```python
import torch

def _softmax(x, axis=-1):
    return torch.softmax(x, dim=axis)
def _gelu(x):
    return torch.nn.functional.gelu(x, approximate="tanh")
def _silu(x):
    return torch.nn.functional.silu(x)
def _sigmoid(x):
    return torch.sigmoid(x)
def _layernorm(x, axis=-1, eps=1e-5):
    m = x.mean(dim=axis, keepdim=True)
    v = x.var(dim=axis, keepdim=True, unbiased=False)
    return (x - m) / torch.sqrt(v + eps)
def _scatter_add(tgt, idx, src, axis=0):
    return tgt.clone().index_add_(axis, idx, src)
def _segment_sum(src, seg, n):
    out = torch.zeros((n,) + src.shape[1:], dtype=src.dtype)
    return out.index_add_(0, seg, src)
def _pad(x, pw):
    flat = tuple(v for pair in reversed(pw) for v in pair)
    return torch.nn.functional.pad(x, flat)

kernel_name = 'gated_mix__ssm_conv_s4__glu_gated_bilinear__prompt'

def setup_inputs():

    _w = (lambda a: (lambda t: t.to(torch.bfloat16) if t.is_floating_point() else t)(torch.as_tensor(a)))
    def _A_setup():
        B, L, D, N = 1, 2048, 448, 256
        A_re = -(lambda _x: torch.exp(torch.as_tensor(_x)))((lambda *s: torch.randn(*s, dtype=torch.bfloat16) * 3.2)(D, N))
        A_im = torch.pi * (lambda *s: torch.randn(*s, dtype=torch.bfloat16) * 0.05)(D, N)
        B_re = (lambda *s: torch.randn(*s, dtype=torch.bfloat16) * 0.05)(D, N)
        B_im = (lambda *s: torch.randn(*s, dtype=torch.bfloat16) * 0.05)(D, N)
        C_re = (lambda *s: torch.randn(*s, dtype=torch.bfloat16) * 0.05)(D, N)
        C_im = (lambda *s: torch.randn(*s, dtype=torch.bfloat16) * 0.1)(D, N)
        log_dt = (lambda *s: torch.randn(*s, dtype=torch.bfloat16) * 0.05)(D) * 0.5 - 4.0
        Dskip = (lambda *s: torch.randn(*s, dtype=torch.bfloat16) * 0.05)(D)
        return {
            "u": _w((lambda *s: torch.randn(*s, dtype=torch.bfloat16) * 0.05)(B, L, D)),
            "A_re": _w(A_re),
            "A_im": _w(A_im),
            "B_re": _w(B_re),
            "B_im": _w(B_im),
            "C_re": _w(C_re),
            "C_im": _w(C_im),
            "log_dt": _w(log_dt),
            "Dskip": _w(Dskip),
        }
    _A_in = _A_setup()

    def _B_setup():
        B, S, D, F = 1, 2048, 448, 1792
        return {
            "x": _w((lambda *s: torch.randn(*s, dtype=torch.bfloat16) * 0.05)(B, S, D)),
            "w_gate": _w((lambda *s: torch.randn(*s, dtype=torch.bfloat16) * 0.8)(D, F) * (D ** -0.5)),
            "w_up": _w((lambda *s: torch.randn(*s, dtype=torch.bfloat16) * 0.8)(D, F) * (D ** -0.5)),
            "w_down": _w((lambda *s: torch.randn(*s, dtype=torch.bfloat16) * 0.8)(F, D) * (F ** -0.5)),
        }
    _B_in = _B_setup()

    return {
        "A_u": _A_in["u"],
        "A_A_re": _A_in["A_re"],
        "A_A_im": _A_in["A_im"],
        "A_B_re": _A_in["B_re"],
        "A_B_im": _A_in["B_im"],
        "A_C_re": _A_in["C_re"],
        "A_C_im": _A_in["C_im"],
        "A_log_dt": _A_in["log_dt"],
        "A_Dskip": _A_in["Dskip"],
        "B_x": _B_in["x"],
        "B_w_gate": _B_in["w_gate"],
        "B_w_up": _B_in["w_up"],
        "B_w_down": _B_in["w_down"],
        "gate_w": _w((lambda *s: torch.randn(*s, dtype=torch.bfloat16) * 0.05)(448) * 16.0),
    }

def reference(A_u, A_A_re, A_A_im, A_B_re, A_B_im, A_C_re, A_C_im, A_log_dt, A_Dskip, B_x, B_w_gate, B_w_up, B_w_down, gate_w):
    def _A_ref(u, A_re, A_im, B_re, B_im, C_re, C_im, log_dt, Dskip):
        Bsz, L, D = u.shape
        dt = torch.exp(log_dt)[:, None]
        A = A_re + 1j * A_im
        Bc = B_re + 1j * B_im
        Cc = C_re + 1j * C_im
        logdA = dt * A
        dB = dt * Bc
        l = (lambda x, dt: x.to(dt))(torch.arange(L), A_re.dtype)
        P = torch.exp(logdA[:, :, None] * l[None, None, :])
        K = torch.einsum("dn,dnl,dn->dl", Cc, P, dB).real
        L2 = 2 * L
        Kp = _pad(K, ((0, 0), (0, L)))
        up = (lambda x, *d: x.permute(*d))(u, 0, 2, 1)
        up = _pad(up, ((0, 0), (0, 0), (0, L)))
        Kf = (lambda x, axes=(-2,-1): torch.fft.rfft2(x.float(), dim=axes))(Kp[:, None, :], axes=(-2, -1))
        Uf = (lambda x, axes=(-2,-1): torch.fft.rfft2(x.float(), dim=axes))(up[:, :, None, :], axes=(-2, -1))
        Yf = Uf * Kf[None, :, :, :]
        y = (lambda x, s, axes=(-2,-1): torch.fft.irfft2(x, s=s, dim=axes).to(torch.bfloat16))(Yf, (1, L2), axes=(-2, -1))[:, :, 0, :L]
        y = (lambda x, *d: x.permute(*d))(y, 0, 2, 1) + u * Dskip[None, None, :]
        return y

    def _B_ref(x, w_gate, w_up, w_down):
        g = torch.einsum("bsd,df->bsf", x, w_gate)
        u = torch.einsum("bsd,df->bsf", x, w_up)
        h = g * u
        return torch.einsum("bsf,fd->bsd", h, w_down)

    x = A_u
    g = _sigmoid((x * gate_w).sum(-1, keepdims=True))
    a = _A_ref(x, A_A_re, A_A_im, A_B_re, A_B_im, A_C_re, A_C_im, A_log_dt, A_Dskip)
    b = _B_ref(x, B_w_gate, B_w_up, B_w_down)
    return g * a + (1 - g) * b
```

```python
class Asm:
    def __init__(self):
        self.L = []
    def __call__(self, s=""):
        for line in s.split("\n"):
            line = line.strip()
            if line:
                self.L.append("    " + line)
    def label(self, n):
        self.L.append(n + ":")
    def c(self, s):
        self.L.append("    ; " + s)
    def text(self):
        return "\n".join(self.L)

def vr(a, n=1):
    return f"v{a}" if n == 1 else f"v[{a}:{a+n-1}]"
def sr(a, n=1):
    return f"s{a}" if n == 1 else f"s[{a}:{a+n-1}]"

KA = dict(u=0, are=8, aim=16, bre=24, bim=32, cre=40, cim=48, ldt=56, dskip=64, bx=72, wg=80, wu=88, wd=96, gw=104, out=112, dbg=120, ws=128)

WS_H  = 0x000000; SZ_H = 2048*1792*2
WS_UT = 0x700000; SZ_UT = 448*2048*2
WS_AT = 0x8C0000; SZ_AT = 448*2048*2
WS_KX = 0xA80000; KX_ROW = 2112*2; SZ_KX = 448*2*KX_ROW
WS_G  = 0xE20000; SZ_G = 2048*4

def srd_from(a, dst, src, size, off=0):
    if off:
        a(f"s_add_u32 s{dst}, s{src}, {off}")
        a(f"s_addc_u32 s{dst+1}, s{src+1}, 0")
    else:
        a(f"s_mov_b32 s{dst}, s{src}")
        a(f"s_mov_b32 s{dst+1}, s{src+1}")
    a(f"s_mov_b32 s{dst+2}, {size}")
    a(f"s_mov_b32 s{dst+3}, 0x20000")

def kdesc(name, vgpr, sgpr=102, accum=None):
    accum = accum or ((vgpr + 3) // 4 * 4)
    return f""".section .rodata,"a"
.p2align 6
.amdhsa_kernel {name}
  .amdhsa_next_free_vgpr {vgpr}
  .amdhsa_next_free_sgpr {sgpr}
  .amdhsa_accum_offset {accum}
  .amdhsa_group_segment_fixed_size 0
  .amdhsa_kernarg_size 136
  .amdhsa_user_sgpr_count 2
  .amdhsa_user_sgpr_kernarg_segment_ptr 1
  .amdhsa_system_sgpr_workgroup_id_x 1
  .amdhsa_float_denorm_mode_32 3
.end_amdhsa_kernel
.text
"""

WS_STAMP = 0x2000000
class Stamps:
    def __init__(self, a, base, on):
        self.a, self.base, self.on, self.n = a, base, on, 0
    def stamp(self, real=False):
        if not self.on: return
        self.a(f"s_mem{'real' if real else ''}time s[{self.base+2*self.n}:{self.base+2*self.n+1}]")
        self.n += 1
    def flush(self, wave_sgpr, tmp0=92):
        if not self.on: return
        a = self.a
        a("s_waitcnt lgkmcnt(0) vmcnt(0)")
        a(f"s_load_dwordx2 s[{tmp0}:{tmp0+1}], s[0:1], {KA['ws']}")
        a("s_waitcnt lgkmcnt(0)")
        a(f"s_add_u32 s{tmp0}, s{tmp0}, {WS_STAMP}")
        a(f"s_addc_u32 s{tmp0+1}, s{tmp0+1}, 0")
        a(f"s_mov_b32 s{tmp0+2}, 0x100000")
        a(f"s_mov_b32 s{tmp0+3}, 0x20000")
        a(f"s_lshl_b32 s{tmp0+4}, s2, 8")
        a(f"s_lshl_b32 s{tmp0+5}, s{wave_sgpr}, 6")
        a(f"s_add_u32 s{tmp0+4}, s{tmp0+4}, s{tmp0+5}")
        a(f"v_mov_b32 v250, 0")
        for k in range(self.n):
            a(f"v_mov_b32 v251, s{self.base+2*k}")
            a(f"buffer_store_dword v251, v250, s[{tmp0}:{tmp0+3}], s{tmp0+4} offen offset:{4*k}")
        a("s_waitcnt vmcnt(0)")

FLAG_AUX = 0
FLAG_H = 16
FLAG_A = 128
```

```python
from asmlib import *

USE_DOT2 = False
def aux(a, s_ax, flags=True, stamps=False):
    S_W = 4; S_T0 = 5
    SRD_X = 8; SRD_GW = 12; SRD_UT = 16; SRD_G = 20
    S_TMP = 24; S_TMP2 = 25; S_XOFF = 26; S_XL = 27
    P0 = 28
    a.c("---- aux role ----")
    a(f"s_lshl_b32 s{S_T0}, s{s_ax}, 6")
    a(f"s_load_dwordx2 s[{P0}:{P0+1}], s[0:1], {KA['u']}")
    a(f"s_load_dwordx2 s[{P0+2}:{P0+3}], s[0:1], {KA['ws']}")
    a(f"s_load_dwordx2 s[{P0+4}:{P0+5}], s[0:1], {KA['gw']}")
    a(f"s_load_dwordx2 s[{P0+6}:{P0+7}], s[0:1], {KA['dbg']}")
    a("v_lshrrev_b32 v1, 6, v0")
    a("v_and_b32 v0, 63, v0")
    a(f"v_readfirstlane_b32 s{S_W}, v1")
    a("v_lshrrev_b32 v10, 4, v0")
    a("v_lshrrev_b32 v11, 3, v0")
    a("v_mul_u32_u24 v11, 896, v11")
    a("v_and_b32 v12, 7, v0")
    a("v_xor_b32 v13, v12, v10")
    a("v_lshlrev_b32 v13, 4, v13")
    a("v_add_u32 v2, v11, v13")
    a("v_xor_b32 v13, 64, v13")
    a("v_add_u32 v3, v11, v13")
    a("v_and_b32 v4, 3, v0")
    a("v_lshlrev_b32 v4, 5, v4")
    a("s_waitcnt lgkmcnt(0)")
    srd_from(a, SRD_X, P0, 2048*448*2)
    srd_from(a, SRD_GW, P0+4, 448*2)
    srd_from(a, SRD_UT, P0+2, SZ_UT, WS_UT)
    srd_from(a, SRD_G, P0+2, SZ_G, WS_G)
    a(f"s_lshl_b32 s{S_TMP}, s{S_W}, 4")
    a(f"s_add_u32 s{S_XOFF}, s{S_T0}, s{S_TMP}")
    a(f"s_mul_i32 s{S_XOFF}, s{S_XOFF}, 896")
    a(f"s_lshl_b32 s{S_XL}, s{S_W}, 11")
    for k in range(7):
        for i in range(2):
            a(f"s_add_u32 m0, s{S_XL}, {k*8192 + i*1024}")
            a(f"s_add_u32 s{S_TMP}, s{S_XOFF}, {8*i*896 + 128*k}")
            a(f"buffer_load_dwordx4 v{2+i}, s[{SRD_X}:{SRD_X+3}], s{S_TMP} offen lds")
    GW = 64
    for k in range(7):
        for i in range(2):
            a(f"buffer_load_dwordx4 v[{GW+8*k+4*i}:{GW+8*k+4*i+3}], v4, s[{SRD_GW}:{SRD_GW+3}], 0 offen offset:{128*k + 16*i}")
    a("v_lshrrev_b32 v10, 4, v0")
    a("v_lshrrev_b32 v11, 2, v0")
    a("v_and_b32 v11, 3, v11")
    a("v_and_b32 v12, 3, v0")
    a("v_lshlrev_b32 v13, 3, v10")
    a("v_add_u32 v13, v13, v11")
    a("v_lshlrev_b32 v13, 7, v13")
    a("v_and_b32 v14, 1, v12")
    a("v_lshlrev_b32 v14, 3, v14")
    a("v_add_u32 v13, v13, v14")
    a("v_lshrrev_b32 v14, 1, v12")
    a(f"s_lshl_b32 s{S_TMP}, s{S_W}, 1")
    a(f"v_add_u32 v14, s{S_TMP}, v14")
    a("v_and_b32 v15, 1, v10")
    a("v_lshlrev_b32 v15, 2, v15")
    a("v_lshrrev_b32 v16, 1, v11")
    a("v_add_u32 v15, v15, v16")
    a("v_xor_b32 v14, v14, v15")
    a("v_lshlrev_b32 v16, 4, v14")
    a("v_add_u32 v5, v13, v16")
    a("v_xor_b32 v14, 2, v14")
    a("v_lshlrev_b32 v16, 4, v14")
    a("v_add_u32 v6, v13, v16")
    a("v_add_u32 v6, 512, v6")
    STG = 57344
    a("v_and_b32 v10, 15, v0")
    a("v_lshrrev_b32 v11, 4, v0")
    a("v_and_b32 v12, 7, v10")
    a("v_xor_b32 v12, v12, v11")
    a("v_lshlrev_b32 v13, 7, v10")
    a(f"s_lshl_b32 s{S_TMP}, s{S_W}, 11")
    a(f"s_add_u32 s{S_TMP}, s{S_TMP}, {STG}")
    a(f"v_add_u32 v13, s{S_TMP}, v13")
    a("v_lshlrev_b32 v14, 4, v12")
    a("v_add_u32 v7, v13, v14")
    a("v_xor_b32 v14, 64, v14")
    a("v_add_u32 v8, v13, v14")
    a("v_lshlrev_b32 v9, 4, v0")
    a(f"v_add_u32 v9, s{S_TMP}, v9")
    a("v_lshrrev_b32 v10, 3, v0")
    a("v_and_b32 v11, 7, v0")
    a("v_xor_b32 v11, v11, v10")
    a("v_lshlrev_b32 v11, 4, v11")
    a("v_lshlrev_b32 v10, 12, v10")
    a("v_add_u32 v17, v10, v11")
    a(f"s_lshl_b32 s{S_XOFF}, s{S_W}, 16")
    a(f"s_lshl_b32 s{S_TMP}, s{S_T0}, 1")
    a(f"s_add_u32 s{S_XOFF}, s{S_XOFF}, s{S_TMP}")
    a("v_lshrrev_b32 v10, 2, v0")
    a(f"s_lshl_b32 s{S_TMP}, s{S_W}, 4")
    a(f"v_add_u32 v10, s{S_TMP}, v10")
    a("v_lshrrev_b32 v11, 1, v10")
    a("v_and_b32 v11, 7, v11")
    a("v_and_b32 v12, 3, v0")
    a("v_lshlrev_b32 v12, 1, v12")
    a("v_xor_b32 v12, v12, v11")
    a("v_lshlrev_b32 v13, 7, v10")
    a("v_lshlrev_b32 v14, 4, v12")
    a("v_add_u32 v18, v13, v14")
    a("v_xor_b32 v14, 16, v14")
    a("v_add_u32 v19, v13, v14")
    a("s_waitcnt vmcnt(0)")
    a("s_barrier")
    for k in range(7):
        b = 24 + 8*(k % 2)
        for o in range(2):
            a(f"ds_read_b64_tr_b16 v[{b+4*o}:{b+4*o+1}], v5 offset:{k*8192 + o*4096}")
            a(f"ds_read_b64_tr_b16 v[{b+4*o+2}:{b+4*o+3}], v6 offset:{k*8192 + o*4096}")
        a("s_waitcnt lgkmcnt(0)")
        a(f"ds_write_b128 v7, v[{b}:{b+3}]")
        a(f"ds_write_b128 v8, v[{b+4}:{b+7}]")
        a("s_waitcnt lgkmcnt(0)")
        c = 40 + 8*(k % 2)
        a(f"ds_read_b128 v[{c}:{c+3}], v9")
        a(f"ds_read_b128 v[{c+4}:{c+7}], v9 offset:1024")
        a("s_waitcnt lgkmcnt(0)")
        for i in range(2):
            a(f"s_add_u32 s{S_TMP}, s{S_XOFF}, {(64*k + 8*i)*4096}")
            a(f"buffer_store_dwordx4 v[{c+4*i}:{c+4*i+3}], v17, s[{SRD_UT}:{SRD_UT+3}], s{S_TMP} offen sc1")
    a("v_mov_b32 v20, 0")
    a("s_mov_b32 s36, 0xffff0000")
    a("s_mov_b32 s37, 0x3f803f80")
    for k in range(7):
        a(f"ds_read_b128 v[56:59], v18 offset:{k*8192}")
        a(f"ds_read_b128 v[60:63], v19 offset:{k*8192}")
        a("s_waitcnt lgkmcnt(0)")
        for j in range(8):
            x = 56 + j; g = GW + 8*k + j
            a(f"v_lshlrev_b32 v21, 16, v{x}")
            a(f"v_and_b32 v22, s36, v{x}")
            a(f"v_lshlrev_b32 v23, 16, v{g}")
            a(f"v_and_b32 v{g}, s36, v{g}")
            a(f"v_mul_f32 v21, v21, v23")
            a(f"v_mul_f32 v22, v22, v{g}")
            a(f"v_cvt_pk_bf16_f32 v21, v21, v22")
            if USE_DOT2:
                a(f"v_dot2_f32_bf16 v20, v21, s37, v20")
            else:
                a(f"v_lshlrev_b32 v22, 16, v21")
                a(f"v_and_b32 v21, s36, v21")
                a(f"v_add_f32 v20, v20, v22")
                a(f"v_add_f32 v20, v20, v21")
    a("s_nop 3")
    a("v_add_f32_dpp v20, v20, v20 quad_perm:[1,0,3,2] row_mask:0xf bank_mask:0xf")
    a("s_nop 1")
    a("v_add_f32_dpp v20, v20, v20 quad_perm:[2,3,0,1] row_mask:0xf bank_mask:0xf")
    a("v_cvt_pk_bf16_f32 v20, v20, v20")
    a("v_lshlrev_b32 v20, 16, v20")
    a("v_mul_f32 v20, 0xbfb8aa3b, v20")
    a("v_exp_f32 v20, v20")
    a("s_nop 0")
    a("v_add_f32 v20, 1.0, v20")
    a("v_rcp_f32 v20, v20")
    a("s_nop 0")
    a("v_cvt_pk_bf16_f32 v20, v20, v20")
    a("v_lshlrev_b32 v20, 16, v20")
    a("v_lshrrev_b32 v10, 2, v0")
    a("v_lshlrev_b32 v10, 2, v10")
    a(f"s_lshl_b32 s{S_TMP}, s{S_W}, 4")
    a(f"s_add_u32 s{S_TMP}, s{S_TMP}, s{S_T0}")
    a(f"s_lshl_b32 s{S_TMP}, s{S_TMP}, 2")
    a("v_and_b32 v11, 3, v0")
    a("v_cmp_eq_u32 vcc, 0, v11")
    a("s_and_saveexec_b64 s[38:39], vcc")
    a(f"buffer_store_dword v20, v10, s[{SRD_G}:{SRD_G+3}], s{S_TMP} offen sc1")
    a("s_mov_b64 exec, s[38:39]")
    a("s_waitcnt vmcnt(0)")
    if flags:
        a("s_barrier")
        a(f"s_cmp_lg_u32 s{S_W}, 0")
        a("s_cbranch_scc1 aux_done")
        a("v_mov_b32 v10, 0")
        a("v_mov_b32 v11, 1")
        a("s_mov_b64 exec, 1")
        a(f"global_atomic_add v10, v11, s[{P0+6}:{P0+7}] offset:{FLAG_AUX} sc1")
        a("s_waitcnt vmcnt(0)")
        a("s_mov_b64 exec, -1")
        a.label("aux_done")
```

```python
from asmlib import *

G1_LDS = 114688
def gemm1(a, exact_round=True, stamps=False, mode=0):
    S_W = 4
    S_T0 = 5; S_F0 = 6
    SRD_X = 8; SRD_W = 12; SRD_H = 16
    S_XOFF = 20
    S_WOFF = 21
    S_XL = 22
    S_WL = 23
    S_TMP = 24; S_TMP2 = 25
    P0 = 28
    a.c("---- GEMM1 role ----")
    st = Stamps(a, 60, stamps)
    st.stamp(real=True); st.stamp()
    a(f"s_load_dwordx2 s[{P0}:{P0+1}], s[0:1], {KA['u']}")
    a(f"s_load_dwordx4 s[{P0+4}:{P0+7}], s[0:1], {KA['wg']}")
    a(f"s_load_dwordx2 s[{P0+2}:{P0+3}], s[0:1], {KA['ws']}")
    a("v_lshrrev_b32 v1, 6, v0")
    a("v_and_b32 v0, 63, v0")
    a(f"v_readfirstlane_b32 s{S_W}, v1")
    a(f"s_and_b32 s{S_TMP}, s2, 7")
    a(f"s_lshr_b32 s{S_TMP2}, s2, 3")
    a(f"s_mul_i32 s{S_T0}, s{S_TMP2}, 37")
    a(f"s_lshr_b32 s{S_T0}, s{S_T0}, 8")
    a(f"s_mul_i32 s{S_F0}, s{S_T0}, 7")
    a(f"s_sub_u32 s{S_F0}, s{S_TMP2}, s{S_F0}")
    a(f"s_lshr_b32 s{S_TMP2}, s{S_TMP}, 1")
    a(f"s_lshl_b32 s{S_TMP2}, s{S_TMP2}, 2")
    a(f"s_add_u32 s{S_T0}, s{S_T0}, s{S_TMP2}")
    a(f"s_lshl_b32 s{S_T0}, s{S_T0}, 7")
    a(f"s_and_b32 s{S_TMP}, s{S_TMP}, 1")
    a(f"s_mul_i32 s{S_TMP}, s{S_TMP}, 7")
    a(f"s_add_u32 s{S_F0}, s{S_F0}, s{S_TMP}")
    a(f"s_lshl_b32 s{S_F0}, s{S_F0}, 7")
    V_DW = 2; V_DX0 = 3; V_DX1 = 4
    a("v_lshrrev_b32 v10, 4, v0")
    a("v_and_b32 v11, 15, v0")
    a("v_lshlrev_b32 v12, 1, v10")
    a("v_xor_b32 v11, v11, v12")
    a(f"s_lshr_b32 s{S_TMP}, s{S_W}, 1")
    a(f"s_lshl_b32 s{S_TMP2}, s{S_TMP}, 3")
    a(f"v_xor_b32 v11, s{S_TMP2}, v11")
    a("v_lshlrev_b32 v11, 4, v11")
    a("v_mul_u32_u24 v12, 3584, v10")
    a(f"v_add_u32 v{V_DW}, v11, v12")
    a("v_lshrrev_b32 v11, 3, v0")
    a("v_mul_u32_u24 v11, 896, v11")
    a("v_and_b32 v12, 7, v0")
    a("v_xor_b32 v13, v12, v10")
    a("v_lshlrev_b32 v13, 4, v13")
    a(f"v_add_u32 v{V_DX0}, v11, v13")
    a("v_xor_b32 v13, 64, v13")
    a(f"v_add_u32 v{V_DX1}, v11, v13")
    a("s_waitcnt lgkmcnt(0)")
    srd_from(a, SRD_X, P0, 2048*448*2)
    a(f"s_cmp_eq_u32 s{S_TMP}, 0")
    a(f"s_cselect_b32 s{SRD_W}, s{P0+4}, s{P0+6}")
    a(f"s_cselect_b32 s{SRD_W+1}, s{P0+5}, s{P0+7}")
    a(f"s_mov_b32 s{SRD_W+2}, {448*1792*2}")
    a(f"s_mov_b32 s{SRD_W+3}, 0x20000")
    srd_from(a, SRD_H, P0+2, SZ_H, WS_H)
    a(f"s_lshl_b32 s{S_TMP2}, s{S_W}, 5")
    a(f"s_add_u32 s{S_XOFF}, s{S_T0}, s{S_TMP2}")
    a(f"s_mul_i32 s{S_XOFF}, s{S_XOFF}, 896")
    a(f"s_lshl_b32 s{S_XL}, s{S_W}, 12")
    a(f"s_add_u32 s{S_XL}, s{S_XL}, 65536")
    a(f"s_and_b32 s{S_TMP2}, s{S_W}, 1")
    a(f"s_mul_i32 s{S_WOFF}, s{S_TMP2}, {16*3584}")
    a(f"s_lshl_b32 s{S_WL}, s{S_F0}, 1")
    a(f"s_add_u32 s{S_WOFF}, s{S_WOFF}, s{S_WL}")
    a(f"s_lshl_b32 s{S_WL}, s{S_TMP}, 13")
    a(f"s_lshl_b32 s{S_TMP2}, s{S_TMP2}, 12")
    a(f"s_add_u32 s{S_WL}, s{S_WL}, s{S_TMP2}")

    vm = []
    def dma_w(u):
        for i in range(4):
            a(f"s_add_u32 m0, s{S_WL}, {(u % 4)*16384 + i*1024}")
            a(f"s_add_u32 s{S_TMP}, s{S_WOFF}, {(32*u + 4*i)*3584}")
            a(f"buffer_load_dwordx4 v{V_DW}, s[{SRD_W}:{SRD_W+3}], s{S_TMP} offen lds")
        vm.append(("W", u))
    def dma_x(v):
        for i in range(4):
            a(f"s_add_u32 m0, s{S_XL}, {(v % 3)*16384 + i*1024}")
            a(f"s_add_u32 s{S_TMP}, s{S_XOFF}, {8*i*896 + 128*v}")
            a(f"buffer_load_dwordx4 v{V_DX0 + (i & 1)}, s[{SRD_X}:{SRD_X+3}], s{S_TMP} offen lds")
        vm.append(("X", v))
    def wait_for(needs):
        last = max(vm.index(n) for n in needs)
        n = sum((3 if g[0] == "P" else 4) for g in vm[last+1:])
        a(f"s_waitcnt vmcnt({n})")
    if mode >= 4:
        dma_x(0); dma_w(0); dma_w(1); dma_x(1); dma_w(2); dma_w(3); dma_x(2)
    else:
        dma_x(0); dma_w(0); dma_w(1); dma_w(2); dma_x(1)
    if mode == 5:
        a(f"s_lshr_b32 s{S_TMP}, s{S_T0}, 7")
        a(f"s_and_b32 s{S_TMP}, s{S_TMP}, 3")
        a(f"s_mul_i32 s{S_TMP}, s{S_TMP}, 112")
        a(f"s_and_b32 s{S_TMP2}, s{S_W}, 1")
        a(f"s_mul_i32 s{S_TMP2}, s{S_TMP2}, 56")
        a(f"s_add_u32 s{S_TMP}, s{S_TMP}, s{S_TMP2}")
        a(f"s_mul_i32 s{S_TMP}, s{S_TMP}, 3584")
        a(f"s_lshl_b32 s{S_TMP2}, s{S_F0}, 1")
        a(f"s_add_u32 s{S_TMP}, s{S_TMP}, s{S_TMP2}")
        a("v_lshrrev_b32 v10, 1, v0")
        a("v_and_b32 v11, 1, v0")
        a("v_lshlrev_b32 v11, 7, v11")
        a("v_mul_u32_u24 v12, 3584, v10")
        a("v_add_u32 v12, v12, v11")
        a(f"buffer_load_dword v21, v12, s[{SRD_W}:{SRD_W+3}], s{S_TMP} offen")
        a("v_add_u32 v10, 32, v10")
        a("v_min_u32 v10, 55, v10")
        a("v_mul_u32_u24 v12, 3584, v10")
        a("v_add_u32 v12, v12, v11")
        a(f"buffer_load_dword v22, v12, s[{SRD_W}:{SRD_W+3}], s{S_TMP} offen")
        a(f"s_lshr_b32 s{S_TMP}, s{S_F0}, 7")
        a(f"s_cmp_ge_u32 s{S_TMP}, 7")
        a(f"s_cselect_b32 s{S_TMP2}, 7, 0")
        a(f"s_sub_u32 s{S_TMP}, s{S_TMP}, s{S_TMP2}")
        a(f"s_lshl_b32 s{S_TMP}, s{S_TMP}, 7")
        a(f"s_add_u32 s{S_TMP}, s{S_TMP}, s{S_XOFF}")
        a("v_and_b32 v10, 31, v0")
        a("v_mul_u32_u24 v12, 896, v10")
        a(f"buffer_load_dword v23, v12, s[{SRD_X}:{SRD_X+3}], s{S_TMP} offen")
        vm.append(("P", 0)); PRE_N = 3
    V_AW = 5
    V_AX = 14
    a("v_lshrrev_b32 v10, 4, v0")
    a("v_lshrrev_b32 v11, 2, v0")
    a("v_and_b32 v11, 3, v11")
    a("v_and_b32 v12, 3, v0")
    a("v_lshrrev_b32 v13, 1, v10")
    a("v_and_b32 v10, 1, v10")
    a("v_lshlrev_b32 v18, 13, v10")
    a("v_lshlrev_b32 v19, 3, v13")
    a("v_add_u32 v19, v19, v11")
    a("v_lshlrev_b32 v19, 8, v19")
    a("v_add_u32 v18, v18, v19")
    a("v_lshrrev_b32 v19, 1, v12")
    a("v_lshlrev_b32 v19, 3, v19")
    a("v_add_u32 v18, v18, v19")
    a("v_and_b32 v19, 1, v12")
    a("v_lshlrev_b32 v20, 1, v11")
    a("v_xor_b32 v19, v19, v20")
    a("v_lshlrev_b32 v20, 3, v10")
    a("v_xor_b32 v19, v19, v20")
    a(f"s_lshr_b32 s{S_TMP}, s{S_W}, 1")
    a(f"s_lshl_b32 s{S_TMP}, s{S_TMP}, 3")
    for rb in range(4):
        a(f"s_add_u32 s{S_TMP2}, s{S_TMP}, {rb*2}")
        a(f"v_xor_b32 v20, s{S_TMP2}, v19")
        a("v_lshlrev_b32 v20, 4, v20")
        a(f"v_add_u32 v{V_AW+rb}, v18, v20")
    a("v_and_b32 v10, 31, v0")
    a("v_lshrrev_b32 v11, 5, v0")
    a("v_lshrrev_b32 v12, 1, v10")
    a("v_and_b32 v12, 7, v12")
    a("v_xor_b32 v12, v12, v11")
    a(f"s_and_b32 s{S_TMP}, s{S_W}, 1")
    a(f"s_lshl_b32 s{S_TMP}, s{S_TMP}, 13")
    a(f"s_add_u32 s{S_TMP}, s{S_TMP}, 65536")
    a("v_lshlrev_b32 v10, 7, v10")
    a(f"v_add_u32 v10, s{S_TMP}, v10")
    for ks in range(4):
        a(f"v_xor_b32 v13, {2*ks}, v12")
        a("v_lshlrev_b32 v13, 4, v13")
        a(f"v_add_u32 v{V_AX+ks}, v10, v13")

    FR = [24, 48]
    ACC = 128
    def acc(rb, cb): return ACC + 16*(rb*2 + cb)
    def reads(step):
        u = step // 2; s = step % 2; v = step // 4; ks = step % 4
        fb = FR[step % 2]
        R = []
        def ra(rb):
            for h2 in range(2):
                R.append(f"ds_read_b64_tr_b16 v[{fb+4*rb+2*h2}:{fb+4*rb+2*h2+1}], v{V_AW+rb} offset:{(u%4)*16384 + (16*s+4*h2)*256}")
        def rbb(cb):
            R.append(f"ds_read_b128 v[{fb+16+4*cb}:{fb+16+4*cb+3}], v{V_AX+ks} offset:{(v%3)*16384 + cb*4096}")
        rbb(0); ra(0); ra(1); rbb(1); ra(2); ra(3)
        return R
    def mfmas(step):
        fb = FR[step % 2]
        M = []
        for (rb, cb) in [(0,0),(1,0),(0,1),(1,1),(2,0),(2,1),(3,0),(3,1)]:
            c = "0" if step == 0 else f"v[{acc(rb,cb)}:{acc(rb,cb)+15}]"
            M.append(f"v_mfma_f32_32x32x16_bf16 v[{acc(rb,cb)}:{acc(rb,cb)+15}], v[{fb+4*rb}:{fb+4*rb+3}], v[{fb+16+4*cb}:{fb+16+4*cb+3}], {c}")
        return M

    st.stamp()
    wait_for([("X",0),("W",0)] if mode >= 4 else [("X",0),("W",0),("W",1)])
    a("s_barrier")
    st.stamp()
    for r in reads(0): a(r)
    def dma_instrs(d):
        kind, idx = d
        out = []
        for i in range(4):
            if kind == "W":
                out.append([f"s_add_u32 m0, s{S_WL}, {(idx % 4)*16384 + i*1024}",
                            f"s_add_u32 s{S_TMP}, s{S_WOFF}, {(32*idx + 4*i)*3584}",
                            f"buffer_load_dwordx4 v{V_DW}, s[{SRD_W}:{SRD_W+3}], s{S_TMP} offen lds"])
            else:
                out.append([f"s_add_u32 m0, s{S_XL}, {(idx % 3)*16384 + i*1024}",
                            f"s_add_u32 s{S_TMP}, s{S_XOFF}, {8*i*896 + 128*idx}",
                            f"buffer_load_dwordx4 v{V_DX0 + (i & 1)}, s[{SRD_X}:{SRD_X+3}], s{S_TMP} offen lds"])
        vm.append(d)
        return out
    def main_mid():
        for u in range(14):
            for s in range(2):
                step = 2*u + s
                a("s_waitcnt lgkmcnt(0)")
                D = []
                if s == 1:
                    need = []
                    if u + 1 < 14: need = [("W", u+1), ("X", (u+1)//2)]
                    if need: wait_for(need)
                    a("s_barrier")
                    dmas = []
                    if u + 4 < 14: dmas.append(("W", u+4))
                    if u % 2 == 1 and (u//2) + 3 < 7: dmas.append(("X", u//2 + 3))
                    for d in dmas: D += dma_instrs(d)
                    pend[:] = D
                M = mfmas(step)
                R = reads(step + 1) if step + 1 < 28 else []
                ri = 0
                for mi, m in enumerate(M):
                    a(m)
                    if pend and (mi % 2 == 1 or len(pend) > 4 + (0 if s == 1 else -4) + 4):
                        pass
                    if pend and mi % 2 == 1:
                        for line in pend.pop(0): a(line)
                    for _ in range(2):
                        if ri < len(R):
                            a(R[ri]); ri += 1

    pend = []
    if mode >= 4:
        main_mid()
    else:
        for u in range(14):
            if u > 0:
                need = []
                if u + 1 < 14: need = [("W", u+1), ("X", (u+1)//2)]
                if need and mode != 1: wait_for(need)
                if mode != 3: a("s_barrier")
            dmas = []
            if u + 3 < 14: dmas.append(("W", u+3))
            if u % 2 == 0 and u//2 + 2 < 7: dmas.append(("X", u//2 + 2))
            D = []
            for d in dmas: D += dma_instrs(d)
            if mode == 1: D = []
            if mode == 0:
                pos = [0]*len(D)
            else:
                pos = [1 + 2*i for i in range(len(D))] if len(D) > 4 else [1 + 4*i for i in range(len(D))]
            for s in range(2):
                step = 2*u + s
                a("s_waitcnt lgkmcnt(0)")
                M = mfmas(step)
                R = reads(step + 1) if step + 1 < 28 else []
                ri = 0
                for mi, m in enumerate(M):
                    a(m)
                    for k, p in enumerate(pos):
                        if p == 8*s + mi:
                            for line in D[k]: a(line)
                    for _ in range(2):
                        if ri < len(R):
                            a(R[ri]); ri += 1
    st.stamp()
    a("s_nop 15")
    a("s_nop 3")
    a("s_barrier")
    a("v_and_b32 v10, 31, v0")
    a("v_lshrrev_b32 v11, 5, v0")
    a("v_and_b32 v12, 7, v10")
    a("v_xor_b32 v12, v12, v11")
    a(f"s_and_b32 s{S_TMP}, s{S_W}, 1")
    a(f"s_lshl_b32 s{S_TMP}, s{S_TMP}, 14")
    a("v_lshlrev_b32 v10, 8, v10")
    a(f"v_add_u32 v10, s{S_TMP}, v10")
    a(f"s_lshr_b32 s{S_TMP}, s{S_W}, 1")
    a(f"s_lshl_b32 s{S_TMP}, s{S_TMP}, 3")
    for rb in range(4):
        a(f"s_add_u32 s{S_TMP2}, s{S_TMP}, {2*rb}")
        a(f"v_xor_b32 v13, s{S_TMP2}, v12")
        a("v_lshlrev_b32 v13, 4, v13")
        a(f"v_add_u32 v{V_AW+rb}, v10, v13")
    a("s_mov_b32 s26, 0xffff0000")
    for rb in range(4):
        for cb in range(2):
            A0 = acc(rb, cb)
            o = 24 + 4*((rb*2+cb) % 2)
            for p in range(4):
                g0, g1, u0, u1 = A0+2*p, A0+2*p+1, A0+8+2*p, A0+8+2*p+1
                if exact_round:
                    a(f"v_cvt_pk_bf16_f32 v32, v{g0}, v{g1}")
                    a(f"v_cvt_pk_bf16_f32 v33, v{u0}, v{u1}")
                    a(f"v_lshlrev_b32 v34, 16, v32")
                    a(f"v_and_b32 v35, s26, v32")
                    a(f"v_lshlrev_b32 v36, 16, v33")
                    a(f"v_and_b32 v37, s26, v33")
                    a(f"v_mul_f32 v34, v34, v36")
                    a(f"v_mul_f32 v35, v35, v37")
                    a(f"v_cvt_pk_bf16_f32 v{o+p}, v34, v35")
                else:
                    a(f"v_mul_f32 v34, v{g0}, v{u0}")
                    a(f"v_mul_f32 v35, v{g1}, v{u1}")
                    a(f"v_cvt_pk_bf16_f32 v{o+p}, v34, v35")
            a(f"ds_write_b128 v{V_AW+rb}, v[{o}:{o+3}] offset:{cb*8192}")
    a("v_lshrrev_b32 v10, 4, v0")
    a("v_and_b32 v11, 15, v0")
    a("v_xor_b32 v12, v11, v10")
    a("v_lshlrev_b32 v12, 4, v12")
    a("v_mul_u32_u24 v13, 3584, v10")
    a("v_add_u32 v2, v12, v13")
    a("v_xor_b32 v12, 64, v12")
    a("v_add_u32 v3, v12, v13")
    a(f"s_lshl_b32 s{S_TMP}, s{S_W}, 13")
    a("v_lshlrev_b32 v4, 4, v0")
    a(f"v_add_u32 v4, s{S_TMP}, v4")
    a(f"s_lshl_b32 s{S_TMP2}, s{S_W}, 5")
    a(f"s_add_u32 s{S_TMP2}, s{S_TMP2}, s{S_T0}")
    a(f"s_mul_i32 s{S_TMP2}, s{S_TMP2}, 3584")
    a(f"s_lshl_b32 s{S_TMP}, s{S_F0}, 1")
    a(f"s_add_u32 s{S_TMP2}, s{S_TMP2}, s{S_TMP}")
    a("s_waitcnt lgkmcnt(0)")
    a("s_barrier")
    for i in range(8):
        a(f"ds_read_b128 v[{24+4*i}:{27+4*i}], v4 offset:{i*1024}")
    for i in range(8):
        a(f"s_waitcnt lgkmcnt({7-i})")
        a(f"s_add_u32 s{S_TMP}, s{S_TMP2}, {4*i*3584}")
        a(f"buffer_store_dwordx4 v[{24+4*i}:{27+4*i}], v{2+(i&1)}, s[{SRD_H}:{SRD_H+3}], s{S_TMP} offen")
    st.stamp()
    if stamps: a("s_waitcnt vmcnt(0)")
    st.stamp(); st.stamp(real=True)
    st.flush(S_W)
    a("s_endpgm")
```

```python
from asmlib import *

NSLOT = 5
def poll(a, name, s_ptr, voff_reg, off, target, s_tmp, vtmp):
    a.label(name)
    a(f"global_load_dword v{vtmp}, v{voff_reg}, s[{s_ptr}:{s_ptr+1}] offset:{off} sc1")
    a("s_waitcnt vmcnt(0)")
    a(f"v_readfirstlane_b32 s{s_tmp}, v{vtmp}")
    a("s_nop 3")
    a(f"s_cmp_ge_u32 s{s_tmp}, {target}")
    a(f"s_cbranch_scc1 {name}_ok")
    a("s_sleep 2")
    a(f"s_branch {name}")
    a.label(name + "_ok")

def gemm2(a, s_tt, s_ct, flags=True, stamps=False, have_wave=False):
    S_W = 4; S_T0 = 5; S_D0 = 6
    SRD_H = 8; SRD_WD = 12; SRD_AT = 16; SRD_O = 20
    S_TMP = 24; S_TMP2 = 25; S_HOFF = 26; S_WOFF = 27
    P0 = 28
    S_L = 36; SRD_G = 40
    st = Stamps(a, 60, stamps)
    a.c("---- GEMM2 role ----")
    st.stamp(real=True); st.stamp()
    a(f"s_load_dwordx2 s[{P0}:{P0+1}], s[0:1], {KA['wd']}")
    a(f"s_load_dwordx2 s[{P0+2}:{P0+3}], s[0:1], {KA['ws']}")
    a(f"s_load_dwordx4 s[{P0+4}:{P0+7}], s[0:1], {KA['out']}")
    if not have_wave:
        a("v_lshrrev_b32 v1, 6, v0")
        a("v_and_b32 v0, 63, v0")
        a(f"v_readfirstlane_b32 s{S_W}, v1")
    a(f"s_lshl_b32 s{S_T0}, s{s_tt}, 6")
    a(f"s_lshl_b32 s{S_D0}, s{s_ct}, 6")
    V_H0, V_H1, V_WD = 2, 3, 4
    a("v_lshrrev_b32 v10, 4, v0")
    a("v_lshrrev_b32 v11, 3, v0")
    a("v_and_b32 v12, 7, v0")
    a("v_xor_b32 v13, v12, v10")
    a("v_lshlrev_b32 v13, 4, v13")
    a("v_mul_u32_u24 v14, 3584, v11")
    a(f"v_add_u32 v{V_H0}, v14, v13")
    a("v_xor_b32 v13, 64, v13")
    a(f"v_add_u32 v{V_H1}, v14, v13")
    a("v_and_b32 v13, 1, v10")
    a("v_lshlrev_b32 v13, 2, v13")
    a("v_xor_b32 v13, v13, v12")
    a("v_lshlrev_b32 v13, 4, v13")
    a("v_mul_u32_u24 v14, 896, v11")
    a(f"v_add_u32 v{V_WD}, v14, v13")
    a("s_waitcnt lgkmcnt(0)")
    srd_from(a, SRD_WD, P0, 1792*448*2)
    srd_from(a, SRD_H, P0+2, SZ_H, WS_H)
    srd_from(a, SRD_AT, P0+2, SZ_AT, WS_AT)
    srd_from(a, SRD_O, P0+4, 2048*448*2)
    srd_from(a, SRD_G, P0+2, SZ_G, WS_G)
    a(f"s_lshl_b32 s{S_TMP}, s{S_W}, 4")
    a(f"s_add_u32 s{S_HOFF}, s{S_T0}, s{S_TMP}")
    a(f"s_mul_i32 s{S_HOFF}, s{S_HOFF}, 3584")
    a(f"s_mul_i32 s{S_WOFF}, s{S_TMP}, 896")
    a(f"s_lshl_b32 s{S_TMP2}, s{S_D0}, 1")
    a(f"s_add_u32 s{S_WOFF}, s{S_WOFF}, s{S_TMP2}")
    a(f"s_lshl_b32 s{S_L}, s{S_W}, 11")
    vm = []
    sc = "sc1" if flags else ""
    def dma(kind, u):
        out = []
        for i in range(2):
            if kind == "H":
                out.append([f"s_add_u32 m0, s{S_L}, {(u % NSLOT)*16384 + i*1024}",
                            f"s_add_u32 s{S_TMP}, s{S_HOFF}, {8*i*3584 + 128*u}",
                            f"buffer_load_dwordx4 v{V_H0+i}, s[{SRD_H}:{SRD_H+3}], s{S_TMP} offen {sc} lds"])
            else:
                out.append([f"s_add_u32 m0, s{S_L}, {(u % NSLOT)*16384 + 8192 + i*1024}",
                            f"s_add_u32 s{S_TMP}, s{S_WOFF}, {(64*u + 8*i)*896}",
                            f"buffer_load_dwordx4 v{V_WD}, s[{SRD_WD}:{SRD_WD+3}], s{S_TMP} offen lds"])
        vm.append((kind, u))
        return out
    def wait_for(needs):
        last = max(vm.index(n) for n in needs)
        a(f"s_waitcnt vmcnt({2*(len(vm) - 1 - last)})")
    for u in range(NSLOT):
        for g in dma("W", u):
            for l in g: a(l)
    V_B = 5; V_A0 = 6; V_A1 = 7
    a("v_and_b32 v10, 31, v0")
    a("v_lshrrev_b32 v11, 5, v0")
    a("v_lshrrev_b32 v12, 1, v10")
    a("v_and_b32 v12, 7, v12")
    a(f"s_lshl_b32 s{S_TMP}, s{S_W}, 1")
    a(f"v_add_u32 v11, s{S_TMP}, v11")
    a("v_xor_b32 v12, v12, v11")
    a("v_lshlrev_b32 v12, 4, v12")
    a("v_lshlrev_b32 v10, 7, v10")
    a(f"v_add_u32 v{V_B}, v10, v12")
    a("v_lshrrev_b32 v10, 4, v0")
    a("v_lshrrev_b32 v11, 2, v0")
    a("v_and_b32 v11, 3, v11")
    a("v_and_b32 v12, 3, v0")
    a("v_lshrrev_b32 v13, 1, v10")
    a("v_lshlrev_b32 v13, 3, v13")
    a("v_add_u32 v13, v13, v11")
    a(f"s_lshl_b32 s{S_TMP}, s{S_W}, 4")
    a(f"v_add_u32 v13, s{S_TMP}, v13")
    a("v_lshlrev_b32 v13, 7, v13")
    a("v_lshrrev_b32 v14, 1, v12")
    a("v_lshlrev_b32 v14, 3, v14")
    a("v_add_u32 v13, v13, v14")
    a("v_add_u32 v13, 8192, v13")
    a("v_and_b32 v14, 1, v10")
    a("v_lshlrev_b32 v14, 1, v14")
    a("v_and_b32 v15, 1, v12")
    a("v_add_u32 v14, v14, v15")
    a("v_lshrrev_b32 v15, 1, v11")
    a("v_lshlrev_b32 v15, 2, v15")
    a("v_xor_b32 v14, v14, v15")
    a("v_lshlrev_b32 v15, 4, v14")
    a(f"v_add_u32 v{V_A0}, v13, v15")
    a("v_xor_b32 v15, 64, v15")
    a(f"v_add_u32 v{V_A1}, v13, v15")
    st.stamp()
    if flags:
        a(f"s_cmp_lg_u32 s{S_W}, 0")
        a("s_cbranch_scc1 g2_hready")
        a(f"s_lshr_b32 s{S_TMP2}, s{S_T0}, 7")
        a(f"s_lshl_b32 s{S_TMP2}, s{S_TMP2}, 2")
        a(f"v_mov_b32 v10, s{S_TMP2}")
        poll(a, "g2_pollh", P0+6, 10, FLAG_H, 14, S_TMP, 11)
        a("v_mov_b32 v10, 0")
        poll(a, "g2_pollx", P0+6, 10, FLAG_AUX, 32, S_TMP, 11)
        a.label("g2_hready")
        a("s_barrier")
        vm.clear(); vm.append(("W", NSLOT-1))
        vm[:] = [("W", u) for u in range(NSLOT)]
    st.stamp()
    for u in range(NSLOT):
        for g in dma("H", u):
            for l in g: a(l)
    V_G = 8
    a("v_and_b32 v10, 31, v0")
    a(f"s_and_b32 s{S_TMP}, s{S_W}, 1")
    a(f"s_lshl_b32 s{S_TMP}, s{S_TMP}, 5")
    a(f"s_add_u32 s{S_TMP}, s{S_TMP}, s{S_T0}")
    a(f"v_add_u32 v10, s{S_TMP}, v10")
    a("v_lshlrev_b32 v10, 2, v10")
    a(f"buffer_load_dword v{V_G}, v10, s[{SRD_G}:{SRD_G+3}], 0 offen {sc}")
    vm.append(("G", 0))
    GPOS = len(vm) - 1
    def wait_for(needs):
        last = max(vm.index(n) for n in needs)
        n = sum((1 if g[0] == "G" else 2) for g in vm[last+1:])
        a(f"s_waitcnt vmcnt({n})")
    FR = [24, 40]
    ACC = 64
    def acc(rb, cb): return ACC + 16*(2*rb + cb)
    a(f"v_add_u32 v16, 0x10000, v{V_B}")
    a(f"v_add_u32 v17, 0x10000, v{V_A0}")
    a(f"v_add_u32 v18, 0x10000, v{V_A1}")
    def reads(u):
        fb = FR[u % 2]; so = (u % NSLOT)*16384
        vb, va0, va1 = V_B, V_A0, V_A1
        if so >= 65536:
            so -= 65536; vb, va0, va1 = 16, 17, 18
        return [f"ds_read_b128 v[{fb+8}:{fb+11}], v{vb} offset:{so}",
                f"ds_read_b64_tr_b16 v[{fb}:{fb+1}], v{va0} offset:{so}",
                f"ds_read_b64_tr_b16 v[{fb+2}:{fb+3}], v{va0} offset:{so+512}",
                f"ds_read_b128 v[{fb+12}:{fb+15}], v{vb} offset:{so+4096}",
                f"ds_read_b64_tr_b16 v[{fb+4}:{fb+5}], v{va1} offset:{so}",
                f"ds_read_b64_tr_b16 v[{fb+6}:{fb+7}], v{va1} offset:{so+512}"]
    wait_for([("W", 0), ("H", 0)])
    a("s_barrier")
    st.stamp()
    for r in reads(0): a(r)
    NS = 28
    for u in range(NS):
        fb = FR[u % 2]
        a("s_waitcnt lgkmcnt(0)")
        if u + 1 < NS: wait_for([("W", u+1), ("H", u+1)])
        a("s_barrier")
        D = []
        if u + NSLOT < NS:
            D = dma("H", u + NSLOT) + dma("W", u + NSLOT)
        R = reads(u + 1) if u + 1 < NS else []
        M = []
        for (rb, cb) in ((0,0),(0,1),(1,0),(1,1)):
            c = "0" if u == 0 else f"v[{acc(rb,cb)}:{acc(rb,cb)+15}]"
            M.append(f"v_mfma_f32_32x32x16_bf16 v[{acc(rb,cb)}:{acc(rb,cb)+15}], v[{fb+4*rb}:{fb+4*rb+3}], v[{fb+8+4*cb}:{fb+8+4*cb+3}], {c}")
        for r in R[:3]: a(r)
        for mi in range(4):
            a(M[mi])
            if mi == 0:
                for r in R[3:]: a(r)
            if D:
                for l in D.pop(0): a(l)
    st.stamp()
    if flags:
        a(f"s_cmp_lg_u32 s{S_W}, 0")
        a("s_cbranch_scc1 g2_aready")
        a(f"s_lshl_b32 s{S_TMP2}, s{s_ct}, 2")
        a(f"v_mov_b32 v10, s{S_TMP2}")
        poll(a, "g2_polla", P0+6, 10, FLAG_A, 32, S_TMP, 11)
        a.label("g2_aready")
    a("s_nop 15")
    a("s_barrier")
    ATL = 65536
    a("v_lshrrev_b32 v10, 3, v0")
    a("v_lshlrev_b32 v10, 12, v10")
    a("v_and_b32 v11, 7, v0")
    a("v_lshlrev_b32 v11, 4, v11")
    a("v_add_u32 v10, v10, v11")
    a(f"s_lshl_b32 s{S_TMP}, s{S_W}, 4")
    a(f"s_add_u32 s{S_TMP}, s{S_TMP}, s{S_D0}")
    a(f"s_lshl_b32 s{S_TMP}, s{S_TMP}, 12")
    a(f"s_lshl_b32 s{S_TMP2}, s{S_T0}, 1")
    a(f"s_add_u32 s{S_TMP2}, s{S_TMP2}, s{S_TMP}")
    for i in range(2):
        a(f"s_add_u32 m0, s{S_L}, {ATL + i*1024}")
        a(f"s_add_u32 s{S_TMP}, s{S_TMP2}, {8*i*4096}")
        a(f"buffer_load_dwordx4 v10, s[{SRD_AT}:{SRD_AT+3}], s{S_TMP} offen {sc} lds")
    a("v_lshlrev_b32 v11, 4, v0")
    a(f"s_lshl_b32 s{S_TMP}, s{S_W}, 12")
    a(f"v_add_u32 v12, s{S_TMP}, v11")
    for beta in range(4):
        rb, cb = beta >> 1, beta & 1
        a(f"s_cmp_eq_u32 s{S_W}, {beta}")
        a(f"s_cbranch_scc1 g2_skipw{beta}")
        for q in range(4):
            a(f"ds_write_b128 v12, v[{acc(rb,cb)+4*q}:{acc(rb,cb)+4*q+3}] offset:{beta*16384 + q*1024}")
        a.label(f"g2_skipw{beta}")
    for beta in range(4):
        rb, cb = beta >> 1, beta & 1
        a(f"s_cmp_lg_u32 s{S_W}, {beta}")
        a(f"s_cbranch_scc1 g2_skipm{beta}")
        for r in range(16):
            a(f"v_mov_b32 v{24+r}, v{acc(rb,cb)+r}")
        a.label(f"g2_skipm{beta}")
    a("s_waitcnt lgkmcnt(0)")
    a("s_barrier")
    a(f"s_lshl_b32 s{S_TMP}, s{S_W}, 14")
    a(f"v_add_u32 v12, s{S_TMP}, v11")
    for k in range(1, 4):
        a(f"s_add_u32 s{S_TMP}, s{S_W}, {k}")
        a(f"s_and_b32 s{S_TMP}, s{S_TMP}, 3")
        a(f"s_lshl_b32 s{S_TMP}, s{S_TMP}, 12")
        a(f"v_add_u32 v13, s{S_TMP}, v12")
        for q in range(4):
            a(f"ds_read_b128 v[{64+16*(k-1)+4*q}:{64+16*(k-1)+4*q+3}], v13 offset:{q*1024}")
    a("v_lshrrev_b32 v10, 4, v0")
    a("v_lshrrev_b32 v13, 2, v0")
    a("v_and_b32 v13, 3, v13")
    a("v_and_b32 v14, 3, v0")
    a("v_lshrrev_b32 v15, 1, v10")
    a("v_lshlrev_b32 v15, 3, v15")
    a("v_add_u32 v15, v15, v13")
    a("v_lshlrev_b32 v15, 7, v15")
    a("v_and_b32 v16, 1, v10")
    a("v_lshlrev_b32 v16, 5, v16")
    a("v_add_u32 v15, v15, v16")
    a("v_lshlrev_b32 v14, 3, v14")
    a("v_add_u32 v15, v15, v14")
    a(f"s_lshr_b32 s{S_TMP}, s{S_W}, 1")
    a(f"s_lshl_b32 s{S_TMP}, s{S_TMP}, 12")
    a(f"s_and_b32 s{S_TMP2}, s{S_W}, 1")
    a(f"s_lshl_b32 s{S_TMP2}, s{S_TMP2}, 6")
    a(f"s_add_u32 s{S_TMP}, s{S_TMP}, s{S_TMP2}")
    a(f"s_add_u32 s{S_TMP}, s{S_TMP}, {ATL}")
    a(f"v_add_u32 v15, s{S_TMP}, v15")
    a("s_waitcnt lgkmcnt(0)")
    for r in range(16):
        a(f"v_add_f32 v{24+r}, v{24+r}, v{64+r}")
        a(f"v_add_f32 v{80+r}, v{80+r}, v{96+r}")
    for r in range(16):
        a(f"v_add_f32 v{24+r}, v{24+r}, v{80+r}")
    a("s_waitcnt vmcnt(0)")
    a("s_barrier")
    for Q in range(2):
        for h2 in range(2):
            a(f"ds_read_b64_tr_b16 v[{44+4*Q+2*h2}:{44+4*Q+2*h2+1}], v15 offset:{(16*Q+4*h2)*128}")
    a(f"v_sub_f32 v9, 1.0, v{V_G}")
    a("v_cvt_pk_bf16_f32 v9, v9, v9")
    a("v_lshlrev_b32 v9, 16, v9")
    a("s_mov_b32 s37, 0xffff0000")
    OT = 0
    a("v_and_b32 v10, 31, v0")
    a("v_lshrrev_b32 v11, 5, v0")
    a(f"s_and_b32 s{S_TMP}, s{S_W}, 1")
    a(f"s_lshl_b32 s{S_TMP}, s{S_TMP}, 5")
    a(f"v_add_u32 v10, s{S_TMP}, v10")
    a(f"s_lshr_b32 s{S_TMP2}, s{S_W}, 1")
    a(f"s_lshl_b32 s{S_TMP2}, s{S_TMP2}, 2")
    a(f"v_add_u32 v11, s{S_TMP2}, v11")
    a("v_and_b32 v12, 7, v10")
    a("v_xor_b32 v11, v11, v12")
    a("v_lshlrev_b32 v10, 7, v10")
    a("v_lshlrev_b32 v12, 4, v11")
    a("v_add_u32 v13, v10, v12")
    a("v_xor_b32 v12, 32, v12")
    a("v_add_u32 v14, v10, v12")
    a("s_waitcnt lgkmcnt(0)")
    for Q in range(2):
        for p in range(4):
            b0, b1 = 24 + 8*Q + 2*p, 24 + 8*Q + 2*p + 1
            av = 44 + 4*Q + p
            a(f"v_cvt_pk_bf16_f32 v52, v{b0}, v{b1}")
            a(f"v_lshlrev_b32 v53, 16, v52")
            a(f"v_and_b32 v54, s37, v52")
            a(f"v_mul_f32 v53, v9, v53")
            a(f"v_mul_f32 v54, v9, v54")
            a(f"v_cvt_pk_bf16_f32 v52, v53, v54")
            a(f"v_lshlrev_b32 v55, 16, v{av}")
            a(f"v_and_b32 v56, s37, v{av}")
            a(f"v_mul_f32 v55, v{V_G}, v55")
            a(f"v_mul_f32 v56, v{V_G}, v56")
            a(f"v_cvt_pk_bf16_f32 v55, v55, v56")
            a(f"v_lshlrev_b32 v53, 16, v52")
            a(f"v_and_b32 v54, s37, v52")
            a(f"v_lshlrev_b32 v56, 16, v55")
            a(f"v_and_b32 v55, s37, v55")
            a(f"v_add_f32 v53, v53, v56")
            a(f"v_add_f32 v54, v54, v55")
            a(f"v_cvt_pk_bf16_f32 v{60+p}, v53, v54") if Q == 0 else a(f"v_cvt_pk_bf16_f32 v{64+p}, v53, v54")
        a(f"ds_write_b128 v{13+Q}, v[{60+4*Q}:{63+4*Q}] offset:{OT}")
    a("v_lshrrev_b32 v10, 3, v0")
    a("v_and_b32 v11, 7, v0")
    a("v_xor_b32 v11, v11, v10")
    a("v_lshlrev_b32 v11, 4, v11")
    a("v_mul_u32_u24 v10, 896, v10")
    a("v_add_u32 v10, v10, v11")
    a("v_lshlrev_b32 v12, 4, v0")
    a(f"v_add_u32 v12, s{S_L}, v12")
    a(f"s_lshl_b32 s{S_TMP}, s{S_W}, 4")
    a(f"s_add_u32 s{S_TMP}, s{S_TMP}, s{S_T0}")
    a(f"s_mul_i32 s{S_TMP}, s{S_TMP}, 896")
    a(f"s_lshl_b32 s{S_TMP2}, s{S_D0}, 1")
    a(f"s_add_u32 s{S_TMP2}, s{S_TMP2}, s{S_TMP}")
    a("s_waitcnt lgkmcnt(0)")
    a("s_barrier")
    a(f"ds_read_b128 v[24:27], v12 offset:{OT}")
    a(f"ds_read_b128 v[28:31], v12 offset:{OT+1024}")
    for i in range(2):
        a(f"s_waitcnt lgkmcnt({1-i})")
        a(f"s_add_u32 s{S_TMP}, s{S_TMP2}, {8*i*896}")
        a(f"buffer_store_dwordx4 v[{24+4*i}:{27+4*i}], v10, s[{SRD_O}:{SRD_O+3}], s{S_TMP} offen")
    st.stamp()
    if stamps: a("s_waitcnt vmcnt(0)")
    st.stamp(); st.stamp(real=True)
    st.flush(S_W)
```

```python
from asmlib import *

STG = 14848
ESTR = 272
FOFF = 21*ESTR
UBASE = 59392
KCSZ = 16640; CPSZ = 4160
XCH = 18432

def cmul(a, dr, di, xr, xi, cr, ci, nci):
    a(f"v_mul_f32 v{dr}, v{xr}, v{cr}")
    a(f"v_mul_f32 v{di}, v{xr}, v{ci}")
    a(f"v_fmac_f32 v{dr}, v{xi}, v{nci}")
    a(f"v_fmac_f32 v{di}, v{xi}, v{cr}")

def side(a, s_cp, flags=True, stamps=False, dump_k=False):
    S_W = 4; S_D = 5; S_HALF = 6; S_CHL = 7
    SRD_P = 8
    SRD_UT = 12; SRD_AT = 16
    S_TMP = 24; S_TMP2 = 25; S_SC = 26; S_ISC = 27
    P0 = 28
    P_WS = 44; P_DBG = 46
    S_STG = 48; S_U = 49; S_KC = 50; S_DSK = 51; S_LDT = 52
    st = Stamps(a, 60, stamps)
    a.c("---- side role ----")
    st.stamp(real=True); st.stamp()
    a(f"s_load_dwordx8 s[{P0}:{P0+7}], s[0:1], {KA['are']}")
    a(f"s_load_dwordx8 s[{P0+8}:{P0+15}], s[0:1], {KA['cre']}")
    a(f"s_load_dwordx2 s[{P_WS}:{P_WS+1}], s[0:1], {KA['ws']}")
    a(f"s_load_dwordx2 s[{P_DBG}:{P_DBG+1}], s[0:1], {KA['dbg']}")
    a("v_lshrrev_b32 v1, 6, v0")
    a("v_and_b32 v0, 63, v0")
    a(f"v_readfirstlane_b32 s{S_W}, v1")
    a("s_nop 3")
    a(f"s_and_b32 s{S_HALF}, s{S_W}, 1")
    a(f"s_lshr_b32 s{S_CHL}, s{S_W}, 1")
    a(f"s_lshl_b32 s{S_D}, s{s_cp}, 1")
    a(f"s_add_u32 s{S_D}, s{S_D}, s{S_CHL}")
    a(f"s_lshl_b32 s{S_TMP}, s{S_D}, 9")
    a(f"s_lshl_b32 s{S_TMP2}, s{S_HALF}, 8")
    a(f"s_add_u32 s{S_TMP}, s{S_TMP}, s{S_TMP2}")
    a("v_lshlrev_b32 v2, 2, v0")
    a("s_waitcnt lgkmcnt(0)")
    a(f"s_mov_b32 s{SRD_P+2}, {448*256*2}")
    a(f"s_mov_b32 s{SRD_P+3}, 0x20000")
    for i in range(6):
        a(f"s_mov_b32 s{SRD_P}, s{P0+2*i}")
        a(f"s_mov_b32 s{SRD_P+1}, s{P0+2*i+1}")
        a(f"buffer_load_dword v{10+i}, v2, s[{SRD_P}:{SRD_P+3}], s{S_TMP} offen")
        a("s_nop 0")
    a(f"s_lshl_b32 s{S_TMP2}, s{s_cp}, 2")
    a(f"s_load_dword s{S_LDT}, s[{P0+12}:{P0+13}], s{S_TMP2}")
    a(f"s_load_dword s{S_DSK}, s[{P0+14}:{P0+15}], s{S_TMP2}")
    srd_from(a, SRD_UT, P_WS, SZ_UT, WS_UT)
    srd_from(a, SRD_AT, P_WS, SZ_AT, WS_AT)
    a(f"s_mul_i32 s{S_STG}, s{S_W}, {STG}")
    a(f"s_lshl_b32 s{S_U}, s{S_CHL}, 13")
    a(f"s_add_u32 s{S_U}, s{S_U}, {UBASE}")
    a(f"s_mul_i32 s{S_KC}, s{S_CHL}, {KCSZ}")
    a(f"v_lshlrev_b32 v3, 2, v0")
    a(f"v_add_u32 v3, s{S_STG}, v3")
    a("v_and_b32 v4, 31, v0")
    a(f"v_mul_u32_u24 v4, {ESTR}, v4")
    a("v_lshrrev_b32 v5, 5, v0")
    a("v_lshlrev_b32 v5, 4, v5")
    a("v_add_u32 v4, v4, v5")
    a(f"v_add_u32 v4, s{S_STG}, v4")
    a("s_waitcnt lgkmcnt(0)")
    for r in (S_LDT, S_DSK):
        a(f"s_lshl_b32 s{S_TMP}, s{r}, 16")
        a(f"s_and_b32 s{S_TMP2}, s{r}, 0xffff0000")
        a(f"s_cmp_eq_u32 s{S_CHL}, 0")
        a(f"s_cselect_b32 s{r}, s{S_TMP}, s{S_TMP2}")
    a(f"v_mov_b32 v6, s{S_LDT}")
    a("v_mul_f32 v7, 0x3fb8aa3b, v6")
    a("s_mov_b32 s53, 0x3fb8aa3b")
    a("v_fma_f32 v8, v6, s53, -v7")
    a("v_fmac_f32 v8, 0x32a57060, v6")
    a("v_exp_f32 v7, v7")
    a("v_mul_f32 v8, 0x3f317218, v8")
    a("s_nop 0")
    a("v_fmac_f32 v7, v7, v8")
    a("v_cvt_pk_bf16_f32 v7, v7, v7")
    a("v_lshlrev_b32 v6, 16, v7")
    st.stamp()
    a("s_waitcnt vmcnt(0)")
    st.stamp()
    a("s_mov_b32 s54, 0xffff0000")
    for p in range(2):
        def ex(dst, src):
            if p == 0: a(f"v_lshlrev_b32 v{dst}, 16, v{src}")
            else: a(f"v_and_b32 v{dst}, s54, v{src}")
        ex(24, 10); ex(25, 11); ex(26, 12); ex(27, 13); ex(28, 14); ex(29, 15)
        a("v_mul_f32 v24, v6, v24")
        a("v_mul_f32 v25, v6, v25")
        a("v_mul_f32 v26, v6, v26")
        a("v_mul_f32 v27, v6, v27")
        wr, wi = 16+2*p, 17+2*p
        a(f"v_mul_f32 v{wr}, v28, v26")
        a(f"v_fma_f32 v{wr}, -v29, v27, v{wr}")
        a(f"v_mul_f32 v{wi}, v28, v27")
        a(f"v_fmac_f32 v{wi}, v29, v26")
        a(f"v_mul_f32 v{20+2*p}, 0x3fb8aa3b, v24")
        a(f"v_mul_f32 v{21+2*p}, 0.15915494, v25")
        a(f"v_mul_f32 v30, 0x45000000, v{20+2*p}")
        a("v_max_f32 v30, 0, v30")
        a("v_exp_f32 v30, v30")
        a(f"v_max_f32 v31, |v{wr}|, |v{wi}|")
        if p == 0: a("v_mul_f32 v9, v30, v31")
        else:
            a("v_mul_f32 v30, v30, v31")
            a("v_max_f32 v9, v9, v30")
    for ctrl in ("row_shr:1", "row_shr:2", "row_shr:4", "row_shr:8", "row_bcast:15 row_mask:0xa", "row_bcast:31 row_mask:0xc"):
        a("s_nop 1")
        if "row_mask" in ctrl:
            a(f"v_max_f32_dpp v9, v9, v9 {ctrl} bank_mask:0xf")
        else:
            a(f"v_max_f32_dpp v9, v9, v9 {ctrl} row_mask:0xf bank_mask:0xf")
    a("s_nop 1")
    a(f"v_readlane_b32 s{S_TMP}, v9, 63")
    a("s_nop 3")
    a(f"s_lshr_b32 s{S_TMP}, s{S_TMP}, 23")
    a(f"s_max_u32 s{S_TMP}, s{S_TMP}, 8")
    a(f"s_min_u32 s{S_TMP}, s{S_TMP}, 254")
    a(f"s_sub_u32 s{S_SC}, 261, s{S_TMP}")
    a(f"s_lshl_b32 s{S_SC}, s{S_SC}, 23")
    a(f"s_sub_u32 s{S_ISC}, s{S_TMP}, 7")
    a(f"s_lshl_b32 s{S_ISC}, s{S_ISC}, 23")
    D = 112
    for p in range(2):
        e2, ph = 20+2*p, 21+2*p
        def polar(r, i, ni, mult):
            if mult == 1:
                a(f"v_exp_f32 v40, v{e2}")
                a(f"v_fract_f32 v41, v{ph}")
            else:
                a(f"v_mul_f32 v40, {mult}, v{e2}")
                a(f"v_mul_f32 v41, {mult}, v{ph}")
                a(f"v_exp_f32 v40, v40")
                a(f"v_fract_f32 v41, v41")
            a(f"v_cos_f32 v42, v41")
            a(f"v_sin_f32 v43, v41")
            a("s_nop 0")
            a(f"v_mul_f32 v{r}, v40, v42")
            a(f"v_mul_f32 v{i}, v40, v43")
            a(f"v_sub_f32 v{ni}, 0, v{i}")
        polar(24, 25, 26, 1)
        polar(33, 34, 35, "0x43800000")
        polar(36, 37, 38, "0x41000000")
        cmul(a, 27, 28, 24, 25, 24, 25, 26); a("v_sub_f32 v29, 0, v28")
        cmul(a, 30, 31, 27, 28, 27, 28, 29); a("v_sub_f32 v32, 0, v31")
        wr, wi = 16+2*p, 17+2*p
        a(f"v_mul_f32 v44, s{S_SC}, v{wr}")
        a(f"v_mul_f32 v45, s{S_SC}, v{wi}")
        a("v_sub_f32 v45, 0, v45")
        def put(row, r, i, off=0):
            a(f"v_cvt_pk_f16_f32 v39, v{r}, v{i}")
            a(f"ds_write_b32 v3, v39 offset:{off + row*ESTR}")
        if p == 1:
            a("s_waitcnt lgkmcnt(0)")
        put(0, 44, 45)
        cur = (44, 45); alt = (46, 47)
        for row in range(1, 8):
            cmul(a, alt[0], alt[1], cur[0], cur[1], 24, 26, 25)
            cur, alt = alt, cur
            put(row, cur[0], cur[1])
        a(f"v_mul_f32 v48, s{S_SC}, v{wr}")
        a(f"v_mul_f32 v49, s{S_SC}, v{wi}")
        a("v_sub_f32 v49, 0, v49")
        Gc = (33, 35, 34); z2c = (27, 29, 28); z4c = (30, 32, 31)
        cmul(a, 50, 51, 48, 49, *Gc); put(8, 50, 51)
        cmul(a, 44, 45, 50, 51, *z2c); put(16, 44, 45)
        cmul(a, 46, 47, 44, 45, *z2c); put(17, 46, 47)
        cmul(a, 44, 45, 46, 47, *z2c); put(18, 44, 45)
        cmul(a, 48, 49, 50, 51, *Gc); put(9, 48, 49)
        cmul(a, 44, 45, 48, 49, *z4c); put(19, 44, 45)
        cmul(a, 50, 51, 48, 49, *Gc); put(10, 50, 51)
        cmul(a, 44, 45, 50, 51, *z4c); put(20, 44, 45)
        cur = (50, 51); alt = (48, 49)
        for row in range(11, 16):
            cmul(a, alt[0], alt[1], cur[0], cur[1], *Gc)
            cur, alt = alt, cur
            put(row, cur[0], cur[1])
        a("v_mov_b32 v39, 0x3c00")
        a(f"ds_write_b32 v3, v39 offset:{FOFF}")
        put(1, 36, 37, FOFF)
        cur = (36, 37); bufs = [(44, 45), (46, 47)]
        for j in range(2, 32):
            nx = bufs[j % 2]
            cmul(a, nx[0], nx[1], cur[0], cur[1], 36, 37, 38)
            cur = nx
            put(j, cur[0], cur[1], FOFF)
        a("s_waitcnt lgkmcnt(0)")
        for k in range(8):
            a(f"ds_read_b128 v[{48+4*k}:{51+4*k}], v4 offset:{32*k}")
            a(f"ds_read_b128 v[{80+4*k}:{83+4*k}], v4 offset:{FOFF + 32*k}")
        for k in range(8):
            a(f"s_waitcnt lgkmcnt({min(15, 14-2*k)})")
            c = "0" if (p == 0 and k == 0) else f"v[{D}:{D+15}]"
            a(f"v_mfma_f32_32x32x16_f16 v[{D}:{D+15}], v[{48+4*k}:{51+4*k}], v[{80+4*k}:{83+4*k}], {c}")
    st.stamp()
    a("v_and_b32 v7, 31, v0")
    a("v_lshlrev_b32 v7, 2, v7")
    a("v_lshrrev_b32 v8, 5, v0")
    a("v_lshlrev_b32 v8, 9, v8")
    a("v_add_u32 v7, v7, v8")
    a(f"v_add_u32 v7, s{S_STG}, v7")
    a("s_nop 15")
    a("s_nop 7")
    for r in range(12):
        q, rr = r // 4, r % 4
        a(f"v_mul_f32 v{D+r}, s{S_ISC}, v{D+r}")
        a(f"ds_write_b32 v7, v{D+r} offset:{(8*q + rr)*128}")
    if flags:
        a(f"s_cmp_lg_u32 s{S_W}, 0")
        a("s_cbranch_scc1 side_polled")
        a("v_mov_b32 v10, 0")
        a.label("side_poll")
        a(f"global_load_dword v11, v10, s[{P_DBG}:{P_DBG+1}] offset:{FLAG_AUX} sc1")
        a("s_waitcnt vmcnt(0)")
        a(f"v_readfirstlane_b32 s{S_TMP}, v11")
        a("s_nop 3")
        a(f"s_cmp_ge_u32 s{S_TMP}, 32")
        a("s_cbranch_scc1 side_polled")
        a("s_sleep 2")
        a("s_branch side_poll")
        a.label("side_polled")
    a("s_waitcnt lgkmcnt(0)")
    a("s_barrier")
    a(f"s_lshl_b32 s{S_TMP}, s{S_HALF}, 8")
    a(f"v_add_u32 v10, s{S_TMP}, v0")
    a(f"s_lshl_b32 s{S_TMP2}, s{S_D}, 12")
    a(f"s_lshl_b32 s55, s{S_HALF}, 12")
    a(f"s_add_u32 s55, s55, s{S_U}")
    a("s_mov_b32 s56, 52429")
    for ii in range(4):
        a("v_mul_u32_u24 v11, s56, v10")
        a("v_lshrrev_b32 v11, 18, v11")
        a("v_mul_u32_u24 v12, 5, v11")
        a("v_sub_u32 v12, v10, v12")
        a("v_subrev_u32 v11, 31, v11")
        a("v_lshlrev_b32 v13, 6, v11")
        a("v_lshlrev_b32 v14, 4, v12")
        a("v_add_u32 v13, v13, v14")
        a("v_cmp_gt_u32 vcc, 64, v11")
        a("v_cmp_gt_u32 s[58:59], 4, v12")
        a("s_and_b64 vcc, vcc, s[58:59]")
        a("v_mov_b32 v14, 0x80000000")
        a("s_nop 0")
        a("v_cndmask_b32 v13, v14, v13, vcc")
        a(f"s_add_u32 m0, s55, {ii*1024}")
        a("s_nop 0")
        a(f"buffer_load_dwordx4 v13, s[{SRD_UT}:{SRD_UT+3}], s{S_TMP2} offen sc1 lds")
        if ii < 3: a("v_add_u32 v10, 64, v10")
    a(f"s_mul_i32 s{S_TMP}, s{S_CHL}, {2*STG}")
    VV = 24
    a(f"s_cmp_eq_u32 s{S_HALF}, 0")
    a("s_cbranch_scc0 side_exp_h1")
    a("v_and_b32 v10, 31, v0")
    a("v_lshlrev_b32 v10, 2, v10")
    a(f"v_add_u32 v10, s{S_TMP}, v10")
    a("v_cmp_gt_u32 vcc, 32, v0")
    r1 = [8*128, 8*128, 16*128, 17*128, 17*128, 17*128, 18*128, 8*128+4]
    for i in range(8):
        a(f"v_mov_b32 v11, {r1[i]}")
        if i*128 == r1[i]:
            a(f"v_add_u32 v12, v10, v11")
        else:
            a(f"v_mov_b32 v12, {i*128}")
            a("v_cndmask_b32 v11, v11, v12, vcc")
            a("v_add_u32 v12, v10, v11")
        a(f"ds_read_b32 v{VV+i}, v12")
        a(f"ds_read_b32 v{40+i}, v12 offset:{STG}")
    a("v_cmp_eq_u32 s[58:59], 32, v0")
    a("v_mov_b32 v11, 1024")
    a("v_mov_b32 v12, 892")
    a("v_cndmask_b32 v11, v11, v12, vcc")
    a("v_mov_b32 v12, 1020")
    a("v_cndmask_b32 v11, v11, v12, s[58:59]")
    a("v_add_u32 v12, v10, v11")
    a(f"ds_read_b32 v{VV+8}, v12")
    a(f"ds_read_b32 v48, v12 offset:{STG}")
    a("v_lshlrev_b32 v10, 2, v0")
    a(f"v_add_u32 v10, s{S_TMP}, v10")
    a(f"ds_read_b32 v33, v10 offset:{1024+128}")
    a(f"ds_read_b32 v49, v10 offset:{1024+128+STG}")
    a(f"ds_read_b32 v34, v10 offset:2432")
    a(f"ds_read_b32 v50, v10 offset:{2432+STG}")
    a(f"ds_read_b32 v35, v10 offset:{1024+132}")
    a(f"ds_read_b32 v51, v10 offset:{1024+132+STG}")
    a("s_waitcnt lgkmcnt(0)")
    for i in range(12):
        a(f"v_add_f32 v{24+i}, v{24+i}, v{40+i}")
    a("v_cmp_eq_u32 vcc, 0, v0")
    a("v_mov_b32 v11, 0")
    a("s_nop 0")
    a(f"v_cndmask_b32 v{VV+8}, v{VV+8}, v11, vcc")
    for i in range(4):
        a(f"v_cvt_pk_bf16_f32 v{40+i}, v{VV+2*i}, v{VV+2*i+1}")
    a(f"v_cvt_pk_bf16_f32 v44, v{VV+8}, v{VV}")
    for i in range(1, 4):
        a(f"v_cvt_pk_bf16_f32 v{44+i}, v{VV+2*i-1}, v{VV+2*i}")
    a("v_cvt_pk_bf16_f32 v48, v33, v33")
    a("v_cvt_pk_bf16_f32 v49, v33, v34")
    a("v_cvt_pk_bf16_f32 v50, v34, v34")
    a("v_cvt_pk_bf16_f32 v51, v35, v35")
    a("v_mov_b32 v52, v48")
    a("v_mov_b32 v53, v48")
    a("v_mov_b32 v54, v50")
    a("v_cvt_pk_bf16_f32 v55, v34, v35")
    a("v_mov_b32 v15, v0")
    a("s_branch side_exp_join")
    a.label("side_exp_h1")
    a("v_lshlrev_b32 v10, 2, v0")
    a(f"v_add_u32 v10, s{S_TMP}, v10")
    o = 1024 + 4*96
    for sl in range(2):
        a(f"ds_read_b32 v{24+2*sl}, v10 offset:{o + 256*sl}")
        a(f"ds_read_b32 v{40+2*sl}, v10 offset:{o + 256*sl + STG}")
        a(f"ds_read_b32 v{25+2*sl}, v10 offset:{o + 256*sl + 4}")
        a(f"ds_read_b32 v{41+2*sl}, v10 offset:{o + 256*sl + 4 + STG}")
    a("s_waitcnt lgkmcnt(0)")
    for i in range(4):
        a(f"v_add_f32 v{24+i}, v{24+i}, v{40+i}")
    a("v_and_b32 v11, 1, v0")
    a("v_cmp_eq_u32 vcc, 0, v11")
    for sl in range(2):
        f0, f8 = 24+2*sl, 25+2*sl
        o0 = 40 + 8*sl
        a(f"v_cvt_pk_bf16_f32 v{o0}, v{f0}, v{f0}")
        a(f"v_mov_b32 v{o0+1}, v{o0}")
        a(f"v_cndmask_b32 v12, v{f8}, v{f0}, vcc")
        a(f"v_cvt_pk_bf16_f32 v{o0+2}, v12, v{f8}")
        a(f"v_cvt_pk_bf16_f32 v{o0+3}, v{f8}, v{f8}")
        a(f"v_mov_b32 v{o0+4}, v{o0}")
        a(f"v_mov_b32 v{o0+5}, v{o0}")
        a(f"v_cvt_pk_bf16_f32 v{o0+6}, v{f0}, v12")
        a(f"v_mov_b32 v{o0+7}, v{o0+3}")
    a("v_add_u32 v15, 128, v0")
    a.label("side_exp_join")
    a("s_barrier")
    a(f"s_cmp_eq_u32 s{S_HALF}, 0")
    a("s_cbranch_scc0 side_nozero")
    a("v_lshrrev_b32 v10, 3, v0")
    a("v_and_b32 v11, 7, v0")
    a(f"v_mul_u32_u24 v10, {CPSZ}, v10")
    a("v_lshlrev_b32 v11, 4, v11")
    a("v_add_u32 v10, v10, v11")
    a(f"v_add_u32 v10, s{S_KC}, v10")
    a("v_mov_b32 v56, 0"); a("v_mov_b32 v57, 0"); a("v_mov_b32 v58, 0"); a("v_mov_b32 v59, 0")
    a("v_and_b32 v11, 7, v0")
    a("v_cmp_gt_u32 vcc, 5, v11")
    a("v_cmp_gt_u32 s[58:59], 32, v0")
    a("s_and_b64 vcc, vcc, s[58:59]")
    a("s_and_saveexec_b64 s[58:59], vcc")
    a("ds_write_b128 v10, v[56:59]")
    a("s_mov_b64 exec, s[58:59]")
    a.label("side_nozero")
    a("v_lshlrev_b32 v10, 4, v15")
    a(f"v_add_u32 v10, s{S_KC}, v10")
    a("v_add_u32 v10, 64, v10")
    for sl in range(2):
        o0 = 40 + 8*sl; ob = 1024*sl
        a(f"ds_write_b128 v10, v[{o0}:{o0+3}] offset:{ob}")
        a(f"ds_write_b128 v10, v[{o0+4}:{o0+7}] offset:{ob + CPSZ}")
    a(f"v_add_u32 v11, {2*CPSZ+4}, v10")
    a(f"v_add_u32 v12, {3*CPSZ+4}, v10")
    for sl in range(2):
        o0 = 40 + 8*sl
        if sl == 1:
            a("v_add_u32 v11, 1024, v11"); a("v_add_u32 v12, 1024, v12")
        a(f"ds_write2_b32 v11, v{o0}, v{o0+1} offset0:0 offset1:1")
        a(f"ds_write2_b32 v11, v{o0+2}, v{o0+3} offset0:2 offset1:3")
        a(f"ds_write2_b32 v12, v{o0+4}, v{o0+5} offset0:0 offset1:1")
        a(f"ds_write2_b32 v12, v{o0+6}, v{o0+7} offset0:2 offset1:3")
    if dump_k:
        srd_from(a, SRD_P, P_WS, SZ_KX, WS_KX)
        a("v_lshlrev_b32 v13, 4, v15")
        a(f"s_lshl_b32 s{S_TMP}, s{S_D}, 12")
        a(f"buffer_store_dwordx4 v[40:43], v13, s[{SRD_P}:{SRD_P+3}], s{S_TMP} offen")
        a(f"buffer_store_dwordx4 v[48:51], v13, s[{SRD_P}:{SRD_P+3}], s{S_TMP} offen offset:1024")
    a("v_lshrrev_b32 v10, 4, v0")
    a("v_lshrrev_b32 v11, 2, v0")
    a("v_and_b32 v11, 3, v11")
    a("v_and_b32 v12, 3, v0")
    a(f"v_mul_u32_u24 v13, {CPSZ}, v11")
    a("v_and_b32 v14, 1, v10")
    a("v_lshlrev_b32 v14, 5, v14")
    a("v_add_u32 v13, v13, v14")
    a("v_and_b32 v14, 1, v12")
    a("v_lshlrev_b32 v14, 4, v14")
    a("v_add_u32 v13, v13, v14")
    a("v_lshrrev_b32 v14, 1, v12")
    a("v_lshlrev_b32 v14, 3, v14")
    a("v_add_u32 v13, v13, v14")
    a("v_lshrrev_b32 v14, 1, v10")
    a("v_lshlrev_b32 v14, 4, v14")
    a("v_sub_u32 v13, v13, v14")
    a(f"s_lshl_b32 s{S_TMP}, s{S_HALF}, 10")
    a(f"s_add_u32 s{S_TMP}, s{S_TMP}, s{S_KC}")
    a(f"s_add_u32 s{S_TMP}, s{S_TMP}, 24")
    a(f"v_add_u32 v2, s{S_TMP}, v13")
    a("v_and_b32 v10, 31, v0")
    a("v_mul_u32_u24 v10, 80, v10")
    a("v_lshrrev_b32 v11, 5, v0")
    a("v_lshlrev_b32 v11, 4, v11")
    a("v_add_u32 v10, v10, v11")
    a(f"s_mul_i32 s{S_TMP}, s{S_HALF}, {80*16}")
    a(f"s_sub_u32 s{S_TMP}, s{S_U}, s{S_TMP}")
    a(f"s_add_u32 s{S_TMP}, s{S_TMP}, {80*16}")
    a(f"v_add_u32 v3, s{S_TMP}, v10")
    st.stamp()
    a("s_waitcnt vmcnt(0) lgkmcnt(0)")
    a("s_barrier")
    st.stamp()
    ACC0, ACC1 = 96, 112
    FB = [24, 40, 56]
    steps = [(dl, s) for dl in range(16) for s in range(2)]
    def reads(i):
        dl, s = steps[i]; fb = FB[i % 3]
        R = []
        base = 64*dl + 40 - 32*s
        R.append(f"ds_read_b128 v[{fb+8}:{fb+11}], v3 offset:{80*(15-dl) + 32*s}")
        R.append(f"ds_read_b64_tr_b16 v[{fb}:{fb+1}], v2 offset:{base}")
        R.append(f"ds_read_b64_tr_b16 v[{fb+2}:{fb+3}], v2 offset:{base - 8}")
        R.append(f"ds_read_b128 v[{fb+12}:{fb+15}], v3 offset:{80*(15-dl) + 32*s + 2560}")
        R.append(f"ds_read_b64_tr_b16 v[{fb+4}:{fb+5}], v2 offset:{base + 2048}")
        R.append(f"ds_read_b64_tr_b16 v[{fb+6}:{fb+7}], v2 offset:{base + 2048 - 8}")
        return R
    for r in reads(0): a(r)
    for r in reads(1): a(r)
    n = len(steps)
    for i in range(n):
        fb = FB[i % 3]
        outstanding = 6 if i + 1 < n else 0
        a(f"s_waitcnt lgkmcnt({outstanding})")
        R = reads(i + 2) if i + 2 < n else []
        c0 = "0" if i == 0 else f"v[{ACC0}:{ACC0+15}]"
        c1 = "0" if i == 0 else f"v[{ACC1}:{ACC1+15}]"
        a(f"v_mfma_f32_32x32x16_bf16 v[{ACC0}:{ACC0+15}], v[{fb}:{fb+3}], v[{fb+8}:{fb+11}], {c0}")
        for r in R[:2]: a(r)
        a(f"v_mfma_f32_32x32x16_bf16 v[{ACC1}:{ACC1+15}], v[{fb}:{fb+3}], v[{fb+12}:{fb+15}], {c1}")
        for r in R[2:4]: a(r)
        a(f"v_mfma_f32_32x32x16_bf16 v[{ACC1}:{ACC1+15}], v[{fb+4}:{fb+7}], v[{fb+8}:{fb+11}], v[{ACC1}:{ACC1+15}]")
        for r in R[4:]: a(r)
    st.stamp()
    a("v_and_b32 v10, 31, v0")
    a("v_mul_u32_u24 v10, 144, v10")
    a("v_lshrrev_b32 v11, 5, v0")
    a("v_lshlrev_b32 v11, 5, v11")
    a("v_add_u32 v10, v10, v11")
    a(f"s_mul_i32 s{S_TMP}, s{S_CHL}, {XCH}")
    a(f"s_mul_i32 s{S_TMP2}, s{S_HALF}, 9216")
    a(f"s_add_u32 s{S_TMP2}, s{S_TMP2}, s{S_TMP}")
    a(f"v_add_u32 v10, s{S_TMP2}, v10")
    a("s_nop 15")
    a("s_barrier")
    for h, acc in ((0, ACC0), (1, ACC1)):
        for q in range(4):
            a(f"ds_write_b128 v10, v[{acc+4*q}:{acc+4*q+3}] offset:{h*32*144 + 4*(16*(q>>1) + 4*(q&1))}")
    a(f"s_lshl_b32 s{S_TMP2}, s{S_HALF}, 6")
    a(f"v_add_u32 v11, s{S_TMP2}, v0")
    a("v_lshrrev_b32 v12, 2, v11")
    a("v_and_b32 v13, 3, v11")
    a("v_mul_u32_u24 v14, 144, v12")
    a("v_lshlrev_b32 v15, 5, v13")
    a("v_add_u32 v14, v14, v15")
    a(f"v_add_u32 v14, s{S_TMP}, v14")
    a("v_mul_u32_u24 v15, 80, v12")
    a("v_lshlrev_b32 v16, 4, v13")
    a("v_add_u32 v15, v15, v16")
    a(f"s_add_u32 s{S_TMP2}, s{S_U}, {80*31}")
    a(f"v_add_u32 v15, s{S_TMP2}, v15")
    a("v_lshlrev_b32 v16, 4, v11")
    a("s_waitcnt lgkmcnt(0)")
    a("s_barrier")
    a("s_mov_b32 s54, 0xffff0000")
    a(f"s_lshl_b32 s{S_TMP}, s{S_D}, 12")
    for sl in range(2):
        o = sl*32*144
        a(f"ds_read_b128 v[24:27], v14 offset:{o}")
        a(f"ds_read_b128 v[28:31], v14 offset:{o+16}")
        a(f"ds_read_b128 v[32:35], v14 offset:{o+9216}")
        a(f"ds_read_b128 v[36:39], v14 offset:{o+9216+16}")
        a(f"ds_read_b128 v[40:43], v15 offset:{sl*32*80}")
        a("s_waitcnt lgkmcnt(0)")
        for i in range(8):
            a(f"v_add_f32 v{24+i}, v{24+i}, v{32+i}")
        ob = 48 + 4*sl
        for i in range(4):
            a(f"v_cvt_pk_bf16_f32 v32, v{24+2*i}, v{25+2*i}")
            a(f"v_lshlrev_b32 v33, 16, v{40+i}")
            a(f"v_and_b32 v34, s54, v{40+i}")
            a(f"v_mul_f32 v33, s{S_DSK}, v33")
            a(f"v_mul_f32 v34, s{S_DSK}, v34")
            a(f"v_cvt_pk_bf16_f32 v33, v33, v34")
            a(f"v_lshlrev_b32 v34, 16, v32")
            a(f"v_and_b32 v32, s54, v32")
            a(f"v_lshlrev_b32 v35, 16, v33")
            a(f"v_and_b32 v33, s54, v33")
            a(f"v_add_f32 v34, v34, v35")
            a(f"v_add_f32 v32, v32, v33")
            a(f"v_cvt_pk_bf16_f32 v{ob+i}, v34, v32")
        a(f"buffer_store_dwordx4 v[{ob}:{ob+3}], v16, s[{SRD_AT}:{SRD_AT+3}], s{S_TMP} offen offset:{2048*sl} sc1")
    a("s_waitcnt vmcnt(0)")
    st.stamp()
    if flags:
        a("s_barrier")
        a(f"s_cmp_lg_u32 s{S_W}, 0")
        a("s_cbranch_scc1 side_done")
        a(f"s_lshr_b32 s{S_TMP}, s{s_cp}, 5")
        a(f"s_lshl_b32 s{S_TMP}, s{S_TMP}, 2")
        a(f"v_mov_b32 v10, s{S_TMP}")
        a("v_mov_b32 v11, 1")
        a("s_mov_b64 exec, 1")
        a(f"global_atomic_add v10, v11, s[{P_DBG}:{P_DBG+1}] offset:{FLAG_A} sc1")
        a("s_waitcnt vmcnt(0)")
        a("s_mov_b64 exec, -1")
        a.label("side_done")
    st.stamp(real=True)
    st.flush(S_W)
```

```python
import sys
from asmlib import *
import gemm1, aux, side, gemm2

HEADER = open("gated_mix__ssm_conv_s4__glu_gated_bilinear__prompt.s.ref").read().split("; Override launch")[0]

def build(parts, launches):
    out = [HEADER.rstrip()]
    for (n, g, b, l) in launches:
        out.append(f"; @launch kernel={n} grid=({g},1,1) block=({b},1,1) lds={l}")
    out.append('.amdgcn_target "amdgcn-amd-amdhsa--gfx950"')
    out.append(".text")
    for (n, a, vg, sg) in parts:
        out += [f".globl {n}", ".p2align 8", f".type {n},@function", f"{n}:", a.text()]
        out.append(kdesc(n, vg, sg))
    return "\n".join(out) + "\n"

def k1_only_gemm1(exact=True, stamps=False, mode=0):
    a = Asm()
    a("s_cmp_ge_u32 s2, 224")
    a("s_cbranch_scc1 k1_exit")
    gemm1.gemm1(a, exact, stamps, mode)
    a.label("k1_exit")
    a("s_endpgm")
    return a

def k_aux_only():
    a = Asm()
    a("s_cmp_ge_u32 s2, 32")
    a("s_cbranch_scc1 kaux_exit")
    a("s_mov_b32 s3, s2")
    aux.aux(a, 3)
    a.label("kaux_exit")
    a("s_endpgm")
    return a

def k_side_only(stamps=False):
    a = Asm()
    a("s_cmp_ge_u32 s2, 224")
    a("s_cbranch_scc1 kside_exit")
    a("s_mov_b32 s3, s2")
    side.side(a, 3, flags=False, stamps=stamps, dump_k=True)
    a.label("kside_exit")
    a("s_endpgm")
    return a

def k_g2_only(stamps=False):
    a = Asm()
    a("s_cmp_ge_u32 s2, 224")
    a("s_cbranch_scc1 kg2_exit")
    a("s_and_b32 s40, s2, 7")
    a("s_lshr_b32 s41, s2, 3")
    a("s_and_b32 s42, s41, 3")
    a("s_lshl_b32 s40, s40, 2")
    a("s_add_u32 s44, s40, s42")
    a("s_lshr_b32 s45, s41, 2")
    gemm2.gemm2(a, 44, 45, flags=False, stamps=stamps)
    a.label("kg2_exit")
    a("s_endpgm")
    return a

if __name__ == "__main__":
    which = sys.argv[1]; out = sys.argv[2]
    if which == "g1":
        txt = build([("k1_kernel", k1_only_gemm1(), 256, 40)], [("k1_kernel", 224, 256, gemm1.G1_LDS)])
    if which.startswith("g1s"):
        mode = int(which[3:] or 0)
        txt = build([("k1_kernel", k1_only_gemm1(mode == 0, True, mode), 256, 102)], [("k1_kernel", 224, 256, gemm1.G1_LDS)])
    if which == "aux":
        txt = build([("kaux_kernel", k_aux_only(), 128, 64)], [("kaux_kernel", 32, 256, 81920)])
    if which == "side":
        txt = build([("kaux_kernel", k_aux_only(), 128, 64), ("kside_kernel", k_side_only(True), 256, 102)], [("kaux_kernel", 32, 256, 81920), ("kside_kernel", 224, 256, 81920)])
    if which == "four":
        txt = build([("kaux_kernel", k_aux_only(), 128, 64), ("kside_kernel", k_side_only(False), 256, 102), ("k1_kernel", k1_only_gemm1(True, False, 4), 256, 102), ("kg2_kernel", k_g2_only(True), 256, 102)],
                    [("kaux_kernel", 32, 256, 81920), ("kside_kernel", 224, 256, 81920), ("k1_kernel", 224, 256, gemm1.G1_LDS), ("kg2_kernel", 224, 256, 81920)])
    if which == "four_ns":
        txt = build([("kaux_kernel", k_aux_only(), 128, 64), ("kside_kernel", k_side_only(False), 256, 102), ("k1_kernel", k1_only_gemm1(True, False, 4), 256, 102), ("kg2_kernel", k_g2_only(False), 256, 102)],
                    [("kaux_kernel", 32, 256, 81920), ("kside_kernel", 224, 256, 81920), ("k1_kernel", 224, 256, gemm1.G1_LDS), ("kg2_kernel", 224, 256, 81920)])
    open(out, "w").write(txt)
```

```python
class Asm:
    def __init__(self):
        self.L = []
    def __call__(self, s=""):
        for line in s.split("\n"):
            line = line.strip()
            if line:
                self.L.append("    " + line)
    def label(self, n):
        self.L.append(n + ":")
    def c(self, s):
        self.L.append("    ; " + s)
    def text(self):
        return "\n".join(self.L)

def vr(a, n=1):
    return f"v{a}" if n == 1 else f"v[{a}:{a+n-1}]"
def sr(a, n=1):
    return f"s{a}" if n == 1 else f"s[{a}:{a+n-1}]"

KA = dict(u=0, are=8, aim=16, bre=24, bim=32, cre=40, cim=48, ldt=56, dskip=64, bx=72, wg=80, wu=88, wd=96, gw=104, out=112, dbg=120, ws=128)

WS_H  = 0x000000; SZ_H = 2048*1792*2
WS_UT = 0x700000; SZ_UT = 448*2048*2
WS_AT = 0x8C0000; SZ_AT = 448*2048*2
WS_KX = 0xA80000; KX_ROW = 2112*2; SZ_KX = 448*2*KX_ROW
WS_G  = 0xE20000; SZ_G = 2048*4

def srd_from(a, dst, src, size, off=0):
    if off:
        a(f"s_add_u32 s{dst}, s{src}, {off}")
        a(f"s_addc_u32 s{dst+1}, s{src+1}, 0")
    else:
        a(f"s_mov_b32 s{dst}, s{src}")
        a(f"s_mov_b32 s{dst+1}, s{src+1}")
    a(f"s_mov_b32 s{dst+2}, {size}")
    a(f"s_mov_b32 s{dst+3}, 0x20000")

def kdesc(name, vgpr, sgpr=102, accum=None):
    accum = accum or ((vgpr + 3) // 4 * 4)
    return f""".section .rodata,"a"
.p2align 6
.amdhsa_kernel {name}
  .amdhsa_next_free_vgpr {vgpr}
  .amdhsa_next_free_sgpr {sgpr}
  .amdhsa_accum_offset {accum}
  .amdhsa_group_segment_fixed_size 0
  .amdhsa_kernarg_size 136
  .amdhsa_user_sgpr_count 2
  .amdhsa_user_sgpr_kernarg_segment_ptr 1
  .amdhsa_system_sgpr_workgroup_id_x 1
  .amdhsa_float_denorm_mode_32 3
.end_amdhsa_kernel
.text
"""

WS_STAMP = 0x2000000
class Stamps:
    ALLREAL = False
    def __init__(self, a, base, on):
        self.a, self.base, self.on, self.n = a, base, on, 0
    def stamp(self, real=False):
        if not self.on: return
        real = real or Stamps.ALLREAL
        self.a(f"s_mem{'real' if real else ''}time s[{self.base+2*self.n}:{self.base+2*self.n+1}]")
        self.n += 1
    def flush(self, wave_sgpr, tmp0=92):
        if not self.on: return
        a = self.a
        a("s_waitcnt lgkmcnt(0) vmcnt(0)")
        a(f"s_load_dwordx2 s[{tmp0}:{tmp0+1}], s[0:1], {KA['ws']}")
        a("s_waitcnt lgkmcnt(0)")
        a(f"s_add_u32 s{tmp0}, s{tmp0}, {WS_STAMP}")
        a(f"s_addc_u32 s{tmp0+1}, s{tmp0+1}, 0")
        a(f"s_mov_b32 s{tmp0+2}, 0x100000")
        a(f"s_mov_b32 s{tmp0+3}, 0x20000")
        a(f"s_lshl_b32 s{tmp0+4}, s2, 8")
        a(f"s_lshl_b32 s{tmp0+5}, s{wave_sgpr}, 6")
        a(f"s_add_u32 s{tmp0+4}, s{tmp0+4}, s{tmp0+5}")
        a(f"v_mov_b32 v250, 0")
        for k in range(self.n):
            a(f"v_mov_b32 v251, s{self.base+2*k}")
            a(f"buffer_store_dword v251, v250, s[{tmp0}:{tmp0+3}], s{tmp0+4} offen offset:{4*k}")
        a("s_waitcnt vmcnt(0)")

FLAG_AUX = 0
FLAG_H = 16
FLAG_A = 128

WS_F = 0xE30000; SZ_F = 4096
FL_H = 0
FL_U = 16
FL_G = 24
FL_A = 25
SPIN_MAX = 400000

def wait_reset(a, name, s_dbg, s_tmp, s_cnt, v0_, v1_):
    a(f"v_mov_b32 v{v0_}, 0")
    a(f"s_mov_b32 s{s_cnt}, 0")
    a.label(name)
    a(f"global_load_dword v{v1_}, v{v0_}, s[{s_dbg}:{s_dbg+1}] sc1")
    a("s_waitcnt vmcnt(0)")
    a(f"v_readfirstlane_b32 s{s_tmp}, v{v1_}")
    a(f"s_add_u32 s{s_cnt}, s{s_cnt}, 1")
    a(f"s_cmp_ge_u32 s{s_cnt}, {SPIN_MAX}")
    a(f"s_cbranch_scc1 {name}_ok")
    a(f"s_cmp_lg_u32 s{s_tmp}, 0")
    a(f"s_cbranch_scc1 {name}_ok")
    a("s_sleep 8")
    a(f"s_branch {name}")
    a.label(name + "_ok")

def wait_flags(a, name, srd_f, s_line_off, nwords, s_tmp, s_cnt, v0_, v1_, sleep=2):
    mask = (1 << nwords) - 1
    a(f"v_and_b32 v{v0_}, 31, v0")
    a(f"v_lshlrev_b32 v{v0_}, 2, v{v0_}")
    a(f"s_mov_b32 s{s_cnt}, 0")
    a.label(name)
    a(f"buffer_load_dword v{v1_}, v{v0_}, s[{srd_f}:{srd_f+3}], s{s_line_off} offen sc1")
    a("s_waitcnt vmcnt(0)")
    a(f"v_cmp_eq_u32 vcc, 1, v{v1_}")
    a(f"s_add_u32 s{s_cnt}, s{s_cnt}, 1")
    a(f"s_cmp_ge_u32 s{s_cnt}, {SPIN_MAX}")
    a(f"s_cbranch_scc1 {name}_ok")
    a(f"s_and_b32 s{s_tmp}, vcc_lo, {hex(mask)}")
    a(f"s_cmp_eq_u32 s{s_tmp}, {hex(mask)}")
    a(f"s_cbranch_scc1 {name}_ok")
    a(f"s_sleep {sleep}")
    a(f"s_branch {name}")
    a.label(name + "_ok")

def set_flag(a, srd_f, s_off, v0_, v1_, nrep=1, rep_stride=128):
    if nrep == 1:
        a(f"v_mov_b32 v{v0_}, 0")
    else:
        a(f"v_mul_u32_u24 v{v0_}, {rep_stride}, v0")
    a(f"v_mov_b32 v{v1_}, 1")
    a(f"s_mov_b64 exec, {(1 << nrep) - 1}")
    a(f"buffer_store_dword v{v1_}, v{v0_}, s[{srd_f}:{srd_f+3}], s{s_off} offen sc1")
    a("s_mov_b64 exec, -1")
```

```python
from asmlib import *

USE_DOT2 = False
def aux(a, s_ax, fused=False):
    S_W = 4; S_T0 = 5
    SRD_X = 8; SRD_GW = 12; SRD_UT = 16; SRD_G = 20; SRD_F = 40
    S_TMP = 24; S_TMP2 = 25; S_XOFF = 26; S_XL = 27
    P0 = 28
    a.c("---- aux role ----")
    a(f"s_lshl_b32 s{S_T0}, s{s_ax}, 6")
    a(f"s_load_dwordx2 s[{P0}:{P0+1}], s[0:1], {KA['u']}")
    a(f"s_load_dwordx2 s[{P0+2}:{P0+3}], s[0:1], {KA['ws']}")
    a(f"s_load_dwordx2 s[{P0+4}:{P0+5}], s[0:1], {KA['gw']}")
    a(f"s_load_dwordx2 s[{P0+6}:{P0+7}], s[0:1], {KA['dbg']}")
    if not fused:
        a("v_lshrrev_b32 v1, 6, v0")
        a("v_and_b32 v0, 63, v0")
        a(f"v_readfirstlane_b32 s{S_W}, v1")
    a("v_lshrrev_b32 v10, 4, v0")
    a("v_lshrrev_b32 v11, 3, v0")
    a("v_mul_u32_u24 v11, 896, v11")
    a("v_and_b32 v12, 7, v0")
    a("v_xor_b32 v13, v12, v10")
    a("v_lshlrev_b32 v13, 4, v13")
    a("v_add_u32 v2, v11, v13")
    a("v_xor_b32 v13, 64, v13")
    a("v_add_u32 v3, v11, v13")
    a("v_and_b32 v4, 3, v0")
    a("v_lshlrev_b32 v4, 5, v4")
    a("s_waitcnt lgkmcnt(0)")
    srd_from(a, SRD_X, P0, 2048*448*2)
    srd_from(a, SRD_GW, P0+4, 448*2)
    srd_from(a, SRD_UT, P0+2, SZ_UT, WS_UT)
    srd_from(a, SRD_G, P0+2, SZ_G, WS_G)
    srd_from(a, SRD_F, P0+2, SZ_F, WS_F)
    a(f"s_lshl_b32 s{S_TMP}, s{S_W}, 4")
    a(f"s_add_u32 s{S_XOFF}, s{S_T0}, s{S_TMP}")
    a(f"s_mul_i32 s{S_XOFF}, s{S_XOFF}, 896")
    a(f"s_lshl_b32 s{S_XL}, s{S_W}, 11")
    for k in range(7):
        for i in range(2):
            a(f"s_add_u32 m0, s{S_XL}, {k*8192 + i*1024}")
            a(f"s_add_u32 s{S_TMP}, s{S_XOFF}, {8*i*896 + 128*k}")
            a(f"buffer_load_dwordx4 v{2+i}, s[{SRD_X}:{SRD_X+3}], s{S_TMP} offen lds")
    GW = 64
    for k in range(7):
        for i in range(2):
            a(f"buffer_load_dwordx4 v[{GW+8*k+4*i}:{GW+8*k+4*i+3}], v4, s[{SRD_GW}:{SRD_GW+3}], 0 offen offset:{128*k + 16*i}")
    a("v_lshrrev_b32 v10, 4, v0")
    a("v_lshrrev_b32 v11, 2, v0")
    a("v_and_b32 v11, 3, v11")
    a("v_and_b32 v12, 3, v0")
    a("v_lshlrev_b32 v13, 3, v10")
    a("v_add_u32 v13, v13, v11")
    a("v_lshlrev_b32 v13, 7, v13")
    a("v_and_b32 v14, 1, v12")
    a("v_lshlrev_b32 v14, 3, v14")
    a("v_add_u32 v13, v13, v14")
    a("v_lshrrev_b32 v14, 1, v12")
    a(f"s_lshl_b32 s{S_TMP}, s{S_W}, 1")
    a(f"v_add_u32 v14, s{S_TMP}, v14")
    a("v_and_b32 v15, 1, v10")
    a("v_lshlrev_b32 v15, 2, v15")
    a("v_lshrrev_b32 v16, 1, v11")
    a("v_add_u32 v15, v15, v16")
    a("v_xor_b32 v14, v14, v15")
    a("v_lshlrev_b32 v16, 4, v14")
    a("v_add_u32 v5, v13, v16")
    a("v_xor_b32 v14, 2, v14")
    a("v_lshlrev_b32 v16, 4, v14")
    a("v_add_u32 v6, v13, v16")
    a("v_add_u32 v6, 512, v6")
    STG = 57344
    a("v_and_b32 v10, 15, v0")
    a("v_lshrrev_b32 v11, 4, v0")
    a("v_and_b32 v12, 7, v10")
    a("v_xor_b32 v12, v12, v11")
    a("v_lshlrev_b32 v13, 7, v10")
    a(f"s_mul_i32 s{S_TMP}, s{S_W}, 14336")
    a(f"v_add_u32 v13, s{S_TMP}, v13")
    a("v_lshlrev_b32 v14, 4, v12")
    a("v_add_u32 v7, v13, v14")
    a("v_xor_b32 v14, 64, v14")
    a("v_add_u32 v8, v13, v14")
    a("v_lshlrev_b32 v9, 4, v0")
    a(f"v_add_u32 v9, s{S_TMP}, v9")
    a("v_lshrrev_b32 v10, 3, v0")
    a("v_and_b32 v11, 7, v0")
    a("v_xor_b32 v11, v11, v10")
    a("v_lshlrev_b32 v11, 4, v11")
    a("v_lshlrev_b32 v10, 12, v10")
    a("v_add_u32 v17, v10, v11")
    a(f"s_lshl_b32 s{S_XOFF}, s{S_W}, 16")
    a(f"s_lshl_b32 s{S_TMP}, s{S_T0}, 1")
    a(f"s_add_u32 s{S_XOFF}, s{S_XOFF}, s{S_TMP}")
    a("v_lshrrev_b32 v10, 2, v0")
    a(f"s_lshl_b32 s{S_TMP}, s{S_W}, 4")
    a(f"v_add_u32 v10, s{S_TMP}, v10")
    a("v_lshrrev_b32 v11, 1, v10")
    a("v_and_b32 v11, 7, v11")
    a("v_and_b32 v12, 3, v0")
    a("v_lshlrev_b32 v12, 1, v12")
    a("v_xor_b32 v12, v12, v11")
    a("v_lshlrev_b32 v13, 7, v10")
    a("v_lshlrev_b32 v14, 4, v12")
    a("v_add_u32 v18, v13, v14")
    a("v_xor_b32 v14, 16, v14")
    a("v_add_u32 v19, v13, v14")
    a("s_waitcnt vmcnt(0)")
    a("s_barrier")
    TR = 120
    GX = 176
    for k in range(7):
        b = TR + 8*k
        for o in range(2):
            a(f"ds_read_b64_tr_b16 v[{b+4*o}:{b+4*o+1}], v5 offset:{k*8192 + o*4096}")
            a(f"ds_read_b64_tr_b16 v[{b+4*o+2}:{b+4*o+3}], v6 offset:{k*8192 + o*4096}")
    for k in range(7):
        a(f"ds_read_b128 v[{GX+8*k}:{GX+8*k+3}], v18 offset:{k*8192}")
        a(f"ds_read_b128 v[{GX+8*k+4}:{GX+8*k+7}], v19 offset:{k*8192}")
    a("s_waitcnt lgkmcnt(0)")
    a("s_barrier")
    for k in range(7):
        b = TR + 8*k
        a(f"ds_write_b128 v7, v[{b}:{b+3}] offset:{k*2048}")
        a(f"ds_write_b128 v8, v[{b+4}:{b+7}] offset:{k*2048}")
    a("s_waitcnt lgkmcnt(0)")
    for k in range(7):
        b = TR + 8*k
        a(f"ds_read_b128 v[{b}:{b+3}], v9 offset:{k*2048}")
        a(f"ds_read_b128 v[{b+4}:{b+7}], v9 offset:{k*2048+1024}")
    for k in range(7):
        b = TR + 8*k
        a(f"s_waitcnt lgkmcnt({12 - 2*k})")
        for i in range(2):
            a(f"s_add_u32 s{S_TMP}, s{S_XOFF}, {(64*k + 8*i)*4096}")
            a(f"buffer_store_dwordx4 v[{b+4*i}:{b+4*i+3}], v17, s[{SRD_UT}:{SRD_UT+3}], s{S_TMP} offen sc1")
    a("v_mov_b32 v20, 0")
    a("v_mov_b32 v21, 0")
    a("s_mov_b32 s36, 0xffff0000")
    for k in range(7):
        for j in range(8):
            x = GX + 8*k + j; g = GW + 8*k + j
            a(f"v_lshlrev_b32 v22, 16, v{x}")
            a(f"v_and_b32 v{x}, s36, v{x}")
            a(f"v_lshlrev_b32 v23, 16, v{g}")
            a(f"v_and_b32 v{g}, s36, v{g}")
            a(f"v_mul_f32 v22, v22, v23")
            a(f"v_mul_f32 v{x}, v{x}, v{g}")
            a(f"v_cvt_pk_bf16_f32 v22, v22, v{x}")
            a(f"v_lshlrev_b32 v23, 16, v22")
            a(f"v_and_b32 v22, s36, v22")
            a(f"v_add_f32 v20, v20, v23")
            a(f"v_add_f32 v20, v20, v22")
        if k == 2:
            a("s_waitcnt vmcnt(0)")
            a("s_barrier")
            a(f"s_cmp_lg_u32 s{S_W}, 0")
            a("s_cbranch_scc1 aux_u_done")
            wait_reset(a, "aux_wr", P0+6, S_TMP, S_TMP2, 10, 11)
            a(f"s_lshl_b32 s{S_TMP}, s{s_ax}, 2")
            a(f"s_add_u32 s{S_TMP}, s{S_TMP}, {FL_U*128}")
            set_flag(a, SRD_F, S_TMP, 10, 11, nrep=8)
            a.label("aux_u_done")
    a("s_nop 1")
    a("v_add_f32_dpp v20, v20, v20 quad_perm:[1,0,3,2] row_mask:0xf bank_mask:0xf")
    a("s_nop 1")
    a("v_add_f32_dpp v20, v20, v20 quad_perm:[2,3,0,1] row_mask:0xf bank_mask:0xf")
    a("v_cvt_pk_bf16_f32 v20, v20, v20")
    a("v_lshlrev_b32 v20, 16, v20")
    a("v_mul_f32 v20, 0xbfb8aa3b, v20")
    a("v_exp_f32 v20, v20")
    a("s_nop 0")
    a("v_add_f32 v20, 1.0, v20")
    a("v_rcp_f32 v20, v20")
    a("s_nop 0")
    a("v_cvt_pk_bf16_f32 v20, v20, v20")
    a("v_lshlrev_b32 v20, 16, v20")
    a("v_lshrrev_b32 v10, 2, v0")
    a("v_lshlrev_b32 v10, 2, v10")
    a(f"s_lshl_b32 s{S_TMP}, s{S_W}, 4")
    a(f"s_add_u32 s{S_TMP}, s{S_TMP}, s{S_T0}")
    a(f"s_lshl_b32 s{S_TMP}, s{S_TMP}, 2")
    a("v_and_b32 v11, 3, v0")
    a("v_cmp_eq_u32 vcc, 0, v11")
    a("s_and_saveexec_b64 s[38:39], vcc")
    a(f"buffer_store_dword v20, v10, s[{SRD_G}:{SRD_G+3}], s{S_TMP} offen sc1")
    a("s_mov_b64 exec, s[38:39]")
    a("s_waitcnt vmcnt(0)")
    a("s_barrier")
    a(f"s_cmp_lg_u32 s{S_W}, 0")
    a("s_cbranch_scc1 aux_done")
    a(f"s_lshl_b32 s{S_TMP}, s{s_ax}, 2")
    a(f"s_add_u32 s{S_TMP}, s{S_TMP}, {FL_G*128}")
    set_flag(a, SRD_F, S_TMP, 10, 11)
    a.label("aux_done")
```

```python
from asmlib import *
import gemm1, aux, side, gemm2

def make_prefetch(opts):
    def prefetch(a, phase):
        if phase == 1:
            if not opts.get("pf1", False): return 0
            a.c("L2 prefetch phase 1: x half and W group of this XCD")
            a(f"s_load_dwordx2 s[8:9], s[0:1], {KA['u']}")
            a(f"s_load_dwordx4 s[56:59], s[0:1], {KA['wg']}")
            a("s_sub_u32 s53, s2, 256")
            a("s_lshr_b32 s53, s53, 3")
            a("s_lshl_b32 s53, s53, 2")
            a("s_add_u32 s53, s53, s4")
            a("s_lshl_b32 s54, s53, 6")
            a("v_add_u32 v60, s54, v0")
            a("s_mov_b32 s55, 37450")
            a("v_mul_u32_u24 v61, s55, v60")
            a("v_lshrrev_b32 v61, 18, v61")
            a("v_mul_u32_u24 v62, 7, v61")
            a("v_sub_u32 v62, v60, v62")
            a("v_mul_u32_u24 v61, 896, v61")
            a("v_lshlrev_b32 v62, 6, v62")
            a("v_add_u32 v61, v61, v62")
            a("s_lshr_b32 s54, s53, 1")
            a("s_lshl_b32 s54, s54, 6")
            a("v_add_u32 v63, s54, v0")
            a("v_lshrrev_b32 v64, 4, v63")
            a("v_and_b32 v63, 15, v63")
            a("v_mul_u32_u24 v64, 3584, v64")
            a("v_lshlrev_b32 v63, 6, v63")
            a("v_add_u32 v63, v63, v64")
            a("s_and_b32 s53, s53, 1")
            a("s_waitcnt lgkmcnt(0)")
            a(f"s_mov_b32 s10, {2048*448*2}"); a("s_mov_b32 s11, 0x20000")
            a("s_cmp_eq_u32 s53, 0")
            a("s_cselect_b32 s20, s56, s58")
            a("s_cselect_b32 s21, s57, s59")
            a(f"s_mov_b32 s22, {448*1792*2}"); a("s_mov_b32 s23, 0x20000")
            a("s_and_b32 s53, s2, 7")
            a("s_and_b32 s54, s53, 1")
            a(f"s_mul_i32 s54, s54, {1024*896}")
            a("s_lshr_b32 s55, s53, 1")
            a("s_lshr_b32 s56, s55, 1")
            a("s_mul_i32 s56, s56, 7")
            a("s_and_b32 s55, s55, 1")
            a("s_lshl_b32 s55, s55, 2")
            a("s_add_u32 s55, s55, s56")
            a("s_lshl_b32 s55, s55, 8")
            for h in range(2):
                a(f"s_add_u32 s56, s54, {7*64*h}")
                a(f"buffer_load_dword v{200+2*h}, v61, s[8:11], s56 offen")
                a(f"s_add_u32 s56, s55, {224*3584*h}")
                a(f"buffer_load_dword v{201+2*h}, v63, s[20:23], s56 offen")
            return 4
        if phase == 2:
            if not opts.get("pf2", False): return 0
            a.c("L2 prefetch phase 2: Wd (whole) for this XCD")
            a(f"s_load_dwordx2 s[20:21], s[0:1], {KA['wd']}")
            a("s_sub_u32 s53, s2, 256")
            a("s_lshr_b32 s53, s53, 3")
            a("s_lshl_b32 s53, s53, 2")
            a("s_add_u32 s53, s53, s4")
            a("s_mul_i32 s53, s53, 14336")
            a("v_lshlrev_b32 v60, 6, v0")
            a("s_waitcnt lgkmcnt(0)")
            a(f"s_mov_b32 s22, {1792*448*2}"); a("s_mov_b32 s23, 0x20000")
            for i in range(4):
                a(f"s_add_u32 s56, s53, {4096*i}")
                if i == 3:
                    a("s_mov_b64 exec, 0xffffffff")
                a(f"buffer_load_dword v{204+i}, v60, s[20:23], s56 offen")
            a("s_mov_b64 exec, -1")
            return 4
    return prefetch

def do_reset(a, s_cp, srd_f, s_dbg):
    a(f"s_cmp_lg_u32 s2, 256")
    a("s_cbranch_scc1 reset_skip")
    a("s_cmp_lg_u32 s4, 0")
    a("s_cbranch_scc1 reset_skip")
    a("v_mov_b32 v100, 0"); a("v_mov_b32 v101, 0"); a("v_mov_b32 v102, 0"); a("v_mov_b32 v103, 0")
    a("v_lshlrev_b32 v104, 4, v0")
    for i in range(4):
        a(f"buffer_store_dwordx4 v[100:103], v104, s[{srd_f}:{srd_f+3}], 0 offen offset:{1024*i} sc1")
    a("s_waitcnt vmcnt(0)")
    a("v_mov_b32 v105, 1")
    a("s_mov_b64 exec, 1")
    a(f"global_store_dword v100, v105, s[{s_dbg}:{s_dbg+1}] sc1")
    a("s_mov_b64 exec, -1")
    a.label("reset_skip")

def fused(opts):
    stamps = opts.get("stamps", False)
    gemm2.SLEEP = opts.get('sleep', 2)
    Stamps.ALLREAL = not opts.get('cyc')
    a = Asm()
    st = Stamps(a, 60 if not stamps else 60, stamps)
    a("s_cmp_ge_u32 s2, 480")
    a("s_cbranch_scc1 f_exit")
    st.stamp(real=True); st.stamp()
    a("v_lshrrev_b32 v1, 6, v0")
    a("v_and_b32 v0, 63, v0")
    a("v_readfirstlane_b32 s4, v1")
    a("s_cmp_ge_u32 s2, 256")
    a("s_cbranch_scc1 f_side" if not opts.get("noside") else "s_cbranch_scc1 f_exit")
    if opts.get("prio"): a(f"s_setprio {opts['prio']}")
    a("s_and_b32 s40, s2, 7")
    a("s_lshr_b32 s41, s2, 3")
    a("s_and_b32 s42, s40, 1")
    a("s_lshr_b32 s43, s40, 1")
    a("s_lshr_b32 s44, s41, 3")
    a("s_and_b32 s45, s41, 7")
    a("s_and_b32 s46, s43, 1")
    a("s_sub_u32 s47, 4, s46")
    a("s_cmp_ge_u32 s44, s47")
    a("s_cbranch_scc1 f_aux")
    a("s_lshl_b32 s48, s42, 3")
    a("s_add_u32 s48, s48, s45")
    a("s_lshr_b32 s49, s43, 1")
    a("s_mul_i32 s49, s49, 7")
    a("s_lshl_b32 s46, s46, 2")
    a("s_add_u32 s49, s49, s46")
    a("s_add_u32 s49, s49, s44")
    a("s_add_u32 s50, s48, s49")
    if not opts.get("rot", 1): a("s_mov_b32 s50, 0")
    a("s_mul_i32 s51, s50, 37")
    a("s_lshr_b32 s51, s51, 8")
    a("s_mul_i32 s51, s51, 7")
    a("s_sub_u32 s50, s50, s51")
    gemm1.gemm1(a, st, 48, 49, 50, exact_round=opts.get("exact", True), NW=opts.get('NW', 3), NX=opts.get('NX', 2))
    a("s_branch f_g2")
    a.label("f_aux")
    a("s_lshr_b32 s48, s43, 1")
    a("s_lshl_b32 s48, s48, 1")
    a("s_add_u32 s48, s48, s42")
    a("s_lshl_b32 s48, s48, 3")
    a("s_add_u32 s48, s48, s45")
    aux.aux(a, 48, fused=True)
    if stamps:
        n0 = st.n; st.n = 6; st.stamp(); st.n = n0
    a.label("f_g2")
    a("s_lshr_b32 s41, s2, 3")
    a("s_cmp_ge_u32 s41, 28" if not opts.get("nog2") else "s_cmp_ge_u32 s41, 0")
    a("s_cbranch_scc1 f_early")
    a("s_and_b32 s40, s2, 7")
    a("s_lshl_b32 s40, s40, 2")
    a("s_and_b32 s42, s41, 3")
    a("s_add_u32 s44, s40, s42")
    a("s_lshr_b32 s45, s41, 2")
    a("s_barrier")
    gemm2.gemm2(a, 44, 45, flags=True, stamps=st, have_wave=True, prefetch_h=opts.get("pfh", False), rot=opts.get('rot', 1))
    a("s_endpgm")
    a.label("f_early")
    if stamps:
        n0 = st.n; st.n = 7; st.flush(4); st.n = n0
    a("s_endpgm")
    a.label("f_side")
    a("s_and_b32 s40, s2, 7")
    a("s_sub_u32 s41, s2, 256")
    a("s_lshr_b32 s41, s41, 3")
    a("s_mul_i32 s3, s40, 28")
    a("s_add_u32 s3, s3, s41")
    st2 = Stamps(a, 60, stamps); st2.n = 2
    side.side(a, 3, flags=True, stamps=st2, fused=True, prefetch=make_prefetch(opts), kmode=opts.get('kmode', 0), reset=do_reset)
    a.label("f_exit")
    a("s_endpgm")
    return a
```

```python
from asmlib import *

def gemm1(a, st, s_ti, s_tj, s_rot, exact_round=True, NW=3, NX=2, sc1=True):
    S_W = 4
    S_T0 = 5; S_F0 = 6
    SRD_X = 8; SRD_W = 12; SRD_H = 16
    S_XCUR = 20; S_WCUR = 21; S_XL = 22; S_WL = 23
    S_TMP = 24; S_TMP2 = 25; S_XLIM = 26; S_WLIM = 27
    P0 = 28
    a.c("---- GEMM1 role ----")
    a(f"s_load_dwordx2 s[{P0}:{P0+1}], s[0:1], {KA['u']}")
    a(f"s_load_dwordx4 s[{P0+4}:{P0+7}], s[0:1], {KA['wg']}")
    a(f"s_load_dwordx2 s[{P0+2}:{P0+3}], s[0:1], {KA['ws']}")
    a(f"s_lshl_b32 s{S_T0}, s{s_ti}, 7")
    a(f"s_lshl_b32 s{S_F0}, s{s_tj}, 7")
    V_DW = 2; V_DX0 = 3; V_DX1 = 4
    a("v_lshrrev_b32 v10, 4, v0")
    a("v_and_b32 v11, 15, v0")
    a("v_lshlrev_b32 v12, 1, v10")
    a("v_xor_b32 v11, v11, v12")
    a(f"s_lshr_b32 s{S_TMP}, s{S_W}, 1")
    a(f"s_lshl_b32 s{S_TMP2}, s{S_TMP}, 3")
    a(f"v_xor_b32 v11, s{S_TMP2}, v11")
    a("v_lshlrev_b32 v11, 4, v11")
    a("v_mul_u32_u24 v12, 3584, v10")
    a(f"v_add_u32 v{V_DW}, v11, v12")
    a("v_lshrrev_b32 v11, 3, v0")
    a("v_mul_u32_u24 v11, 896, v11")
    a("v_and_b32 v12, 7, v0")
    a("v_xor_b32 v13, v12, v10")
    a("v_lshlrev_b32 v13, 4, v13")
    a(f"v_add_u32 v{V_DX0}, v11, v13")
    a("v_xor_b32 v13, 64, v13")
    a(f"v_add_u32 v{V_DX1}, v11, v13")
    a(f"s_lshl_b32 s{S_TMP2}, s{S_W}, 5")
    a(f"s_add_u32 s{S_XCUR}, s{S_T0}, s{S_TMP2}")
    a(f"s_mul_i32 s{S_XCUR}, s{S_XCUR}, 896")
    a(f"s_add_u32 s{S_XLIM}, s{S_XCUR}, 896")
    a(f"s_lshl_b32 s{S_TMP2}, s{s_rot}, 7")
    a(f"s_add_u32 s{S_XCUR}, s{S_XCUR}, s{S_TMP2}")
    a(f"s_lshl_b32 s{S_XL}, s{S_W}, 12")
    a(f"s_add_u32 s{S_XL}, s{S_XL}, {NW*16384}")
    a(f"s_and_b32 s{S_TMP2}, s{S_W}, 1")
    a(f"s_mul_i32 s{S_WCUR}, s{S_TMP2}, {16*3584}")
    a(f"s_lshl_b32 s{S_WL}, s{S_F0}, 1")
    a(f"s_add_u32 s{S_WCUR}, s{S_WCUR}, s{S_WL}")
    a(f"s_add_u32 s{S_WLIM}, s{S_WCUR}, {448*3584}")
    a(f"s_mul_i32 s{S_WL}, s{s_rot}, {64*3584}")
    a(f"s_add_u32 s{S_WCUR}, s{S_WCUR}, s{S_WL}")
    a(f"s_lshl_b32 s{S_WL}, s{S_TMP}, 13")
    a(f"s_lshl_b32 s{S_TMP2}, s{S_TMP2}, 12")
    a(f"s_add_u32 s{S_WL}, s{S_WL}, s{S_TMP2}")
    a("s_waitcnt lgkmcnt(0)")
    srd_from(a, SRD_X, P0, 2048*448*2)
    a(f"s_cmp_eq_u32 s{S_TMP}, 0")
    a(f"s_cselect_b32 s{SRD_W}, s{P0+4}, s{P0+6}")
    a(f"s_cselect_b32 s{SRD_W+1}, s{P0+5}, s{P0+7}")
    a(f"s_mov_b32 s{SRD_W+2}, {448*1792*2}")
    a(f"s_mov_b32 s{SRD_W+3}, 0x20000")

    vm = []
    def dma_instrs(d):
        kind, idx = d
        out = []
        for i in range(4):
            if kind == "W":
                g = [f"s_add_u32 m0, s{S_WL}, {(idx % NW)*16384 + i*1024}",
                     f"s_add_u32 s{S_TMP}, s{S_WCUR}, {4*i*3584}",
                     f"buffer_load_dwordx4 v{V_DW}, s[{SRD_W}:{SRD_W+3}], s{S_TMP} offen lds"]
                if i == 3:
                    g += [f"s_add_u32 s{S_WCUR}, s{S_WCUR}, {32*3584}",
                          f"s_sub_u32 s{S_TMP2}, s{S_WCUR}, {448*3584}",
                          f"s_cmp_ge_u32 s{S_WCUR}, s{S_WLIM}",
                          f"s_cselect_b32 s{S_WCUR}, s{S_TMP2}, s{S_WCUR}"]
            else:
                g = [f"s_add_u32 m0, s{S_XL}, {(idx % NX)*16384 + i*1024}",
                     f"s_add_u32 s{S_TMP}, s{S_XCUR}, {8*i*896}",
                     f"buffer_load_dwordx4 v{V_DX0 + (i & 1)}, s[{SRD_X}:{SRD_X+3}], s{S_TMP} offen lds"]
                if i == 3:
                    g += [f"s_add_u32 s{S_XCUR}, s{S_XCUR}, 128",
                          f"s_sub_u32 s{S_TMP2}, s{S_XCUR}, 896",
                          f"s_cmp_ge_u32 s{S_XCUR}, s{S_XLIM}",
                          f"s_cselect_b32 s{S_XCUR}, s{S_TMP2}, s{S_XCUR}"]
            out.append(g)
        vm.append(d)
        return out
    def wait_for(needs):
        last = max(vm.index(n) for n in needs)
        a(f"s_waitcnt vmcnt({4 * (len(vm) - 1 - last)})")
    order = [("X",0),("W",0),("W",1),("X",1),("W",2),("W",3),("X",2),("W",4),("W",5)]
    for d in order:
        if (d[0] == "W" and d[1] < NW) or (d[0] == "X" and d[1] < NX):
            for g in dma_instrs(d):
                for l in g: a(l)
    srd_from(a, SRD_H, P0+2, SZ_H, WS_H)

    V_AW = 5
    V_AX = 14
    a("v_lshrrev_b32 v10, 4, v0")
    a("v_lshrrev_b32 v11, 2, v0")
    a("v_and_b32 v11, 3, v11")
    a("v_and_b32 v12, 3, v0")
    a("v_lshrrev_b32 v13, 1, v10")
    a("v_and_b32 v10, 1, v10")
    a("v_lshlrev_b32 v18, 13, v10")
    a("v_lshlrev_b32 v19, 3, v13")
    a("v_add_u32 v19, v19, v11")
    a("v_lshlrev_b32 v19, 8, v19")
    a("v_add_u32 v18, v18, v19")
    a("v_lshrrev_b32 v19, 1, v12")
    a("v_lshlrev_b32 v19, 3, v19")
    a("v_add_u32 v18, v18, v19")
    a("v_and_b32 v19, 1, v12")
    a("v_lshlrev_b32 v20, 1, v11")
    a("v_xor_b32 v19, v19, v20")
    a("v_lshlrev_b32 v20, 3, v10")
    a("v_xor_b32 v19, v19, v20")
    a(f"s_lshr_b32 s{S_TMP}, s{S_W}, 1")
    a(f"s_lshl_b32 s{S_TMP}, s{S_TMP}, 3")
    for rb in range(4):
        a(f"s_add_u32 s{S_TMP2}, s{S_TMP}, {rb*2}")
        a(f"v_xor_b32 v20, s{S_TMP2}, v19")
        a("v_lshlrev_b32 v20, 4, v20")
        a(f"v_add_u32 v{V_AW+rb}, v18, v20")
    a("v_and_b32 v10, 31, v0")
    a("v_lshrrev_b32 v11, 5, v0")
    a("v_lshrrev_b32 v12, 1, v10")
    a("v_and_b32 v12, 7, v12")
    a("v_xor_b32 v12, v12, v11")
    a(f"s_and_b32 s{S_TMP}, s{S_W}, 1")
    a(f"s_lshl_b32 s{S_TMP}, s{S_TMP}, 13")
    a(f"s_add_u32 s{S_TMP}, s{S_TMP}, {NW*16384}")
    a("v_lshlrev_b32 v10, 7, v10")
    a(f"v_add_u32 v10, s{S_TMP}, v10")
    for ks in range(4):
        a(f"v_xor_b32 v13, {2*ks}, v12")
        a("v_lshlrev_b32 v13, 4, v13")
        a(f"v_add_u32 v{V_AX+ks}, v10, v13")

    FR = [24, 48]
    ACC = 128
    def acc(rb, cb): return ACC + 16*(rb*2 + cb)
    def reads(step):
        u = step // 2; s = step % 2; v = step // 4; ks = step % 4
        fb = FR[step % 2]
        R = []
        def ra(rb):
            for h2 in range(2):
                R.append(f"ds_read_b64_tr_b16 v[{fb+4*rb+2*h2}:{fb+4*rb+2*h2+1}], v{V_AW+rb} offset:{(u%NW)*16384 + (16*s+4*h2)*256}")
        def rbb(cb):
            R.append(f"ds_read_b128 v[{fb+16+4*cb}:{fb+16+4*cb+3}], v{V_AX+ks} offset:{(v%NX)*16384 + cb*4096}")
        rbb(0); ra(0); ra(1); rbb(1); ra(2); ra(3)
        return R
    def mfmas(step):
        fb = FR[step % 2]
        M = []
        for (rb, cb) in [(0,0),(1,0),(0,1),(1,1),(2,0),(2,1),(3,0),(3,1)]:
            c = "0" if step == 0 else f"v[{acc(rb,cb)}:{acc(rb,cb)+15}]"
            M.append(f"v_mfma_f32_32x32x16_bf16 v[{acc(rb,cb)}:{acc(rb,cb)+15}], v[{fb+4*rb}:{fb+4*rb+3}], v[{fb+16+4*cb}:{fb+16+4*cb+3}], {c}")
        return M
    st.stamp()
    wait_for([("X",0),("W",0)])
    a("s_barrier")
    st.stamp()
    for r in reads(0): a(r)
    pend = []
    for u in range(14):
        for s in range(2):
            step = 2*u + s
            a("s_waitcnt lgkmcnt(0)")
            if s == 1:
                need = []
                if u + 1 < 14: need = [("W", u+1), ("X", (u+1)//2)]
                if need: wait_for(need)
                a("s_barrier")
                assert not pend
                dmas = []
                if u + NW < 14: dmas.append(("W", u+NW))
                if u % 2 == 1 and (u//2) + NX < 7: dmas.append(("X", u//2 + NX))
                for d in dmas: pend += dma_instrs(d)
            M = mfmas(step)
            R = reads(step + 1) if step + 1 < 28 else []
            ri = 0
            for mi, m in enumerate(M):
                a(m)
                if pend and mi % 2 == 1:
                    for line in pend.pop(0): a(line)
                for _ in range(2):
                    if ri < len(R):
                        a(R[ri]); ri += 1
    st.stamp()
    a("v_and_b32 v10, 31, v0")
    a("v_lshrrev_b32 v11, 5, v0")
    a("v_and_b32 v12, 7, v10")
    a("v_xor_b32 v12, v12, v11")
    a(f"s_and_b32 s{S_TMP}, s{S_W}, 1")
    a(f"s_lshl_b32 s{S_TMP}, s{S_TMP}, 14")
    a("v_lshlrev_b32 v10, 8, v10")
    a(f"v_add_u32 v10, s{S_TMP}, v10")
    a(f"s_lshr_b32 s{S_TMP}, s{S_W}, 1")
    a(f"s_lshl_b32 s{S_TMP}, s{S_TMP}, 3")
    for rb in range(4):
        a(f"s_add_u32 s{S_TMP2}, s{S_TMP}, {2*rb}")
        a(f"v_xor_b32 v13, s{S_TMP2}, v12")
        a("v_lshlrev_b32 v13, 4, v13")
        a(f"v_add_u32 v{V_AW+rb}, v10, v13")
    a("s_mov_b32 s36, 0xffff0000")
    a("v_lshrrev_b32 v10, 4, v0")
    a("v_and_b32 v11, 15, v0")
    a("v_xor_b32 v12, v11, v10")
    a("v_lshlrev_b32 v12, 4, v12")
    a("v_mul_u32_u24 v13, 3584, v10")
    a("v_add_u32 v2, v12, v13")
    a("v_xor_b32 v12, 64, v12")
    a("v_add_u32 v3, v12, v13")
    a(f"s_lshl_b32 s{S_TMP}, s{S_W}, 13")
    a("v_lshlrev_b32 v4, 4, v0")
    a(f"v_add_u32 v4, s{S_TMP}, v4")
    a(f"s_lshl_b32 s{S_TMP2}, s{S_W}, 5")
    a(f"s_add_u32 s{S_TMP2}, s{S_TMP2}, s{S_T0}")
    a(f"s_mul_i32 s{S_TMP2}, s{S_TMP2}, 3584")
    a(f"s_lshl_b32 s{S_TMP}, s{S_F0}, 1")
    a(f"s_add_u32 s{S_TMP2}, s{S_TMP2}, s{S_TMP}")
    a("s_barrier")
    order = [(0,0),(1,0),(0,1),(1,1),(2,0),(2,1),(3,0),(3,1)]
    for n, (rb, cb) in enumerate(order):
        A0 = acc(rb, cb)
        o = 24 + 4*(n % 2)
        for p in range(4):
            g0, g1, u0, u1 = A0+2*p, A0+2*p+1, A0+8+2*p, A0+8+2*p+1
            if exact_round:
                a(f"v_cvt_pk_bf16_f32 v32, v{g0}, v{g1}")
                a(f"v_cvt_pk_bf16_f32 v33, v{u0}, v{u1}")
                a(f"v_lshlrev_b32 v34, 16, v32")
                a(f"v_and_b32 v35, s36, v32")
                a(f"v_lshlrev_b32 v36, 16, v33")
                a(f"v_and_b32 v37, s36, v33")
                a(f"v_mul_f32 v34, v34, v36")
                a(f"v_mul_f32 v35, v35, v37")
                a(f"v_cvt_pk_bf16_f32 v{o+p}, v34, v35")
            else:
                a(f"v_pk_mul_f32 v[34:35], v[{g0}:{g1}], v[{u0}:{u1}]")
                a(f"v_cvt_pk_bf16_f32 v{o+p}, v34, v35")
        a(f"ds_write_b128 v{V_AW+rb}, v[{o}:{o+3}] offset:{cb*8192}")
    a("s_waitcnt lgkmcnt(0)")
    a("s_barrier")
    for i in range(8):
        a(f"ds_read_b128 v[{24+4*i}:{27+4*i}], v4 offset:{i*1024}")
    for i in range(8):
        a(f"s_waitcnt lgkmcnt({7-i})")
        a(f"s_add_u32 s{S_TMP}, s{S_TMP2}, {4*i*3584}")
        a(f"buffer_store_dwordx4 v[{24+4*i}:{27+4*i}], v{2+(i&1)}, s[{SRD_H}:{SRD_H+3}], s{S_TMP} offen {'sc1' if sc1 else ''}")
    st.stamp()
    a(f"s_load_dwordx2 s[{P0}:{P0+1}], s[0:1], {KA['dbg']}")
    srd_from(a, SRD_X, P0+2, SZ_F, WS_F)
    a("s_waitcnt vmcnt(0) lgkmcnt(0)")
    st.stamp()
    a("s_barrier")
    a(f"s_cmp_lg_u32 s{S_W}, 0")
    a("s_cbranch_scc1 g1_flagged")
    wait_reset(a, "g1_wr", P0, S_TMP, S_TMP2, 10, 11)
    a(f"s_lshl_b32 s{S_TMP}, s{S_T0}, 0")
    a(f"s_lshr_b32 s{S_TMP2}, s{S_F0}, 5")
    a(f"s_add_u32 s{S_TMP}, s{S_TMP}, s{S_TMP2}")
    set_flag(a, SRD_X, S_TMP, 10, 11)
    a.label("g1_flagged")
```

```python
from asmlib import *

NSLOT = 5
SLEEP = 2
def poll(a, name, s_ptr, voff_reg, off, target, s_tmp, vtmp, s_cnt=38):
    a(f"s_mov_b32 s{s_cnt}, 0")
    a.label(name)
    a(f"global_load_dword v{vtmp}, v{voff_reg}, s[{s_ptr}:{s_ptr+1}] offset:{off} sc1")
    a("s_waitcnt vmcnt(0)")
    a(f"v_readfirstlane_b32 s{s_tmp}, v{vtmp}")
    a(f"s_add_u32 s{s_cnt}, s{s_cnt}, 1")
    a(f"s_cmp_ge_u32 s{s_cnt}, 200000")
    a(f"s_cbranch_scc1 {name}_ok")
    a(f"s_cmp_ge_u32 s{s_tmp}, {target}")
    a(f"s_cbranch_scc1 {name}_ok")
    a(f"s_sleep {SLEEP}")
    a(f"s_branch {name}")
    a.label(name + "_ok")

def gemm2(a, s_tt, s_ct, flags=True, stamps=False, have_wave=False, prefetch_h=False, rot=True):
    S_W = 4; S_T0 = 5; S_D0 = 6
    SRD_H = 8; SRD_WD = 12; SRD_AT = 16; SRD_O = 20
    S_TMP = 24; S_TMP2 = 25; S_HOFF = 26; S_WOFF = 27
    P0 = 28
    S_L = 36; SRD_G = 40; SRD_F = 48
    st = stamps if isinstance(stamps, Stamps) else Stamps(a, 60, stamps)
    a.c("---- GEMM2 role ----")
    if not isinstance(stamps, Stamps):
        st.stamp(real=True); st.stamp()
    a(f"s_load_dwordx2 s[{P0}:{P0+1}], s[0:1], {KA['wd']}")
    a(f"s_load_dwordx2 s[{P0+2}:{P0+3}], s[0:1], {KA['ws']}")
    a(f"s_load_dwordx4 s[{P0+4}:{P0+7}], s[0:1], {KA['out']}")
    if not have_wave:
        a("v_lshrrev_b32 v1, 6, v0")
        a("v_and_b32 v0, 63, v0")
        a(f"v_readfirstlane_b32 s{S_W}, v1")
    a(f"s_lshl_b32 s{S_T0}, s{s_tt}, 6")
    a(f"s_lshl_b32 s{S_D0}, s{s_ct}, 6")
    V_H0, V_H1, V_WD = 2, 3, 4
    a("v_lshrrev_b32 v10, 4, v0")
    a("v_lshrrev_b32 v11, 3, v0")
    a("v_and_b32 v12, 7, v0")
    a("v_xor_b32 v13, v12, v10")
    a("v_lshlrev_b32 v13, 4, v13")
    a("v_mul_u32_u24 v14, 3584, v11")
    a(f"v_add_u32 v{V_H0}, v14, v13")
    a("v_xor_b32 v13, 64, v13")
    a(f"v_add_u32 v{V_H1}, v14, v13")
    a("v_and_b32 v13, 1, v10")
    a("v_lshlrev_b32 v13, 2, v13")
    a("v_xor_b32 v13, v13, v12")
    a("v_lshlrev_b32 v13, 4, v13")
    a("v_mul_u32_u24 v14, 896, v11")
    a(f"v_add_u32 v{V_WD}, v14, v13")
    a("s_waitcnt lgkmcnt(0)")
    srd_from(a, SRD_WD, P0, 1792*448*2)
    srd_from(a, SRD_H, P0+2, SZ_H, WS_H)
    srd_from(a, SRD_AT, P0+2, SZ_AT, WS_AT)
    srd_from(a, SRD_O, P0+4, 2048*448*2)
    srd_from(a, SRD_G, P0+2, SZ_G, WS_G)
    srd_from(a, SRD_F, P0+2, SZ_F, WS_F)
    a(f"s_lshl_b32 s{S_TMP}, s{S_W}, 4")
    a(f"s_add_u32 s{S_HOFF}, s{S_T0}, s{S_TMP}")
    a(f"s_mul_i32 s{S_HOFF}, s{S_HOFF}, 3584")
    a(f"s_mul_i32 s{S_WOFF}, s{S_TMP}, 896")
    a(f"s_lshl_b32 s{S_TMP2}, s{S_D0}, 1")
    a(f"s_add_u32 s{S_WOFF}, s{S_WOFF}, s{S_TMP2}")
    a(f"s_lshl_b32 s{S_L}, s{S_W}, 11")
    S_HK = 39; S_WK = 46
    a(f"s_and_b32 s{S_TMP}, s{s_tt}, 3")
    a(f"s_mul_i32 s{S_TMP}, s{S_TMP}, 7")
    a(f"s_lshl_b32 s{S_TMP2}, s{s_ct}, 2")
    a(f"s_add_u32 s{S_TMP}, s{S_TMP}, s{S_TMP2}")
    a(f"s_sub_u32 s{S_TMP2}, s{S_TMP}, 28")
    a(f"s_cmp_ge_u32 s{S_TMP}, 28")
    a(f"s_cselect_b32 s{S_TMP}, s{S_TMP2}, s{S_TMP}")
    if not rot: a(f"s_mov_b32 s{S_TMP}, 0")
    a(f"s_lshl_b32 s{S_HK}, s{S_TMP}, 7")
    a(f"s_mul_i32 s{S_WK}, s{S_TMP}, {64*896}")
    vm = []
    sc = "sc1" if flags else ""
    def dma(kind, u):
        out = []
        for i in range(2):
            if kind == "H":
                g = [f"s_add_u32 m0, s{S_L}, {(u % NSLOT)*16384 + i*1024}",
                     f"s_add_u32 s{S_TMP}, s{S_HOFF}, s{S_HK}"]
                if i: g.append(f"s_add_u32 s{S_TMP}, s{S_TMP}, {8*i*3584}")
                g.append(f"buffer_load_dwordx4 v{V_H0+i}, s[{SRD_H}:{SRD_H+3}], s{S_TMP} offen {sc} lds")
                if i == 1:
                    g += [f"s_add_u32 s{S_HK}, s{S_HK}, 128", f"s_cmp_ge_u32 s{S_HK}, 3584", f"s_cselect_b32 s{S_HK}, 0, s{S_HK}"]
            else:
                g = [f"s_add_u32 m0, s{S_L}, {(u % NSLOT)*16384 + 8192 + i*1024}",
                     f"s_add_u32 s{S_TMP}, s{S_WOFF}, s{S_WK}"]
                if i: g.append(f"s_add_u32 s{S_TMP}, s{S_TMP}, {8*i*896}")
                g.append(f"buffer_load_dwordx4 v{V_WD}, s[{SRD_WD}:{SRD_WD+3}], s{S_TMP} offen lds")
                if i == 1:
                    g += [f"s_add_u32 s{S_WK}, s{S_WK}, {64*896}", f"s_cmp_ge_u32 s{S_WK}, {1792*896}", f"s_cselect_b32 s{S_WK}, 0, s{S_WK}"]
            out.append(g)
        vm.append((kind, u))
        return out
    def wait_for(needs):
        last = max(vm.index(n) for n in needs)
        a(f"s_waitcnt vmcnt({2*(len(vm) - 1 - last)})")
    for u in range(NSLOT):
        for g in dma("W", u):
            for l in g: a(l)
    V_B = 5; V_A0 = 6; V_A1 = 7
    a("v_and_b32 v10, 31, v0")
    a("v_lshrrev_b32 v11, 5, v0")
    a("v_lshrrev_b32 v12, 1, v10")
    a("v_and_b32 v12, 7, v12")
    a(f"s_lshl_b32 s{S_TMP}, s{S_W}, 1")
    a(f"v_add_u32 v11, s{S_TMP}, v11")
    a("v_xor_b32 v12, v12, v11")
    a("v_lshlrev_b32 v12, 4, v12")
    a("v_lshlrev_b32 v10, 7, v10")
    a(f"v_add_u32 v{V_B}, v10, v12")
    a("v_lshrrev_b32 v10, 4, v0")
    a("v_lshrrev_b32 v11, 2, v0")
    a("v_and_b32 v11, 3, v11")
    a("v_and_b32 v12, 3, v0")
    a("v_lshrrev_b32 v13, 1, v10")
    a("v_lshlrev_b32 v13, 3, v13")
    a("v_add_u32 v13, v13, v11")
    a(f"s_lshl_b32 s{S_TMP}, s{S_W}, 4")
    a(f"v_add_u32 v13, s{S_TMP}, v13")
    a("v_lshlrev_b32 v13, 7, v13")
    a("v_lshrrev_b32 v14, 1, v12")
    a("v_lshlrev_b32 v14, 3, v14")
    a("v_add_u32 v13, v13, v14")
    a("v_add_u32 v13, 8192, v13")
    a("v_and_b32 v14, 1, v10")
    a("v_lshlrev_b32 v14, 1, v14")
    a("v_and_b32 v15, 1, v12")
    a("v_add_u32 v14, v14, v15")
    a("v_lshrrev_b32 v15, 1, v11")
    a("v_lshlrev_b32 v15, 2, v15")
    a("v_xor_b32 v14, v14, v15")
    a("v_lshlrev_b32 v15, 4, v14")
    a(f"v_add_u32 v{V_A0}, v13, v15")
    a("v_xor_b32 v15, 64, v15")
    a(f"v_add_u32 v{V_A1}, v13, v15")
    st.stamp()
    if flags:
        a(f"s_cmp_lg_u32 s{S_W}, 0")
        a("s_cbranch_scc1 g2_hready")
        wait_reset(a, "g2_wr", P0+6, S_TMP, 38, 10, 11)
        a(f"s_lshr_b32 s{S_TMP2}, s{S_T0}, 7")
        a(f"s_lshl_b32 s{S_TMP2}, s{S_TMP2}, 7")
        wait_flags(a, "g2_wh", SRD_F, S_TMP2, 14, S_TMP, 38, 10, 11, sleep=SLEEP)
        a.label("g2_hready")
        a("s_barrier")
        vm[:] = [("W", u) for u in range(NSLOT)]
    st.stamp()
    for u in range(NSLOT):
        for g in dma("H", u):
            for l in g: a(l)
    if prefetch_h:
        a("v_lshrrev_b32 v10, 3, v0")
        a("v_and_b32 v11, 7, v0")
        a("v_lshlrev_b32 v11, 6, v11")
        a("v_mul_u32_u24 v10, 3584, v10")
        a("v_add_u32 v10, v10, v11")
        a(f"s_lshl_b32 s{S_TMP2}, s{s_ct}, 9")
        a(f"s_add_u32 s{S_TMP2}, s{S_TMP2}, s{S_HOFF}")
        for i in range(2):
            a(f"s_add_u32 s{S_TMP}, s{S_TMP2}, {8*i*3584}")
            a(f"buffer_load_dword v{20+i}, v10, s[{SRD_H}:{SRD_H+3}], s{S_TMP} offen sc1")
        vm.append(("P", 0))
    V_G = 8
    def wait_for(needs):
        last = max(vm.index(n) for n in needs)
        n = sum((1 if g[0] == "G" else 2) for g in vm[last+1:])
        a(f"s_waitcnt vmcnt({n})")
    FR = [24, 40]
    ACC = 64
    def acc(rb, cb): return ACC + 16*(2*rb + cb)
    a(f"v_add_u32 v16, 0x10000, v{V_B}")
    a(f"v_add_u32 v17, 0x10000, v{V_A0}")
    a(f"v_add_u32 v18, 0x10000, v{V_A1}")
    def reads(u):
        fb = FR[u % 2]; so = (u % NSLOT)*16384
        vb, va0, va1 = V_B, V_A0, V_A1
        if so >= 65536:
            so -= 65536; vb, va0, va1 = 16, 17, 18
        return [f"ds_read_b128 v[{fb+8}:{fb+11}], v{vb} offset:{so}",
                f"ds_read_b64_tr_b16 v[{fb}:{fb+1}], v{va0} offset:{so}",
                f"ds_read_b64_tr_b16 v[{fb+2}:{fb+3}], v{va0} offset:{so+512}",
                f"ds_read_b128 v[{fb+12}:{fb+15}], v{vb} offset:{so+4096}",
                f"ds_read_b64_tr_b16 v[{fb+4}:{fb+5}], v{va1} offset:{so}",
                f"ds_read_b64_tr_b16 v[{fb+6}:{fb+7}], v{va1} offset:{so+512}"]
    wait_for([("W", 0), ("H", 0)])
    a("s_barrier")
    st.stamp()
    for r in reads(0): a(r)
    NS = 28
    for u in range(NS):
        fb = FR[u % 2]
        a("s_waitcnt lgkmcnt(0)")
        if u + 1 < NS: wait_for([("W", u+1), ("H", u+1)])
        a("s_barrier")
        D = []
        if u + NSLOT < NS:
            D = dma("H", u + NSLOT) + dma("W", u + NSLOT)
        R = reads(u + 1) if u + 1 < NS else []
        M = []
        for (rb, cb) in ((0,0),(0,1),(1,0),(1,1)):
            c = "0" if u == 0 else f"v[{acc(rb,cb)}:{acc(rb,cb)+15}]"
            M.append(f"v_mfma_f32_32x32x16_bf16 v[{acc(rb,cb)}:{acc(rb,cb)+15}], v[{fb+4*rb}:{fb+4*rb+3}], v[{fb+8+4*cb}:{fb+8+4*cb+3}], {c}")
        for r in R[:3]: a(r)
        for mi in range(4):
            a(M[mi])
            if mi == 0:
                for r in R[3:]: a(r)
            if D:
                for l in D.pop(0): a(l)
    st.stamp()
    if flags:
        a(f"s_cmp_lg_u32 s{S_W}, 0")
        a("s_cbranch_scc1 g2_aready")
        a(f"s_lshl_b32 s{S_TMP2}, s{s_ct}, 7")
        a(f"s_add_u32 s{S_TMP2}, s{S_TMP2}, {FL_A*128}")
        wait_flags(a, "g2_wa", SRD_F, S_TMP2, 32, S_TMP, 38, 10, 11, sleep=SLEEP)
        a(f"s_mov_b32 s{S_TMP2}, {FL_G*128}")
        wait_flags(a, "g2_wg", SRD_F, S_TMP2, 32, S_TMP, 38, 10, 11, sleep=SLEEP)
        a.label("g2_aready")
    a("s_nop 15")
    a("s_barrier")
    ATL = 65536
    a("v_and_b32 v10, 31, v0")
    a(f"s_and_b32 s{S_TMP}, s{S_W}, 1")
    a(f"s_lshl_b32 s{S_TMP}, s{S_TMP}, 5")
    a(f"s_add_u32 s{S_TMP}, s{S_TMP}, s{S_T0}")
    a(f"v_add_u32 v10, s{S_TMP}, v10")
    a("v_lshlrev_b32 v10, 2, v10")
    a(f"buffer_load_dword v{V_G}, v10, s[{SRD_G}:{SRD_G+3}], 0 offen {sc}")
    a("v_lshrrev_b32 v10, 3, v0")
    a("v_lshlrev_b32 v10, 12, v10")
    a("v_and_b32 v11, 7, v0")
    a("v_lshlrev_b32 v11, 4, v11")
    a("v_add_u32 v10, v10, v11")
    a(f"s_lshl_b32 s{S_TMP}, s{S_W}, 4")
    a(f"s_add_u32 s{S_TMP}, s{S_TMP}, s{S_D0}")
    a(f"s_lshl_b32 s{S_TMP}, s{S_TMP}, 12")
    a(f"s_lshl_b32 s{S_TMP2}, s{S_T0}, 1")
    a(f"s_add_u32 s{S_TMP2}, s{S_TMP2}, s{S_TMP}")
    for i in range(2):
        a(f"s_add_u32 m0, s{S_L}, {ATL + i*1024}")
        a(f"s_add_u32 s{S_TMP}, s{S_TMP2}, {8*i*4096}")
        a(f"buffer_load_dwordx4 v10, s[{SRD_AT}:{SRD_AT+3}], s{S_TMP} offen {sc} lds")
    a("v_lshlrev_b32 v11, 4, v0")
    a(f"s_lshl_b32 s{S_TMP}, s{S_W}, 12")
    a(f"v_add_u32 v12, s{S_TMP}, v11")
    for beta in range(4):
        rb, cb = beta >> 1, beta & 1
        a(f"s_cmp_eq_u32 s{S_W}, {beta}")
        a(f"s_cbranch_scc1 g2_skipw{beta}")
        for q in range(4):
            a(f"ds_write_b128 v12, v[{acc(rb,cb)+4*q}:{acc(rb,cb)+4*q+3}] offset:{beta*16384 + q*1024}")
        a.label(f"g2_skipw{beta}")
    for beta in range(4):
        rb, cb = beta >> 1, beta & 1
        a(f"s_cmp_lg_u32 s{S_W}, {beta}")
        a(f"s_cbranch_scc1 g2_skipm{beta}")
        for r in range(16):
            a(f"v_mov_b32 v{24+r}, v{acc(rb,cb)+r}")
        a.label(f"g2_skipm{beta}")
    a("s_waitcnt lgkmcnt(0)")
    a("s_barrier")
    a(f"s_lshl_b32 s{S_TMP}, s{S_W}, 14")
    a(f"v_add_u32 v12, s{S_TMP}, v11")
    for k in range(1, 4):
        a(f"s_add_u32 s{S_TMP}, s{S_W}, {k}")
        a(f"s_and_b32 s{S_TMP}, s{S_TMP}, 3")
        a(f"s_lshl_b32 s{S_TMP}, s{S_TMP}, 12")
        a(f"v_add_u32 v13, s{S_TMP}, v12")
        for q in range(4):
            a(f"ds_read_b128 v[{64+16*(k-1)+4*q}:{64+16*(k-1)+4*q+3}], v13 offset:{q*1024}")
    a("v_lshrrev_b32 v10, 4, v0")
    a("v_lshrrev_b32 v13, 2, v0")
    a("v_and_b32 v13, 3, v13")
    a("v_and_b32 v14, 3, v0")
    a("v_lshrrev_b32 v15, 1, v10")
    a("v_lshlrev_b32 v15, 3, v15")
    a("v_add_u32 v15, v15, v13")
    a("v_lshlrev_b32 v15, 7, v15")
    a("v_and_b32 v16, 1, v10")
    a("v_lshlrev_b32 v16, 5, v16")
    a("v_add_u32 v15, v15, v16")
    a("v_lshlrev_b32 v14, 3, v14")
    a("v_add_u32 v15, v15, v14")
    a(f"s_lshr_b32 s{S_TMP}, s{S_W}, 1")
    a(f"s_lshl_b32 s{S_TMP}, s{S_TMP}, 12")
    a(f"s_and_b32 s{S_TMP2}, s{S_W}, 1")
    a(f"s_lshl_b32 s{S_TMP2}, s{S_TMP2}, 6")
    a(f"s_add_u32 s{S_TMP}, s{S_TMP}, s{S_TMP2}")
    a(f"s_add_u32 s{S_TMP}, s{S_TMP}, {ATL}")
    a(f"v_add_u32 v15, s{S_TMP}, v15")
    a("s_waitcnt lgkmcnt(0)")
    for r in range(16):
        a(f"v_add_f32 v{24+r}, v{24+r}, v{64+r}")
        a(f"v_add_f32 v{80+r}, v{80+r}, v{96+r}")
    for r in range(16):
        a(f"v_add_f32 v{24+r}, v{24+r}, v{80+r}")
    a("s_waitcnt vmcnt(0)")
    a("s_barrier")
    for Q in range(2):
        for h2 in range(2):
            a(f"ds_read_b64_tr_b16 v[{44+4*Q+2*h2}:{44+4*Q+2*h2+1}], v15 offset:{(16*Q+4*h2)*128}")
    a(f"v_sub_f32 v9, 1.0, v{V_G}")
    a("v_cvt_pk_bf16_f32 v9, v9, v9")
    a("v_lshlrev_b32 v9, 16, v9")
    a("s_mov_b32 s37, 0xffff0000")
    OT = 0
    a("v_and_b32 v10, 31, v0")
    a("v_lshrrev_b32 v11, 5, v0")
    a(f"s_and_b32 s{S_TMP}, s{S_W}, 1")
    a(f"s_lshl_b32 s{S_TMP}, s{S_TMP}, 5")
    a(f"v_add_u32 v10, s{S_TMP}, v10")
    a(f"s_lshr_b32 s{S_TMP2}, s{S_W}, 1")
    a(f"s_lshl_b32 s{S_TMP2}, s{S_TMP2}, 2")
    a(f"v_add_u32 v11, s{S_TMP2}, v11")
    a("v_and_b32 v12, 7, v10")
    a("v_xor_b32 v11, v11, v12")
    a("v_lshlrev_b32 v10, 7, v10")
    a("v_lshlrev_b32 v12, 4, v11")
    a("v_add_u32 v13, v10, v12")
    a("v_xor_b32 v12, 32, v12")
    a("v_add_u32 v14, v10, v12")
    a("s_waitcnt lgkmcnt(0)")
    for Q in range(2):
        for p in range(4):
            b0, b1 = 24 + 8*Q + 2*p, 24 + 8*Q + 2*p + 1
            av = 44 + 4*Q + p
            a(f"v_cvt_pk_bf16_f32 v52, v{b0}, v{b1}")
            a(f"v_lshlrev_b32 v53, 16, v52")
            a(f"v_and_b32 v54, s37, v52")
            a(f"v_mul_f32 v53, v9, v53")
            a(f"v_mul_f32 v54, v9, v54")
            a(f"v_cvt_pk_bf16_f32 v52, v53, v54")
            a(f"v_lshlrev_b32 v55, 16, v{av}")
            a(f"v_and_b32 v56, s37, v{av}")
            a(f"v_mul_f32 v55, v{V_G}, v55")
            a(f"v_mul_f32 v56, v{V_G}, v56")
            a(f"v_cvt_pk_bf16_f32 v55, v55, v56")
            a(f"v_lshlrev_b32 v53, 16, v52")
            a(f"v_and_b32 v54, s37, v52")
            a(f"v_lshlrev_b32 v56, 16, v55")
            a(f"v_and_b32 v55, s37, v55")
            a(f"v_add_f32 v53, v53, v56")
            a(f"v_add_f32 v54, v54, v55")
            a(f"v_cvt_pk_bf16_f32 v{60+p}, v53, v54") if Q == 0 else a(f"v_cvt_pk_bf16_f32 v{64+p}, v53, v54")
        a(f"ds_write_b128 v{13+Q}, v[{60+4*Q}:{63+4*Q}] offset:{OT}")
    a("v_lshrrev_b32 v10, 3, v0")
    a("v_and_b32 v11, 7, v0")
    a("v_xor_b32 v11, v11, v10")
    a("v_lshlrev_b32 v11, 4, v11")
    a("v_mul_u32_u24 v10, 896, v10")
    a("v_add_u32 v10, v10, v11")
    a("v_lshlrev_b32 v12, 4, v0")
    a(f"v_add_u32 v12, s{S_L}, v12")
    a(f"s_lshl_b32 s{S_TMP}, s{S_W}, 4")
    a(f"s_add_u32 s{S_TMP}, s{S_TMP}, s{S_T0}")
    a(f"s_mul_i32 s{S_TMP}, s{S_TMP}, 896")
    a(f"s_lshl_b32 s{S_TMP2}, s{S_D0}, 1")
    a(f"s_add_u32 s{S_TMP2}, s{S_TMP2}, s{S_TMP}")
    a("s_waitcnt lgkmcnt(0)")
    a("s_barrier")
    a(f"ds_read_b128 v[24:27], v12 offset:{OT}")
    a(f"ds_read_b128 v[28:31], v12 offset:{OT+1024}")
    for i in range(2):
        a(f"s_waitcnt lgkmcnt({1-i})")
        a(f"s_add_u32 s{S_TMP}, s{S_TMP2}, {8*i*896}")
        a(f"buffer_store_dwordx4 v[{24+4*i}:{27+4*i}], v10, s[{SRD_O}:{SRD_O+3}], s{S_TMP} offen")
    st.stamp()
    if st.on: a("s_waitcnt vmcnt(0)")
    st.stamp(); st.stamp(real=True)
    st.flush(S_W)
```

```python
from asmlib import *

STG = 14848
ESTR = 272
FOFF = 21*ESTR
UBASE = 59392
KCSZ = 16640; CPSZ = 4160
XCH = 18432

def cmul(a, dr, di, xr, xi, cr, ci, nci):
    a(f"v_mul_f32 v{dr}, v{xr}, v{cr}")
    a(f"v_mul_f32 v{di}, v{xr}, v{ci}")
    a(f"v_fmac_f32 v{dr}, v{xi}, v{nci}")
    a(f"v_fmac_f32 v{di}, v{xi}, v{cr}")

def side(a, s_cp, flags=True, stamps=False, dump_k=False, fused=False, prefetch=None, kmode=0, reset=None):
    S_W = 4; S_D = 5; S_HALF = 6; S_CHL = 7
    SRD_P = 8
    SRD_UT = 12; SRD_AT = 16; SRD_F = 20
    S_TMP = 24; S_TMP2 = 25; S_SC = 26; S_ISC = 27
    P0 = 28
    P_WS = 44; P_DBG = 46
    S_STG = 48; S_U = 49; S_KC = 50; S_DSK = 51; S_LDT = 52
    st = stamps if isinstance(stamps, Stamps) else Stamps(a, 60, stamps)
    a.c("---- side role ----")
    if not isinstance(stamps, Stamps):
        st.stamp(real=True); st.stamp()
    a(f"s_load_dwordx8 s[{P0}:{P0+7}], s[0:1], {KA['are']}")
    a(f"s_load_dwordx8 s[{P0+8}:{P0+15}], s[0:1], {KA['cre']}")
    a(f"s_load_dwordx2 s[{P_WS}:{P_WS+1}], s[0:1], {KA['ws']}")
    a(f"s_load_dwordx2 s[{P_DBG}:{P_DBG+1}], s[0:1], {KA['dbg']}")
    if not fused:
        a("v_lshrrev_b32 v1, 6, v0")
        a("v_and_b32 v0, 63, v0")
        a(f"v_readfirstlane_b32 s{S_W}, v1")
        a("s_nop 3")
    a(f"s_and_b32 s{S_HALF}, s{S_W}, 1")
    a(f"s_lshr_b32 s{S_CHL}, s{S_W}, 1")
    a(f"s_lshl_b32 s{S_D}, s{s_cp}, 1")
    a(f"s_add_u32 s{S_D}, s{S_D}, s{S_CHL}")
    a(f"s_lshl_b32 s{S_TMP}, s{S_D}, 9")
    a(f"s_lshl_b32 s{S_TMP2}, s{S_HALF}, 8")
    a(f"s_add_u32 s{S_TMP}, s{S_TMP}, s{S_TMP2}")
    a("v_lshlrev_b32 v2, 2, v0")
    a("s_waitcnt lgkmcnt(0)")
    a(f"s_mov_b32 s{SRD_P+2}, {448*256*2}")
    a(f"s_mov_b32 s{SRD_P+3}, 0x20000")
    for i in range(6):
        a(f"s_mov_b32 s{SRD_P}, s{P0+2*i}")
        a(f"s_mov_b32 s{SRD_P+1}, s{P0+2*i+1}")
        a(f"buffer_load_dword v{10+i}, v2, s[{SRD_P}:{SRD_P+3}], s{S_TMP} offen")
        a("s_nop 0")
    NPF = 0
    if prefetch: NPF = prefetch(a, 1)
    a(f"s_lshl_b32 s{S_TMP2}, s{s_cp}, 2")
    a(f"s_load_dword s{S_LDT}, s[{P0+12}:{P0+13}], s{S_TMP2}")
    a(f"s_load_dword s{S_DSK}, s[{P0+14}:{P0+15}], s{S_TMP2}")
    srd_from(a, SRD_UT, P_WS, SZ_UT, WS_UT)
    srd_from(a, SRD_AT, P_WS, SZ_AT, WS_AT)
    srd_from(a, SRD_F, P_WS, SZ_F, WS_F)
    if reset: reset(a, s_cp, SRD_F, P_DBG)
    a(f"s_mul_i32 s{S_STG}, s{S_W}, {STG}")
    a(f"s_lshl_b32 s{S_U}, s{S_CHL}, 13")
    a(f"s_add_u32 s{S_U}, s{S_U}, {UBASE}")
    a(f"s_mul_i32 s{S_KC}, s{S_CHL}, {KCSZ}")
    a(f"v_lshlrev_b32 v3, 2, v0")
    a(f"v_add_u32 v3, s{S_STG}, v3")
    a("v_and_b32 v4, 31, v0")
    a(f"v_mul_u32_u24 v4, {ESTR}, v4")
    a("v_lshrrev_b32 v5, 5, v0")
    a("v_lshlrev_b32 v5, 4, v5")
    a("v_add_u32 v4, v4, v5")
    a(f"v_add_u32 v4, s{S_STG}, v4")
    a("s_waitcnt lgkmcnt(0)")
    for r in (S_LDT, S_DSK):
        a(f"s_lshl_b32 s{S_TMP}, s{r}, 16")
        a(f"s_and_b32 s{S_TMP2}, s{r}, 0xffff0000")
        a(f"s_cmp_eq_u32 s{S_CHL}, 0")
        a(f"s_cselect_b32 s{r}, s{S_TMP}, s{S_TMP2}")
    a(f"v_mov_b32 v6, s{S_LDT}")
    a("v_mul_f32 v7, 0x3fb8aa3b, v6")
    a("s_mov_b32 s53, 0x3fb8aa3b")
    a("v_fma_f32 v8, v6, s53, -v7")
    a("v_fmac_f32 v8, 0x32a57060, v6")
    a("v_exp_f32 v7, v7")
    a("v_mul_f32 v8, 0x3f317218, v8")
    a("s_nop 0")
    a("v_fmac_f32 v7, v7, v8")
    a("v_cvt_pk_bf16_f32 v7, v7, v7")
    a("v_lshlrev_b32 v6, 16, v7")
    st.stamp()
    a(f"s_waitcnt vmcnt({NPF})")
    st.stamp()
    if kmode == 4:
        for _ in range(7): st.stamp()
        st.flush(S_W); a("s_endpgm")
    a("s_mov_b32 s54, 0xffff0000")
    for p in range(2):
        def ex(dst, src):
            if p == 0: a(f"v_lshlrev_b32 v{dst}, 16, v{src}")
            else: a(f"v_and_b32 v{dst}, s54, v{src}")
        ex(24, 10); ex(25, 11); ex(26, 12); ex(27, 13); ex(28, 14); ex(29, 15)
        a("v_mul_f32 v24, v6, v24")
        a("v_mul_f32 v25, v6, v25")
        a("v_mul_f32 v26, v6, v26")
        a("v_mul_f32 v27, v6, v27")
        wr, wi = 16+2*p, 17+2*p
        a(f"v_mul_f32 v{wr}, v28, v26")
        a(f"v_fma_f32 v{wr}, -v29, v27, v{wr}")
        a(f"v_mul_f32 v{wi}, v28, v27")
        a(f"v_fmac_f32 v{wi}, v29, v26")
        a(f"v_mul_f32 v{20+2*p}, 0x3fb8aa3b, v24")
        a(f"v_mul_f32 v{21+2*p}, 0.15915494, v25")
        a(f"v_mul_f32 v30, 0x45000000, v{20+2*p}")
        a("v_max_f32 v30, 0, v30")
        a("v_exp_f32 v30, v30")
        a(f"v_max_f32 v31, |v{wr}|, |v{wi}|")
        if p == 0: a("v_mul_f32 v9, v30, v31")
        else:
            a("v_mul_f32 v30, v30, v31")
            a("v_max_f32 v9, v9, v30")
    for ctrl in ("row_shr:1", "row_shr:2", "row_shr:4", "row_shr:8", "row_bcast:15 row_mask:0xa", "row_bcast:31 row_mask:0xc"):
        a("s_nop 1")
        if "row_mask" in ctrl:
            a(f"v_max_f32_dpp v9, v9, v9 {ctrl} bank_mask:0xf")
        else:
            a(f"v_max_f32_dpp v9, v9, v9 {ctrl} row_mask:0xf bank_mask:0xf")
    a("s_nop 1")
    a(f"v_readlane_b32 s{S_TMP}, v9, 63")
    a("s_nop 3")
    a(f"s_lshr_b32 s{S_TMP}, s{S_TMP}, 23")
    a(f"s_max_u32 s{S_TMP}, s{S_TMP}, 8")
    a(f"s_min_u32 s{S_TMP}, s{S_TMP}, 254")
    a(f"s_sub_u32 s{S_SC}, 261, s{S_TMP}")
    a(f"s_lshl_b32 s{S_SC}, s{S_SC}, 23")
    a(f"s_sub_u32 s{S_ISC}, s{S_TMP}, 7")
    a(f"s_lshl_b32 s{S_ISC}, s{S_ISC}, 23")
    D = 112
    for p in range(2):
        e2, ph = 20+2*p, 21+2*p
        def polar(r, i, ni, mult):
            if mult == 1:
                a(f"v_exp_f32 v40, v{e2}")
                a(f"v_fract_f32 v41, v{ph}")
            else:
                a(f"v_mul_f32 v40, {mult}, v{e2}")
                a(f"v_mul_f32 v41, {mult}, v{ph}")
                a(f"v_exp_f32 v40, v40")
                a(f"v_fract_f32 v41, v41")
            a(f"v_cos_f32 v42, v41")
            a(f"v_sin_f32 v43, v41")
            a("s_nop 0")
            a(f"v_mul_f32 v{r}, v40, v42")
            a(f"v_mul_f32 v{i}, v40, v43")
            a(f"v_sub_f32 v{ni}, 0, v{i}")
        polar(24, 25, 26, 1)
        polar(33, 34, 35, "0x43800000")
        polar(36, 37, 38, "0x41000000")
        cmul(a, 27, 28, 24, 25, 24, 25, 26); a("v_sub_f32 v29, 0, v28")
        cmul(a, 30, 31, 27, 28, 27, 28, 29); a("v_sub_f32 v32, 0, v31")
        wr, wi = 16+2*p, 17+2*p
        a(f"v_mul_f32 v44, s{S_SC}, v{wr}")
        a(f"v_mul_f32 v45, s{S_SC}, v{wi}")
        a("v_sub_f32 v45, 0, v45")
        def put(row, r, i, off=0):
            if kmode != 2: a(f"v_cvt_pk_f16_f32 v39, v{r}, v{i}")
            if kmode not in (1, 2): a(f"ds_write_b32 v3, v39 offset:{off + row*ESTR}")
        if p == 1:
            a("s_waitcnt lgkmcnt(0)")
        put(0, 44, 45)
        cur = (44, 45); alt = (46, 47)
        for row in range(1, 8):
            cmul(a, alt[0], alt[1], cur[0], cur[1], 24, 26, 25)
            cur, alt = alt, cur
            put(row, cur[0], cur[1])
        a(f"v_mul_f32 v48, s{S_SC}, v{wr}")
        a(f"v_mul_f32 v49, s{S_SC}, v{wi}")
        a("v_sub_f32 v49, 0, v49")
        Gc = (33, 35, 34); z2c = (27, 29, 28); z4c = (30, 32, 31)
        cmul(a, 50, 51, 48, 49, *Gc); put(8, 50, 51)
        cmul(a, 44, 45, 50, 51, *z2c); put(16, 44, 45)
        cmul(a, 46, 47, 44, 45, *z2c); put(17, 46, 47)
        cmul(a, 44, 45, 46, 47, *z2c); put(18, 44, 45)
        cmul(a, 48, 49, 50, 51, *Gc); put(9, 48, 49)
        cmul(a, 44, 45, 48, 49, *z4c); put(19, 44, 45)
        cmul(a, 50, 51, 48, 49, *Gc); put(10, 50, 51)
        cmul(a, 44, 45, 50, 51, *z4c); put(20, 44, 45)
        cur = (50, 51); alt = (48, 49)
        for row in range(11, 16):
            cmul(a, alt[0], alt[1], cur[0], cur[1], *Gc)
            cur, alt = alt, cur
            put(row, cur[0], cur[1])
        a("v_mov_b32 v39, 0x3c00")
        a(f"ds_write_b32 v3, v39 offset:{FOFF}")
        put(1, 36, 37, FOFF)
        cur = (36, 37); bufs = [(44, 45), (46, 47)]
        for j in range(2, 32):
            nx = bufs[j % 2]
            cmul(a, nx[0], nx[1], cur[0], cur[1], 36, 37, 38)
            cur = nx
            put(j, cur[0], cur[1], FOFF)
        a("s_waitcnt lgkmcnt(0)")
        for k in range(8):
            a(f"ds_read_b128 v[{48+4*k}:{51+4*k}], v4 offset:{32*k}")
            a(f"ds_read_b128 v[{80+4*k}:{83+4*k}], v4 offset:{FOFF + 32*k}")
        for k in range(8):
            a(f"s_waitcnt lgkmcnt({min(15, 14-2*k)})")
            c = "0" if (p == 0 and k == 0) else f"v[{D}:{D+15}]"
            a(f"v_mfma_f32_32x32x16_f16 v[{D}:{D+15}], v[{48+4*k}:{51+4*k}], v[{80+4*k}:{83+4*k}], {c}")
    st.stamp()
    if kmode == 3:
        st.stamp(); st.stamp(); st.stamp(); st.stamp(); st.stamp(); st.stamp(real=True); st.flush(S_W); a("s_endpgm")
    a("v_and_b32 v7, 31, v0")
    a("v_lshlrev_b32 v7, 2, v7")
    a("v_lshrrev_b32 v8, 5, v0")
    a("v_lshlrev_b32 v8, 9, v8")
    a("v_add_u32 v7, v7, v8")
    a(f"v_add_u32 v7, s{S_STG}, v7")
    a("s_nop 15")
    a("s_nop 7")
    for r in range(12):
        q, rr = r // 4, r % 4
        a(f"v_mul_f32 v{D+r}, s{S_ISC}, v{D+r}")
        a(f"ds_write_b32 v7, v{D+r} offset:{(8*q + rr)*128}")
    if prefetch: prefetch(a, 2)
    if flags:
        a(f"s_cmp_lg_u32 s{S_W}, 0")
        a("s_cbranch_scc1 side_polled")
        wait_reset(a, "side_wr", P_DBG, S_TMP, 57, 10, 11)
        a(f"s_and_b32 s{S_TMP2}, s2, 7")
        a(f"s_lshl_b32 s{S_TMP2}, s{S_TMP2}, 7")
        a(f"s_add_u32 s{S_TMP2}, s{S_TMP2}, {FL_U*128}")
        wait_flags(a, "side_wu", SRD_F, S_TMP2, 32, S_TMP, 57, 10, 11, sleep=4)
        a.label("side_polled")
    a("s_waitcnt lgkmcnt(0)")
    a("s_barrier")
    a(f"s_lshl_b32 s{S_TMP}, s{S_HALF}, 8")
    a(f"v_add_u32 v10, s{S_TMP}, v0")
    a(f"s_lshl_b32 s{S_TMP2}, s{S_D}, 12")
    a(f"s_lshl_b32 s55, s{S_HALF}, 12")
    a(f"s_add_u32 s55, s55, s{S_U}")
    a("s_mov_b32 s56, 52429")
    for ii in range(4):
        a("v_mul_u32_u24 v11, s56, v10")
        a("v_lshrrev_b32 v11, 18, v11")
        a("v_mul_u32_u24 v12, 5, v11")
        a("v_sub_u32 v12, v10, v12")
        a("v_subrev_u32 v11, 31, v11")
        a("v_lshlrev_b32 v13, 6, v11")
        a("v_lshlrev_b32 v14, 4, v12")
        a("v_add_u32 v13, v13, v14")
        a("v_cmp_gt_u32 vcc, 64, v11")
        a("v_cmp_gt_u32 s[58:59], 4, v12")
        a("s_and_b64 vcc, vcc, s[58:59]")
        a("v_mov_b32 v14, 0x80000000")
        a("s_nop 0")
        a("v_cndmask_b32 v13, v14, v13, vcc")
        a(f"s_add_u32 m0, s55, {ii*1024}")
        a("s_nop 0")
        a(f"buffer_load_dwordx4 v13, s[{SRD_UT}:{SRD_UT+3}], s{S_TMP2} offen sc1 lds")
        if ii < 3: a("v_add_u32 v10, 64, v10")
    a(f"s_mul_i32 s{S_TMP}, s{S_CHL}, {2*STG}")
    VV = 24
    a(f"s_cmp_eq_u32 s{S_HALF}, 0")
    a("s_cbranch_scc0 side_exp_h1")
    a("v_and_b32 v10, 31, v0")
    a("v_lshlrev_b32 v10, 2, v10")
    a(f"v_add_u32 v10, s{S_TMP}, v10")
    a("v_cmp_gt_u32 vcc, 32, v0")
    r1 = [8*128, 8*128, 16*128, 17*128, 17*128, 17*128, 18*128, 8*128+4]
    for i in range(8):
        a(f"v_mov_b32 v11, {r1[i]}")
        if i*128 == r1[i]:
            a(f"v_add_u32 v12, v10, v11")
        else:
            a(f"v_mov_b32 v12, {i*128}")
            a("v_cndmask_b32 v11, v11, v12, vcc")
            a("v_add_u32 v12, v10, v11")
        a(f"ds_read_b32 v{VV+i}, v12")
        a(f"ds_read_b32 v{40+i}, v12 offset:{STG}")
    a("v_cmp_eq_u32 s[58:59], 32, v0")
    a("v_mov_b32 v11, 1024")
    a("v_mov_b32 v12, 892")
    a("v_cndmask_b32 v11, v11, v12, vcc")
    a("v_mov_b32 v12, 1020")
    a("v_cndmask_b32 v11, v11, v12, s[58:59]")
    a("v_add_u32 v12, v10, v11")
    a(f"ds_read_b32 v{VV+8}, v12")
    a(f"ds_read_b32 v48, v12 offset:{STG}")
    a("v_lshlrev_b32 v10, 2, v0")
    a(f"v_add_u32 v10, s{S_TMP}, v10")
    a(f"ds_read_b32 v33, v10 offset:{1024+128}")
    a(f"ds_read_b32 v49, v10 offset:{1024+128+STG}")
    a(f"ds_read_b32 v34, v10 offset:2432")
    a(f"ds_read_b32 v50, v10 offset:{2432+STG}")
    a(f"ds_read_b32 v35, v10 offset:{1024+132}")
    a(f"ds_read_b32 v51, v10 offset:{1024+132+STG}")
    a("s_waitcnt lgkmcnt(0)")
    for i in range(12):
        a(f"v_add_f32 v{24+i}, v{24+i}, v{40+i}")
    a("v_cmp_eq_u32 vcc, 0, v0")
    a("v_mov_b32 v11, 0")
    a("s_nop 0")
    a(f"v_cndmask_b32 v{VV+8}, v{VV+8}, v11, vcc")
    for i in range(4):
        a(f"v_cvt_pk_bf16_f32 v{40+i}, v{VV+2*i}, v{VV+2*i+1}")
    a(f"v_cvt_pk_bf16_f32 v44, v{VV+8}, v{VV}")
    for i in range(1, 4):
        a(f"v_cvt_pk_bf16_f32 v{44+i}, v{VV+2*i-1}, v{VV+2*i}")
    a("v_cvt_pk_bf16_f32 v48, v33, v33")
    a("v_cvt_pk_bf16_f32 v49, v33, v34")
    a("v_cvt_pk_bf16_f32 v50, v34, v34")
    a("v_cvt_pk_bf16_f32 v51, v35, v35")
    a("v_mov_b32 v52, v48")
    a("v_mov_b32 v53, v48")
    a("v_mov_b32 v54, v50")
    a("v_cvt_pk_bf16_f32 v55, v34, v35")
    a("v_mov_b32 v15, v0")
    a("s_branch side_exp_join")
    a.label("side_exp_h1")
    a("v_lshlrev_b32 v10, 2, v0")
    a(f"v_add_u32 v10, s{S_TMP}, v10")
    o = 1024 + 4*96
    for sl in range(2):
        a(f"ds_read_b32 v{24+2*sl}, v10 offset:{o + 256*sl}")
        a(f"ds_read_b32 v{40+2*sl}, v10 offset:{o + 256*sl + STG}")
        a(f"ds_read_b32 v{25+2*sl}, v10 offset:{o + 256*sl + 4}")
        a(f"ds_read_b32 v{41+2*sl}, v10 offset:{o + 256*sl + 4 + STG}")
    a("s_waitcnt lgkmcnt(0)")
    for i in range(4):
        a(f"v_add_f32 v{24+i}, v{24+i}, v{40+i}")
    a("v_and_b32 v11, 1, v0")
    a("v_cmp_eq_u32 vcc, 0, v11")
    for sl in range(2):
        f0, f8 = 24+2*sl, 25+2*sl
        o0 = 40 + 8*sl
        a(f"v_cvt_pk_bf16_f32 v{o0}, v{f0}, v{f0}")
        a(f"v_mov_b32 v{o0+1}, v{o0}")
        a(f"v_cndmask_b32 v12, v{f8}, v{f0}, vcc")
        a(f"v_cvt_pk_bf16_f32 v{o0+2}, v12, v{f8}")
        a(f"v_cvt_pk_bf16_f32 v{o0+3}, v{f8}, v{f8}")
        a(f"v_mov_b32 v{o0+4}, v{o0}")
        a(f"v_mov_b32 v{o0+5}, v{o0}")
        a(f"v_cvt_pk_bf16_f32 v{o0+6}, v{f0}, v12")
        a(f"v_mov_b32 v{o0+7}, v{o0+3}")
    a("v_add_u32 v15, 128, v0")
    a.label("side_exp_join")
    a("s_barrier")
    a(f"s_cmp_eq_u32 s{S_HALF}, 0")
    a("s_cbranch_scc0 side_nozero")
    a("v_lshrrev_b32 v10, 3, v0")
    a("v_and_b32 v11, 7, v0")
    a(f"v_mul_u32_u24 v10, {CPSZ}, v10")
    a("v_lshlrev_b32 v11, 4, v11")
    a("v_add_u32 v10, v10, v11")
    a(f"v_add_u32 v10, s{S_KC}, v10")
    a("v_mov_b32 v56, 0"); a("v_mov_b32 v57, 0"); a("v_mov_b32 v58, 0"); a("v_mov_b32 v59, 0")
    a("v_and_b32 v11, 7, v0")
    a("v_cmp_gt_u32 vcc, 5, v11")
    a("v_cmp_gt_u32 s[58:59], 32, v0")
    a("s_and_b64 vcc, vcc, s[58:59]")
    a("s_and_saveexec_b64 s[58:59], vcc")
    a("ds_write_b128 v10, v[56:59]")
    a("s_mov_b64 exec, s[58:59]")
    a.label("side_nozero")
    a("v_lshlrev_b32 v10, 4, v15")
    a(f"v_add_u32 v10, s{S_KC}, v10")
    a("v_add_u32 v10, 64, v10")
    for sl in range(2):
        o0 = 40 + 8*sl; ob = 1024*sl
        a(f"ds_write_b128 v10, v[{o0}:{o0+3}] offset:{ob}")
        a(f"ds_write_b128 v10, v[{o0+4}:{o0+7}] offset:{ob + CPSZ}")
    a(f"v_add_u32 v11, {2*CPSZ+4}, v10")
    a(f"v_add_u32 v12, {3*CPSZ+4}, v10")
    for sl in range(2):
        o0 = 40 + 8*sl
        if sl == 1:
            a("v_add_u32 v11, 1024, v11"); a("v_add_u32 v12, 1024, v12")
        a(f"ds_write2_b32 v11, v{o0}, v{o0+1} offset0:0 offset1:1")
        a(f"ds_write2_b32 v11, v{o0+2}, v{o0+3} offset0:2 offset1:3")
        a(f"ds_write2_b32 v12, v{o0+4}, v{o0+5} offset0:0 offset1:1")
        a(f"ds_write2_b32 v12, v{o0+6}, v{o0+7} offset0:2 offset1:3")
    if dump_k:
        srd_from(a, SRD_P, P_WS, SZ_KX, WS_KX)
        a("v_lshlrev_b32 v13, 4, v15")
        a(f"s_lshl_b32 s{S_TMP}, s{S_D}, 12")
        a(f"buffer_store_dwordx4 v[40:43], v13, s[{SRD_P}:{SRD_P+3}], s{S_TMP} offen")
        a(f"buffer_store_dwordx4 v[48:51], v13, s[{SRD_P}:{SRD_P+3}], s{S_TMP} offen offset:1024")
    a("v_lshrrev_b32 v10, 4, v0")
    a("v_lshrrev_b32 v11, 2, v0")
    a("v_and_b32 v11, 3, v11")
    a("v_and_b32 v12, 3, v0")
    a(f"v_mul_u32_u24 v13, {CPSZ}, v11")
    a("v_and_b32 v14, 1, v10")
    a("v_lshlrev_b32 v14, 5, v14")
    a("v_add_u32 v13, v13, v14")
    a("v_and_b32 v14, 1, v12")
    a("v_lshlrev_b32 v14, 4, v14")
    a("v_add_u32 v13, v13, v14")
    a("v_lshrrev_b32 v14, 1, v12")
    a("v_lshlrev_b32 v14, 3, v14")
    a("v_add_u32 v13, v13, v14")
    a("v_lshrrev_b32 v14, 1, v10")
    a("v_lshlrev_b32 v14, 4, v14")
    a("v_sub_u32 v13, v13, v14")
    a(f"s_lshl_b32 s{S_TMP}, s{S_HALF}, 10")
    a(f"s_add_u32 s{S_TMP}, s{S_TMP}, s{S_KC}")
    a(f"s_add_u32 s{S_TMP}, s{S_TMP}, 24")
    a(f"v_add_u32 v2, s{S_TMP}, v13")
    a("v_and_b32 v10, 31, v0")
    a("v_mul_u32_u24 v10, 80, v10")
    a("v_lshrrev_b32 v11, 5, v0")
    a("v_lshlrev_b32 v11, 4, v11")
    a("v_add_u32 v10, v10, v11")
    a(f"s_mul_i32 s{S_TMP}, s{S_HALF}, {80*16}")
    a(f"s_sub_u32 s{S_TMP}, s{S_U}, s{S_TMP}")
    a(f"s_add_u32 s{S_TMP}, s{S_TMP}, {80*16}")
    a(f"v_add_u32 v3, s{S_TMP}, v10")
    st.stamp()
    a("s_waitcnt vmcnt(0) lgkmcnt(0)")
    a("s_barrier")
    st.stamp()
    ACC0, ACC1 = 96, 112
    FB = [24, 40, 56]
    steps = [(dl, s) for dl in range(16) for s in range(2)]
    def reads(i):
        dl, s = steps[i]; fb = FB[i % 3]
        R = []
        base = 64*dl + 40 - 32*s
        R.append(f"ds_read_b128 v[{fb+8}:{fb+11}], v3 offset:{80*(15-dl) + 32*s}")
        R.append(f"ds_read_b64_tr_b16 v[{fb}:{fb+1}], v2 offset:{base}")
        R.append(f"ds_read_b64_tr_b16 v[{fb+2}:{fb+3}], v2 offset:{base - 8}")
        R.append(f"ds_read_b128 v[{fb+12}:{fb+15}], v3 offset:{80*(15-dl) + 32*s + 2560}")
        R.append(f"ds_read_b64_tr_b16 v[{fb+4}:{fb+5}], v2 offset:{base + 2048}")
        R.append(f"ds_read_b64_tr_b16 v[{fb+6}:{fb+7}], v2 offset:{base + 2048 - 8}")
        return R
    for r in reads(0): a(r)
    for r in reads(1): a(r)
    n = len(steps)
    for i in range(n):
        fb = FB[i % 3]
        outstanding = 6 if i + 1 < n else 0
        a(f"s_waitcnt lgkmcnt({outstanding})")
        R = reads(i + 2) if i + 2 < n else []
        c0 = "0" if i == 0 else f"v[{ACC0}:{ACC0+15}]"
        c1 = "0" if i == 0 else f"v[{ACC1}:{ACC1+15}]"
        a(f"v_mfma_f32_32x32x16_bf16 v[{ACC0}:{ACC0+15}], v[{fb}:{fb+3}], v[{fb+8}:{fb+11}], {c0}")
        for r in R[:2]: a(r)
        a(f"v_mfma_f32_32x32x16_bf16 v[{ACC1}:{ACC1+15}], v[{fb}:{fb+3}], v[{fb+12}:{fb+15}], {c1}")
        for r in R[2:4]: a(r)
        a(f"v_mfma_f32_32x32x16_bf16 v[{ACC1}:{ACC1+15}], v[{fb+4}:{fb+7}], v[{fb+8}:{fb+11}], v[{ACC1}:{ACC1+15}]")
        for r in R[4:]: a(r)
    st.stamp()
    a("v_and_b32 v10, 31, v0")
    a("v_mul_u32_u24 v10, 144, v10")
    a("v_lshrrev_b32 v11, 5, v0")
    a("v_lshlrev_b32 v11, 5, v11")
    a("v_add_u32 v10, v10, v11")
    a(f"s_mul_i32 s{S_TMP}, s{S_CHL}, {XCH}")
    a(f"s_mul_i32 s{S_TMP2}, s{S_HALF}, 9216")
    a(f"s_add_u32 s{S_TMP2}, s{S_TMP2}, s{S_TMP}")
    a(f"v_add_u32 v10, s{S_TMP2}, v10")
    a("s_nop 15")
    a("s_barrier")
    for h, acc in ((0, ACC0), (1, ACC1)):
        for q in range(4):
            a(f"ds_write_b128 v10, v[{acc+4*q}:{acc+4*q+3}] offset:{h*32*144 + 4*(16*(q>>1) + 4*(q&1))}")
    a(f"s_lshl_b32 s{S_TMP2}, s{S_HALF}, 6")
    a(f"v_add_u32 v11, s{S_TMP2}, v0")
    a("v_lshrrev_b32 v12, 2, v11")
    a("v_and_b32 v13, 3, v11")
    a("v_mul_u32_u24 v14, 144, v12")
    a("v_lshlrev_b32 v15, 5, v13")
    a("v_add_u32 v14, v14, v15")
    a(f"v_add_u32 v14, s{S_TMP}, v14")
    a("v_mul_u32_u24 v15, 80, v12")
    a("v_lshlrev_b32 v16, 4, v13")
    a("v_add_u32 v15, v15, v16")
    a(f"s_add_u32 s{S_TMP2}, s{S_U}, {80*31}")
    a(f"v_add_u32 v15, s{S_TMP2}, v15")
    a("v_lshlrev_b32 v16, 4, v11")
    a("s_waitcnt lgkmcnt(0)")
    a("s_barrier")
    a("s_mov_b32 s54, 0xffff0000")
    a(f"s_lshl_b32 s{S_TMP}, s{S_D}, 12")
    for sl in range(2):
        o = sl*32*144
        a(f"ds_read_b128 v[24:27], v14 offset:{o}")
        a(f"ds_read_b128 v[28:31], v14 offset:{o+16}")
        a(f"ds_read_b128 v[32:35], v14 offset:{o+9216}")
        a(f"ds_read_b128 v[36:39], v14 offset:{o+9216+16}")
        a(f"ds_read_b128 v[40:43], v15 offset:{sl*32*80}")
        a("s_waitcnt lgkmcnt(0)")
        for i in range(8):
            a(f"v_add_f32 v{24+i}, v{24+i}, v{32+i}")
        ob = 48 + 4*sl
        for i in range(4):
            a(f"v_cvt_pk_bf16_f32 v32, v{24+2*i}, v{25+2*i}")
            a(f"v_lshlrev_b32 v33, 16, v{40+i}")
            a(f"v_and_b32 v34, s54, v{40+i}")
            a(f"v_mul_f32 v33, s{S_DSK}, v33")
            a(f"v_mul_f32 v34, s{S_DSK}, v34")
            a(f"v_cvt_pk_bf16_f32 v33, v33, v34")
            a(f"v_lshlrev_b32 v34, 16, v32")
            a(f"v_and_b32 v32, s54, v32")
            a(f"v_lshlrev_b32 v35, 16, v33")
            a(f"v_and_b32 v33, s54, v33")
            a(f"v_add_f32 v34, v34, v35")
            a(f"v_add_f32 v32, v32, v33")
            a(f"v_cvt_pk_bf16_f32 v{ob+i}, v34, v32")
        a(f"buffer_store_dwordx4 v[{ob}:{ob+3}], v16, s[{SRD_AT}:{SRD_AT+3}], s{S_TMP} offen offset:{2048*sl} sc1")
    a("s_waitcnt vmcnt(0)")
    st.stamp()
    if flags:
        a("s_barrier")
        a(f"s_cmp_lg_u32 s{S_W}, 0")
        a("s_cbranch_scc1 side_done")
        a(f"s_lshr_b32 s{S_TMP}, s{s_cp}, 5")
        a(f"s_lshl_b32 s{S_TMP}, s{S_TMP}, 7")
        a(f"s_and_b32 s{S_TMP2}, s{s_cp}, 31")
        a(f"s_lshl_b32 s{S_TMP2}, s{S_TMP2}, 2")
        a(f"s_add_u32 s{S_TMP}, s{S_TMP}, s{S_TMP2}")
        a(f"s_add_u32 s{S_TMP}, s{S_TMP}, {FL_A*128}")
        set_flag(a, SRD_F, S_TMP, 10, 11)
        a.label("side_done")
    st.stamp(real=True)
    st.flush(S_W)
```

```python
import sys
from asmlib import *
import aux, side, gemm2, fused

HEADER = open("gated_mix__ssm_conv_s4__glu_gated_bilinear__prompt.s.ref").read().split("; Override launch")[0]

def build(parts, launches):
    out = [HEADER.rstrip()]
    for (n, g, b, l) in launches:
        out.append(f"; @launch kernel={n} grid=({g},1,1) block=({b},1,1) lds={l}")
    out.append('.amdgcn_target "amdgcn-amd-amdhsa--gfx950"')
    out.append(".text")
    for (n, a, vg, sg) in parts:
        out += [f".globl {n}", ".p2align 8", f".type {n},@function", f"{n}:", a.text()]
        out.append(kdesc(n, vg, sg))
    return "\n".join(out) + "\n"

def k_aux_only():
    a = Asm()
    a("s_cmp_ge_u32 s2, 32")
    a("s_cbranch_scc1 kaux_exit")
    a("s_mov_b32 s3, s2")
    aux.aux(a, 3)
    a.label("kaux_exit")
    a("s_endpgm")
    return a

def k_side_only(stamps=False):
    a = Asm()
    a("s_cmp_ge_u32 s2, 224")
    a("s_cbranch_scc1 kside_exit")
    a("s_mov_b32 s3, s2")
    side.side(a, 3, flags=False, stamps=stamps, dump_k=True)
    a.label("kside_exit")
    a("s_endpgm")
    return a

def k_g2_only(stamps=False):
    a = Asm()
    a("s_cmp_ge_u32 s2, 224")
    a("s_cbranch_scc1 kg2_exit")
    a("s_and_b32 s40, s2, 7")
    a("s_lshr_b32 s41, s2, 3")
    a("s_and_b32 s42, s41, 3")
    a("s_lshl_b32 s40, s40, 2")
    a("s_add_u32 s44, s40, s42")
    a("s_lshr_b32 s45, s41, 2")
    gemm2.gemm2(a, 44, 45, flags=False, stamps=stamps)
    a.label("kg2_exit")
    a("s_endpgm")
    return a

if __name__ == "__main__":
    which = sys.argv[1]; out = sys.argv[2]
    if which == "aux":
        txt = build([("kaux_kernel", k_aux_only(), 128, 64)], [("kaux_kernel", 32, 256, 81920)])
    if which == "side":
        txt = build([("kaux_kernel", k_aux_only(), 128, 64), ("kside_kernel", k_side_only(True), 256, 102)], [("kaux_kernel", 32, 256, 81920), ("kside_kernel", 224, 256, 81920)])
    if which.startswith("fused"):
        opts = {}
        for kv in sys.argv[3:]:
            k, v = kv.split("="); opts[k] = int(v)
        NAME = "gated_mix__ssm_conv_s4__glu_gated_bilinear__prompt_kernel"
        txt = build([(NAME, fused.fused(opts), 256, 102)], [(NAME, 480, 256, opts.get('lds', 81920))])
    open(out, "w").write(txt)
```

```python
import sys
from asmlib import *
import aux, side, gemm2, fused

HEADER = open("gated_mix__ssm_conv_s4__glu_gated_bilinear__prompt.s.ref").read().split("; Override launch")[0]

def build(parts, launches):
    out = [HEADER.rstrip()]
    for (n, g, b, l) in launches:
        if len(launches) == 1 and n.startswith("gated_mix"):
            out.append(f"; @launch grid=({g},1,1) block=({b},1,1) lds={l}")
        else:
            out.append(f"; @launch kernel={n} grid=({g},1,1) block=({b},1,1) lds={l}")
    out.append('.amdgcn_target "amdgcn-amd-amdhsa--gfx950"')
    out.append(".text")
    for (n, a, vg, sg) in parts:
        out += [f".globl {n}", ".p2align 8", f".type {n},@function", f"{n}:", a.text()]
        out.append(kdesc(n, vg, sg))
    return "\n".join(out) + "\n"

def k_aux_only():
    a = Asm()
    a("s_cmp_ge_u32 s2, 32")
    a("s_cbranch_scc1 kaux_exit")
    a("s_mov_b32 s3, s2")
    aux.aux(a, 3)
    a.label("kaux_exit")
    a("s_endpgm")
    return a

def k_side_only(stamps=False):
    a = Asm()
    a("s_cmp_ge_u32 s2, 224")
    a("s_cbranch_scc1 kside_exit")
    a("s_mov_b32 s3, s2")
    side.side(a, 3, flags=False, stamps=stamps, dump_k=True)
    a.label("kside_exit")
    a("s_endpgm")
    return a

def k_g2_only(stamps=False):
    a = Asm()
    a("s_cmp_ge_u32 s2, 224")
    a("s_cbranch_scc1 kg2_exit")
    a("s_and_b32 s40, s2, 7")
    a("s_lshr_b32 s41, s2, 3")
    a("s_and_b32 s42, s41, 3")
    a("s_lshl_b32 s40, s40, 2")
    a("s_add_u32 s44, s40, s42")
    a("s_lshr_b32 s45, s41, 2")
    gemm2.gemm2(a, 44, 45, flags=False, stamps=stamps)
    a.label("kg2_exit")
    a("s_endpgm")
    return a

if __name__ == "__main__":
    which = sys.argv[1]; out = sys.argv[2]
    if which == "aux":
        txt = build([("kaux_kernel", k_aux_only(), 128, 64)], [("kaux_kernel", 32, 256, 81920)])
    if which == "side":
        txt = build([("kaux_kernel", k_aux_only(), 128, 64), ("kside_kernel", k_side_only(True), 256, 102)], [("kaux_kernel", 32, 256, 81920), ("kside_kernel", 224, 256, 81920)])
    if which.startswith("fused"):
        opts = {}
        for kv in sys.argv[3:]:
            k, v = kv.split("="); opts[k] = int(v)
        NAME = "gated_mix__ssm_conv_s4__glu_gated_bilinear__prompt_kernel"
        txt = build([(NAME, fused.fused(opts), 256, 102)], [(NAME, 480, 256, opts.get('lds', 81920))])
    open(out, "w").write(txt)
```

```python
class Asm:
    def __init__(self):
        self.L = []
    def __call__(self, s=""):
        for line in s.split("\n"):
            line = line.strip()
            if line:
                self.L.append("    " + line)
    def label(self, n):
        self.L.append(n + ":")
    def c(self, s):
        self.L.append("    ; " + s)
    def text(self):
        return "\n".join(self.L)

def vr(a, n=1):
    return f"v{a}" if n == 1 else f"v[{a}:{a+n-1}]"
def sr(a, n=1):
    return f"s{a}" if n == 1 else f"s[{a}:{a+n-1}]"

KA = dict(u=0, are=8, aim=16, bre=24, bim=32, cre=40, cim=48, ldt=56, dskip=64, bx=72, wg=80, wu=88, wd=96, gw=104, out=112, dbg=120, ws=128)

WS_H  = 0x000000; SZ_H = 2048*1792*2
WS_UT = 0x700000; SZ_UT = 448*2048*2
WS_AT = 0x8C0000; SZ_AT = 448*2048*2
WS_KX = 0xA80000; KX_ROW = 2112*2; SZ_KX = 448*2*KX_ROW
WS_G  = 0xE20000; SZ_G = 2048*4

def srd_from(a, dst, src, size, off=0):
    if off:
        a(f"s_add_u32 s{dst}, s{src}, {off}")
        a(f"s_addc_u32 s{dst+1}, s{src+1}, 0")
    else:
        a(f"s_mov_b32 s{dst}, s{src}")
        a(f"s_mov_b32 s{dst+1}, s{src+1}")
    a(f"s_mov_b32 s{dst+2}, {size}")
    a(f"s_mov_b32 s{dst+3}, 0x20000")

def kdesc(name, vgpr, sgpr=102, accum=None):
    accum = accum or ((vgpr + 3) // 4 * 4)
    return f""".section .rodata,"a"
.p2align 6
.amdhsa_kernel {name}
  .amdhsa_next_free_vgpr {vgpr}
  .amdhsa_next_free_sgpr {sgpr}
  .amdhsa_accum_offset {accum}
  .amdhsa_group_segment_fixed_size 0
  .amdhsa_kernarg_size 136
  .amdhsa_user_sgpr_count 2
  .amdhsa_user_sgpr_kernarg_segment_ptr 1
  .amdhsa_system_sgpr_workgroup_id_x 1
  .amdhsa_float_denorm_mode_32 3
.end_amdhsa_kernel
.text
"""

WS_STAMP = 0x2000000
class Stamps:
    ALLREAL = False
    def __init__(self, a, base, on):
        self.a, self.base, self.on, self.n = a, base, on, 0
    def stamp(self, real=False):
        if not self.on: return
        real = real or Stamps.ALLREAL
        self.a(f"s_mem{'real' if real else ''}time s[{self.base+2*self.n}:{self.base+2*self.n+1}]")
        self.n += 1
    def flush(self, wave_sgpr, tmp0=92):
        if not self.on: return
        a = self.a
        a("s_waitcnt lgkmcnt(0) vmcnt(0)")
        a(f"s_load_dwordx2 s[{tmp0}:{tmp0+1}], s[0:1], {KA['ws']}")
        a("s_waitcnt lgkmcnt(0)")
        a(f"s_add_u32 s{tmp0}, s{tmp0}, {WS_STAMP}")
        a(f"s_addc_u32 s{tmp0+1}, s{tmp0+1}, 0")
        a(f"s_mov_b32 s{tmp0+2}, 0x100000")
        a(f"s_mov_b32 s{tmp0+3}, 0x20000")
        a(f"s_lshl_b32 s{tmp0+4}, s2, 8")
        a(f"s_lshl_b32 s{tmp0+5}, s{wave_sgpr}, 6")
        a(f"s_add_u32 s{tmp0+4}, s{tmp0+4}, s{tmp0+5}")
        a(f"v_mov_b32 v250, 0")
        for k in range(16):
            a(f"v_mov_b32 v251, s{self.base+2*k}")
            a(f"buffer_store_dword v251, v250, s[{tmp0}:{tmp0+3}], s{tmp0+4} offen offset:{4*k}")
        a("s_waitcnt vmcnt(0)")

FLAG_AUX = 0
FLAG_H = 16
FLAG_A = 128

WS_F = 0xE30000; SZ_F = 896*128
L_H = 0
L_A = 224
L_U = 448
L_M = 672
SPIN_MAX = 400000

def wait_tag(a, name, s_dbg, s_tag, s_cnt, v0_, v1_):
    a(f"v_mov_b32 v{v0_}, 0")
    a(f"s_mov_b32 s{s_cnt}, 0")
    a.label(name)
    a(f"global_load_dword v{v1_}, v{v0_}, s[{s_dbg}:{s_dbg+1}] sc1")
    a("s_waitcnt vmcnt(0)")
    a(f"v_readfirstlane_b32 s{s_tag}, v{v1_}")
    a(f"s_add_u32 s{s_cnt}, s{s_cnt}, 1")
    a(f"s_cmp_ge_u32 s{s_cnt}, {SPIN_MAX}")
    a(f"s_cbranch_scc1 {name}_ok")
    a(f"s_cmp_lg_u32 s{s_tag}, 0")
    a(f"s_cbranch_scc1 {name}_ok")
    a("s_sleep 8")
    a(f"s_branch {name}")
    a.label(name + "_ok")

def wait_flags(a, name, srd_f, s_line_off, nwords, s_tag, s_tmp, s_cnt, v0_, v1_, sleep=2, s_mask=None):
    mask = f"s{s_mask}" if s_mask is not None else hex((1 << nwords) - 1)
    a(f"v_and_b32 v{v0_}, 31, v0")
    a(f"v_lshlrev_b32 v{v0_}, 2, v{v0_}")
    a(f"s_mov_b32 s{s_cnt}, 0")
    a.label(name)
    a(f"buffer_load_dword v{v1_}, v{v0_}, s[{srd_f}:{srd_f+3}], s{s_line_off} offen sc1")
    a("s_waitcnt vmcnt(0)")
    a(f"v_cmp_eq_u32 vcc, s{s_tag}, v{v1_}")
    a(f"s_add_u32 s{s_cnt}, s{s_cnt}, 1")
    a(f"s_cmp_ge_u32 s{s_cnt}, {SPIN_MAX}")
    a(f"s_cbranch_scc1 {name}_ok")
    a(f"s_and_b32 s{s_tmp}, vcc_lo, {mask}")
    a(f"s_cmp_eq_u32 s{s_tmp}, {mask}")
    a(f"s_cbranch_scc1 {name}_ok")
    if sleep: a(f"s_sleep {sleep}")
    a(f"s_branch {name}")
    a.label(name + "_ok")

def set_flags(a, srd_f, s_off, s_tag, nlanes, lane_stride, v0_, v1_):
    if nlanes == 1: a(f"v_mov_b32 v{v0_}, 0")
    else: a(f"v_mul_u32_u24 v{v0_}, {lane_stride}, v0")
    a(f"v_mov_b32 v{v1_}, s{s_tag}")
    a(f"s_mov_b64 exec, {hex((1 << nlanes) - 1)}")
    a(f"buffer_store_dword v{v1_}, v{v0_}, s[{srd_f}:{srd_f+3}], s{s_off} offen sc1")
    a("s_mov_b64 exec, -1")
```

```python
from asmlib import *

def aux(a, st, s_ax, s_k, s_j, mshift=0):
    S_W = 4; S_T0 = 5
    SRD_X = 8; SRD_GW = 12; SRD_G = 20; SRD_F = 52
    S_TMP = 24; S_TMP2 = 25
    P0 = 28
    a.c("---- aux role (gate) ----")
    a(f"s_lshl_b32 s{S_T0}, s{s_ax}, 6")
    a(f"s_load_dwordx2 s[{P0}:{P0+1}], s[0:1], {KA['u']}")
    a(f"s_load_dwordx2 s[{P0+2}:{P0+3}], s[0:1], {KA['ws']}")
    a(f"s_load_dwordx2 s[{P0+4}:{P0+5}], s[0:1], {KA['gw']}")
    a(f"s_load_dwordx2 s[{P0+6}:{P0+7}], s[0:1], {KA['dbg']}")
    a("v_lshrrev_b32 v10, 4, v0")
    a("v_lshrrev_b32 v11, 3, v0")
    a("v_mul_u32_u24 v11, 896, v11")
    a("v_and_b32 v12, 7, v0")
    a("v_xor_b32 v13, v12, v10")
    a("v_lshlrev_b32 v13, 4, v13")
    a("v_add_u32 v2, v11, v13")
    a("v_xor_b32 v13, 64, v13")
    a("v_add_u32 v3, v11, v13")
    a(f"v_add_u32 v3, {8*896 - 1024}, v3")
    a("v_lshlrev_b32 v4, 4, v0")
    a(f"s_lshl_b32 s{S_TMP}, s{S_W}, 4")
    a(f"s_add_u32 s{S_TMP2}, s{S_T0}, s{S_TMP}")
    a(f"s_mul_i32 s26, s{S_TMP2}, 896")
    a(f"s_lshl_b32 s27, s{S_W}, 11")
    a("s_waitcnt lgkmcnt(0)")
    srd_from(a, SRD_X, P0, 2048*448*2)
    srd_from(a, SRD_GW, P0+4, 448*2)
    for k in range(7):
        a(f"s_add_u32 m0, s27, {k*8192}")
        a(f"s_add_u32 s{S_TMP}, s26, {128*k}")
        a(f"buffer_load_dwordx4 v2, s[{SRD_X}:{SRD_X+3}], s{S_TMP} offen lds")
        a(f"buffer_load_dwordx4 v3, s[{SRD_X}:{SRD_X+3}], s{S_TMP} offen offset:1024 lds")
    a(f"s_lshl_b32 s{S_TMP}, s{S_W}, 10")
    a(f"s_add_u32 m0, s{S_TMP}, 57344")
    a("s_nop 0")
    a(f"buffer_load_dwordx4 v4, s[{SRD_GW}:{SRD_GW+3}], 0 offen lds")
    a("v_lshrrev_b32 v10, 2, v0")
    a(f"s_lshl_b32 s26, s{S_W}, 4")
    a("v_add_u32 v10, s26, v10")
    a("v_lshrrev_b32 v11, 1, v10")
    a("v_and_b32 v11, 7, v11")
    a("v_and_b32 v12, 3, v0")
    a("v_lshlrev_b32 v14, 1, v12")
    a("v_xor_b32 v14, v14, v11")
    a("v_lshlrev_b32 v13, 7, v10")
    a("v_lshlrev_b32 v14, 4, v14")
    a("v_add_u32 v18, v13, v14")
    a("v_xor_b32 v14, 16, v14")
    a("v_add_u32 v19, v13, v14")
    a("v_lshlrev_b32 v17, 5, v12")
    a(f"s_add_u32 s{S_TMP}, s{S_TMP}, 57344")
    a(f"v_add_u32 v17, s{S_TMP}, v17")
    GW = 64; GX = 120
    srd_from(a, SRD_G, P0+2, SZ_G, WS_G)
    srd_from(a, SRD_F, P0+2, SZ_F, WS_F)
    a(f"s_cmp_lg_u32 s{S_W}, 0")
    a("s_cbranch_scc1 aux_mf_done")
    wait_tag(a, "aux_wr", P0+6, 37, S_TMP2, 10, 11)
    a(f"s_sub_u32 s{S_TMP2}, s{s_j}, {mshift}")
    a(f"s_cmp_ge_u32 s{S_TMP2}, 28")
    a("s_cbranch_scc1 aux_mf_done")
    a(f"s_lshl_b32 s{S_TMP}, s{S_TMP2}, 3")
    a(f"s_add_u32 s{S_TMP}, s{S_TMP}, s{s_k}")
    a(f"s_add_u32 s{S_TMP}, s{S_TMP}, {L_M}")
    a(f"s_lshl_b32 s{S_TMP}, s{S_TMP}, 7")
    set_flags(a, SRD_F, S_TMP, 37, 1, 0, 10, 11)
    a.label("aux_mf_done")
    st.stamp()
    a("s_waitcnt vmcnt(0)")
    st.stamp()
    for k in range(7):
        a(f"ds_read_b128 v[{GX+8*k}:{GX+8*k+3}], v18 offset:{k*8192}")
        a(f"ds_read_b128 v[{GX+8*k+4}:{GX+8*k+7}], v19 offset:{k*8192}")
        a(f"ds_read_b128 v[{GW+8*k}:{GW+8*k+3}], v17 offset:{128*k}")
        a(f"ds_read_b128 v[{GW+8*k+4}:{GW+8*k+7}], v17 offset:{128*k+16}")
    a("s_waitcnt lgkmcnt(0)")
    a("v_mov_b32 v20, 0")
    a("v_mov_b32 v21, 0")
    a("s_mov_b32 s36, 0xffff0000")
    for k in range(7):
        for j in range(8):
            x = GX + 8*k + j; g = GW + 8*k + j
            acc = 20 + (j & 1)
            a(f"v_lshlrev_b32 v22, 16, v{x}")
            a(f"v_and_b32 v{x}, s36, v{x}")
            a(f"v_lshlrev_b32 v23, 16, v{g}")
            a(f"v_and_b32 v{g}, s36, v{g}")
            a(f"v_mul_f32 v22, v22, v23")
            a(f"v_mul_f32 v{x}, v{x}, v{g}")
            a(f"v_cvt_pk_bf16_f32 v22, v22, v{x}")
            a(f"v_lshlrev_b32 v23, 16, v22")
            a(f"v_and_b32 v22, s36, v22")
            a(f"v_add_f32 v20, v20, v23")
            a(f"v_add_f32 v20, v20, v22")
    a("s_nop 1")
    a("v_add_f32_dpp v20, v20, v20 quad_perm:[1,0,3,2] row_mask:0xf bank_mask:0xf")
    a("s_nop 1")
    a("v_add_f32_dpp v20, v20, v20 quad_perm:[2,3,0,1] row_mask:0xf bank_mask:0xf")
    a("v_cvt_pk_bf16_f32 v20, v20, v20")
    a("v_lshlrev_b32 v20, 16, v20")
    a("v_mul_f32 v20, 0xbfb8aa3b, v20")
    a("v_exp_f32 v20, v20")
    a("s_nop 0")
    a("v_add_f32 v20, 1.0, v20")
    a("v_rcp_f32 v20, v20")
    a("s_nop 0")
    a("v_cvt_pk_bf16_f32 v20, v20, v20")
    a("v_lshlrev_b32 v20, 16, v20")
    a("v_lshrrev_b32 v10, 2, v0")
    a("v_lshlrev_b32 v10, 2, v10")
    a(f"s_lshl_b32 s{S_TMP}, s{S_W}, 4")
    a(f"s_add_u32 s{S_TMP}, s{S_TMP}, s{S_T0}")
    a(f"s_lshl_b32 s{S_TMP}, s{S_TMP}, 2")
    a("v_and_b32 v11, 3, v0")
    a("v_cmp_eq_u32 vcc, 0, v11")
    a("s_and_saveexec_b64 s[38:39], vcc")
    a(f"buffer_store_dword v20, v10, s[{SRD_G}:{SRD_G+3}], s{S_TMP} offen sc1")
    a("s_mov_b64 exec, s[38:39]")
    a("s_waitcnt vmcnt(0)")
    st.stamp()
    a("s_barrier")
    a(f"s_cmp_lg_u32 s{S_W}, 0")
    a("s_cbranch_scc1 aux_done")
    a(f"s_mul_i32 s{S_TMP}, s{s_ax}, {7*128}")
    a(f"s_add_u32 s{S_TMP}, s{S_TMP}, 56")
    set_flags(a, SRD_F, S_TMP, 37, 7, 128, 10, 11)
    a.label("aux_done")
```

```python
from asmlib import *
import gemm1, aux2, side2, gemm2

def publish(a, s_dbg):
    a("s_cmp_lg_u32 s2, 224")
    a("s_cbranch_scc1 pub_skip")
    a("s_cmp_lg_u32 s4, 0")
    a("s_cbranch_scc1 pub_skip")
    a("s_memrealtime s[58:59]") if False else None
    a("s_memrealtime s[46:47]")
    a("s_waitcnt lgkmcnt(0)")
    a("s_or_b32 s46, s46, 1")
    a("v_mov_b32 v22, s46")
    a("s_mov_b64 exec, 1")
    a(f"global_store_dword v21, v22, s[{s_dbg}:{s_dbg+1}] sc1")
    a("s_mov_b64 exec, -1")
    a.label("pub_skip")

def fused(opts):
    stamps = opts.get("stamps", False)
    gemm2.SLEEP = opts.get('sleep', 2)
    Stamps.ALLREAL = not opts.get('cyc')
    a = Asm()
    st = Stamps(a, 60 if not stamps else 60, stamps)
    a("s_cmp_ge_u32 s2, 480")
    a("s_cbranch_scc1 f_exit")
    st.stamp(real=True); st.stamp()
    if opts.get("mainfirst", 1):
        a("s_add_u32 s3, s2, 224")
        a("s_sub_u32 s5, s2, 256")
        a("s_cmp_lt_u32 s2, 256")
        a("s_cselect_b32 s2, s3, s5")
    a("v_lshrrev_b32 v1, 6, v0")
    a("v_and_b32 v0, 63, v0")
    a("v_readfirstlane_b32 s4, v1")
    a("s_cmp_lt_u32 s2, 224")
    a("s_cbranch_scc1 f_side" if not opts.get("noside") else "s_cbranch_scc1 f_exit")
    if opts.get("prio"): a(f"s_setprio {opts['prio']}")
    a("s_sub_u32 s3, s2, 224")
    a("s_and_b32 s40, s3, 7")
    a("s_lshr_b32 s41, s3, 3")
    a("s_and_b32 s42, s40, 1")
    a("s_lshr_b32 s43, s40, 1")
    a("s_lshr_b32 s44, s41, 3")
    a("s_and_b32 s45, s41, 7")
    a("s_and_b32 s46, s43, 1")
    a("s_sub_u32 s47, 4, s46")
    a("s_cmp_ge_u32 s44, s47")
    a("s_cbranch_scc1 f_aux")
    a("s_lshl_b32 s48, s42, 3")
    a("s_add_u32 s48, s48, s45")
    a("s_lshr_b32 s49, s43, 1")
    a("s_mul_i32 s49, s49, 7")
    a("s_lshl_b32 s46, s46, 2")
    a("s_add_u32 s49, s49, s46")
    a("s_add_u32 s49, s49, s44")
    rotc = opts.get("rotc", 1)
    a("s_add_u32 s50, s48, s49")
    if rotc == 1: a("s_mov_b32 s50, 0")
    elif rotc == 2:
        a("s_and_b32 s50, s50, 1"); a("s_mul_i32 s50, s50, 4")
    elif rotc == 4:
        a("s_and_b32 s50, s50, 3"); a("s_lshl_b32 s50, s50, 1")
    elif rotc == 6:
        a("s_mul_i32 s51, s50, 43"); a("s_lshr_b32 s51, s51, 8"); a("s_mul_i32 s51, s51, 6"); a("s_sub_u32 s50, s50, s51")
    elif rotc == 3:
        a("s_mul_i32 s51, s50, 86"); a("s_lshr_b32 s51, s51, 8"); a("s_mul_i32 s51, s51, 3"); a("s_sub_u32 s50, s50, s51"); a("s_lshl_b32 s50, s50, 1")
    else:
        a("s_mul_i32 s51, s50, 37"); a("s_lshr_b32 s51, s51, 8"); a("s_mul_i32 s51, s51, 7"); a("s_sub_u32 s50, s50, s51")
    gemm1.gemm1(a, st, 48, 49, 50, exact_round=opts.get("exact", True), NW=opts.get('NW', 3), NX=opts.get('NX', 2), NPRO=opts.get('npro', 3), unitstamps=opts.get('ust', 0), s_k=40, s_j=41, MFU=opts.get('mfu', 11), hybrid=opts.get('hyb', 0), publish=publish, tail=(gemm2 if opts.get('early', 1) else None), s_main=3, mshift=(0 if opts.get('mainfirst', 1) else 4))
    a("s_branch f_g2")
    a.label("f_aux")
    a("s_lshr_b32 s48, s43, 1")
    a("s_lshl_b32 s48, s48, 1")
    a("s_add_u32 s48, s48, s42")
    a("s_lshl_b32 s48, s48, 3")
    a("s_add_u32 s48, s48, s45")
    n0 = st.n; st.n = 2
    aux2.aux(a, st, 48, 40, 41, mshift=(0 if opts.get('mainfirst', 1) else 4))
    st.n = 6; st.stamp(); st.n = n0
    gemm2.setup_w(a, 3)
    if opts.get('early', 1):
        a("s_barrier")
        for p in range(6):
            for g in gemm2.dma_w_lines(gemm2.EARLY_AREA[p]*8192, p):
                for l in g: a(l)
        a("s_waitcnt vmcnt(0)")
        gemm2.pre_dma(a)
    a.label("f_g2")
    a("s_lshr_b32 s41, s3, 3")
    a("s_cmp_ge_u32 s41, 28" if not opts.get("nog2") else "s_cmp_ge_u32 s41, 0")
    a("s_cbranch_scc1 f_early")
    a("s_and_b32 s40, s3, 7")
    a("s_lshl_b32 s40, s40, 2")
    a("s_and_b32 s42, s41, 3")
    a("s_add_u32 s44, s40, s42")
    a("s_lshr_b32 s45, s41, 2")
    a("s_barrier")
    gemm2.gemm2(a, st, 44, 45, rot=opts.get('rot2', 1), NP=opts.get('np', 16), prio=opts.get('prio2', 0), early=opts.get('early', 1))
    a("s_endpgm")
    a.label("f_early")
    if stamps:
        n0 = st.n; st.n = 7; st.flush(4); st.n = n0
    a("s_endpgm")
    a.label("f_side")
    a("s_and_b32 s40, s2, 7")
    a("s_lshr_b32 s41, s2, 3")
    a("s_mul_i32 s3, s40, 28")
    a("s_add_u32 s3, s3, s41")
    st2 = Stamps(a, 60, stamps); st2.n = 2
    side2.side(a, st2, 3, gate=opts.get('gate', 1), sleep=opts.get('ssleep', 4), pf=opts.get('pf', 0), p0early=opts.get('p0e', 1), latetile=opts.get('lt', 1), lategate=opts.get('lg', 1))
    a.label("f_exit")
    a("s_endpgm")
    return a
```

```python
from asmlib import *

def gemm1(a, st, s_ti, s_tj, s_rot, exact_round=True, NW=3, NX=2, sc1=True, NPRO=5, unitstamps=False, s_k=None, s_j=None, MFU=11, hybrid=True, publish=None, tail=None, s_main=None, mshift=0):
    S_W = 4
    S_T0 = 5; S_F0 = 6
    SRD_X = 8; SRD_W = 12; SRD_H = 16
    S_XCUR = 20; S_WCUR = 21; S_XL = 22; S_WL = 23
    S_TMP = 24; S_TMP2 = 25; S_XLIM = 26; S_WLIM = 27
    P0 = 28
    a.c("---- GEMM1 role ----")
    a(f"s_load_dwordx2 s[{P0}:{P0+1}], s[0:1], {KA['u']}")
    a(f"s_load_dwordx4 s[{P0+4}:{P0+7}], s[0:1], {KA['wg']}")
    a(f"s_load_dwordx2 s[{P0+2}:{P0+3}], s[0:1], {KA['ws']}")
    a(f"s_lshl_b32 s{S_T0}, s{s_ti}, 7")
    a(f"s_lshl_b32 s{S_F0}, s{s_tj}, 7")
    V_DW = 2; V_DX0 = 3; V_DX1 = 4
    V_DWI = 72; V_DXI = 76
    a("v_lshrrev_b32 v10, 4, v0")
    a("v_and_b32 v11, 15, v0")
    a("v_lshlrev_b32 v12, 1, v10")
    a("v_xor_b32 v11, v11, v12")
    a(f"s_lshr_b32 s{S_TMP}, s{S_W}, 1")
    a(f"s_lshl_b32 s{S_TMP2}, s{S_TMP}, 3")
    a(f"v_xor_b32 v11, s{S_TMP2}, v11")
    a("v_lshlrev_b32 v11, 4, v11")
    a("v_mul_u32_u24 v12, 3584, v10")
    a(f"v_add_u32 v{V_DW}, v11, v12")
    a("v_lshrrev_b32 v11, 3, v0")
    a("v_mul_u32_u24 v11, 896, v11")
    a("v_and_b32 v12, 7, v0")
    a("v_xor_b32 v13, v12, v10")
    a("v_lshlrev_b32 v13, 4, v13")
    a(f"v_add_u32 v{V_DX0}, v11, v13")
    a("v_xor_b32 v13, 64, v13")
    a(f"v_add_u32 v{V_DX1}, v11, v13")
    for i in range(4):
        a(f"v_add_u32 v{V_DWI+i}, {i*(4*3584 - 1024)}, v{V_DW}")
        a(f"v_add_u32 v{V_DXI+i}, {i*(8*896 - 1024)}, v{V_DX0 + (i & 1)}")
    a(f"s_lshl_b32 s{S_TMP2}, s{S_W}, 5")
    a(f"s_add_u32 s{S_XCUR}, s{S_T0}, s{S_TMP2}")
    a(f"s_mul_i32 s{S_XCUR}, s{S_XCUR}, 896")
    a(f"s_add_u32 s{S_XLIM}, s{S_XCUR}, 896")
    a(f"s_lshl_b32 s{S_TMP2}, s{s_rot}, 7")
    if hybrid:
        a(f"s_add_u32 s58, s{S_XCUR}, s{S_TMP2}")
        a(f"s_add_u32 s58, s58, 128")
    else:
        a(f"s_add_u32 s{S_XCUR}, s{S_XCUR}, s{S_TMP2}")
    a(f"s_lshl_b32 s{S_XL}, s{S_W}, 12")
    a(f"s_add_u32 s{S_XL}, s{S_XL}, {NW*16384}")
    a(f"s_and_b32 s{S_TMP2}, s{S_W}, 1")
    a(f"s_mul_i32 s{S_WCUR}, s{S_TMP2}, {16*3584}")
    a(f"s_lshl_b32 s{S_WL}, s{S_F0}, 1")
    a(f"s_add_u32 s{S_WCUR}, s{S_WCUR}, s{S_WL}")
    a(f"s_add_u32 s{S_WLIM}, s{S_WCUR}, {448*3584}")
    a(f"s_mul_i32 s{S_WL}, s{s_rot}, {64*3584}")
    if hybrid:
        a(f"s_add_u32 s59, s{S_WCUR}, s{S_WL}")
        a(f"s_add_u32 s59, s59, {64*3584}")
    else:
        a(f"s_add_u32 s{S_WCUR}, s{S_WCUR}, s{S_WL}")
    a(f"s_lshl_b32 s{S_WL}, s{S_TMP}, 13")
    a(f"s_lshl_b32 s{S_TMP2}, s{S_TMP2}, 12")
    a(f"s_add_u32 s{S_WL}, s{S_WL}, s{S_TMP2}")
    a("s_waitcnt lgkmcnt(0)")
    srd_from(a, SRD_X, P0, 2048*448*2)
    a(f"s_cmp_eq_u32 s{S_TMP}, 0")
    a(f"s_cselect_b32 s{SRD_W}, s{P0+4}, s{P0+6}")
    a(f"s_cselect_b32 s{SRD_W+1}, s{P0+5}, s{P0+7}")
    a(f"s_mov_b32 s{SRD_W+2}, {448*1792*2}")
    a(f"s_mov_b32 s{SRD_W+3}, 0x20000")

    vm = []
    def dma_instrs(d):
        kind, idx = d
        out = []
        for i in range(4):
            if kind == "W":
                g = [f"s_add_u32 m0, s{S_WL}, {(idx % NW)*16384}"] if i == 0 else []
                g.append(f"buffer_load_dwordx4 v{V_DWI+i}, s[{SRD_W}:{SRD_W+3}], s{S_WCUR} offen offset:{i*1024} lds")
                if i == 3 and hybrid and idx == 1:
                    g += [f"s_mov_b32 s{S_WCUR}, s59"]
                elif i == 3:
                    g += [f"s_add_u32 s{S_WCUR}, s{S_WCUR}, {32*3584}",
                          f"s_sub_u32 s{S_TMP2}, s{S_WCUR}, {(384 if hybrid else 448)*3584}",
                          f"s_cmp_ge_u32 s{S_WCUR}, s{S_WLIM}",
                          f"s_cselect_b32 s{S_WCUR}, s{S_TMP2}, s{S_WCUR}"]
            else:
                g = [f"s_add_u32 m0, s{S_XL}, {(idx % NX)*16384}"] if i == 0 else []
                g.append(f"buffer_load_dwordx4 v{V_DXI+i}, s[{SRD_X}:{SRD_X+3}], s{S_XCUR} offen offset:{i*1024} lds")
                if i == 3 and hybrid and idx == 0:
                    g += [f"s_mov_b32 s{S_XCUR}, s58"]
                elif i == 3:
                    g += [f"s_add_u32 s{S_XCUR}, s{S_XCUR}, 128",
                          f"s_sub_u32 s{S_TMP2}, s{S_XCUR}, {768 if hybrid else 896}",
                          f"s_cmp_ge_u32 s{S_XCUR}, s{S_XLIM}",
                          f"s_cselect_b32 s{S_XCUR}, s{S_TMP2}, s{S_XCUR}"]
            if i == 0: g.insert(1, "s_nop 0")
            out.append(g)
        vm.append(d)
        return out
    def wait_for(needs):
        last = max(vm.index(n) for n in needs)
        a(f"s_waitcnt vmcnt({sum((1 if g[0] == 'F' else 2 if g[0] == 'T' else 4) for g in vm[last+1:])})")
    order = [("X",0),("W",0),("W",1),("X",1),("W",2),("W",3),("X",2),("W",4),("W",5)]
    order = [d for d in order if (d[0] == "W" and d[1] < NW) or (d[0] == "X" and d[1] < NX)]
    for d in order[:NPRO]:
        for g in dma_instrs(d):
            for l in g: a(l)
    late = order[NPRO:]
    srd_from(a, SRD_H, P0+2, SZ_H, WS_H)
    SRD_F = 52
    srd_from(a, SRD_F, P0+2, SZ_F, WS_F)
    a(f"s_load_dwordx2 s[{P0}:{P0+1}], s[0:1], {KA['dbg']}")
    a(f"s_sub_u32 s57, s{s_j}, {mshift}")
    a(f"s_lshl_b32 s56, s57, 3")
    a(f"s_add_u32 s56, s56, s{s_k}")
    a(f"s_add_u32 s56, s56, {L_M}")
    a("s_lshl_b32 s56, s56, 7")
    a(f"s_cmp_lt_u32 s57, 28")
    a(f"s_cselect_b32 s56, s56, {SZ_F}")
    a("v_mov_b32 v21, 0")
    a("s_waitcnt lgkmcnt(0)")
    if publish: publish(a, P0)

    V_AW = 5
    V_AX = 14
    a("v_lshrrev_b32 v10, 4, v0")
    a("v_lshrrev_b32 v11, 2, v0")
    a("v_and_b32 v11, 3, v11")
    a("v_and_b32 v12, 3, v0")
    a("v_lshrrev_b32 v13, 1, v10")
    a("v_and_b32 v10, 1, v10")
    a("v_lshlrev_b32 v18, 13, v10")
    a("v_lshlrev_b32 v19, 3, v13")
    a("v_add_u32 v19, v19, v11")
    a("v_lshlrev_b32 v19, 8, v19")
    a("v_add_u32 v18, v18, v19")
    a("v_lshrrev_b32 v19, 1, v12")
    a("v_lshlrev_b32 v19, 3, v19")
    a("v_add_u32 v18, v18, v19")
    a("v_and_b32 v19, 1, v12")
    a("v_lshlrev_b32 v20, 1, v11")
    a("v_xor_b32 v19, v19, v20")
    a("v_lshlrev_b32 v20, 3, v10")
    a("v_xor_b32 v19, v19, v20")
    a(f"s_lshr_b32 s{S_TMP}, s{S_W}, 1")
    a(f"s_lshl_b32 s{S_TMP}, s{S_TMP}, 3")
    for rb in range(4):
        a(f"s_add_u32 s{S_TMP2}, s{S_TMP}, {rb*2}")
        a(f"v_xor_b32 v20, s{S_TMP2}, v19")
        a("v_lshlrev_b32 v20, 4, v20")
        a(f"v_add_u32 v{V_AW+rb}, v18, v20")
    a("v_and_b32 v10, 31, v0")
    a("v_lshrrev_b32 v11, 5, v0")
    a("v_lshrrev_b32 v12, 1, v10")
    a("v_and_b32 v12, 7, v12")
    a("v_xor_b32 v12, v12, v11")
    a(f"s_and_b32 s{S_TMP}, s{S_W}, 1")
    a(f"s_lshl_b32 s{S_TMP}, s{S_TMP}, 13")
    a(f"s_add_u32 s{S_TMP}, s{S_TMP}, {NW*16384}")
    a("v_lshlrev_b32 v10, 7, v10")
    a(f"v_add_u32 v10, s{S_TMP}, v10")
    for ks in range(4):
        a(f"v_xor_b32 v13, {2*ks}, v12")
        a("v_lshlrev_b32 v13, 4, v13")
        a(f"v_add_u32 v{V_AX+ks}, v10, v13")

    FR = [24, 48]
    ACC = 128
    def acc(rb, cb): return ACC + 16*(rb*2 + cb)
    def reads(step):
        u = step // 2; s = step % 2; v = step // 4; ks = step % 4
        fb = FR[step % 2]
        R = []
        def ra(rb):
            for h2 in range(2):
                R.append(f"ds_read_b64_tr_b16 v[{fb+4*rb+2*h2}:{fb+4*rb+2*h2+1}], v{V_AW+rb} offset:{(u%NW)*16384 + (16*s+4*h2)*256}")
        def rbb(cb):
            R.append(f"ds_read_b128 v[{fb+16+4*cb}:{fb+16+4*cb+3}], v{V_AX+ks} offset:{(v%NX)*16384 + cb*4096}")
        rbb(0); ra(0); ra(1); rbb(1); ra(2); ra(3)
        return R
    def mfmas(step):
        fb = FR[step % 2]
        M = []
        for (rb, cb) in [(0,0),(1,0),(0,1),(1,1),(2,0),(2,1),(3,0),(3,1)]:
            c = "0" if step == 0 else f"v[{acc(rb,cb)}:{acc(rb,cb)+15}]"
            M.append(f"v_mfma_f32_32x32x16_bf16 v[{acc(rb,cb)}:{acc(rb,cb)+15}], v[{fb+4*rb}:{fb+4*rb+3}], v[{fb+16+4*cb}:{fb+16+4*cb+3}], {c}")
        return M
    if tail: tail.setup_w(a, s_main)
    if not unitstamps: st.stamp()
    wait_for([("X",0),("W",0)])
    a("s_barrier")
    st.stamp()
    dbg_event(a, 1)
    if st.on: a("s_memtime s[88:89]")
    for r in reads(0): a(r)
    pend = []
    for d in late:
        for g in dma_instrs(d):
            for l in g: a(l)
    for u in range(14):
        for s in range(2):
            step = 2*u + s
            a("s_waitcnt lgkmcnt(0)")
            if s == 1:
                need = []
                if u + 1 < 14: need = [("W", u+1), ("X", (u+1)//2)]
                if need: wait_for(need)
                a("s_barrier")
                if unitstamps and (u < 11 if unitstamps == 1 else u >= 3): st.stamp()
                assert not pend
                dmas = []
                if u + NW < 14: dmas.append(("W", u+NW))
                if u % 2 == 1 and (u//2) + NX < 7: dmas.append(("X", u//2 + NX))
                if u == 6:
                    a(f"global_load_dword v23, v21, s[{P0}:{P0+1}] sc1")
                    vm.append(("F", 1))
                if u == MFU:
                    a("v_readfirstlane_b32 s37, v23")
                    a("s_nop 3")
                    a("s_cmp_lg_u32 s37, 0")
                    a("s_cbranch_scc1 g1_mf_fast")
                    wait_tag(a, "g1_wr", P0, 37, S_TMP2, 21, 23)
                    a("v_mov_b32 v21, 0")
                    a.label("g1_mf_fast")
                    a("v_mov_b32 v22, s37")
                    a("s_mov_b64 exec, 1")
                    a(f"buffer_store_dword v22, v21, s[{SRD_F}:{SRD_F+3}], s56 offen sc1")
                    a("s_mov_b64 exec, -1")
                    vm.append(("F", 0))
                for d in dmas: pend += dma_instrs(d)
                if tail and u in (11, 13):
                    for p in ((0, 1, 2, 3) if u == 11 else (4, 5)):
                        pend += tail.dma_w_lines(tail.EARLY_AREA[p]*8192, p)
                        vm.append(("T", p))
            M = mfmas(step)
            R = reads(step + 1) if step + 1 < 28 else []
            ri = 0
            for mi, m in enumerate(M):
                a(m)
                if pend and mi % 2 == 1:
                    for line in pend.pop(0): a(line)
                for _ in range(2):
                    if ri < len(R):
                        a(R[ri]); ri += 1
    dbg_event(a, 2)
    if unitstamps:
        st.stamp(); st.flush(S_W); a("s_endpgm"); st.n = 4
    st.stamp()
    if st.on: a("s_memtime s[90:91]")
    a("v_and_b32 v10, 31, v0")
    a("v_lshrrev_b32 v11, 5, v0")
    a("v_and_b32 v12, 7, v10")
    a("v_xor_b32 v12, v12, v11")
    a(f"s_lshl_b32 s{S_TMP}, s{S_W}, 13")
    a("v_lshlrev_b32 v10, 7, v10")
    a(f"v_add_u32 v10, s{S_TMP}, v10")
    for rb in range(4):
        a(f"v_xor_b32 v13, {2*rb}, v12")
        a("v_lshlrev_b32 v13, 4, v13")
        a(f"v_add_u32 v{V_AW+rb}, v10, v13")
    a("s_mov_b32 s36, 0xffff0000")
    a("v_lshrrev_b32 v10, 3, v0")
    a("v_and_b32 v11, 7, v0")
    a("v_xor_b32 v11, v11, v10")
    a("v_lshlrev_b32 v11, 4, v11")
    a("v_mul_u32_u24 v13, 3584, v10")
    a("v_add_u32 v2, v11, v13")
    a("v_lshlrev_b32 v4, 4, v0")
    a(f"v_add_u32 v4, s{S_TMP}, v4")
    a(f"s_and_b32 s{S_TMP2}, s{S_W}, 1")
    a(f"s_lshl_b32 s{S_TMP2}, s{S_TMP2}, 6")
    a(f"s_add_u32 s{S_TMP2}, s{S_TMP2}, s{S_T0}")
    a(f"s_mul_i32 s{S_TMP2}, s{S_TMP2}, 3584")
    a(f"s_lshr_b32 s{S_TMP}, s{S_W}, 1")
    a(f"s_lshl_b32 s{S_TMP}, s{S_TMP}, 6")
    a(f"s_add_u32 s{S_TMP}, s{S_TMP}, s{S_F0}")
    a(f"s_lshl_b32 s{S_TMP}, s{S_TMP}, 1")
    a(f"s_add_u32 s{S_TMP2}, s{S_TMP2}, s{S_TMP}")
    a("s_barrier")
    for cb in range(2):
        for rb in range(4):
            A0 = acc(rb, cb)
            o = 24 + 4*(rb % 2)
            for p in range(4):
                g0, g1, u0, u1 = A0+2*p, A0+2*p+1, A0+8+2*p, A0+8+2*p+1
                if exact_round:
                    a(f"v_cvt_pk_bf16_f32 v32, v{g0}, v{g1}")
                    a(f"v_cvt_pk_bf16_f32 v33, v{u0}, v{u1}")
                    a(f"v_lshlrev_b32 v34, 16, v32")
                    a(f"v_and_b32 v35, s36, v32")
                    a(f"v_lshlrev_b32 v36, 16, v33")
                    a(f"v_and_b32 v37, s36, v33")
                    a(f"v_mul_f32 v34, v34, v36")
                    a(f"v_mul_f32 v35, v35, v37")
                    a(f"v_cvt_pk_bf16_f32 v{o+p}, v34, v35")
                else:
                    a(f"v_mul_f32 v34, v{g0}, v{u0}")
                    a(f"v_mul_f32 v35, v{g1}, v{u1}")
                    a(f"v_cvt_pk_bf16_f32 v{o+p}, v34, v35")
            a(f"ds_write_b128 v{V_AW+rb}, v[{o}:{o+3}] offset:{cb*4096}")
        a("s_waitcnt lgkmcnt(0)")
        for i in range(4):
            a(f"ds_read_b128 v[{40+4*i}:{43+4*i}], v4 offset:{cb*4096 + i*1024}")
        for i in range(4):
            a(f"s_waitcnt lgkmcnt({3-i})")
            a(f"s_add_u32 s{S_TMP}, s{S_TMP2}, {(32*cb + 8*i)*3584}")
            a(f"buffer_store_dwordx4 v[{40+4*i}:{43+4*i}], v2, s[{SRD_H}:{SRD_H+3}], s{S_TMP} offen {'sc1' if sc1 else ''}")
    if MFU >= 14:
        a("v_readfirstlane_b32 s37, v23")
        a("s_nop 3")
        a("s_cmp_lg_u32 s37, 0")
        a("s_cbranch_scc1 g1_mf_fast")
        wait_tag(a, "g1_wr", P0, 37, S_TMP2, 21, 23)
        a("v_mov_b32 v21, 0")
        a.label("g1_mf_fast")
        a("v_mov_b32 v22, s37")
        a("s_mov_b64 exec, 1")
        a(f"buffer_store_dword v22, v21, s[{SRD_F}:{SRD_F+3}], s56 offen sc1")
        a("s_mov_b64 exec, -1")
    st.stamp()
    a("s_barrier")
    tail.pre_dma(a)
    a("s_waitcnt vmcnt(8)")
    st.stamp()
    a("s_barrier")
    a(f"s_cmp_lg_u32 s{S_W}, 0")
    a("s_cbranch_scc1 g1_flagged")
    a(f"s_lshr_b32 s{S_TMP}, s{S_T0}, 7")
    a(f"s_mul_i32 s{S_TMP}, s{S_TMP}, {14*128}")
    a(f"s_lshr_b32 s{S_TMP2}, s{S_F0}, 5")
    a(f"s_add_u32 s{S_TMP}, s{S_TMP}, s{S_TMP2}")
    set_flags(a, SRD_F, S_TMP, 37, 14, 128, 10, 11)
    a.label("g1_flagged")
    dbg_event(a, 3)
```

```python
from asmlib import *

NSLOT = 5
SLEEP = 2
NS = 28

SRD_WD = 92; S_WCUR = 96; S_WLIM = 97; S_L2 = 98; V_W0 = 20; V_W1 = 19
S_R = 38; S_PH = 39; S_WB = 47
EARLY_AREA = [4, 5, 8, 9, 6, 7]
def setup_w(a, s_main, rot=True):
    a(f"s_load_dwordx2 s[{SRD_WD}:{SRD_WD+1}], s[0:1], {KA['wd']}")
    a("v_lshrrev_b32 v10, 4, v0")
    a("v_lshrrev_b32 v11, 3, v0")
    a("v_and_b32 v12, 7, v0")
    a("v_and_b32 v13, 1, v10")
    a("v_lshlrev_b32 v13, 2, v13")
    a("v_xor_b32 v13, v13, v12")
    a("v_lshlrev_b32 v13, 4, v13")
    a("v_mul_u32_u24 v12, 896, v11")
    a(f"v_add_u32 v{V_W0}, v12, v13")
    a(f"v_add_u32 v{V_W1}, {8*896 - 1024}, v{V_W0}")
    a(f"s_lshr_b32 s99, s{s_main}, 3")
    a("s_and_b32 s100, s99, 3")
    a("s_mul_i32 s100, s100, 3")
    a("s_lshr_b32 s99, s99, 2")
    a("s_lshl_b32 s101, s99, 1")
    a("s_add_u32 s100, s100, s101")
    a("s_sub_u32 s101, s100, 14")
    a("s_cmp_ge_u32 s100, 14")
    a("s_cselect_b32 s100, s101, s100")
    if not rot: a("s_mov_b32 s100, 0")
    a(f"s_mov_b32 s{S_R}, s100")
    a(f"s_and_b32 s101, s{s_main}, 4")
    a("s_cmp_eq_u32 s101, 0")
    a(f"s_cselect_b32 s{S_PH}, 8, 0")
    a(f"s_lshl_b32 s101, s4, 4")
    a(f"s_mul_i32 s{S_WB}, s101, 896")
    a("s_lshl_b32 s99, s99, 7")
    a(f"s_add_u32 s{S_WB}, s{S_WB}, s99")
    a(f"s_add_u32 s99, s{S_PH}, 14")
    a(f"s_mul_i32 s99, s99, {64*896}")
    a(f"s_add_u32 s{S_WLIM}, s{S_WB}, s99")
    a(f"s_add_u32 s99, s{S_PH}, s100")
    a(f"s_mul_i32 s99, s99, {64*896}")
    a(f"s_add_u32 s{S_WCUR}, s{S_WB}, s99")
    a(f"s_lshl_b32 s{S_L2}, s4, 11")
    a("s_waitcnt lgkmcnt(0)")
    a(f"s_mov_b32 s{SRD_WD+2}, {1792*448*2}")
    a(f"s_mov_b32 s{SRD_WD+3}, 0x20000")

def advance(cur, lim, step, i, base_reg, tmp):
    if i == 13:
        return [f"s_add_u32 s{tmp}, s{S_PH}, 14", f"s_mul_i32 s{tmp}, s{tmp}, {step}", f"s_add_u32 s{cur}, s{base_reg}, s{tmp}",
                f"s_add_u32 s{lim}, s{base_reg}, {28*step}"]
    n = 14 if i < 13 else 28
    return [f"s_add_u32 s{cur}, s{cur}, {step}", f"s_sub_u32 s{tmp}, s{cur}, {n*step}",
            f"s_cmp_ge_u32 s{cur}, s{lim}", f"s_cselect_b32 s{cur}, s{tmp}, s{cur}"]

def dma_w_lines(ldsoff, i):
    g0 = [f"s_add_u32 m0, s{S_L2}, {ldsoff}", "s_nop 0",
          f"buffer_load_dwordx4 v{V_W0}, s[{SRD_WD}:{SRD_WD+3}], s{S_WCUR} offen lds"]
    g1 = [f"buffer_load_dwordx4 v{V_W1}, s[{SRD_WD}:{SRD_WD+3}], s{S_WCUR} offen offset:1024 lds"] + advance(S_WCUR, S_WLIM, 64*896, i, S_WB, 99)
    return [g0, g1]

def pre_dma(a):
    for p in range(6, 10):
        for g in dma_w_lines((p-6)*8192, p):
            for l in g: a(l)

def gemm2(a, st, s_tt, s_ct, rot=True, NP=16, prio=0, early=True):
    S_W = 4; S_T0 = 5; S_D0 = 6
    SRD_H = 8; SRD_AT = 16; SRD_O = 20
    S_TMP = 24; S_TMP2 = 25; S_HCUR = 26
    P0 = 28
    S_L = 36; S_HLIM = 27; SRD_G = 52; SRD_F = 48; S_HB = 40; S_LINE = 41
    a.c("---- GEMM2 role ----")
    a(f"s_load_dwordx2 s[{P0+2}:{P0+3}], s[0:1], {KA['ws']}")
    a(f"s_load_dwordx2 s[{P0+4}:{P0+5}], s[0:1], {KA['out']}")
    if prio: a(f"s_setprio {prio}")
    a(f"s_lshl_b32 s{S_T0}, s{s_tt}, 6")
    a(f"s_lshl_b32 s{S_D0}, s{s_ct}, 6")
    V_H0, V_H1 = 2, 3
    a("v_lshrrev_b32 v10, 4, v0")
    a("v_lshrrev_b32 v11, 3, v0")
    a("v_and_b32 v12, 7, v0")
    a("v_xor_b32 v13, v12, v10")
    a("v_lshlrev_b32 v13, 4, v13")
    a("v_mul_u32_u24 v14, 3584, v11")
    a(f"v_add_u32 v{V_H0}, v14, v13")
    a("v_xor_b32 v13, 64, v13")
    a(f"v_add_u32 v{V_H1}, v14, v13")
    a(f"v_add_u32 v{V_H1}, {8*3584 - 1024}, v{V_H1}")
    a(f"s_lshl_b32 s{S_TMP}, s{S_W}, 4")
    a(f"s_add_u32 s{S_HB}, s{S_T0}, s{S_TMP}")
    a(f"s_mul_i32 s{S_HB}, s{S_HB}, 3584")
    a(f"s_add_u32 s{S_TMP}, s{S_PH}, 14")
    a(f"s_lshl_b32 s{S_TMP}, s{S_TMP}, 7")
    a(f"s_add_u32 s{S_HLIM}, s{S_HB}, s{S_TMP}")
    a(f"s_add_u32 s{S_TMP}, s{S_PH}, s{S_R}")
    a(f"s_lshl_b32 s{S_TMP}, s{S_TMP}, 7")
    a(f"s_add_u32 s{S_HCUR}, s{S_HB}, s{S_TMP}")
    a(f"s_lshl_b32 s{S_L}, s{S_W}, 11")
    a(f"s_mul_i32 s{S_LINE}, s{s_tt}, 7")
    a(f"s_add_u32 s{S_LINE}, s{S_LINE}, s{s_ct}")
    a(f"s_lshl_b32 s{S_LINE}, s{S_LINE}, 7")
    a(f"s_lshr_b32 s46, s{S_PH}, 1")
    a("s_lshl_b32 s46, 0x7f, s46")
    a("s_waitcnt lgkmcnt(0)")
    vm = []
    def dma_w(ldsoff, key):
        vm.append(key)
        return dma_w_lines(ldsoff, key[1])
    def dma_h(u):
        g0 = [f"s_add_u32 m0, s{S_L}, {(u % NSLOT)*16384}", "s_nop 0",
              f"buffer_load_dwordx4 v{V_H0}, s[{SRD_H}:{SRD_H+3}], s{S_HCUR} offen sc1 lds"]
        g1 = [f"buffer_load_dwordx4 v{V_H1}, s[{SRD_H}:{SRD_H+3}], s{S_HCUR} offen offset:1024 sc1 lds"] + advance(S_HCUR, S_HLIM, 128, u, S_HB, S_TMP2)
        vm.append(("H", u))
        return [g0, g1]
    def emit(groups):
        for g in groups:
            for l in g: a(l)
    def wait_for(needs):
        last = max(vm.index(n) for n in needs)
        a(f"s_waitcnt vmcnt({sum((1 if g[0] == 'S' else 2) for g in vm[last+1:])})")
    NB = 10
    area = EARLY_AREA + [0, 1, 2, 3]
    for p in range(6, 10): vm.append(("P", p))
    srd_from(a, SRD_H, P0+2, SZ_H, WS_H)
    srd_from(a, SRD_AT, P0+2, SZ_AT, WS_AT)
    srd_from(a, SRD_O, P0+4, 2048*448*2)
    srd_from(a, SRD_G, P0+2, SZ_G, WS_G)
    srd_from(a, SRD_F, P0+2, SZ_F, WS_F)
    V_B = 5; V_A0 = 6; V_A1 = 7
    a("v_and_b32 v10, 31, v0")
    a("v_lshrrev_b32 v11, 5, v0")
    a("v_lshrrev_b32 v12, 1, v10")
    a("v_and_b32 v12, 7, v12")
    a(f"s_lshl_b32 s{S_TMP}, s{S_W}, 1")
    a(f"v_add_u32 v11, s{S_TMP}, v11")
    a("v_xor_b32 v12, v12, v11")
    a("v_lshlrev_b32 v12, 4, v12")
    a("v_lshlrev_b32 v10, 7, v10")
    a(f"v_add_u32 v{V_B}, v10, v12")
    a("v_lshrrev_b32 v10, 4, v0")
    a("v_lshrrev_b32 v11, 2, v0")
    a("v_and_b32 v11, 3, v11")
    a("v_and_b32 v12, 3, v0")
    a("v_lshrrev_b32 v13, 1, v10")
    a("v_lshlrev_b32 v13, 3, v13")
    a("v_add_u32 v13, v13, v11")
    a(f"s_lshl_b32 s{S_TMP}, s{S_W}, 4")
    a(f"v_add_u32 v13, s{S_TMP}, v13")
    a("v_lshlrev_b32 v13, 7, v13")
    a("v_lshrrev_b32 v14, 1, v12")
    a("v_lshlrev_b32 v14, 3, v14")
    a("v_add_u32 v13, v13, v14")
    a("v_and_b32 v14, 1, v10")
    a("v_lshlrev_b32 v14, 1, v14")
    a("v_and_b32 v15, 1, v12")
    a("v_add_u32 v14, v14, v15")
    a("v_lshrrev_b32 v15, 1, v11")
    a("v_lshlrev_b32 v15, 2, v15")
    a("v_xor_b32 v14, v14, v15")
    a("v_lshlrev_b32 v15, 4, v14")
    a(f"v_add_u32 v{V_A0}, v13, v15")
    a("v_xor_b32 v15, 64, v15")
    a(f"v_add_u32 v{V_A1}, v13, v15")
    a(f"v_add_u32 v16, 0x10000, v{V_B}")
    a(f"v_add_u32 v17, 0x10000, v{V_A0}")
    a(f"v_add_u32 v18, 0x10000, v{V_A1}")
    PRE = 128
    def a_reads(dst, off):
        va0, va1 = V_A0, V_A1
        if off >= 65536: off -= 65536; va0, va1 = 17, 18
        return [f"ds_read_b64_tr_b16 v[{dst}:{dst+1}], v{va0} offset:{off}",
                f"ds_read_b64_tr_b16 v[{dst+2}:{dst+3}], v{va0} offset:{off+512}",
                f"ds_read_b64_tr_b16 v[{dst+4}:{dst+5}], v{va1} offset:{off}",
                f"ds_read_b64_tr_b16 v[{dst+6}:{dst+7}], v{va1} offset:{off+512}"]
    def b_reads(dst, off):
        vb = V_B
        if off >= 65536: off -= 65536; vb = 16
        return [f"ds_read_b128 v[{dst}:{dst+3}], v{vb} offset:{off}",
                f"ds_read_b128 v[{dst+4}:{dst+7}], v{vb} offset:{off+4096}"]
    assert NP == 16
    for p in range(6):
        for r in a_reads(PRE + 8*p, area[p]*8192): a(r)
    a("s_waitcnt lgkmcnt(0)")
    a("s_barrier")
    for p in range(10, 16):
        emit(dma_w(EARLY_AREA[p-10]*8192, ("P", p)))
    wait_for([("P", 9)])
    a("s_barrier")
    for p in range(6, 10):
        for r in a_reads(PRE + 8*p, area[p]*8192): a(r)
    wait_for([("P", 15)])
    a("s_barrier")
    for p in range(10, 16):
        for r in a_reads(PRE + 8*p, EARLY_AREA[p-10]*8192): a(r)
    a("s_waitcnt lgkmcnt(0)")
    for u in range(NP, NSLOT):
        emit(dma_w((u % NSLOT)*16384 + 8192, ("W", u)))
    st.stamp()
    a(f"s_cmp_lg_u32 s{S_W}, 0")
    a("s_cbranch_scc1 g2_hready")
    wait_flags(a, "g2_wh", SRD_F, S_LINE, 14, 37, S_TMP, 43, 10, 11, sleep=SLEEP, s_mask=46)
    a.label("g2_hready")
    a("s_barrier")
    st.stamp()
    for u in range(NSLOT):
        emit(dma_h(u))
    FR = [24, 40]
    ACC = 64
    def acc(rb, cb): return ACC + 16*(2*rb + cb)
    def reads(u):
        fb = FR[u % 2]; so = (u % NSLOT)*16384
        R = b_reads(fb+8, so)
        if u >= NP: R = [R[0]] + a_reads(fb, so + 8192)[:2] + [R[1]] + a_reads(fb, so + 8192)[2:]
        return R
    def needs(u):
        return [("H", u)] + ([("W", u)] if u >= NP else [])
    ATL = 65536
    V_G = 8
    def at_loads():
        a("v_and_b32 v9, 31, v0")
        a(f"s_and_b32 s{S_TMP}, s{S_W}, 1")
        a(f"s_lshl_b32 s{S_TMP}, s{S_TMP}, 5")
        a(f"s_add_u32 s{S_TMP}, s{S_TMP}, s{S_T0}")
        a(f"v_add_u32 v9, s{S_TMP}, v9")
        a("v_lshlrev_b32 v9, 2, v9")
        a(f"buffer_load_dword v{V_G}, v9, s[{SRD_G}:{SRD_G+3}], 0 offen sc1")
        a("v_lshrrev_b32 v9, 3, v0")
        a("v_lshlrev_b32 v9, 12, v9")
        a("v_and_b32 v12, 7, v0")
        a("v_lshlrev_b32 v12, 4, v12")
        a("v_add_u32 v9, v9, v12")
        a(f"s_lshl_b32 s{S_TMP}, s{S_W}, 4")
        a(f"s_add_u32 s{S_TMP}, s{S_TMP}, s{S_D0}")
        a(f"s_lshl_b32 s{S_TMP}, s{S_TMP}, 12")
        a(f"s_lshl_b32 s{S_TMP2}, s{S_T0}, 1")
        a(f"s_add_u32 s{S_TMP2}, s{S_TMP2}, s{S_TMP}")
        for i in range(2):
            a(f"s_add_u32 m0, s{S_L}, {ATL + i*1024}")
            a(f"s_add_u32 s{S_TMP}, s{S_TMP2}, {8*i*4096}")
            a(f"buffer_load_dwordx4 v9, s[{SRD_AT}:{SRD_AT+3}], s{S_TMP} offen sc1 lds")
        for i in range(3): vm.append(("S", i))
    wait_for(needs(0))
    a("s_barrier")
    st.stamp()
    dbg_event(a, 4)
    for r in reads(0): a(r)
    for u in range(NS):
        fb = FR[u % 2]
        a("s_waitcnt lgkmcnt(0)")
        if u + 1 < NS: wait_for(needs(u+1))
        if u + NSLOT == 14:
            a(f"s_cmp_lg_u32 s{S_W}, 0")
            a("s_cbranch_scc1 g2_h2ready")
            wait_flags(a, "g2_wh2", SRD_F, S_LINE, 15, 37, S_TMP, 43, 10, 11, sleep=SLEEP)
            a.label("g2_h2ready")
        if u == 24:
            a(f"s_cmp_lg_u32 s{S_W}, 0")
            a("s_cbranch_scc1 g2_aready")
            a(f"s_add_u32 s{S_TMP2}, s{S_LINE}, {L_A*128}")
            wait_flags(a, "g2_wa", SRD_F, S_TMP2, 32, 37, S_TMP, 43, 10, 11, sleep=SLEEP)
            a.label("g2_aready")
        a("s_barrier")
        if u == 24:
            at_loads()
        D = []
        if u + NSLOT < NS:
            D = dma_h(u + NSLOT)
            if u + NSLOT >= NP: D += dma_w(((u + NSLOT) % NSLOT)*16384 + 8192, ("W", u + NSLOT))
        R = reads(u + 1) if u + 1 < NS else []
        M = []
        for (rb, cb) in ((0,0),(0,1),(1,0),(1,1)):
            c = "0" if u == 0 else f"v[{acc(rb,cb)}:{acc(rb,cb)+15}]"
            A = (PRE + 8*u + 4*rb) if u < NP else (fb + 4*rb)
            M.append(f"v_mfma_f32_32x32x16_bf16 v[{acc(rb,cb)}:{acc(rb,cb)+15}], v[{A}:{A+3}], v[{fb+8+4*cb}:{fb+8+4*cb+3}], {c}")
        seq = []
        seq += D[0] if len(D) > 0 else []
        seq += R[:2]
        seq.append(M[0])
        seq += D[1] if len(D) > 1 else []
        seq += R[2:4]
        seq.append(M[1])
        seq += D[2] if len(D) > 2 else []
        seq += R[4:]
        seq.append(M[2])
        seq += D[3] if len(D) > 3 else []
        seq.append(M[3])
        for l in seq: a(l)
    st.stamp()
    a("v_lshlrev_b32 v11, 4, v0")
    a(f"s_lshl_b32 s{S_TMP}, s{S_W}, 12")
    a(f"v_add_u32 v12, s{S_TMP}, v11")
    a("s_nop 7")
    a("s_barrier")
    for beta in range(4):
        rb, cb = beta >> 1, beta & 1
        a(f"s_cmp_eq_u32 s{S_W}, {beta}")
        a(f"s_cbranch_scc1 g2_skipw{beta}")
        for q in range(4):
            a(f"ds_write_b128 v12, v[{acc(rb,cb)+4*q}:{acc(rb,cb)+4*q+3}] offset:{beta*16384 + q*1024}")
        a.label(f"g2_skipw{beta}")
    for beta in range(4):
        rb, cb = beta >> 1, beta & 1
        a(f"s_cmp_lg_u32 s{S_W}, {beta}")
        a(f"s_cbranch_scc1 g2_skipm{beta}")
        for r in range(16):
            a(f"v_mov_b32 v{24+r}, v{acc(rb,cb)+r}")
        a.label(f"g2_skipm{beta}")
    a("s_waitcnt lgkmcnt(0)")
    a("s_barrier")
    st.stamp()
    a(f"s_lshl_b32 s{S_TMP}, s{S_W}, 14")
    a(f"v_add_u32 v12, s{S_TMP}, v11")
    for k in range(1, 4):
        a(f"s_add_u32 s{S_TMP}, s{S_W}, {k}")
        a(f"s_and_b32 s{S_TMP}, s{S_TMP}, 3")
        a(f"s_lshl_b32 s{S_TMP}, s{S_TMP}, 12")
        a(f"v_add_u32 v13, s{S_TMP}, v12")
        for q in range(4):
            a(f"ds_read_b128 v[{64+16*(k-1)+4*q}:{64+16*(k-1)+4*q+3}], v13 offset:{q*1024}")
    a("v_lshrrev_b32 v10, 4, v0")
    a("v_lshrrev_b32 v13, 2, v0")
    a("v_and_b32 v13, 3, v13")
    a("v_and_b32 v14, 3, v0")
    a("v_lshrrev_b32 v15, 1, v10")
    a("v_lshlrev_b32 v15, 3, v15")
    a("v_add_u32 v15, v15, v13")
    a("v_lshlrev_b32 v15, 7, v15")
    a("v_and_b32 v16, 1, v10")
    a("v_lshlrev_b32 v16, 5, v16")
    a("v_add_u32 v15, v15, v16")
    a("v_lshlrev_b32 v14, 3, v14")
    a("v_add_u32 v15, v15, v14")
    a(f"s_lshr_b32 s{S_TMP}, s{S_W}, 1")
    a(f"s_lshl_b32 s{S_TMP}, s{S_TMP}, 12")
    a(f"s_and_b32 s{S_TMP2}, s{S_W}, 1")
    a(f"s_lshl_b32 s{S_TMP2}, s{S_TMP2}, 6")
    a(f"s_add_u32 s{S_TMP}, s{S_TMP}, s{S_TMP2}")
    a(f"s_add_u32 s{S_TMP}, s{S_TMP}, {ATL}")
    a(f"v_add_u32 v15, s{S_TMP}, v15")
    OT = 0
    a("v_and_b32 v10, 31, v0")
    a("v_lshrrev_b32 v11, 5, v0")
    a(f"s_and_b32 s{S_TMP}, s{S_W}, 1")
    a(f"s_lshl_b32 s{S_TMP}, s{S_TMP}, 5")
    a(f"v_add_u32 v10, s{S_TMP}, v10")
    a(f"s_lshr_b32 s{S_TMP2}, s{S_W}, 1")
    a(f"s_lshl_b32 s{S_TMP2}, s{S_TMP2}, 2")
    a(f"v_add_u32 v11, s{S_TMP2}, v11")
    a("v_and_b32 v12, 7, v10")
    a("v_xor_b32 v11, v11, v12")
    a("v_lshlrev_b32 v10, 7, v10")
    a("v_lshlrev_b32 v12, 4, v11")
    a("v_add_u32 v13, v10, v12")
    a("v_xor_b32 v12, 32, v12")
    a("v_add_u32 v14, v10, v12")
    a("v_lshrrev_b32 v10, 3, v0")
    a("v_and_b32 v11, 7, v0")
    a("v_xor_b32 v11, v11, v10")
    a("v_lshlrev_b32 v11, 4, v11")
    a("v_mul_u32_u24 v10, 896, v10")
    a("v_add_u32 v10, v10, v11")
    a("v_lshlrev_b32 v12, 4, v0")
    a(f"v_add_u32 v12, s{S_L}, v12")
    a(f"s_lshl_b32 s{S_TMP}, s{S_W}, 4")
    a(f"s_add_u32 s{S_TMP}, s{S_TMP}, s{S_T0}")
    a(f"s_mul_i32 s{S_TMP}, s{S_TMP}, 896")
    a(f"s_lshl_b32 s{S_TMP2}, s{S_D0}, 1")
    a(f"s_add_u32 s{S_TMP2}, s{S_TMP2}, s{S_TMP}")
    a("s_mov_b32 s39, 0xffff0000")
    a("s_waitcnt lgkmcnt(0)")
    for r in range(16):
        a(f"v_add_f32 v{24+r}, v{24+r}, v{64+r}")
        a(f"v_add_f32 v{80+r}, v{80+r}, v{96+r}")
    for r in range(16):
        a(f"v_add_f32 v{24+r}, v{24+r}, v{80+r}")
    for p in range(8):
        a(f"v_cvt_pk_bf16_f32 v52, v{24+2*p}, v{25+2*p}")
        a(f"v_lshlrev_b32 v{64+2*p}, 16, v52")
        a(f"v_and_b32 v{65+2*p}, s39, v52")
    a("s_waitcnt vmcnt(0)")
    a(f"v_sub_f32 v9, 1.0, v{V_G}")
    a("v_cvt_pk_bf16_f32 v9, v9, v9")
    a("v_lshlrev_b32 v9, 16, v9")
    for p in range(8):
        a(f"v_mul_f32 v53, v9, v{64+2*p}")
        a(f"v_mul_f32 v54, v9, v{65+2*p}")
        a(f"v_cvt_pk_bf16_f32 v52, v53, v54")
        a(f"v_lshlrev_b32 v{64+2*p}, 16, v52")
        a(f"v_and_b32 v{65+2*p}, s39, v52")
    a("s_waitcnt vmcnt(0)")
    a("s_barrier")
    for Q in range(2):
        for h2 in range(2):
            a(f"ds_read_b64_tr_b16 v[{44+4*Q+2*h2}:{44+4*Q+2*h2+1}], v15 offset:{(16*Q+4*h2)*128}")
    a("s_waitcnt lgkmcnt(0)")
    for Q in range(2):
        for p in range(4):
            av = 44 + 4*Q + p; bb = 64 + 8*Q + 2*p
            a(f"v_lshlrev_b32 v55, 16, v{av}")
            a(f"v_and_b32 v56, s39, v{av}")
            a(f"v_mul_f32 v55, v{V_G}, v55")
            a(f"v_mul_f32 v56, v{V_G}, v56")
            a(f"v_cvt_pk_bf16_f32 v55, v55, v56")
            a(f"v_lshlrev_b32 v56, 16, v55")
            a(f"v_and_b32 v55, s39, v55")
            a(f"v_add_f32 v53, v{bb}, v56")
            a(f"v_add_f32 v54, v{bb+1}, v55")
            a(f"v_cvt_pk_bf16_f32 v{24+4*Q+p}, v53, v54")
        a(f"ds_write_b128 v{13+Q}, v[{24+4*Q}:{27+4*Q}] offset:{OT}")
    a("s_waitcnt lgkmcnt(0)")
    a("s_barrier")
    a(f"ds_read_b128 v[32:35], v12 offset:{OT}")
    a(f"ds_read_b128 v[36:39], v12 offset:{OT+1024}")
    for i in range(2):
        a(f"s_waitcnt lgkmcnt({1-i})")
        a(f"s_add_u32 s{S_TMP}, s{S_TMP2}, {8*i*896}")
        a(f"buffer_store_dwordx4 v[{32+4*i}:{35+4*i}], v10, s[{SRD_O}:{SRD_O+3}], s{S_TMP} offen")
    st.stamp()
    dbg_event(a, 5)
    if st.on: a("s_waitcnt vmcnt(0)")
    st.stamp(real=True)
    st.flush(S_W)
```

```python
from asmlib import *

STG = 14848
ESTR = 272
FOFF = 21*ESTR
UBASE = 59392
XT = 66560
KCSZ = 16640; CPSZ = 4160
XCH = 18432

def cmul(a, dr, di, xr, xi, cr, ci, nci):
    a(f"v_mul_f32 v{dr}, v{xr}, v{cr}")
    a(f"v_mul_f32 v{di}, v{xr}, v{ci}")
    a(f"v_fmac_f32 v{dr}, v{xi}, v{nci}")
    a(f"v_fmac_f32 v{di}, v{xi}, v{cr}")

def side(a, st, s_cp, gate=True, sleep=4, pf=True, p0early=True, latetile=True, lategate=True):
    S_W = 4; S_D = 5; S_HALF = 6; S_CHL = 7
    SRD_P = 8; SRD_UT = 12; SRD_AT = 16; SRD_F = 20
    S_TMP = 24; S_TMP2 = 25; S_SC = 26; S_ISC = 27
    P0 = 28
    P_WS = 44; P_DBG = 46
    S_STG = 48; S_U = 49; S_KC = 50; S_DSK = 51; S_LDT = 52
    P_X = 54
    WA, RA, VT, UD, TA, TB, KCW, VA, VB, XW, XR, UR, ATO, VM = 216, 220, 222, 223, 227, 236, 237, 238, 239, 240, 241, 242, 243, 244
    PK = [104, 160]; D = 88
    a.c("---- side role ----")
    a(f"s_load_dwordx8 s[{P0}:{P0+7}], s[0:1], {KA['are']}")
    a(f"s_load_dwordx8 s[{P0+8}:{P0+15}], s[0:1], {KA['cre']}")
    a(f"s_load_dwordx2 s[{P_WS}:{P_WS+1}], s[0:1], {KA['ws']}")
    a(f"s_load_dwordx2 s[{P_DBG}:{P_DBG+1}], s[0:1], {KA['dbg']}")
    a(f"s_load_dwordx2 s[{P_X}:{P_X+1}], s[0:1], {KA['u']}")
    a(f"s_and_b32 s{S_HALF}, s{S_W}, 1")
    a(f"s_lshr_b32 s{S_CHL}, s{S_W}, 1")
    a(f"s_lshl_b32 s{S_D}, s{s_cp}, 1")
    a(f"s_add_u32 s{S_D}, s{S_D}, s{S_CHL}")
    a(f"s_lshl_b32 s{S_TMP}, s{S_D}, 9")
    a(f"s_lshl_b32 s{S_TMP2}, s{S_HALF}, 8")
    a(f"s_add_u32 s{S_TMP}, s{S_TMP}, s{S_TMP2}")
    a("v_lshlrev_b32 v2, 2, v0")
    a("v_lshrrev_b32 v5, 4, v0")
    a("v_lshrrev_b32 v6, 3, v0")
    a("v_mul_u32_u24 v6, 896, v6")
    a("v_and_b32 v7, 7, v0")
    a("v_xor_b32 v7, v7, v5")
    a("v_lshlrev_b32 v7, 4, v7")
    a("v_add_u32 v3, v6, v7")
    a("v_xor_b32 v7, 64, v7")
    a("v_add_u32 v4, v6, v7")
    a("s_and_b32 s56, s2, 31")
    a("s_lshr_b32 s57, s2, 5")
    a("s_lshl_b32 s58, s56, 6")
    a(f"s_lshl_b32 s59, s{S_W}, 4")
    a("s_add_u32 s58, s58, s59")
    a("s_mul_i32 s58, s58, 896")
    a("s_lshl_b32 s59, s57, 7")
    a("s_add_u32 s58, s58, s59")
    a("s_waitcnt lgkmcnt(0)")
    srd_from(a, SRD_F, P_WS, SZ_F, WS_F)
    a(f"s_mov_b32 s{SRD_P+2}, {448*256*2}")
    a(f"s_mov_b32 s{SRD_P+3}, 0x20000")
    for i in range(6):
        a(f"s_mov_b32 s{SRD_P}, s{P0+2*i}")
        a(f"s_mov_b32 s{SRD_P+1}, s{P0+2*i+1}")
        a(f"buffer_load_dword v{10+i}, v2, s[{SRD_P}:{SRD_P+3}], s{S_TMP} offen")
        a("s_nop 0")
    a(f"s_lshl_b32 s{S_TMP2}, s{s_cp}, 2")
    a(f"s_load_dword s{S_LDT}, s[{P0+12}:{P0+13}], s{S_TMP2}")
    a(f"s_load_dword s{S_DSK}, s[{P0+14}:{P0+15}], s{S_TMP2}")
    srd_from(a, SRD_UT, P_X, 2048*448*2)
    a(f"s_lshl_b32 s59, s{S_W}, 11")
    a(f"s_add_u32 s59, s59, {XT}")
    def tile_dma(v0_):
        for i in range(2):
            a(f"s_add_u32 m0, s59, {i*1024}")
            a(f"s_add_u32 s{S_TMP}, s58, {8*i*896}")
            a(f"buffer_load_dwordx4 v{v0_+i}, s[{SRD_UT}:{SRD_UT+3}], s{S_TMP} offen lds")
    if latetile:
        a("v_mov_b32 v251, v3"); a("v_mov_b32 v252, v4")
    else:
        tile_dma(3)
    NPF = 0
    if pf:
        NPF = 4
        a("s_lshr_b32 s40, s2, 3")
        a("s_lshl_b32 s40, s40, 2")
        a(f"s_add_u32 s40, s40, s{S_W}")
        a("s_cmp_ge_u32 s40, 96")
        a("s_cbranch_scc1 side_pf_none")
        a(f"s_load_dwordx4 s[28:31], s[0:1], {KA['wg']}")
        a("s_and_b32 s41, s2, 7")
        a("s_cmp_ge_u32 s40, 48")
        a("s_cbranch_scc1 side_pf_w")
        a("s_lshl_b32 s42, s40, 6")
        a("v_add_u32 v3, s42, v0")
        a("s_mov_b32 s43, 21846")
        a("v_mul_u32_u24 v4, s43, v3")
        a("v_lshrrev_b32 v4, 16, v4")
        a("v_mul_u32_u24 v5, 3, v4")
        a("v_sub_u32 v5, v3, v5")
        a("v_mul_u32_u24 v4, 896, v4")
        a("v_lshlrev_b32 v5, 6, v5")
        a("v_add_u32 v4, v4, v5")
        a("s_and_b32 s42, s41, 1")
        a(f"s_mul_i32 s42, s42, {1024*896}")
        a("s_add_u32 s42, s42, 128")
        for q in range(4):
            a(f"buffer_load_dword v{251+q}, v4, s[{SRD_UT}:{SRD_UT+3}], s42 offen")
            a("s_add_u32 s42, s42, 192")
        a("s_waitcnt lgkmcnt(0)")
        a("s_branch side_pf_done")
        a.label("side_pf_w")
        a("s_sub_u32 s40, s40, 48")
        a("s_lshr_b32 s42, s40, 1")
        a("s_lshl_b32 s42, s42, 6")
        a("v_add_u32 v3, s42, v0")
        a("v_lshrrev_b32 v4, 4, v3")
        a("v_and_b32 v3, 15, v3")
        a("v_mul_u32_u24 v4, 3584, v4")
        a("v_lshlrev_b32 v3, 6, v3")
        a("v_add_u32 v4, v4, v3")
        a("s_lshr_b32 s42, s41, 1")
        a("s_lshr_b32 s43, s42, 1")
        a("s_mul_i32 s43, s43, 7")
        a("s_and_b32 s42, s42, 1")
        a("s_lshl_b32 s42, s42, 2")
        a("s_add_u32 s42, s42, s43")
        a("s_lshl_b32 s42, s42, 8")
        a(f"s_add_u32 s42, s42, {64*3584}")
        a("s_and_b32 s40, s40, 1")
        a("s_waitcnt lgkmcnt(0)")
        a("s_cmp_eq_u32 s40, 0")
        a("s_cselect_b32 s32, s28, s30")
        a("s_cselect_b32 s33, s29, s31")
        a(f"s_mov_b32 s34, {448*1792*2}")
        a("s_mov_b32 s35, 0x20000")
        for q in range(4):
            a(f"buffer_load_dword v{251+q}, v4, s[32:35], s42 offen")
            a(f"s_add_u32 s42, s42, {96*3584}")
        a("s_branch side_pf_done")
        a.label("side_pf_none")
        for q in range(4):
            a(f"buffer_load_dword v{251+q}, v2, s[{SRD_UT}:{SRD_UT+3}], 0 offen")
        a.label("side_pf_done")
    srd_from(a, SRD_AT, P_WS, SZ_AT, WS_AT)
    a(f"s_mul_i32 s{S_STG}, s{S_W}, {STG}")
    a(f"s_lshl_b32 s{S_U}, s{S_CHL}, 13")
    a(f"s_add_u32 s{S_U}, s{S_U}, {UBASE}")
    a(f"s_mul_i32 s{S_KC}, s{S_CHL}, {KCSZ}")
    a("v_and_b32 v3, 31, v0")
    a(f"v_mul_u32_u24 v3, {ESTR}, v3")
    a("v_lshrrev_b32 v4, 5, v0")
    a("v_lshlrev_b32 v4, 4, v4")
    a("v_add_u32 v3, v3, v4")
    a(f"v_add_u32 v{RA}, s{S_STG}, v3")
    a("v_lshrrev_b32 v3, 4, v0")
    a("v_lshrrev_b32 v4, 2, v0")
    a("v_and_b32 v4, 3, v4")
    a("v_and_b32 v5, 3, v0")
    a("v_lshrrev_b32 v7, 1, v3")
    a(f"v_mul_u32_u24 v8, {CPSZ}, v4")
    a("v_and_b32 v9, 1, v3")
    a("v_lshlrev_b32 v9, 5, v9")
    a("v_add_u32 v8, v8, v9")
    a("v_and_b32 v9, 1, v5")
    a("v_lshlrev_b32 v9, 4, v9")
    a("v_add_u32 v8, v8, v9")
    a("v_lshrrev_b32 v9, 1, v5")
    a("v_lshlrev_b32 v9, 3, v9")
    a("v_add_u32 v8, v8, v9")
    a("v_lshlrev_b32 v9, 4, v7")
    a("v_sub_u32 v8, v8, v9")
    a(f"s_lshl_b32 s{S_TMP}, s{S_HALF}, 10")
    a(f"s_add_u32 s{S_TMP}, s{S_TMP}, s{S_KC}")
    a(f"s_add_u32 s{S_TMP}, s{S_TMP}, 24")
    a(f"v_add_u32 v{VA}, s{S_TMP}, v8")
    a("v_lshlrev_b32 v8, 3, v3")
    a("v_add_u32 v8, v8, v4")
    a("v_lshlrev_b32 v8, 7, v8")
    a("v_and_b32 v9, 1, v5")
    a("v_lshlrev_b32 v9, 3, v9")
    a("v_add_u32 v8, v8, v9")
    a(f"v_add_u32 v8, {XT}, v8")
    a("v_lshrrev_b32 v9, 1, v5")
    a(f"s_lshl_b32 s{S_TMP}, s{S_W}, 1")
    a(f"v_add_u32 v9, s{S_TMP}, v9")
    a("v_and_b32 v1, 1, v3")
    a("v_lshlrev_b32 v1, 2, v1")
    a("v_lshrrev_b32 v4, 1, v4")
    a("v_add_u32 v1, v1, v4")
    a("v_xor_b32 v9, v9, v1")
    a("v_lshlrev_b32 v1, 4, v9")
    a("v_add_u32 v245, v8, v1")
    a("v_xor_b32 v9, 2, v9")
    a("v_lshlrev_b32 v1, 4, v9")
    a("v_add_u32 v246, v8, v1")
    a("v_add_u32 v246, 512, v246")
    a("v_and_b32 v3, 15, v0")
    a("v_lshrrev_b32 v4, 4, v0")
    a("v_and_b32 v5, 7, v3")
    a("v_xor_b32 v5, v5, v4")
    a("v_lshlrev_b32 v7, 7, v3")
    a(f"v_add_u32 v7, s59, v7")
    a("v_lshlrev_b32 v8, 4, v5")
    a("v_add_u32 v247, v7, v8")
    a("v_xor_b32 v8, 64, v8")
    a("v_add_u32 v248, v7, v8")
    a("v_lshlrev_b32 v249, 4, v0")
    a("v_add_u32 v249, s59, v249")
    a("v_lshrrev_b32 v3, 3, v0")
    a("v_and_b32 v4, 7, v0")
    a("v_xor_b32 v4, v4, v3")
    a("v_lshlrev_b32 v4, 4, v4")
    a("v_lshlrev_b32 v3, 12, v3")
    a("v_add_u32 v250, v3, v4")
    a("v_and_b32 v7, 31, v0")
    a("v_lshlrev_b32 v7, 2, v7")
    a("v_lshrrev_b32 v8, 5, v0")
    a("v_lshlrev_b32 v9, 9, v8")
    a("v_add_u32 v9, v7, v9")
    a(f"v_add_u32 v{VT}, s{S_STG}, v9")
    a("v_and_b32 v3, 31, v0")
    a("v_mul_u32_u24 v4, 80, v3")
    a("v_lshlrev_b32 v5, 4, v8")
    a("v_add_u32 v4, v4, v5")
    a(f"s_mul_i32 s{S_TMP}, s{S_HALF}, {80*16}")
    a(f"s_sub_u32 s{S_TMP}, s{S_U}, s{S_TMP}")
    a(f"s_add_u32 s{S_TMP}, s{S_TMP}, {80*16}")
    a(f"v_add_u32 v{VB}, s{S_TMP}, v4")
    a(f"s_mul_i32 s{S_TMP}, s{S_CHL}, {XCH}")
    a(f"s_lshl_b32 s{S_TMP2}, s{S_HALF}, 12")
    a("v_lshlrev_b32 v4, 4, v0")
    a(f"v_add_u32 v4, s{S_TMP}, v4")
    a(f"v_add_u32 v{XW}, s{S_TMP2}, v4")
    a(f"s_xor_b32 s{S_TMP2}, s{S_TMP2}, 4096")
    a(f"v_add_u32 v{XR}, s{S_TMP2}, v4")
    a("v_and_b32 v3, 31, v0")
    a("v_lshrrev_b32 v8, 5, v0")
    a("v_mul_u32_u24 v7, 80, v3")
    a("v_lshlrev_b32 v5, 4, v8")
    a("v_add_u32 v7, v7, v5")
    a(f"s_mul_i32 s{S_TMP}, s{S_HALF}, {80*32}")
    a(f"s_add_u32 s{S_TMP}, s{S_TMP}, s{S_U}")
    a(f"s_add_u32 s{S_TMP}, s{S_TMP}, {80*31}")
    a(f"v_add_u32 v{UR}, s{S_TMP}, v7")
    a("v_lshlrev_b32 v7, 6, v3")
    a("v_add_u32 v7, v7, v5")
    a(f"s_mul_i32 s56, s{S_CHL}, {XCH}")
    a(f"s_lshl_b32 s{S_TMP}, s{S_HALF}, 11")
    a(f"s_add_u32 s56, s56, s{S_TMP}")
    a("s_add_u32 s56, s56, 8192")
    a(f"v_add_u32 v{ATO}, s56, v7")
    a(f"s_lshl_b32 s{S_TMP}, s{S_HALF}, 8")
    a(f"v_add_u32 v3, s{S_TMP}, v0")
    a("s_mov_b32 s53, 52429")
    for ii in range(4):
        a("v_mul_u32_u24 v4, s53, v3")
        a("v_lshrrev_b32 v4, 18, v4")
        a("v_mul_u32_u24 v5, 5, v4")
        a("v_sub_u32 v5, v3, v5")
        a("v_subrev_u32 v4, 31, v4")
        a("v_lshlrev_b32 v7, 6, v4")
        a("v_lshlrev_b32 v8, 4, v5")
        a("v_add_u32 v7, v7, v8")
        a("v_cmp_gt_u32 vcc, 64, v4")
        a("v_cmp_gt_u32 s[56:57], 4, v5") if False else a("v_cmp_gt_u32 s[40:41], 4, v5")
        a("s_and_b64 vcc, vcc, s[40:41]")
        a("v_mov_b32 v8, 0x80000000")
        a("s_nop 0")
        a(f"v_cndmask_b32 v{UD+ii}, v8, v7, vcc")
        if ii < 3: a("v_add_u32 v3, 64, v3")
    a(f"s_mul_i32 s{S_TMP}, s{S_CHL}, {2*STG}")
    a("v_and_b32 v3, 31, v0")
    a("v_lshlrev_b32 v3, 2, v3")
    a(f"v_add_u32 v3, s{S_TMP}, v3")
    a("v_cmp_gt_u32 vcc, 32, v0")
    r1 = [8*128, 8*128, 16*128, 17*128, 17*128, 17*128, 18*128, 8*128+4]
    for i in range(8):
        a(f"v_mov_b32 v4, {r1[i]}")
        a(f"v_mov_b32 v5, {i*128}")
        a("v_cndmask_b32 v4, v4, v5, vcc")
        a(f"v_add_u32 v{TA+i}, v3, v4")
    a("v_cmp_eq_u32 s[40:41], 32, v0")
    a("v_mov_b32 v4, 1024")
    a("v_mov_b32 v5, 892")
    a("v_cndmask_b32 v4, v4, v5, vcc")
    a("v_mov_b32 v5, 1020")
    a("v_cndmask_b32 v4, v4, v5, s[40:41]")
    a(f"v_add_u32 v{TA+8}, v3, v4")
    a(f"v_lshlrev_b32 v{TB}, 2, v0")
    a(f"v_add_u32 v{TB}, s{S_TMP}, v{TB}")
    a(f"s_lshl_b32 s{S_TMP}, s{S_HALF}, 7")
    a(f"v_add_u32 v{VM}, s{S_TMP}, v0")
    a(f"v_lshlrev_b32 v{KCW}, 4, v{VM}")
    a(f"s_add_u32 s{S_TMP}, s{S_KC}, 64")
    a(f"v_add_u32 v{KCW}, s{S_TMP}, v{KCW}")
    a("s_waitcnt lgkmcnt(0)")
    for r in (S_LDT, S_DSK):
        a(f"s_lshl_b32 s{S_TMP}, s{r}, 16")
        a(f"s_and_b32 s{S_TMP2}, s{r}, 0xffff0000")
        a(f"s_cmp_eq_u32 s{S_CHL}, 0")
        a(f"s_cselect_b32 s{r}, s{S_TMP}, s{S_TMP2}")
    a(f"v_mov_b32 v6, s{S_LDT}")
    a("v_mul_f32 v7, 0x3fb8aa3b, v6")
    a("s_mov_b32 s53, 0x3fb8aa3b")
    a("v_fma_f32 v8, v6, s53, -v7")
    a("v_fmac_f32 v8, 0x32a57060, v6")
    a("v_exp_f32 v7, v7")
    a("v_mul_f32 v8, 0x3f317218, v8")
    a("s_nop 0")
    a("v_fmac_f32 v7, v7, v8")
    a("v_cvt_pk_bf16_f32 v7, v7, v7")
    a("v_lshlrev_b32 v6, 16, v7")
    st.stamp()
    a(f"s_waitcnt vmcnt({NPF + (0 if latetile else 0)})")
    st.stamp()
    if latetile: tile_dma(251)
    a("s_mov_b32 s54, 0xffff0000")
    for p in range(2):
        def ex(dst, src):
            if p == 0: a(f"v_lshlrev_b32 v{dst}, 16, v{src}")
            else: a(f"v_and_b32 v{dst}, s54, v{src}")
        ex(24, 10); ex(25, 11); ex(26, 12); ex(27, 13); ex(28, 14); ex(29, 15)
        a("v_mul_f32 v24, v6, v24")
        a("v_mul_f32 v25, v6, v25")
        a("v_mul_f32 v26, v6, v26")
        a("v_mul_f32 v27, v6, v27")
        wr, wi = 16+2*p, 17+2*p
        a(f"v_mul_f32 v{wr}, v28, v26")
        a(f"v_fma_f32 v{wr}, -v29, v27, v{wr}")
        a(f"v_mul_f32 v{wi}, v28, v27")
        a(f"v_fmac_f32 v{wi}, v29, v26")
        a(f"v_mul_f32 v{20+2*p}, 0x3fb8aa3b, v24")
        a(f"v_mul_f32 v{21+2*p}, 0.15915494, v25")
        a(f"v_mul_f32 v30, 0x45000000, v{20+2*p}")
        a("v_max_f32 v30, 0, v30")
        a("v_exp_f32 v30, v30")
        a(f"v_max_f32 v31, |v{wr}|, |v{wi}|")
        if p == 0: a("v_mul_f32 v9, v30, v31")
        else:
            a("v_mul_f32 v30, v30, v31")
            a("v_max_f32 v9, v9, v30")
    for ctrl in ("row_shr:1", "row_shr:2", "row_shr:4", "row_shr:8", "row_bcast:15 row_mask:0xa", "row_bcast:31 row_mask:0xc"):
        a("s_nop 1")
        if "row_mask" in ctrl: a(f"v_max_f32_dpp v9, v9, v9 {ctrl} bank_mask:0xf")
        else: a(f"v_max_f32_dpp v9, v9, v9 {ctrl} row_mask:0xf bank_mask:0xf")
    a("s_nop 1")
    a(f"v_readlane_b32 s{S_TMP}, v9, 63")
    a("s_nop 3")
    a(f"s_lshr_b32 s{S_TMP}, s{S_TMP}, 23")
    a(f"s_max_u32 s{S_TMP}, s{S_TMP}, 8")
    a(f"s_min_u32 s{S_TMP}, s{S_TMP}, 254")
    a(f"s_sub_u32 s{S_SC}, 261, s{S_TMP}")
    a(f"s_lshl_b32 s{S_SC}, s{S_SC}, 23")
    a(f"s_sub_u32 s{S_ISC}, s{S_TMP}, 7")
    a(f"s_lshl_b32 s{S_ISC}, s{S_ISC}, 23")
    def vpass(p, mid=None):
        e2, ph = 20+2*p, 21+2*p
        def polar(r, i, ni, mult):
            if mult == 1:
                a(f"v_exp_f32 v40, v{e2}")
                a(f"v_fract_f32 v41, v{ph}")
            else:
                a(f"v_mul_f32 v40, {mult}, v{e2}")
                a(f"v_mul_f32 v41, {mult}, v{ph}")
                a(f"v_exp_f32 v40, v40")
                a(f"v_fract_f32 v41, v41")
            a(f"v_cos_f32 v42, v41")
            a(f"v_sin_f32 v43, v41")
            a("s_nop 0")
            a(f"v_mul_f32 v{r}, v40, v42")
            a(f"v_mul_f32 v{i}, v40, v43")
            a(f"v_sub_f32 v{ni}, 0, v{i}")
        polar(24, 25, 26, 1)
        polar(33, 34, 35, "0x43800000")
        polar(36, 37, 38, "0x41000000")
        cmul(a, 27, 28, 24, 25, 24, 25, 26); a("v_sub_f32 v29, 0, v28")
        cmul(a, 30, 31, 27, 28, 27, 28, 29); a("v_sub_f32 v32, 0, v31")
        wr, wi = 16+2*p, 17+2*p
        def put(idx, r, i):
            a(f"v_cvt_pk_f16_f32 v{PK[p]+idx}, v{r}, v{i}")
        Gc = (33, 35, 34); z2c = (27, 29, 28); z4c = (30, 32, 31); zc = (24, 26, 25)
        a(f"v_mul_f32 v48, s{S_SC}, v{wr}")
        a(f"v_mul_f32 v49, s{S_SC}, v{wi}")
        a("v_sub_f32 v49, 0, v49")
        put(0, 48, 49)
        cur = (48, 49); bufs = [(44, 45), (46, 47)]
        for row in range(1, 8):
            nx = bufs[row % 2]
            cmul(a, nx[0], nx[1], cur[0], cur[1], *zc); cur = nx
            put(row, *cur)
        cmul(a, 50, 51, 48, 49, *Gc); put(8, 50, 51)
        cmul(a, 44, 45, 50, 51, *z2c); put(16, 44, 45)
        cmul(a, 46, 47, 44, 45, *z2c); put(17, 46, 47)
        cmul(a, 44, 45, 46, 47, *z2c); put(18, 44, 45)
        cmul(a, 48, 49, 50, 51, *Gc); put(9, 48, 49)
        cmul(a, 44, 45, 48, 49, *z4c); put(19, 44, 45)
        cmul(a, 50, 51, 48, 49, *Gc); put(10, 50, 51)
        cmul(a, 44, 45, 50, 51, *z4c); put(20, 44, 45)
        cur = (50, 51); other = (48, 49)
        for row in range(11, 16):
            cmul(a, other[0], other[1], cur[0], cur[1], *Gc)
            cur, other = other, cur
            put(row, *cur)
        if mid: mid()
        a(f"v_mov_b32 v{PK[p]+21}, 0x3c00")
        put(22, 36, 37)
        cur = (36, 37)
        for j in range(2, 32):
            nx = bufs[j % 2]
            cmul(a, nx[0], nx[1], cur[0], cur[1], 36, 37, 38); cur = nx
            put(21 + j, *cur)
    FA = [24, PK[0]]; FBk = [56, PK[0] + 32]
    def writes(p):
        return [f"ds_write_addtid_b32 v{PK[p]+row} offset:{row*ESTR}" for row in range(21)] + \
               [f"ds_write_addtid_b32 v{PK[p]+21+row} offset:{FOFF + row*ESTR}" for row in range(32)]
    def freads(p):
        R = []
        for kk in range(8):
            R.append(f"ds_read_b128 v[{FA[p]+4*kk}:{FA[p]+4*kk+3}], v{RA} offset:{32*kk}")
            R.append(f"ds_read_b128 v[{FBk[p]+4*kk}:{FBk[p]+4*kk+3}], v{RA} offset:{FOFF + 32*kk}")
        return R
    def mf(p, kk):
        c = "0" if (p == 0 and kk == 0) else f"v[{D}:{D+15}]"
        return f"v_mfma_f32_32x32x16_f16 v[{D}:{D+15}], v[{FA[p]+4*kk}:{FA[p]+4*kk+3}], v[{FBk[p]+4*kk}:{FBk[p]+4*kk+3}], {c}"
    def ldspass(p):
        a(f"s_mov_b32 m0, s{S_STG}")
        a("s_nop 0")
        for l in writes(p): a(l)
        for l in freads(p): a(l)
        for kk in range(8):
            a(f"s_waitcnt lgkmcnt({14 - 2*kk})")
            a(mf(p, kk))
    def uflag():
        a("s_waitcnt vmcnt(0)")
        a("s_barrier")
        a(f"s_cmp_lg_u32 s{S_W}, 0")
        a("s_cbranch_scc1 side_uflagged")
        wait_tag(a, "side_wr", P_DBG, 53, 57, 1, 2)
        a("s_lshr_b32 s57, s2, 5")
        a("s_lshl_b32 s57, s57, 5")
        a(f"s_add_u32 s57, s57, {L_U}")
        a("s_lshl_b32 s57, s57, 7")
        a("s_and_b32 s58, s2, 31")
        a("s_lshl_b32 s58, s58, 2")
        a("s_add_u32 s57, s57, s58")
        set_flags(a, SRD_F, 57, 53, 32, 128, 1, 2)
        a.label("side_uflagged")
    vpass(0)
    a("s_waitcnt vmcnt(0)" if not NPF else f"s_waitcnt vmcnt(0)")
    a("s_barrier")
    for o in range(2):
        a(f"ds_read_b64_tr_b16 v[{56+4*o}:{57+4*o}], v245 offset:{o*4096}")
        a(f"ds_read_b64_tr_b16 v[{58+4*o}:{59+4*o}], v246 offset:{o*4096}")
    srd_from(a, SRD_UT, P_WS, SZ_UT, WS_UT)
    a("s_waitcnt lgkmcnt(0)")
    a("s_barrier")
    a("ds_write_b128 v247, v[56:59]")
    a("ds_write_b128 v248, v[60:63]")
    a("s_lshr_b32 s57, s2, 5")
    a("s_lshl_b32 s57, s57, 6")
    a(f"s_lshl_b32 s58, s{S_W}, 4")
    a("s_add_u32 s57, s57, s58")
    a("s_lshl_b32 s57, s57, 12")
    a("s_and_b32 s58, s2, 31")
    a("s_lshl_b32 s58, s58, 7")
    a("s_add_u32 s57, s57, s58")
    a("s_waitcnt lgkmcnt(0)")
    a("ds_read_b128 v[56:59], v249")
    a("ds_read_b128 v[60:63], v249 offset:1024")
    a("s_waitcnt lgkmcnt(1)")
    a(f"buffer_store_dwordx4 v[56:59], v250, s[{SRD_UT}:{SRD_UT+3}], s57 offen sc1")
    a("s_add_u32 s57, s57, 32768")
    a("s_waitcnt lgkmcnt(0)")
    a(f"buffer_store_dwordx4 v[60:63], v250, s[{SRD_UT}:{SRD_UT+3}], s57 offen sc1")
    if p0early: ldspass(0)
    vpass(1, uflag)
    st.stamp()
    a(f"s_cmp_lg_u32 s{S_W}, 0")
    a("s_cbranch_scc1 side_uready")
    a(f"s_add_u32 s57, s{s_cp}, {L_U}")
    a("s_lshl_b32 s57, s57, 7")
    wait_flags(a, "side_wu", SRD_F, 57, 32, 53, S_TMP, 58, 1, 2, sleep=sleep)
    a.label("side_uready")
    a("s_barrier")
    a(f"s_lshl_b32 s{S_TMP2}, s{S_D}, 12")
    a(f"s_lshl_b32 s55, s{S_HALF}, 12")
    a(f"s_add_u32 s55, s55, s{S_U}")
    for ii in range(4):
        a(f"s_add_u32 m0, s55, {ii*1024}")
        a("s_nop 0")
        a(f"buffer_load_dwordx4 v{UD+ii}, s[{SRD_UT}:{SRD_UT+3}], s{S_TMP2} offen sc1 lds")
    def do_gate():
        a(f"s_cmp_lg_u32 s{S_W}, 0")
        a("s_cbranch_scc1 side_gated")
        a(f"s_add_u32 s57, s2, {L_M}")
        a("s_lshl_b32 s57, s57, 7")
        wait_flags(a, "side_wm", SRD_F, 57, 1, 53, S_TMP, 58, 1, 2, sleep=sleep)
        a.label("side_gated")
        a("s_barrier")
    if gate and not lategate: do_gate()
    st.stamp()
    if p0early:
        ldspass(1)
    else:
        a(f"s_mov_b32 m0, s{S_STG}")
        a("s_nop 0")
        for l in writes(0): a(l)
        for l in freads(0): a(l)
        W1 = writes(1)
        for l in W1[:15]: a(l)
        a("s_waitcnt lgkmcnt(15)")
        W1 = W1[15:]
        for kk in range(8):
            a(mf(0, kk))
            for l in W1[:5]: a(l)
            W1 = W1[5:]
        for l in W1: a(l)
        for l in freads(1): a(l)
        for kk in range(8):
            a(f"s_waitcnt lgkmcnt({14 - 2*kk})")
            a(mf(1, kk))
    a("s_nop 15")
    a("s_nop 3")
    for r in range(12):
        q, rr = r // 4, r % 4
        a(f"v_mul_f32 v{D+r}, s{S_ISC}, v{D+r}")
        a(f"ds_write_b32 v{VT}, v{D+r} offset:{(8*q + rr)*128}")
    a("s_waitcnt lgkmcnt(0)")
    a("s_barrier")
    st.stamp()
    a(f"s_cmp_eq_u32 s{S_HALF}, 0")
    a("s_cbranch_scc0 side_exp_h1")
    for i in range(9):
        a(f"ds_read_b32 v{24+i}, v{TA+i}")
        a(f"ds_read_b32 v{40+i}, v{TA+i} offset:{STG}")
    for i, o in enumerate((1024+128, 2432, 1024+132)):
        a(f"ds_read_b32 v{33+i}, v{TB} offset:{o}")
        a(f"ds_read_b32 v{49+i}, v{TB} offset:{o+STG}")
    a("v_cmp_eq_u32 vcc, 0, v0")
    a("v_mov_b32 v11, 0")
    a("s_waitcnt lgkmcnt(0)")
    for i in range(12):
        a(f"v_add_f32 v{24+i}, v{24+i}, v{40+i}")
    a(f"v_cndmask_b32 v32, v32, v11, vcc")
    for i in range(4):
        a(f"v_cvt_pk_bf16_f32 v{40+i}, v{24+2*i}, v{24+2*i+1}")
    a(f"v_cvt_pk_bf16_f32 v44, v32, v24")
    for i in range(1, 4):
        a(f"v_cvt_pk_bf16_f32 v{44+i}, v{24+2*i-1}, v{24+2*i}")
    a("v_cvt_pk_bf16_f32 v48, v33, v33")
    a("v_cvt_pk_bf16_f32 v49, v33, v34")
    a("v_cvt_pk_bf16_f32 v50, v34, v34")
    a("v_cvt_pk_bf16_f32 v51, v35, v35")
    a("v_mov_b32 v52, v48")
    a("v_mov_b32 v53, v48")
    a("v_mov_b32 v54, v50")
    a("v_cvt_pk_bf16_f32 v55, v34, v35")
    a("s_branch side_exp_join")
    a.label("side_exp_h1")
    o = 1024 + 4*96
    for sl in range(2):
        a(f"ds_read_b32 v{24+2*sl}, v{TB} offset:{o + 256*sl}")
        a(f"ds_read_b32 v{40+2*sl}, v{TB} offset:{o + 256*sl + STG}")
        a(f"ds_read_b32 v{25+2*sl}, v{TB} offset:{o + 256*sl + 4}")
        a(f"ds_read_b32 v{41+2*sl}, v{TB} offset:{o + 256*sl + 4 + STG}")
    a("v_and_b32 v11, 1, v0")
    a("v_cmp_eq_u32 vcc, 0, v11")
    a("s_waitcnt lgkmcnt(0)")
    for i in range(4):
        a(f"v_add_f32 v{24+i}, v{24+i}, v{40+i}")
    for sl in range(2):
        f0, f8 = 24+2*sl, 25+2*sl
        o0 = 40 + 8*sl
        a(f"v_cndmask_b32 v12, v{f8}, v{f0}, vcc")
        a(f"v_cvt_pk_bf16_f32 v{o0}, v{f0}, v{f0}")
        a(f"v_cvt_pk_bf16_f32 v{o0+3}, v{f8}, v{f8}")
        a(f"v_cvt_pk_bf16_f32 v{o0+2}, v12, v{f8}")
        a(f"v_cvt_pk_bf16_f32 v{o0+6}, v{f0}, v12")
        a(f"v_mov_b32 v{o0+1}, v{o0}")
        a(f"v_mov_b32 v{o0+4}, v{o0}")
        a(f"v_mov_b32 v{o0+5}, v{o0}")
        a(f"v_mov_b32 v{o0+7}, v{o0+3}")
    a.label("side_exp_join")
    a("s_barrier")
    a(f"s_cmp_eq_u32 s{S_HALF}, 0")
    a("s_cbranch_scc0 side_nozero")
    a("v_lshrrev_b32 v10, 3, v0")
    a("v_and_b32 v11, 7, v0")
    a(f"v_mul_u32_u24 v10, {CPSZ}, v10")
    a("v_lshlrev_b32 v12, 4, v11")
    a("v_add_u32 v10, v10, v12")
    a(f"v_add_u32 v10, s{S_KC}, v10")
    a("v_mov_b32 v56, 0"); a("v_mov_b32 v57, 0"); a("v_mov_b32 v58, 0"); a("v_mov_b32 v59, 0")
    a("v_cmp_gt_u32 vcc, 5, v11")
    a("v_cmp_gt_u32 s[40:41], 32, v0")
    a("s_and_b64 vcc, vcc, s[40:41]")
    a("s_and_saveexec_b64 s[40:41], vcc")
    a("ds_write_b128 v10, v[56:59]")
    a("s_mov_b64 exec, s[40:41]")
    a.label("side_nozero")
    for sl in range(2):
        o0 = 40 + 8*sl; ob = 1024*sl
        a(f"ds_write_b128 v{KCW}, v[{o0}:{o0+3}] offset:{ob}")
        a(f"ds_write_b128 v{KCW}, v[{o0+4}:{o0+7}] offset:{ob + CPSZ}")
    a(f"v_add_u32 v11, {2*CPSZ+4}, v{KCW}")
    a(f"v_add_u32 v12, {3*CPSZ+4}, v{KCW}")
    for sl in range(2):
        o0 = 40 + 8*sl
        if sl == 1:
            a("v_add_u32 v11, 1024, v11"); a("v_add_u32 v12, 1024, v12")
        a(f"ds_write2_b32 v11, v{o0}, v{o0+1} offset0:0 offset1:1")
        a(f"ds_write2_b32 v11, v{o0+2}, v{o0+3} offset0:2 offset1:3")
        a(f"ds_write2_b32 v12, v{o0+4}, v{o0+5} offset0:0 offset1:1")
        a(f"ds_write2_b32 v12, v{o0+6}, v{o0+7} offset0:2 offset1:3")
    a("s_waitcnt vmcnt(0) lgkmcnt(0)")
    if gate and lategate: do_gate()
    else: a("s_barrier")
    st.stamp()
    ACC0, ACC1 = 96, 112
    FB = [24, 40, 56]
    steps = [(dl, s) for dl in range(16) for s in range(2)]
    def reads(i):
        dl, s = steps[i]; fb = FB[i % 3]
        base = 64*dl + 40 - 32*s
        return [f"ds_read_b128 v[{fb+8}:{fb+11}], v{VB} offset:{80*(15-dl) + 32*s}",
                f"ds_read_b64_tr_b16 v[{fb}:{fb+1}], v{VA} offset:{base}",
                f"ds_read_b64_tr_b16 v[{fb+2}:{fb+3}], v{VA} offset:{base - 8}",
                f"ds_read_b128 v[{fb+12}:{fb+15}], v{VB} offset:{80*(15-dl) + 32*s + 2560}",
                f"ds_read_b64_tr_b16 v[{fb+4}:{fb+5}], v{VA} offset:{base + 2048}",
                f"ds_read_b64_tr_b16 v[{fb+6}:{fb+7}], v{VA} offset:{base + 2048 - 8}"]
    for r in reads(0): a(r)
    for r in reads(1): a(r)
    n = len(steps)
    for i in range(n):
        fb = FB[i % 3]
        a(f"s_waitcnt lgkmcnt({6 if i + 1 < n else 0})")
        R = reads(i + 2) if i + 2 < n else []
        c0 = "0" if i == 0 else f"v[{ACC0}:{ACC0+15}]"
        c1 = "0" if i == 0 else f"v[{ACC1}:{ACC1+15}]"
        a(f"v_mfma_f32_32x32x16_bf16 v[{ACC0}:{ACC0+15}], v[{fb}:{fb+3}], v[{fb+8}:{fb+11}], {c0}")
        for r in R[:2]: a(r)
        a(f"v_mfma_f32_32x32x16_bf16 v[{ACC1}:{ACC1+15}], v[{fb}:{fb+3}], v[{fb+12}:{fb+15}], {c1}")
        for r in R[2:4]: a(r)
        a(f"v_mfma_f32_32x32x16_bf16 v[{ACC1}:{ACC1+15}], v[{fb+4}:{fb+7}], v[{fb+8}:{fb+11}], v[{ACC1}:{ACC1+15}]")
        for r in R[4:]: a(r)
    st.stamp()
    a("s_nop 15")
    a("s_barrier")
    a(f"s_cmp_eq_u32 s{S_HALF}, 0")
    a("s_cbranch_scc0 side_x_h1")
    for q in range(4):
        a(f"ds_write_b128 v{XW}, v[{ACC1+4*q}:{ACC1+4*q+3}] offset:{q*1024}")
    a("s_branch side_x_j")
    a.label("side_x_h1")
    for q in range(4):
        a(f"ds_write_b128 v{XW}, v[{ACC0+4*q}:{ACC0+4*q+3}] offset:{q*1024}")
    for r in range(16):
        a(f"v_mov_b32 v{ACC0+r}, v{ACC1+r}")
    a.label("side_x_j")
    a("s_mov_b32 s54, 0xffff0000")
    a(f"s_lshl_b32 s{S_TMP}, s{S_D}, 12")
    a(f"s_lshl_b32 s{S_TMP2}, s{S_HALF}, 11")
    a(f"s_add_u32 s{S_TMP}, s{S_TMP}, s{S_TMP2}")
    a("s_waitcnt lgkmcnt(0)")
    a("s_barrier")
    for q in range(4):
        a(f"ds_read_b128 v[{24+4*q}:{27+4*q}], v{XR} offset:{q*1024}")
    for Q in range(2):
        a(f"ds_read_b128 v[{40+4*Q}:{43+4*Q}], v{UR} offset:{32*Q}")
    a("s_waitcnt lgkmcnt(2)")
    for r in range(16):
        a(f"v_add_f32 v{24+r}, v{24+r}, v{ACC0+r}")
    a("s_waitcnt lgkmcnt(0)")
    for Q in range(2):
        ob = 72 + 4*Q
        for i in range(4):
            y0 = 24 + 8*Q + 2*i
            a(f"v_cvt_pk_bf16_f32 v64, v{y0}, v{y0+1}")
            a(f"v_lshlrev_b32 v65, 16, v{40+4*Q+i}")
            a(f"v_and_b32 v66, s54, v{40+4*Q+i}")
            a(f"v_mul_f32 v65, s{S_DSK}, v65")
            a(f"v_mul_f32 v66, s{S_DSK}, v66")
            a(f"v_cvt_pk_bf16_f32 v65, v65, v66")
            a(f"v_lshlrev_b32 v66, 16, v64")
            a(f"v_and_b32 v64, s54, v64")
            a(f"v_lshlrev_b32 v67, 16, v65")
            a(f"v_and_b32 v65, s54, v65")
            a(f"v_add_f32 v66, v66, v67")
            a(f"v_add_f32 v64, v64, v65")
            a(f"v_cvt_pk_bf16_f32 v{ob+i}, v66, v64")
        a(f"ds_write_b128 v{ATO}, v[{ob}:{ob+3}] offset:{32*Q}")
    a("v_lshlrev_b32 v10, 4, v0")
    a(f"v_add_u32 v11, s56, v10")
    a("s_waitcnt lgkmcnt(0)")
    for i in range(2):
        a(f"ds_read_b128 v[{24+4*i}:{27+4*i}], v11 offset:{1024*i}")
    for i in range(2):
        a(f"s_waitcnt lgkmcnt({1-i})")
        a(f"buffer_store_dwordx4 v[{24+4*i}:{27+4*i}], v10, s[{SRD_AT}:{SRD_AT+3}], s{S_TMP} offen offset:{1024*i} sc1")
    a("s_waitcnt vmcnt(0)")
    st.stamp()
    a("s_barrier")
    a(f"s_cmp_lg_u32 s{S_W}, 0")
    a("s_cbranch_scc1 side_done")
    a(f"s_lshr_b32 s{S_TMP}, s{s_cp}, 5")
    a(f"s_add_u32 s{S_TMP}, s{S_TMP}, {L_A}")
    a(f"s_lshl_b32 s{S_TMP}, s{S_TMP}, 7")
    a(f"s_and_b32 s{S_TMP2}, s{s_cp}, 31")
    a(f"s_lshl_b32 s{S_TMP2}, s{S_TMP2}, 2")
    a(f"s_add_u32 s{S_TMP}, s{S_TMP}, s{S_TMP2}")
    set_flags(a, SRD_F, S_TMP, 53, 32, 896, 10, 11)
    a.label("side_done")
    dbg_event(a, 6)
    st.stamp(real=True)
    st.flush(S_W)
```

```python
import sys
from asmlib import *
import fused

HEADER = open("gated_mix__ssm_conv_s4__glu_gated_bilinear__prompt.s.ref").read().split("; Override launch")[0]

def build(parts, launches):
    out = [HEADER.rstrip()]
    for (n, g, b, l) in launches:
        if len(launches) == 1 and n.startswith("gated_mix"):
            out.append(f"; @launch grid=({g},1,1) block=({b},1,1) lds={l}")
        else:
            out.append(f"; @launch kernel={n} grid=({g},1,1) block=({b},1,1) lds={l}")
    out.append('.amdgcn_target "amdgcn-amd-amdhsa--gfx950"')
    out.append(".text")
    for (n, a, vg, sg) in parts:
        out += [f".globl {n}", ".p2align 8", f".type {n},@function", f"{n}:", a.text()]
        out.append(kdesc(n, vg, sg))
    return "\n".join(out) + "\n"

if __name__ == "__main__":
    which = sys.argv[1]; out = sys.argv[2]
    if which.startswith("fused"):
        opts = {}
        for kv in sys.argv[3:]:
            k, v = kv.split("="); opts[k] = int(v)
        NAME = "gated_mix__ssm_conv_s4__glu_gated_bilinear__prompt_kernel"
        txt = build([(NAME, fused.fused(opts), 256, 102)], [(NAME, 480, 256, opts.get('lds', 81920))])
    open(out, "w").write(txt)
```

```python
class Asm:
    def __init__(self):
        self.L = []
    def __call__(self, s=""):
        for line in s.split("\n"):
            line = line.strip()
            if line:
                self.L.append("    " + line)
    def label(self, n):
        self.L.append(n + ":")
    def c(self, s):
        self.L.append("    ; " + s)
    def text(self):
        return "\n".join(self.L)

def vr(a, n=1):
    return f"v{a}" if n == 1 else f"v[{a}:{a+n-1}]"
def sr(a, n=1):
    return f"s{a}" if n == 1 else f"s[{a}:{a+n-1}]"

KA = dict(u=0, are=8, aim=16, bre=24, bim=32, cre=40, cim=48, ldt=56, dskip=64, bx=72, wg=80, wu=88, wd=96, gw=104, out=112, dbg=120, ws=128)

WS_H  = 0x000000; SZ_H = 2048*1792*2
WS_UT = 0x700000; SZ_UT = 448*2048*2
WS_AT = 0x8C0000; SZ_AT = 448*2048*2
WS_KX = 0xA80000; KX_ROW = 2112*2; SZ_KX = 448*2*KX_ROW
WS_G  = 0xE20000; SZ_G = 2048*4

def srd_from(a, dst, src, size, off=0):
    if off:
        a(f"s_add_u32 s{dst}, s{src}, {off}")
        a(f"s_addc_u32 s{dst+1}, s{src+1}, 0")
    else:
        a(f"s_mov_b32 s{dst}, s{src}")
        a(f"s_mov_b32 s{dst+1}, s{src+1}")
    a(f"s_mov_b32 s{dst+2}, {size}")
    a(f"s_mov_b32 s{dst+3}, 0x20000")

def kdesc(name, vgpr, sgpr=102, accum=None):
    accum = accum or ((vgpr + 3) // 4 * 4)
    return f""".section .rodata,"a"
.p2align 6
.amdhsa_kernel {name}
  .amdhsa_next_free_vgpr {vgpr}
  .amdhsa_next_free_sgpr {sgpr}
  .amdhsa_accum_offset {accum}
  .amdhsa_group_segment_fixed_size 0
  .amdhsa_kernarg_size 136
  .amdhsa_user_sgpr_count 2
  .amdhsa_user_sgpr_kernarg_segment_ptr 1
  .amdhsa_system_sgpr_workgroup_id_x 1
  .amdhsa_float_denorm_mode_32 3
.end_amdhsa_kernel
.text
"""

WS_STAMP = 0x2000000
class Stamps:
    ALLREAL = False
    def __init__(self, a, base, on):
        self.a, self.base, self.on, self.n = a, base, on, 0
    def stamp(self, real=False):
        if not self.on: return
        real = real or Stamps.ALLREAL
        self.a(f"s_mem{'real' if real else ''}time s[{self.base+2*self.n}:{self.base+2*self.n+1}]")
        self.n += 1
    def flush(self, wave_sgpr, tmp0=92):
        if not self.on: return
        a = self.a
        a("s_waitcnt lgkmcnt(0) vmcnt(0)")
        a(f"s_load_dwordx2 s[{tmp0}:{tmp0+1}], s[0:1], {KA['ws']}")
        a("s_waitcnt lgkmcnt(0)")
        a(f"s_add_u32 s{tmp0}, s{tmp0}, {WS_STAMP}")
        a(f"s_addc_u32 s{tmp0+1}, s{tmp0+1}, 0")
        a(f"s_mov_b32 s{tmp0+2}, 0x100000")
        a(f"s_mov_b32 s{tmp0+3}, 0x20000")
        a(f"s_lshl_b32 s{tmp0+4}, s2, 8")
        a(f"s_lshl_b32 s{tmp0+5}, s{wave_sgpr}, 6")
        a(f"s_add_u32 s{tmp0+4}, s{tmp0+4}, s{tmp0+5}")
        a(f"v_mov_b32 v250, 0")
        for k in range(16):
            a(f"v_mov_b32 v251, s{self.base+2*k}")
            a(f"buffer_store_dword v251, v250, s[{tmp0}:{tmp0+3}], s{tmp0+4} offen offset:{4*k}")
        a("s_waitcnt vmcnt(0)")

FLAG_AUX = 0
FLAG_H = 16
FLAG_A = 128

WS_F = 0xE30000; SZ_F = 896*128
L_H = 0
L_A = 224
L_U = 448
L_M = 672
SPIN_MAX = 400000

def wait_tag(a, name, s_dbg, s_tag, s_cnt, v0_, v1_):
    a(f"v_mov_b32 v{v0_}, 0")
    a(f"s_mov_b32 s{s_cnt}, 0")
    a.label(name)
    a(f"global_load_dword v{v1_}, v{v0_}, s[{s_dbg}:{s_dbg+1}] sc1")
    a("s_waitcnt vmcnt(0)")
    a(f"v_readfirstlane_b32 s{s_tag}, v{v1_}")
    a(f"s_add_u32 s{s_cnt}, s{s_cnt}, 1")
    a(f"s_cmp_ge_u32 s{s_cnt}, {SPIN_MAX}")
    a(f"s_cbranch_scc1 {name}_ok")
    a(f"s_cmp_lg_u32 s{s_tag}, 0")
    a(f"s_cbranch_scc1 {name}_ok")
    a("s_sleep 8")
    a(f"s_branch {name}")
    a.label(name + "_ok")

def wait_flags(a, name, srd_f, s_line_off, nwords, s_tag, s_tmp, s_cnt, v0_, v1_, sleep=2, s_mask=None):
    mask = f"s{s_mask}" if s_mask is not None else hex((1 << nwords) - 1)
    a(f"v_and_b32 v{v0_}, 31, v0")
    a(f"v_lshlrev_b32 v{v0_}, 2, v{v0_}")
    a(f"s_mov_b32 s{s_cnt}, 0")
    a.label(name)
    a(f"buffer_load_dword v{v1_}, v{v0_}, s[{srd_f}:{srd_f+3}], s{s_line_off} offen sc1")
    a("s_waitcnt vmcnt(0)")
    a(f"v_cmp_eq_u32 vcc, s{s_tag}, v{v1_}")
    a(f"s_add_u32 s{s_cnt}, s{s_cnt}, 1")
    a(f"s_cmp_ge_u32 s{s_cnt}, {SPIN_MAX}")
    a(f"s_cbranch_scc1 {name}_ok")
    a(f"s_and_b32 s{s_tmp}, vcc_lo, {mask}")
    a(f"s_cmp_eq_u32 s{s_tmp}, {mask}")
    a(f"s_cbranch_scc1 {name}_ok")
    if sleep: a(f"s_sleep {sleep}")
    a(f"s_branch {name}")
    a.label(name + "_ok")

def set_flags(a, srd_f, s_off, s_tag, nlanes, lane_stride, v0_, v1_):
    if nlanes == 1: a(f"v_mov_b32 v{v0_}, 0")
    else: a(f"v_mul_u32_u24 v{v0_}, {lane_stride}, v0")
    a(f"v_mov_b32 v{v1_}, s{s_tag}")
    a(f"s_mov_b64 exec, {hex((1 << nlanes) - 1)}")
    a(f"buffer_store_dword v{v1_}, v{v0_}, s[{srd_f}:{srd_f+3}], s{s_off} offen sc1")
    a("s_mov_b64 exec, -1")

DBGEV = False
def dbg_event(a, word, invert=False):
    if not DBGEV: return
    lab = f"dbgev_{len(a.L)}"
    a("s_cmp_lg_u32 s4, 0")
    a(f"s_cbranch_scc1 {lab}")
    a("s_memrealtime s[88:89]")
    a(f"s_load_dwordx2 s[90:91], s[0:1], {KA['dbg']}")
    a("s_waitcnt lgkmcnt(0)")
    if invert: a("s_not_b32 s88, s88")
    a("v_mov_b32 v12, s88")
    a(f"v_mov_b32 v13, {4*word}")
    a("s_mov_b64 exec, 1")
    a("global_atomic_umax v13, v12, s[90:91] sc1")
    a("s_mov_b64 exec, -1")
    a.label(lab)
```

```python
from asmlib import *
import gemm1, aux2, side2, gemm2

def publish(a, s_dbg):
    a("s_cmp_lg_u32 s2, 224")
    a("s_cbranch_scc1 pub_skip")
    a("s_cmp_lg_u32 s4, 0")
    a("s_cbranch_scc1 pub_skip")
    a("s_memrealtime s[58:59]") if False else None
    a("s_memrealtime s[46:47]")
    a("s_waitcnt lgkmcnt(0)")
    a("s_or_b32 s46, s46, 1")
    a("v_mov_b32 v22, s46")
    a("s_mov_b64 exec, 1")
    a(f"global_store_dword v21, v22, s[{s_dbg}:{s_dbg+1}] sc1")
    a("s_mov_b64 exec, -1")
    a.label("pub_skip")

def fused(opts):
    stamps = opts.get("stamps", False)
    gemm2.SLEEP = opts.get('sleep', 2)
    Stamps.ALLREAL = not opts.get('cyc')
    import asmlib; asmlib.DBGEV = bool(opts.get('dbgev'))
    a = Asm()
    st = Stamps(a, 60 if not stamps else 60, stamps)
    a("s_cmp_ge_u32 s2, 480")
    a("s_cbranch_scc1 f_exit")
    st.stamp(real=True); st.stamp()
    if opts.get("mainfirst", 1):
        a("s_add_u32 s3, s2, 224")
        a("s_sub_u32 s5, s2, 256")
        a("s_cmp_lt_u32 s2, 256")
        a("s_cselect_b32 s2, s3, s5")
    a("v_lshrrev_b32 v1, 6, v0")
    a("v_and_b32 v0, 63, v0")
    a("v_readfirstlane_b32 s4, v1")
    a("s_nop 3")
    a("s_cmp_lt_u32 s2, 224")
    a("s_cbranch_scc1 f_side" if not opts.get("noside") else "s_cbranch_scc1 f_exit")
    if opts.get("prio"): a(f"s_setprio {opts['prio']}")
    dbg_event(a, 0)
    a("s_sub_u32 s3, s2, 224")
    a("s_and_b32 s40, s3, 7")
    a("s_lshr_b32 s41, s3, 3")
    a("s_and_b32 s42, s40, 1")
    a("s_lshr_b32 s43, s40, 1")
    a("s_lshr_b32 s44, s41, 3")
    a("s_and_b32 s45, s41, 7")
    a("s_and_b32 s46, s43, 1")
    a("s_sub_u32 s47, 4, s46")
    a("s_cmp_ge_u32 s44, s47")
    a("s_cbranch_scc1 f_aux")
    a("s_lshl_b32 s48, s42, 3")
    a("s_add_u32 s48, s48, s45")
    a("s_lshr_b32 s49, s43, 1")
    a("s_mul_i32 s49, s49, 7")
    a("s_lshl_b32 s46, s46, 2")
    a("s_add_u32 s49, s49, s46")
    a("s_add_u32 s49, s49, s44")
    rotc = opts.get("rotc", 1)
    a("s_add_u32 s50, s48, s49")
    if rotc == 1: a("s_mov_b32 s50, 0")
    elif rotc == 2:
        a("s_and_b32 s50, s50, 1"); a("s_mul_i32 s50, s50, 4")
    elif rotc == 4:
        a("s_and_b32 s50, s50, 3"); a("s_lshl_b32 s50, s50, 1")
    elif rotc == 6:
        a("s_mul_i32 s51, s50, 43"); a("s_lshr_b32 s51, s51, 8"); a("s_mul_i32 s51, s51, 6"); a("s_sub_u32 s50, s50, s51")
    elif rotc == 3:
        a("s_mul_i32 s51, s50, 86"); a("s_lshr_b32 s51, s51, 8"); a("s_mul_i32 s51, s51, 3"); a("s_sub_u32 s50, s50, s51"); a("s_lshl_b32 s50, s50, 1")
    else:
        a("s_mul_i32 s51, s50, 37"); a("s_lshr_b32 s51, s51, 8"); a("s_mul_i32 s51, s51, 7"); a("s_sub_u32 s50, s50, s51")
    gemm1.gemm1(a, st, 48, 49, 50, exact_round=opts.get("exact", True), NW=opts.get('NW', 3), NX=opts.get('NX', 2), NPRO=opts.get('npro', 3), unitstamps=opts.get('ust', 0), s_k=40, s_j=41, MFU=opts.get('mfu', 11), hybrid=opts.get('hyb', 0), publish=publish, tail=(gemm2 if opts.get('early', 1) else None), s_main=3, mshift=(0 if opts.get('mainfirst', 1) else 4))
    a("s_branch f_g2")
    a.label("f_aux")
    a("s_lshr_b32 s48, s43, 1")
    a("s_lshl_b32 s48, s48, 1")
    a("s_add_u32 s48, s48, s42")
    a("s_lshl_b32 s48, s48, 3")
    a("s_add_u32 s48, s48, s45")
    n0 = st.n; st.n = 2
    aux2.aux(a, st, 48, 40, 41, mshift=(0 if opts.get('mainfirst', 1) else 4))
    st.n = 6; st.stamp(); st.n = n0
    gemm2.setup_w(a, 3)
    if opts.get('early', 1):
        a("s_barrier")
        for p in range(6):
            for g in gemm2.dma_w_lines(gemm2.EARLY_AREA[p]*8192, p):
                for l in g: a(l)
        a("s_waitcnt vmcnt(0)")
        gemm2.pre_dma(a)
    a.label("f_g2")
    a("s_lshr_b32 s41, s3, 3")
    a("s_cmp_ge_u32 s41, 28" if not opts.get("nog2") else "s_cmp_ge_u32 s41, 0")
    a("s_cbranch_scc1 f_early")
    a("s_and_b32 s40, s3, 7")
    a("s_lshl_b32 s40, s40, 2")
    a("s_and_b32 s42, s41, 3")
    a("s_add_u32 s44, s40, s42")
    a("s_lshr_b32 s45, s41, 2")
    a("s_barrier")
    gemm2.gemm2(a, st, 44, 45, rot=opts.get('rot2', 1), NP=opts.get('np', 16), prio=opts.get('prio2', 0), early=opts.get('early', 1))
    a("s_endpgm")
    a.label("f_early")
    if stamps:
        n0 = st.n; st.n = 7; st.flush(4); st.n = n0
    a("s_endpgm")
    a.label("f_side")
    a("s_and_b32 s40, s2, 7")
    a("s_lshr_b32 s41, s2, 3")
    a("s_mul_i32 s3, s40, 28")
    a("s_add_u32 s3, s3, s41")
    st2 = Stamps(a, 60, stamps); st2.n = 2
    side2.side(a, st2, 3, gate=opts.get('gate', 1), sleep=opts.get('ssleep', 4), pf=opts.get('pf', 0), p0early=opts.get('p0e', 1), latetile=opts.get('lt', 1), lategate=opts.get('lg', 1))
    a.label("f_exit")
    a("s_endpgm")
    return a
```

```python
class Asm:
    def __init__(self):
        self.L = []
    def __call__(self, s=""):
        for line in s.split("\n"):
            line = line.strip()
            if line:
                self.L.append("    " + line)
    def label(self, n):
        self.L.append(n + ":")
    def c(self, s):
        self.L.append("    ; " + s)
    def text(self):
        return "\n".join(self.L)

def vr(a, n=1):
    return f"v{a}" if n == 1 else f"v[{a}:{a+n-1}]"
def sr(a, n=1):
    return f"s{a}" if n == 1 else f"s[{a}:{a+n-1}]"

KA = dict(u=0, are=8, aim=16, bre=24, bim=32, cre=40, cim=48, ldt=56, dskip=64, bx=72, wg=80, wu=88, wd=96, gw=104, out=112, dbg=120, ws=128)

WS_H  = 0x000000; SZ_H = 2048*1792*2
WS_UT = 0x700000; SZ_UT = 448*2048*2
WS_AT = 0x8C0000; SZ_AT = 448*2048*2
WS_KX = 0xA80000; KX_ROW = 2112*2; SZ_KX = 448*2*KX_ROW
WS_G  = 0xE20000; SZ_G = 2048*4

def srd_from(a, dst, src, size, off=0):
    if off:
        a(f"s_add_u32 s{dst}, s{src}, {off}")
        a(f"s_addc_u32 s{dst+1}, s{src+1}, 0")
    else:
        a(f"s_mov_b32 s{dst}, s{src}")
        a(f"s_mov_b32 s{dst+1}, s{src+1}")
    a(f"s_mov_b32 s{dst+2}, {size}")
    a(f"s_mov_b32 s{dst+3}, 0x20000")

def kdesc(name, vgpr, sgpr=102, accum=None):
    accum = accum or ((vgpr + 3) // 4 * 4)
    return f""".section .rodata,"a"
.p2align 6
.amdhsa_kernel {name}
  .amdhsa_next_free_vgpr {vgpr}
  .amdhsa_next_free_sgpr {sgpr}
  .amdhsa_accum_offset {accum}
  .amdhsa_group_segment_fixed_size 0
  .amdhsa_kernarg_size 136
  .amdhsa_user_sgpr_count 2
  .amdhsa_user_sgpr_kernarg_segment_ptr 1
  .amdhsa_system_sgpr_workgroup_id_x 1
  .amdhsa_float_denorm_mode_32 3
.end_amdhsa_kernel
.text
"""

WS_STAMP = 0x2000000
class Stamps:
    ALLREAL = False
    def __init__(self, a, base, on):
        self.a, self.base, self.on, self.n = a, base, on, 0
    def stamp(self, real=False):
        if not self.on: return
        real = real or Stamps.ALLREAL
        self.a(f"s_mem{'real' if real else ''}time s[{self.base+2*self.n}:{self.base+2*self.n+1}]")
        self.n += 1
    def flush(self, wave_sgpr, tmp0=92):
        if not self.on: return
        a = self.a
        a("s_waitcnt lgkmcnt(0) vmcnt(0)")
        a(f"s_load_dwordx2 s[{tmp0}:{tmp0+1}], s[0:1], {KA['ws']}")
        a("s_waitcnt lgkmcnt(0)")
        a(f"s_add_u32 s{tmp0}, s{tmp0}, {WS_STAMP}")
        a(f"s_addc_u32 s{tmp0+1}, s{tmp0+1}, 0")
        a(f"s_mov_b32 s{tmp0+2}, 0x100000")
        a(f"s_mov_b32 s{tmp0+3}, 0x20000")
        a(f"s_lshl_b32 s{tmp0+4}, s2, 8")
        a(f"s_lshl_b32 s{tmp0+5}, s{wave_sgpr}, 6")
        a(f"s_add_u32 s{tmp0+4}, s{tmp0+4}, s{tmp0+5}")
        a(f"v_mov_b32 v250, 0")
        for k in range(16):
            a(f"v_mov_b32 v251, s{self.base+2*k}")
            a(f"buffer_store_dword v251, v250, s[{tmp0}:{tmp0+3}], s{tmp0+4} offen offset:{4*k}")
        a("s_waitcnt vmcnt(0)")

FLAG_AUX = 0
FLAG_H = 16
FLAG_A = 128

WS_F = 0xE30000; SZ_F = 896*128
L_H = 0
L_A = 224
L_U = 448
L_M = 672
SPIN_MAX = 400000

def wait_tag(a, name, s_dbg, s_tag, s_cnt, v0_, v1_):
    a(f"v_mov_b32 v{v0_}, 0")
    a(f"s_mov_b32 s{s_cnt}, 0")
    a.label(name)
    a(f"global_load_dword v{v1_}, v{v0_}, s[{s_dbg}:{s_dbg+1}] sc1")
    a("s_waitcnt vmcnt(0)")
    a(f"v_readfirstlane_b32 s{s_tag}, v{v1_}")
    a(f"s_add_u32 s{s_cnt}, s{s_cnt}, 1")
    a(f"s_cmp_ge_u32 s{s_cnt}, {SPIN_MAX}")
    a(f"s_cbranch_scc1 {name}_ok")
    a(f"s_cmp_lg_u32 s{s_tag}, 0")
    a(f"s_cbranch_scc1 {name}_ok")
    a("s_sleep 8")
    a(f"s_branch {name}")
    a.label(name + "_ok")

def wait_flags(a, name, srd_f, s_line_off, nwords, s_tag, s_tmp, s_cnt, v0_, v1_, sleep=2, s_mask=None):
    mask = f"s{s_mask}" if s_mask is not None else hex((1 << nwords) - 1)
    a(f"v_and_b32 v{v0_}, 31, v0")
    a(f"v_lshlrev_b32 v{v0_}, 2, v{v0_}")
    a(f"s_mov_b32 s{s_cnt}, 0")
    a.label(name)
    a(f"buffer_load_dword v{v1_}, v{v0_}, s[{srd_f}:{srd_f+3}], s{s_line_off} offen sc1")
    a("s_waitcnt vmcnt(0)")
    a(f"v_cmp_eq_u32 vcc, s{s_tag}, v{v1_}")
    a(f"s_add_u32 s{s_cnt}, s{s_cnt}, 1")
    a(f"s_cmp_ge_u32 s{s_cnt}, {SPIN_MAX}")
    a(f"s_cbranch_scc1 {name}_ok")
    a(f"s_and_b32 s{s_tmp}, vcc_lo, {mask}")
    a(f"s_cmp_eq_u32 s{s_tmp}, {mask}")
    a(f"s_cbranch_scc1 {name}_ok")
    if sleep: a(f"s_sleep {sleep}")
    a(f"s_branch {name}")
    a.label(name + "_ok")

def set_flags(a, srd_f, s_off, s_tag, nlanes, lane_stride, v0_, v1_):
    if nlanes == 1: a(f"v_mov_b32 v{v0_}, 0")
    else: a(f"v_mul_u32_u24 v{v0_}, {lane_stride}, v0")
    a(f"v_mov_b32 v{v1_}, s{s_tag}")
    a(f"s_mov_b64 exec, {hex((1 << nlanes) - 1)}")
    a(f"buffer_store_dword v{v1_}, v{v0_}, s[{srd_f}:{srd_f+3}], s{s_off} offen sc1")
    a("s_mov_b64 exec, -1")

DBGEV = False
DBG_IDS = (232, 238)
def dbg_event(a, word, invert=False):
    if not DBGEV: return
    lab = f"dbgev_{len(a.L)}"
    a("s_cmp_lg_u32 s4, 0")
    a(f"s_cbranch_scc1 {lab}")
    a("s_mov_b32 s88, 0")
    a("s_cmp_eq_u32 s2, 232"); a("s_cselect_b32 s88, 1, s88")
    a("s_cmp_eq_u32 s2, 8"); a("s_cselect_b32 s88, 1, s88")
    a("s_cmp_eq_u32 s2, 238"); a("s_cselect_b32 s88, 8, s88")
    a("s_cmp_eq_u32 s2, 14"); a("s_cselect_b32 s88, 8, s88")
    a("s_cmp_eq_u32 s88, 0")
    a(f"s_cbranch_scc1 {lab}")
    a(f"s_add_u32 s88, s88, {word}")
    a("s_lshl_b32 s88, s88, 2")
    a("v_mov_b32 v13, s88")
    a("s_memrealtime s[88:89]")
    a(f"s_load_dwordx2 s[90:91], s[0:1], {KA['dbg']}")
    a("s_waitcnt lgkmcnt(0)")
    a("v_mov_b32 v12, s88")
    a("s_mov_b64 exec, 1")
    a("global_store_dword v13, v12, s[90:91] sc1")
    a("s_mov_b64 exec, -1")
    a.label(lab)
```

```python
from asmlib import *

def aux(a, st, s_ax, s_k, s_j, mshift=0, wdpf=True):
    S_W = 4; S_T0 = 5
    SRD_X = 8; SRD_GW = 12; SRD_G = 20; SRD_F = 52
    S_TMP = 24; S_TMP2 = 25
    P0 = 28
    a.c("---- aux role (gate) ----")
    a(f"s_lshl_b32 s{S_T0}, s{s_ax}, 6")
    a(f"s_load_dwordx2 s[{P0}:{P0+1}], s[0:1], {KA['u']}")
    a(f"s_load_dwordx2 s[{P0+2}:{P0+3}], s[0:1], {KA['ws']}")
    a(f"s_load_dwordx2 s[{P0+4}:{P0+5}], s[0:1], {KA['gw']}")
    a(f"s_load_dwordx2 s[{P0+6}:{P0+7}], s[0:1], {KA['dbg']}")
    a("v_lshrrev_b32 v10, 4, v0")
    a("v_lshrrev_b32 v11, 3, v0")
    a("v_mul_u32_u24 v11, 896, v11")
    a("v_and_b32 v12, 7, v0")
    a("v_xor_b32 v13, v12, v10")
    a("v_lshlrev_b32 v13, 4, v13")
    a("v_add_u32 v2, v11, v13")
    a("v_xor_b32 v13, 64, v13")
    a("v_add_u32 v3, v11, v13")
    a(f"v_add_u32 v3, {8*896 - 1024}, v3")
    a("v_lshlrev_b32 v4, 4, v0")
    a(f"s_lshl_b32 s{S_TMP}, s{S_W}, 4")
    a(f"s_add_u32 s{S_TMP2}, s{S_T0}, s{S_TMP}")
    a(f"s_mul_i32 s26, s{S_TMP2}, 896")
    a(f"s_lshl_b32 s27, s{S_W}, 11")
    a("s_waitcnt lgkmcnt(0)")
    srd_from(a, SRD_X, P0, 2048*448*2)
    srd_from(a, SRD_GW, P0+4, 448*2)
    for k in range(7):
        a(f"s_add_u32 m0, s27, {k*8192}")
        a(f"s_add_u32 s{S_TMP}, s26, {128*k}")
        a(f"buffer_load_dwordx4 v2, s[{SRD_X}:{SRD_X+3}], s{S_TMP} offen lds")
        a(f"buffer_load_dwordx4 v3, s[{SRD_X}:{SRD_X+3}], s{S_TMP} offen offset:1024 lds")
    a(f"s_lshl_b32 s{S_TMP}, s{S_W}, 10")
    a(f"s_add_u32 m0, s{S_TMP}, 57344")
    a("s_nop 0")
    a(f"buffer_load_dwordx4 v4, s[{SRD_GW}:{SRD_GW+3}], 0 offen lds")
    a("v_lshrrev_b32 v10, 2, v0")
    a(f"s_lshl_b32 s26, s{S_W}, 4")
    a("v_add_u32 v10, s26, v10")
    a("v_lshrrev_b32 v11, 1, v10")
    a("v_and_b32 v11, 7, v11")
    a("v_and_b32 v12, 3, v0")
    a("v_lshlrev_b32 v14, 1, v12")
    a("v_xor_b32 v14, v14, v11")
    a("v_lshlrev_b32 v13, 7, v10")
    a("v_lshlrev_b32 v14, 4, v14")
    a("v_add_u32 v18, v13, v14")
    a("v_xor_b32 v14, 16, v14")
    a("v_add_u32 v19, v13, v14")
    a("v_lshlrev_b32 v17, 5, v12")
    a(f"s_add_u32 s{S_TMP}, s{S_TMP}, 57344")
    a(f"v_add_u32 v17, s{S_TMP}, v17")
    GW = 64; GX = 120
    if wdpf:
        a(f"s_load_dwordx2 s[56:57], s[0:1], {KA['wd']}")
        a(f"s_lshl_b32 s58, s{s_ax}, 2")
        a(f"s_add_u32 s58, s58, s{S_W}")
        a("s_mul_i32 s58, s58, 13312")
        a("v_lshlrev_b32 v60, 4, v0")
        a("s_waitcnt lgkmcnt(0)")
        a(f"s_mov_b32 s58, s58")
        a(f"s_mov_b32 s44, s56"); a(f"s_mov_b32 s45, s57"); a(f"s_mov_b32 s46, {1792*448*2}"); a("s_mov_b32 s47, 0x20000")
        for i in range(13):
            a(f"buffer_load_dwordx4 v[{200+4*(i%8)}:{203+4*(i%8)}], v60, s[44:47], s58 offen")
            a("s_add_u32 s58, s58, 1024")
    srd_from(a, SRD_G, P0+2, SZ_G, WS_G)
    srd_from(a, SRD_F, P0+2, SZ_F, WS_F)
    a(f"s_cmp_lg_u32 s{S_W}, 0")
    a("s_cbranch_scc1 aux_mf_done")
    wait_tag(a, "aux_wr", P0+6, 37, S_TMP2, 10, 11)
    a(f"s_sub_u32 s{S_TMP2}, s{s_j}, {mshift}")
    a(f"s_cmp_ge_u32 s{S_TMP2}, 28")
    a("s_cbranch_scc1 aux_mf_done")
    a(f"s_lshl_b32 s{S_TMP}, s{S_TMP2}, 3")
    a(f"s_add_u32 s{S_TMP}, s{S_TMP}, s{s_k}")
    a(f"s_add_u32 s{S_TMP}, s{S_TMP}, {L_M}")
    a(f"s_lshl_b32 s{S_TMP}, s{S_TMP}, 7")
    set_flags(a, SRD_F, S_TMP, 37, 1, 0, 10, 11)
    a.label("aux_mf_done")
    st.stamp()
    a("s_waitcnt vmcnt(0)")
    st.stamp()
    for k in range(7):
        a(f"ds_read_b128 v[{GX+8*k}:{GX+8*k+3}], v18 offset:{k*8192}")
        a(f"ds_read_b128 v[{GX+8*k+4}:{GX+8*k+7}], v19 offset:{k*8192}")
        a(f"ds_read_b128 v[{GW+8*k}:{GW+8*k+3}], v17 offset:{128*k}")
        a(f"ds_read_b128 v[{GW+8*k+4}:{GW+8*k+7}], v17 offset:{128*k+16}")
    a("s_waitcnt lgkmcnt(0)")
    a("v_mov_b32 v20, 0")
    a("v_mov_b32 v21, 0")
    a("s_mov_b32 s36, 0xffff0000")
    for k in range(7):
        for j in range(8):
            x = GX + 8*k + j; g = GW + 8*k + j
            acc = 20 + (j & 1)
            a(f"v_lshlrev_b32 v22, 16, v{x}")
            a(f"v_and_b32 v{x}, s36, v{x}")
            a(f"v_lshlrev_b32 v23, 16, v{g}")
            a(f"v_and_b32 v{g}, s36, v{g}")
            a(f"v_mul_f32 v22, v22, v23")
            a(f"v_mul_f32 v{x}, v{x}, v{g}")
            a(f"v_cvt_pk_bf16_f32 v22, v22, v{x}")
            a(f"v_lshlrev_b32 v23, 16, v22")
            a(f"v_and_b32 v22, s36, v22")
            a(f"v_add_f32 v20, v20, v23")
            a(f"v_add_f32 v20, v20, v22")
    a("s_nop 1")
    a("v_add_f32_dpp v20, v20, v20 quad_perm:[1,0,3,2] row_mask:0xf bank_mask:0xf")
    a("s_nop 1")
    a("v_add_f32_dpp v20, v20, v20 quad_perm:[2,3,0,1] row_mask:0xf bank_mask:0xf")
    a("v_cvt_pk_bf16_f32 v20, v20, v20")
    a("v_lshlrev_b32 v20, 16, v20")
    a("v_mul_f32 v20, 0xbfb8aa3b, v20")
    a("v_exp_f32 v20, v20")
    a("s_nop 0")
    a("v_add_f32 v20, 1.0, v20")
    a("v_rcp_f32 v20, v20")
    a("s_nop 0")
    a("v_cvt_pk_bf16_f32 v20, v20, v20")
    a("v_lshlrev_b32 v20, 16, v20")
    a("v_lshrrev_b32 v10, 2, v0")
    a("v_lshlrev_b32 v10, 2, v10")
    a(f"s_lshl_b32 s{S_TMP}, s{S_W}, 4")
    a(f"s_add_u32 s{S_TMP}, s{S_TMP}, s{S_T0}")
    a(f"s_lshl_b32 s{S_TMP}, s{S_TMP}, 2")
    a("v_and_b32 v11, 3, v0")
    a("v_cmp_eq_u32 vcc, 0, v11")
    a("s_and_saveexec_b64 s[38:39], vcc")
    a(f"buffer_store_dword v20, v10, s[{SRD_G}:{SRD_G+3}], s{S_TMP} offen sc1")
    a("s_mov_b64 exec, s[38:39]")
    a("s_waitcnt vmcnt(0)")
    st.stamp()
    a("s_barrier")
    a(f"s_cmp_lg_u32 s{S_W}, 0")
    a("s_cbranch_scc1 aux_done")
    a(f"s_mul_i32 s{S_TMP}, s{s_ax}, {7*128}")
    a(f"s_add_u32 s{S_TMP}, s{S_TMP}, 56")
    set_flags(a, SRD_F, S_TMP, 37, 7, 128, 10, 11)
    a.label("aux_done")
```

```python
from asmlib import *
import gemm1, aux2, side2, gemm2

def publish(a, s_dbg):
    a("s_cmp_lg_u32 s2, 224")
    a("s_cbranch_scc1 pub_skip")
    a("s_cmp_lg_u32 s4, 0")
    a("s_cbranch_scc1 pub_skip")
    a("s_memrealtime s[58:59]") if False else None
    a("s_memrealtime s[46:47]")
    a("s_waitcnt lgkmcnt(0)")
    a("s_or_b32 s46, s46, 1")
    a("v_mov_b32 v22, s46")
    a("s_mov_b64 exec, 1")
    a(f"global_store_dword v21, v22, s[{s_dbg}:{s_dbg+1}] sc1")
    a("s_mov_b64 exec, -1")
    a.label("pub_skip")

NIPF = 3
def fused(opts):
    stamps = opts.get("stamps", False)
    gemm2.SLEEP = opts.get('sleep', 2)
    Stamps.ALLREAL = not opts.get('cyc')
    import asmlib; asmlib.DBGEV = bool(opts.get('dbgev'))
    a = Asm()
    st = Stamps(a, 60 if not stamps else 60, stamps)
    a("s_cmp_ge_u32 s2, 480")
    a("s_cbranch_scc1 f_exit")
    st.stamp(real=True); st.stamp()
    for _ in range(opts.get('dd0', 0)): a("s_sleep 32")
    if opts.get("mainfirst", 1):
        a("s_add_u32 s3, s2, 224")
        a("s_sub_u32 s5, s2, 256")
        a("s_cmp_lt_u32 s2, 256")
        a("s_cselect_b32 s2, s3, s5")
    a("v_lshrrev_b32 v1, 6, v0")
    a("v_and_b32 v0, 63, v0")
    a("v_readfirstlane_b32 s4, v1")
    a("s_nop 3")
    if opts.get("ipf", 1):
        a("s_cmp_ge_u32 s2, 8")
        a("s_cbranch_scc1 f_noipf")
        a("s_getpc_b64 s[96:97]")
        a.label("f_ipf_base")
        a("v_lshlrev_b32 v2, 6, v0")
        a("s_lshl_b32 s98, s4, 12")
        a("v_add_u32 v2, s98, v2")
        a("s_mov_b32 s99, f_code_end - f_ipf_base - 4")
        for i in range(NIPF):
            a("v_min_u32 v3, s99, v2")
            a(f"global_load_dword v{200+i}, v3, s[96:97]")
            a("v_add_u32 v2, 0x4000, v2")
        a.label("f_noipf")
    a("s_cmp_lt_u32 s2, 224")
    a("s_cbranch_scc1 f_side" if not opts.get("noside") else "s_cbranch_scc1 f_exit")
    if opts.get("prio"): a(f"s_setprio {opts['prio']}")
    dbg_event(a, 0)
    a("s_sub_u32 s3, s2, 224")
    a("s_and_b32 s40, s3, 7")
    a("s_lshr_b32 s41, s3, 3")
    a("s_and_b32 s42, s40, 1")
    a("s_lshr_b32 s43, s40, 1")
    a("s_lshr_b32 s44, s41, 3")
    a("s_and_b32 s45, s41, 7")
    a("s_and_b32 s46, s43, 1")
    a("s_sub_u32 s47, 4, s46")
    a("s_cmp_ge_u32 s44, s47")
    a("s_cbranch_scc1 f_aux")
    a("s_lshl_b32 s48, s42, 3")
    a("s_add_u32 s48, s48, s45")
    a("s_lshr_b32 s49, s43, 1")
    a("s_mul_i32 s49, s49, 7")
    a("s_lshl_b32 s46, s46, 2")
    a("s_add_u32 s49, s49, s46")
    a("s_add_u32 s49, s49, s44")
    rotc = opts.get("rotc", 1)
    a("s_add_u32 s50, s48, s49")
    if rotc == 1: a("s_mov_b32 s50, 0")
    elif rotc == 2:
        a("s_and_b32 s50, s50, 1"); a("s_mul_i32 s50, s50, 4")
    elif rotc == 4:
        a("s_and_b32 s50, s50, 3"); a("s_lshl_b32 s50, s50, 1")
    elif rotc == 6:
        a("s_mul_i32 s51, s50, 43"); a("s_lshr_b32 s51, s51, 8"); a("s_mul_i32 s51, s51, 6"); a("s_sub_u32 s50, s50, s51")
    elif rotc == 3:
        a("s_mul_i32 s51, s50, 86"); a("s_lshr_b32 s51, s51, 8"); a("s_mul_i32 s51, s51, 3"); a("s_sub_u32 s50, s50, s51"); a("s_lshl_b32 s50, s50, 1")
    else:
        a("s_mul_i32 s51, s50, 37"); a("s_lshr_b32 s51, s51, 8"); a("s_mul_i32 s51, s51, 7"); a("s_sub_u32 s50, s50, s51")
    gemm1.gemm1(a, st, 48, 49, 50, exact_round=opts.get("exact", True), NW=opts.get('NW', 3), NX=opts.get('NX', 2), NPRO=opts.get('npro', 3), unitstamps=opts.get('ust', 0), s_k=40, s_j=41, MFU=opts.get('mfu', 11), hybrid=opts.get('hyb', 0), publish=publish, tail=(gemm2 if opts.get('early', 1) else None), s_main=3, mshift=(0 if opts.get('mainfirst', 1) else 4))
    a("s_branch f_g2")
    a.label("f_aux")
    a("s_lshr_b32 s48, s43, 1")
    a("s_lshl_b32 s48, s48, 1")
    a("s_add_u32 s48, s48, s42")
    a("s_lshl_b32 s48, s48, 3")
    a("s_add_u32 s48, s48, s45")
    n0 = st.n; st.n = 2
    aux2.aux(a, st, 48, 40, 41, mshift=(0 if opts.get('mainfirst', 1) else 4), wdpf=opts.get('wdpf', 1))
    st.n = 6; st.stamp(); st.n = n0
    gemm2.setup_w(a, 3)
    if opts.get('early', 1):
        a("s_barrier")
        for p in range(6):
            for g in gemm2.dma_w_lines(gemm2.EARLY_AREA[p]*8192, p):
                for l in g: a(l)
        a("s_waitcnt vmcnt(0)")
        gemm2.pre_dma(a)
        a("s_mov_b32 s58, 0")
    a.label("f_g2")
    a("s_lshr_b32 s41, s3, 3")
    a("s_cmp_ge_u32 s41, 28" if not opts.get("nog2") else "s_cmp_ge_u32 s41, 0")
    a("s_cbranch_scc1 f_early")
    a("s_and_b32 s40, s3, 7")
    a("s_lshl_b32 s40, s40, 2")
    a("s_and_b32 s42, s41, 3")
    a("s_add_u32 s44, s40, s42")
    a("s_lshr_b32 s45, s41, 2")
    gemm2.gemm2(a, st, 44, 45, rot=opts.get('rot2', 1), NP=opts.get('np', 16), prio=opts.get('prio2', 0), early=opts.get('early', 1), sst=opts.get('sst', 0), hsc1=opts.get('hsc1', 1), print_sched=opts.get('ps', 0), diagdelay=opts.get('dd', 0))
    a("s_endpgm")
    a.label("f_early")
    a("s_waitcnt vmcnt(0)")
    a("s_barrier")
    gemm2.h_flag(a, 52, "fe")
    if stamps:
        n0 = st.n; st.n = 7; st.flush(4); st.n = n0
    a("s_endpgm")
    a.label("f_side")
    a("s_and_b32 s40, s2, 7")
    a("s_lshr_b32 s41, s2, 3")
    a("s_mul_i32 s3, s40, 28")
    a("s_add_u32 s3, s3, s41")
    st2 = Stamps(a, 60, stamps); st2.n = 2
    side2.side(a, st2, 3, gate=opts.get('gate', 1), sleep=opts.get('ssleep', 4), pf=opts.get('pf', 0), p0early=opts.get('p0e', 1), latetile=opts.get('lt', 1), lategate=opts.get('lg', 0), lateparam=opts.get('lp', 1), tlb=opts.get('tlb', 0))
    a.label("f_exit")
    a("s_endpgm")
    a.label("f_code_end")
    return a
```

```python
from asmlib import *

def gemm1(a, st, s_ti, s_tj, s_rot, exact_round=True, NW=3, NX=2, sc1=True, NPRO=5, unitstamps=False, s_k=None, s_j=None, MFU=11, hybrid=True, publish=None, tail=None, s_main=None, mshift=0, notag=False):
    S_W = 4
    S_T0 = 5; S_F0 = 6
    SRD_X = 8; SRD_W = 12; SRD_H = 16
    S_XCUR = 20; S_WCUR = 21; S_XL = 22; S_WL = 23
    S_TMP = 24; S_TMP2 = 25; S_XLIM = 26; S_WLIM = 27
    P0 = 28
    a.c("---- GEMM1 role ----")
    a(f"s_load_dwordx2 s[{P0}:{P0+1}], s[0:1], {KA['u']}")
    a(f"s_load_dwordx4 s[{P0+4}:{P0+7}], s[0:1], {KA['wg']}")
    a(f"s_load_dwordx2 s[{P0+2}:{P0+3}], s[0:1], {KA['ws']}")
    a(f"s_lshl_b32 s{S_T0}, s{s_ti}, 7")
    a(f"s_lshl_b32 s{S_F0}, s{s_tj}, 7")
    V_DW = 2; V_DX0 = 3; V_DX1 = 4
    V_DWI = 72; V_DXI = 76
    a("v_lshrrev_b32 v10, 4, v0")
    a("v_and_b32 v11, 15, v0")
    a("v_lshlrev_b32 v12, 1, v10")
    a("v_xor_b32 v11, v11, v12")
    a(f"s_lshr_b32 s{S_TMP}, s{S_W}, 1")
    a(f"s_lshl_b32 s{S_TMP2}, s{S_TMP}, 3")
    a(f"v_xor_b32 v11, s{S_TMP2}, v11")
    a("v_lshlrev_b32 v11, 4, v11")
    a("v_mul_u32_u24 v12, 3584, v10")
    a(f"v_add_u32 v{V_DW}, v11, v12")
    a("v_lshrrev_b32 v11, 3, v0")
    a("v_mul_u32_u24 v11, 896, v11")
    a("v_and_b32 v12, 7, v0")
    a("v_xor_b32 v13, v12, v10")
    a("v_lshlrev_b32 v13, 4, v13")
    a(f"v_add_u32 v{V_DX0}, v11, v13")
    a("v_xor_b32 v13, 64, v13")
    a(f"v_add_u32 v{V_DX1}, v11, v13")
    for i in range(4):
        a(f"v_add_u32 v{V_DWI+i}, {i*(4*3584 - 1024)}, v{V_DW}")
        a(f"v_add_u32 v{V_DXI+i}, {i*(8*896 - 1024)}, v{V_DX0 + (i & 1)}")
    a(f"s_lshl_b32 s{S_TMP2}, s{S_W}, 5")
    a(f"s_add_u32 s{S_XCUR}, s{S_T0}, s{S_TMP2}")
    a(f"s_mul_i32 s{S_XCUR}, s{S_XCUR}, 896")
    a(f"s_add_u32 s{S_XLIM}, s{S_XCUR}, 896")
    a(f"s_lshl_b32 s{S_TMP2}, s{s_rot}, 7")
    if hybrid:
        a(f"s_add_u32 s58, s{S_XCUR}, s{S_TMP2}")
        a(f"s_add_u32 s58, s58, 128")
    else:
        a(f"s_add_u32 s{S_XCUR}, s{S_XCUR}, s{S_TMP2}")
    a(f"s_lshl_b32 s{S_XL}, s{S_W}, 12")
    a(f"s_add_u32 s{S_XL}, s{S_XL}, {NW*16384}")
    a(f"s_and_b32 s{S_TMP2}, s{S_W}, 1")
    a(f"s_mul_i32 s{S_WCUR}, s{S_TMP2}, {16*3584}")
    a(f"s_lshl_b32 s{S_WL}, s{S_F0}, 1")
    a(f"s_add_u32 s{S_WCUR}, s{S_WCUR}, s{S_WL}")
    a(f"s_add_u32 s{S_WLIM}, s{S_WCUR}, {448*3584}")
    a(f"s_mul_i32 s{S_WL}, s{s_rot}, {64*3584}")
    if hybrid:
        a(f"s_add_u32 s59, s{S_WCUR}, s{S_WL}")
        a(f"s_add_u32 s59, s59, {64*3584}")
    else:
        a(f"s_add_u32 s{S_WCUR}, s{S_WCUR}, s{S_WL}")
    a(f"s_lshl_b32 s{S_WL}, s{S_TMP}, 13")
    a(f"s_lshl_b32 s{S_TMP2}, s{S_TMP2}, 12")
    a(f"s_add_u32 s{S_WL}, s{S_WL}, s{S_TMP2}")
    a("s_waitcnt lgkmcnt(0)")
    srd_from(a, SRD_X, P0, 2048*448*2)
    a(f"s_cmp_eq_u32 s{S_TMP}, 0")
    a(f"s_cselect_b32 s{SRD_W}, s{P0+4}, s{P0+6}")
    a(f"s_cselect_b32 s{SRD_W+1}, s{P0+5}, s{P0+7}")
    a(f"s_mov_b32 s{SRD_W+2}, {448*1792*2}")
    a(f"s_mov_b32 s{SRD_W+3}, 0x20000")

    vm = []
    def dma_instrs(d):
        kind, idx = d
        out = []
        for i in range(4):
            if kind == "W":
                g = [f"s_add_u32 m0, s{S_WL}, {(idx % NW)*16384}"] if i == 0 else []
                g.append(f"buffer_load_dwordx4 v{V_DWI+i}, s[{SRD_W}:{SRD_W+3}], s{S_WCUR} offen offset:{i*1024} lds")
                if i == 3 and hybrid and idx == 1:
                    g += [f"s_mov_b32 s{S_WCUR}, s59"]
                elif i == 3:
                    g += [f"s_add_u32 s{S_WCUR}, s{S_WCUR}, {32*3584}",
                          f"s_sub_u32 s{S_TMP2}, s{S_WCUR}, {(384 if hybrid else 448)*3584}",
                          f"s_cmp_ge_u32 s{S_WCUR}, s{S_WLIM}",
                          f"s_cselect_b32 s{S_WCUR}, s{S_TMP2}, s{S_WCUR}"]
            else:
                g = [f"s_add_u32 m0, s{S_XL}, {(idx % NX)*16384}"] if i == 0 else []
                g.append(f"buffer_load_dwordx4 v{V_DXI+i}, s[{SRD_X}:{SRD_X+3}], s{S_XCUR} offen offset:{i*1024} lds")
                if i == 3 and hybrid and idx == 0:
                    g += [f"s_mov_b32 s{S_XCUR}, s58"]
                elif i == 3:
                    g += [f"s_add_u32 s{S_XCUR}, s{S_XCUR}, 128",
                          f"s_sub_u32 s{S_TMP2}, s{S_XCUR}, {768 if hybrid else 896}",
                          f"s_cmp_ge_u32 s{S_XCUR}, s{S_XLIM}",
                          f"s_cselect_b32 s{S_XCUR}, s{S_TMP2}, s{S_XCUR}"]
            if i == 0: g.insert(1, "s_nop 0")
            out.append(g)
        vm.append(d)
        return out
    def wait_for(needs):
        last = max(vm.index(n) for n in needs)
        a(f"s_waitcnt vmcnt({sum((1 if g[0] == 'F' else 2 if g[0] == 'T' else 4) for g in vm[last+1:])})")
    order = [("X",0),("W",0),("W",1),("X",1),("W",2),("W",3),("X",2),("W",4),("W",5)]
    order = [d for d in order if (d[0] == "W" and d[1] < NW) or (d[0] == "X" and d[1] < NX)]
    for d in order[:NPRO]:
        for g in dma_instrs(d):
            for l in g: a(l)
    late = order[NPRO:]
    srd_from(a, SRD_H, P0+2, SZ_H, WS_H)
    SRD_F = 52
    srd_from(a, SRD_F, P0+2, SZ_F, WS_F)
    a(f"s_load_dwordx2 s[{P0}:{P0+1}], s[0:1], {KA['dbg']}")
    a(f"s_sub_u32 s57, s{s_j}, {mshift}")
    a(f"s_lshl_b32 s56, s57, 3")
    a(f"s_add_u32 s56, s56, s{s_k}")
    a(f"s_add_u32 s56, s56, {L_M}")
    a("s_lshl_b32 s56, s56, 7")
    a(f"s_cmp_lt_u32 s57, 28")
    a(f"s_cselect_b32 s56, s56, {SZ_F}")
    a("v_mov_b32 v21, 0")
    a("s_waitcnt lgkmcnt(0)")
    if publish: publish(a, P0)

    V_AW = 5
    V_AX = 14
    a("v_lshrrev_b32 v10, 4, v0")
    a("v_lshrrev_b32 v11, 2, v0")
    a("v_and_b32 v11, 3, v11")
    a("v_and_b32 v12, 3, v0")
    a("v_lshrrev_b32 v13, 1, v10")
    a("v_and_b32 v10, 1, v10")
    a("v_lshlrev_b32 v18, 13, v10")
    a("v_lshlrev_b32 v19, 3, v13")
    a("v_add_u32 v19, v19, v11")
    a("v_lshlrev_b32 v19, 8, v19")
    a("v_add_u32 v18, v18, v19")
    a("v_lshrrev_b32 v19, 1, v12")
    a("v_lshlrev_b32 v19, 3, v19")
    a("v_add_u32 v18, v18, v19")
    a("v_and_b32 v19, 1, v12")
    a("v_lshlrev_b32 v20, 1, v11")
    a("v_xor_b32 v19, v19, v20")
    a("v_lshlrev_b32 v20, 3, v10")
    a("v_xor_b32 v19, v19, v20")
    a(f"s_lshr_b32 s{S_TMP}, s{S_W}, 1")
    a(f"s_lshl_b32 s{S_TMP}, s{S_TMP}, 3")
    for rb in range(4):
        a(f"s_add_u32 s{S_TMP2}, s{S_TMP}, {rb*2}")
        a(f"v_xor_b32 v20, s{S_TMP2}, v19")
        a("v_lshlrev_b32 v20, 4, v20")
        a(f"v_add_u32 v{V_AW+rb}, v18, v20")
    a("v_and_b32 v10, 31, v0")
    a("v_lshrrev_b32 v11, 5, v0")
    a("v_lshrrev_b32 v12, 1, v10")
    a("v_and_b32 v12, 7, v12")
    a("v_xor_b32 v12, v12, v11")
    a(f"s_and_b32 s{S_TMP}, s{S_W}, 1")
    a(f"s_lshl_b32 s{S_TMP}, s{S_TMP}, 13")
    a(f"s_add_u32 s{S_TMP}, s{S_TMP}, {NW*16384}")
    a("v_lshlrev_b32 v10, 7, v10")
    a(f"v_add_u32 v10, s{S_TMP}, v10")
    for ks in range(4):
        a(f"v_xor_b32 v13, {2*ks}, v12")
        a("v_lshlrev_b32 v13, 4, v13")
        a(f"v_add_u32 v{V_AX+ks}, v10, v13")

    FR = [24, 48]
    ACC = 128
    def acc(rb, cb): return ACC + 16*(rb*2 + cb)
    def reads(step):
        u = step // 2; s = step % 2; v = step // 4; ks = step % 4
        fb = FR[step % 2]
        R = []
        def ra(rb):
            for h2 in range(2):
                R.append(f"ds_read_b64_tr_b16 v[{fb+4*rb+2*h2}:{fb+4*rb+2*h2+1}], v{V_AW+rb} offset:{(u%NW)*16384 + (16*s+4*h2)*256}")
        def rbb(cb):
            R.append(f"ds_read_b128 v[{fb+16+4*cb}:{fb+16+4*cb+3}], v{V_AX+ks} offset:{(v%NX)*16384 + cb*4096}")
        rbb(0); ra(0); ra(1); rbb(1); ra(2); ra(3)
        return R
    def mfmas(step):
        fb = FR[step % 2]
        M = []
        for (rb, cb) in [(0,0),(1,0),(0,1),(1,1),(2,0),(2,1),(3,0),(3,1)]:
            c = "0" if step == 0 else f"v[{acc(rb,cb)}:{acc(rb,cb)+15}]"
            M.append(f"v_mfma_f32_32x32x16_bf16 v[{acc(rb,cb)}:{acc(rb,cb)+15}], v[{fb+4*rb}:{fb+4*rb+3}], v[{fb+16+4*cb}:{fb+16+4*cb+3}], {c}")
        return M
    if tail:
        tail.setup_w(a, s_main)
        tail.setup_g2(a, s_main)
    if not unitstamps: st.stamp()
    wait_for([("X",0),("W",0)])
    a("s_barrier")
    st.stamp()
    dbg_event(a, 1)
    if st.on: a("s_memtime s[88:89]")
    for r in reads(0): a(r)
    pend = []
    for d in late:
        for g in dma_instrs(d):
            for l in g: a(l)
    for u in range(14):
        for s in range(2):
            step = 2*u + s
            a("s_waitcnt lgkmcnt(0)")
            if s == 1:
                need = []
                if u + 1 < 14: need = [("W", u+1), ("X", (u+1)//2)]
                if need: wait_for(need)
                a("s_barrier")
                if unitstamps and (u < 11 if unitstamps == 1 else u >= 3): st.stamp()
                assert not pend
                dmas = []
                if u + NW < 14: dmas.append(("W", u+NW))
                if u % 2 == 1 and (u//2) + NX < 7: dmas.append(("X", u//2 + NX))
                if u == 6:
                    a(f"global_load_dword v23, v21, s[{P0}:{P0+1}] sc1")
                    vm.append(("F", 1))
                if u == MFU and not notag:
                    a("v_readfirstlane_b32 s37, v23")
                    a("s_nop 3")
                    a("s_cmp_lg_u32 s37, 0")
                    a("s_cbranch_scc1 g1_mf_fast")
                    wait_tag(a, "g1_wr", P0, 37, S_TMP2, 21, 23)
                    a("v_mov_b32 v21, 0")
                    a.label("g1_mf_fast")
                    a("v_mov_b32 v22, s37")
                    a("s_mov_b64 exec, 1")
                    a(f"buffer_store_dword v22, v21, s[{SRD_F}:{SRD_F+3}], s56 offen sc1")
                    a("s_mov_b64 exec, -1")
                    vm.append(("F", 0))
                for d in dmas: pend += dma_instrs(d)
                if tail and NW == 3 and u in (11, 13):
                    for p in ((0, 1, 2, 3) if u == 11 else (4, 5)):
                        pend += tail.dma_w_lines(tail.EARLY_AREA[p]*8192, p)
                        vm.append(("T", p))
            M = mfmas(step)
            R = reads(step + 1) if step + 1 < 28 else []
            ri = 0
            for mi, m in enumerate(M):
                a(m)
                if pend and mi % 2 == 1:
                    for line in pend.pop(0): a(line)
                for _ in range(2):
                    if ri < len(R):
                        a(R[ri]); ri += 1
    dbg_event(a, 2)
    if unitstamps:
        st.stamp(); st.flush(S_W); a("s_endpgm"); st.n = 4
    st.stamp()
    if st.on: a("s_memtime s[90:91]")
    a("v_and_b32 v10, 31, v0")
    a("v_lshrrev_b32 v11, 5, v0")
    a("v_and_b32 v12, 7, v10")
    a("v_xor_b32 v12, v12, v11")
    a(f"s_lshl_b32 s{S_TMP}, s{S_W}, 13")
    a("v_lshlrev_b32 v10, 7, v10")
    a(f"v_add_u32 v10, s{S_TMP}, v10")
    for rb in range(4):
        a(f"v_xor_b32 v13, {2*rb}, v12")
        a("v_lshlrev_b32 v13, 4, v13")
        a(f"v_add_u32 v{V_AW+rb}, v10, v13")
    a("s_mov_b32 s36, 0xffff0000")
    a("v_lshrrev_b32 v10, 3, v0")
    a("v_and_b32 v11, 7, v0")
    a("v_xor_b32 v11, v11, v10")
    a("v_lshlrev_b32 v11, 4, v11")
    a("v_mul_u32_u24 v13, 3584, v10")
    a("v_add_u32 v2, v11, v13")
    a("v_lshlrev_b32 v4, 4, v0")
    a(f"v_add_u32 v4, s{S_TMP}, v4")
    a(f"s_and_b32 s{S_TMP2}, s{S_W}, 1")
    a(f"s_lshl_b32 s{S_TMP2}, s{S_TMP2}, 6")
    a(f"s_add_u32 s{S_TMP2}, s{S_TMP2}, s{S_T0}")
    a(f"s_mul_i32 s{S_TMP2}, s{S_TMP2}, 3584")
    a(f"s_lshr_b32 s{S_TMP}, s{S_W}, 1")
    a(f"s_lshl_b32 s{S_TMP}, s{S_TMP}, 6")
    a(f"s_add_u32 s{S_TMP}, s{S_TMP}, s{S_F0}")
    a(f"s_lshl_b32 s{S_TMP}, s{S_TMP}, 1")
    a(f"s_add_u32 s{S_TMP2}, s{S_TMP2}, s{S_TMP}")
    a("s_barrier")
    for cb in range(2):
        for rb in range(4):
            A0 = acc(rb, cb)
            o = 24 + 4*(rb % 2)
            for p in range(4):
                g0, g1, u0, u1 = A0+2*p, A0+2*p+1, A0+8+2*p, A0+8+2*p+1
                if exact_round:
                    a(f"v_cvt_pk_bf16_f32 v32, v{g0}, v{g1}")
                    a(f"v_cvt_pk_bf16_f32 v33, v{u0}, v{u1}")
                    a(f"v_lshlrev_b32 v34, 16, v32")
                    a(f"v_and_b32 v35, s36, v32")
                    a(f"v_lshlrev_b32 v36, 16, v33")
                    a(f"v_and_b32 v37, s36, v33")
                    a(f"v_mul_f32 v34, v34, v36")
                    a(f"v_mul_f32 v35, v35, v37")
                    a(f"v_cvt_pk_bf16_f32 v{o+p}, v34, v35")
                else:
                    a(f"v_mul_f32 v34, v{g0}, v{u0}")
                    a(f"v_mul_f32 v35, v{g1}, v{u1}")
                    a(f"v_cvt_pk_bf16_f32 v{o+p}, v34, v35")
            a(f"ds_write_b128 v{V_AW+rb}, v[{o}:{o+3}] offset:{cb*4096}")
        a("s_waitcnt lgkmcnt(0)")
        for i in range(4):
            a(f"ds_read_b128 v[{40+4*i}:{43+4*i}], v4 offset:{cb*4096 + i*1024}")
        for i in range(4):
            a(f"s_waitcnt lgkmcnt({3-i})")
            a(f"s_add_u32 s{S_TMP}, s{S_TMP2}, {(32*cb + 8*i)*3584}")
            a(f"buffer_store_dwordx4 v[{40+4*i}:{43+4*i}], v2, s[{SRD_H}:{SRD_H+3}], s{S_TMP} offen {'sc1' if sc1 else ''}")
    if MFU >= 14:
        a("v_readfirstlane_b32 s37, v23")
        a("s_nop 3")
        a("s_cmp_lg_u32 s37, 0")
        a("s_cbranch_scc1 g1_mf_fast")
        wait_tag(a, "g1_wr", P0, 37, S_TMP2, 21, 23)
        a("v_mov_b32 v21, 0")
        a.label("g1_mf_fast")
        a("v_mov_b32 v22, s37")
        a("s_mov_b64 exec, 1")
        a(f"buffer_store_dword v22, v21, s[{SRD_F}:{SRD_F+3}], s56 offen sc1")
        a("s_mov_b64 exec, -1")
    st.stamp()
    a("s_barrier")
    tail.pre_dma(a)
    a(f"s_lshr_b32 s{S_TMP}, s{S_T0}, 7")
    a(f"s_mul_i32 s57, s{S_TMP}, {14*128}")
    a(f"s_lshr_b32 s{S_TMP2}, s{S_F0}, 5")
    a(f"s_add_u32 s57, s57, s{S_TMP2}")
    a("s_mov_b32 s58, 1")
```

```python
from asmlib import *

NSLOT = 5
SLEEP = 2
NS = 28

SRD_WD = 92; S_WCUR = 96; S_WLIM = 97; S_L2 = 98; V_W0 = 20; V_W1 = 19
S_R = 38; S_PH = 39; S_WB = 47
EARLY_AREA = [4, 5, 8, 9, 6, 7]
def setup_w(a, s_main, rot=True):
    a(f"s_load_dwordx2 s[{SRD_WD}:{SRD_WD+1}], s[0:1], {KA['wd']}")
    a("v_lshrrev_b32 v10, 4, v0")
    a("v_lshrrev_b32 v11, 3, v0")
    a("v_and_b32 v12, 7, v0")
    a("v_and_b32 v13, 1, v10")
    a("v_lshlrev_b32 v13, 2, v13")
    a("v_xor_b32 v13, v13, v12")
    a("v_lshlrev_b32 v13, 4, v13")
    a("v_mul_u32_u24 v12, 896, v11")
    a(f"v_add_u32 v{V_W0}, v12, v13")
    a(f"v_add_u32 v{V_W1}, {8*896 - 1024}, v{V_W0}")
    a(f"s_lshr_b32 s99, s{s_main}, 3")
    a("s_and_b32 s100, s99, 3")
    a("s_mul_i32 s100, s100, 3")
    a("s_lshr_b32 s99, s99, 2")
    a("s_lshl_b32 s101, s99, 1")
    a("s_add_u32 s100, s100, s101")
    a("s_sub_u32 s101, s100, 14")
    a("s_cmp_ge_u32 s100, 14")
    a("s_cselect_b32 s100, s101, s100")
    if not rot: a("s_mov_b32 s100, 0")
    a(f"s_mov_b32 s{S_R}, s100")
    a(f"s_and_b32 s101, s{s_main}, 4")
    a("s_cmp_eq_u32 s101, 0")
    a(f"s_cselect_b32 s{S_PH}, 8, 0")
    a(f"s_lshl_b32 s101, s4, 4")
    a(f"s_mul_i32 s{S_WB}, s101, 896")
    a("s_lshl_b32 s99, s99, 7")
    a(f"s_add_u32 s{S_WB}, s{S_WB}, s99")
    a(f"s_add_u32 s99, s{S_PH}, 14")
    a(f"s_mul_i32 s99, s99, {64*896}")
    a(f"s_add_u32 s{S_WLIM}, s{S_WB}, s99")
    a(f"s_add_u32 s99, s{S_PH}, s100")
    a(f"s_mul_i32 s99, s99, {64*896}")
    a(f"s_add_u32 s{S_WCUR}, s{S_WB}, s99")
    a(f"s_lshl_b32 s{S_L2}, s4, 11")
    a("s_waitcnt lgkmcnt(0)")
    a(f"s_mov_b32 s{SRD_WD+2}, {1792*448*2}")
    a(f"s_mov_b32 s{SRD_WD+3}, 0x20000")

def advance(cur, lim, step, i, base_reg, tmp):
    if i == 13:
        return [f"s_add_u32 s{tmp}, s{S_PH}, 14", f"s_mul_i32 s{tmp}, s{tmp}, {step}", f"s_add_u32 s{cur}, s{base_reg}, s{tmp}",
                f"s_add_u32 s{lim}, s{base_reg}, {28*step}"]
    n = 14 if i < 13 else 28
    return [f"s_add_u32 s{cur}, s{cur}, {step}", f"s_sub_u32 s{tmp}, s{cur}, {n*step}",
            f"s_cmp_ge_u32 s{cur}, s{lim}", f"s_cselect_b32 s{cur}, s{tmp}, s{cur}"]

def dma_w_lines(ldsoff, i):
    g0 = [f"s_add_u32 m0, s{S_L2}, {ldsoff}", "s_nop 0",
          f"buffer_load_dwordx4 v{V_W0}, s[{SRD_WD}:{SRD_WD+3}], s{S_WCUR} offen lds"]
    g1 = [f"buffer_load_dwordx4 v{V_W1}, s[{SRD_WD}:{SRD_WD+3}], s{S_WCUR} offen offset:1024 lds"] + advance(S_WCUR, S_WLIM, 64*896, i, S_WB, 99)
    return [g0, g1]

def pre_dma(a):
    for p in range(6, 10):
        for g in dma_w_lines((p-6)*8192, p):
            for l in g: a(l)

def h_flag(a, srd_f, tag):
    a("s_cmp_lg_u32 s4, 0")
    a(f"s_cbranch_scc1 {tag}_flagged")
    a("s_cmp_eq_u32 s58, 0")
    a(f"s_cbranch_scc1 {tag}_flagged")
    set_flags(a, srd_f, 57, 37, 14, 128, 10, 11)
    a.label(f"{tag}_flagged")
    dbg_event(a, 3)

def gemm2(a, st, s_tt, s_ct, rot=True, NP=16, prio=0, early=True, sst=False, hsc1=True, print_sched=False, diagdelay=0):
    S_W = 4; S_T0 = 5; S_D0 = 6
    SRD_H = 8; SRD_AT = 16; SRD_O = 20
    S_TMP = 24; S_TMP2 = 25; S_HCUR = 26
    P0 = 28
    S_L = 36; S_HLIM = 27; SRD_G = 52; SRD_F = 48; S_HB = 40; S_LINE = 41
    a.c("---- GEMM2 role ----")
    if sst: st.n = 1
    else: st.n = 6
    a(f"s_load_dwordx2 s[{P0+2}:{P0+3}], s[0:1], {KA['ws']}")
    a(f"s_load_dwordx2 s[{P0+4}:{P0+5}], s[0:1], {KA['out']}")
    if prio: a(f"s_setprio {prio}")
    a(f"s_lshl_b32 s{S_T0}, s{s_tt}, 6")
    a(f"s_lshl_b32 s{S_D0}, s{s_ct}, 6")
    V_H0, V_H1 = 2, 3
    a("v_lshrrev_b32 v10, 4, v0")
    a("v_lshrrev_b32 v11, 3, v0")
    a("v_and_b32 v12, 7, v0")
    a("v_xor_b32 v13, v12, v10")
    a("v_lshlrev_b32 v13, 4, v13")
    a("v_mul_u32_u24 v14, 3584, v11")
    a(f"v_add_u32 v{V_H0}, v14, v13")
    a("v_xor_b32 v13, 64, v13")
    a(f"v_add_u32 v{V_H1}, v14, v13")
    a(f"v_add_u32 v{V_H1}, {8*3584 - 1024}, v{V_H1}")
    a(f"s_lshl_b32 s{S_TMP}, s{S_W}, 4")
    a(f"s_add_u32 s{S_HB}, s{S_T0}, s{S_TMP}")
    a(f"s_mul_i32 s{S_HB}, s{S_HB}, 3584")
    a(f"s_add_u32 s{S_TMP}, s{S_PH}, 14")
    a(f"s_lshl_b32 s{S_TMP}, s{S_TMP}, 7")
    a(f"s_add_u32 s{S_HLIM}, s{S_HB}, s{S_TMP}")
    a(f"s_add_u32 s{S_TMP}, s{S_PH}, s{S_R}")
    a(f"s_lshl_b32 s{S_TMP}, s{S_TMP}, 7")
    a(f"s_add_u32 s{S_HCUR}, s{S_HB}, s{S_TMP}")
    a(f"s_lshl_b32 s{S_L}, s{S_W}, 11")
    a(f"s_mul_i32 s{S_LINE}, s{s_tt}, 7")
    a(f"s_add_u32 s{S_LINE}, s{S_LINE}, s{s_ct}")
    a(f"s_lshl_b32 s{S_LINE}, s{S_LINE}, 7")
    a(f"s_lshr_b32 s46, s{S_PH}, 1")
    a("s_lshl_b32 s46, 0x7f, s46")
    a("s_waitcnt lgkmcnt(0)")
    vm = []
    def dma_w(ldsoff, key):
        vm.append(key)
        return dma_w_lines(ldsoff, key[1])
    def dma_h(u, ar):
        g0 = [f"s_add_u32 m0, s{S_L}, {ar*8192}", "s_nop 0",
              f"buffer_load_dwordx4 v{V_H0}, s[{SRD_H}:{SRD_H+3}], s{S_HCUR} offen {'sc1' if hsc1 else ''} lds"]
        g1 = [f"buffer_load_dwordx4 v{V_H1}, s[{SRD_H}:{SRD_H+3}], s{S_HCUR} offen offset:1024 {'sc1' if hsc1 else ''} lds"] + advance(S_HCUR, S_HLIM, 128, u, S_HB, S_TMP2)
        vm.append(("H", u))
        return [g0, g1]
    def emit(groups):
        for g in groups:
            for l in g: a(l)
    def wait_for(needs):
        last = max(vm.index(n) for n in needs)
        a(f"s_waitcnt vmcnt({sum((1 if g[0] == 'S' else 2) for g in vm[last+1:])})")
    NB = 10
    area = EARLY_AREA + [0, 1, 2, 3]
    for p in range(6, 10): vm.append(("P", p))
    srd_from(a, SRD_H, P0+2, SZ_H, WS_H)
    srd_from(a, SRD_AT, P0+2, SZ_AT, WS_AT)
    srd_from(a, SRD_O, P0+4, 2048*448*2)
    srd_from(a, SRD_G, P0+2, SZ_G, WS_G)
    srd_from(a, SRD_F, P0+2, SZ_F, WS_F)
    V_B = 5; V_A0 = 6; V_A1 = 7
    a("v_and_b32 v10, 31, v0")
    a("v_lshrrev_b32 v11, 5, v0")
    a("v_lshrrev_b32 v12, 1, v10")
    a("v_and_b32 v12, 7, v12")
    a(f"s_lshl_b32 s{S_TMP}, s{S_W}, 1")
    a(f"v_add_u32 v11, s{S_TMP}, v11")
    a("v_xor_b32 v12, v12, v11")
    a("v_lshlrev_b32 v12, 4, v12")
    a("v_lshlrev_b32 v10, 7, v10")
    a(f"v_add_u32 v{V_B}, v10, v12")
    a("v_lshrrev_b32 v10, 4, v0")
    a("v_lshrrev_b32 v11, 2, v0")
    a("v_and_b32 v11, 3, v11")
    a("v_and_b32 v12, 3, v0")
    a("v_lshrrev_b32 v13, 1, v10")
    a("v_lshlrev_b32 v13, 3, v13")
    a("v_add_u32 v13, v13, v11")
    a(f"s_lshl_b32 s{S_TMP}, s{S_W}, 4")
    a(f"v_add_u32 v13, s{S_TMP}, v13")
    a("v_lshlrev_b32 v13, 7, v13")
    a("v_lshrrev_b32 v14, 1, v12")
    a("v_lshlrev_b32 v14, 3, v14")
    a("v_add_u32 v13, v13, v14")
    a("v_and_b32 v14, 1, v10")
    a("v_lshlrev_b32 v14, 1, v14")
    a("v_and_b32 v15, 1, v12")
    a("v_add_u32 v14, v14, v15")
    a("v_lshrrev_b32 v15, 1, v11")
    a("v_lshlrev_b32 v15, 2, v15")
    a("v_xor_b32 v14, v14, v15")
    a("v_lshlrev_b32 v15, 4, v14")
    a(f"v_add_u32 v{V_A0}, v13, v15")
    a("v_xor_b32 v15, 64, v15")
    a(f"v_add_u32 v{V_A1}, v13, v15")
    a(f"v_add_u32 v16, 0x10000, v{V_B}")
    a(f"v_add_u32 v17, 0x10000, v{V_A0}")
    a(f"v_add_u32 v18, 0x10000, v{V_A1}")
    PRE = 128
    def a_reads(dst, off):
        va0, va1 = V_A0, V_A1
        if off >= 65536: off -= 65536; va0, va1 = 17, 18
        return [f"ds_read_b64_tr_b16 v[{dst}:{dst+1}], v{va0} offset:{off}",
                f"ds_read_b64_tr_b16 v[{dst+2}:{dst+3}], v{va0} offset:{off+512}",
                f"ds_read_b64_tr_b16 v[{dst+4}:{dst+5}], v{va1} offset:{off}",
                f"ds_read_b64_tr_b16 v[{dst+6}:{dst+7}], v{va1} offset:{off+512}"]
    def b_reads(dst, off):
        vb = V_B
        if off >= 65536: off -= 65536; vb = 16
        return [f"ds_read_b128 v[{dst}:{dst+3}], v{vb} offset:{off}",
                f"ds_read_b128 v[{dst+4}:{dst+7}], v{vb} offset:{off+4096}"]
    assert NP in (10, 16)
    for p in range(6):
        for r in a_reads(PRE + 8*p, area[p]*8192): a(r)
    a("s_waitcnt lgkmcnt(0)")
    a("s_waitcnt vmcnt(8)")
    st.stamp()
    a("s_barrier")
    h_flag(a, SRD_F, "g2")
    if NP == 16:
        for p in range(10, 16):
            emit(dma_w(EARLY_AREA[p-10]*8192, ("P", p)))
    wait_for([("P", 9)])
    a("s_barrier")
    for p in range(6, 10):
        for r in a_reads(PRE + 8*p, area[p]*8192): a(r)
    if NP == 16:
        wait_for([("P", 15)])
        a("s_barrier")
        for p in range(10, 16):
            for r in a_reads(PRE + 8*p, EARLY_AREA[p-10]*8192): a(r)
    a("s_waitcnt lgkmcnt(0)")
    st.stamp()
    a(f"s_cmp_lg_u32 s{S_W}, 0")
    a("s_cbranch_scc1 g2_hready")
    wait_flags(a, "g2_wh", SRD_F, S_LINE, 14, 37, S_TMP, 43, 10, 11, sleep=SLEEP, s_mask=46)
    a.label("g2_hready")
    a("s_barrier")
    st.stamp()
    NINIT = 5
    FLAGST = 8
    MAXLD = 2
    sched = {}
    where = {("H", u): u for u in range(NINIT)}
    free = list(range(NINIT, 10))
    nh, nw = NINIT, NP
    for u in range(NS):
        free.append(where[("H", u)])
        if u >= NP: free.append(where[("W", u)])
        sched[u] = []
        lim = 3 if u < 3 else MAXLD
        while free and len(sched[u]) < lim:
            canh = nh < NS and (nh < 14 or u >= FLAGST)
            canw = nw < NS
            if not (canh or canw): break
            key = ("H", nh) if (canh and (not canw or nh <= nw)) else ("W", nw)
            cand = sorted(free, key=lambda x: (x >= 8 and key[1] >= 22, free.index(x)))
            ar = cand[0]; free.remove(ar); where[key] = ar
            sched[u].append(key)
            if key[0] == "H": nh += 1
            else: nw += 1
    assert nh == NS and nw == NS
    for u in range(NS):
        for key in sched[u]: assert key[1] - u >= 3, (u, key)
    if print_sched: print(sched)
    last_use = {ar: max(k[1] for k, v in where.items() if v == ar) for ar in (8, 9)}
    AT_AREA = min(last_use, key=last_use.get)
    AT_STAGE = max(last_use[AT_AREA], 23)
    assert AT_STAGE <= 25, (last_use, where)
    for u in range(NINIT):
        emit(dma_h(u, u))
    FR = [24, 40]
    ACC = 64
    def acc(rb, cb): return ACC + 16*(2*rb + cb)
    def reads(u):
        fb = FR[u % 2]
        R = b_reads(fb+8, where[("H", u)]*8192)
        if u >= NP:
            Ar = a_reads(fb, where[("W", u)]*8192)
            R = [R[0]] + Ar[:2] + [R[1]] + Ar[2:]
        return R
    def needs(u):
        return [("H", u)] + ([("W", u)] if u >= NP else [])
    V_FL = 21
    last_flag = [None]
    def flag_load(s_off):
        a(f"buffer_load_dword v{V_FL}, v22, s[{SRD_F}:{SRD_F+3}], s{s_off} offen sc1")
        vm.append(("S", 100 + len(vm)))
        last_flag[0] = vm[-1]
    def flag_check(name, s_off, nwords):
        mask = hex((1 << nwords) - 1)
        a(f"s_cmp_lg_u32 s{S_W}, 0")
        a(f"s_cbranch_scc1 {name}_done")
        wait_for([last_flag[0]])
        a(f"v_cmp_eq_u32 vcc, s37, v{V_FL}")
        a("s_nop 2")
        a(f"s_and_b32 s{S_TMP}, vcc_lo, {mask}")
        a(f"s_cmp_eq_u32 s{S_TMP}, {mask}")
        a(f"s_cbranch_scc1 {name}_done")
        wait_flags(a, name, SRD_F, s_off, nwords, 37, S_TMP, 43, 10, 11, sleep=SLEEP)
        a.label(name + "_done")
    a("v_and_b32 v22, 31, v0")
    a("v_lshlrev_b32 v22, 2, v22")
    a(f"s_add_u32 s42, s{S_LINE}, {L_A*128}")
    ATL = AT_AREA*8192
    V_G = 8
    def at_loads():
        a("v_and_b32 v9, 31, v0")
        a(f"s_and_b32 s{S_TMP}, s{S_W}, 1")
        a(f"s_lshl_b32 s{S_TMP}, s{S_TMP}, 5")
        a(f"s_add_u32 s{S_TMP}, s{S_TMP}, s{S_T0}")
        a(f"v_add_u32 v9, s{S_TMP}, v9")
        a("v_lshlrev_b32 v9, 2, v9")
        a(f"buffer_load_dword v{V_G}, v9, s[{SRD_G}:{SRD_G+3}], 0 offen sc1")
        a("v_lshrrev_b32 v9, 3, v0")
        a("v_lshlrev_b32 v9, 12, v9")
        a("v_and_b32 v12, 7, v0")
        a("v_lshlrev_b32 v12, 4, v12")
        a("v_add_u32 v9, v9, v12")
        a(f"s_lshl_b32 s{S_TMP}, s{S_W}, 4")
        a(f"s_add_u32 s{S_TMP}, s{S_TMP}, s{S_D0}")
        a(f"s_lshl_b32 s{S_TMP}, s{S_TMP}, 12")
        a(f"s_lshl_b32 s{S_TMP2}, s{S_T0}, 1")
        a(f"s_add_u32 s{S_TMP2}, s{S_TMP2}, s{S_TMP}")
        for i in range(2):
            a(f"s_add_u32 m0, s{S_L}, {ATL + i*1024}")
            a(f"s_add_u32 s{S_TMP}, s{S_TMP2}, {8*i*4096}")
            a(f"buffer_load_dwordx4 v9, s[{SRD_AT}:{SRD_AT+3}], s{S_TMP} offen sc1 lds")
        for i in range(3): vm.append(("S", i))
    wait_for(needs(0))
    a("s_barrier")
    st.stamp()
    dbg_event(a, 4)
    for r in reads(0): a(r)
    for u in range(NS):
        fb = FR[u % 2]
        if sst == 2 and u in (6, 20): st.stamp()
        a("s_waitcnt lgkmcnt(0)")
        if sst == 2 and u in (6, 20): st.stamp()
        if u + 1 < NS: wait_for(needs(u+1))
        if sst == 2 and u in (6, 20): st.stamp()
        if u == FLAGST: flag_check("g2_wh2", S_LINE, 15)
        if u == AT_STAGE: flag_check("g2_wa", 42, 32)
        a("s_barrier")
        if u == FLAGST - 4: flag_load(S_LINE)
        if u == AT_STAGE - 5: flag_load(42)
        if sst == 1 and u in (4, 9, 10, 16, 20, 24, 25): st.stamp()
        if sst == 2 and u in (6, 7, 20, 21): st.stamp()
        if u == AT_STAGE:
            at_loads()
        D = []
        for key in sched.get(u, []):
            D += dma_h(key[1], where[key]) if key[0] == "H" else dma_w(where[key]*8192, key)
        R = reads(u + 1) if u + 1 < NS else []
        M = []
        for (rb, cb) in ((0,0),(0,1),(1,0),(1,1)):
            c = "0" if u == 0 else f"v[{acc(rb,cb)}:{acc(rb,cb)+15}]"
            A = (PRE + 8*u + 4*rb) if u < NP else (fb + 4*rb)
            M.append(f"v_mfma_f32_32x32x16_bf16 v[{acc(rb,cb)}:{acc(rb,cb)+15}], v[{A}:{A+3}], v[{fb+8+4*cb}:{fb+8+4*cb+3}], {c}")
        seq = []
        nD = len(D); per = [D[0:2], D[2:4], D[4:5], D[5:6]] if nD > 4 else [D[0:1], D[1:2], D[2:3], D[3:4]]
        for g in per[0]: seq += g
        seq += R[:2]
        seq.append(M[0])
        for g in per[1]: seq += g
        seq += R[2:4]
        seq.append(M[1])
        for g in per[2]: seq += g
        seq += R[4:]
        seq.append(M[2])
        for g in per[3]: seq += g
        seq.append(M[3])
        for l in seq: a(l)
    st.stamp()
    if sst:
        st.flush(S_W); a("s_endpgm"); return
    a("v_lshlrev_b32 v11, 4, v0")
    a(f"s_lshl_b32 s{S_TMP}, s{S_W}, 12")
    a(f"v_add_u32 v12, s{S_TMP}, v11")
    a("s_nop 7")
    a("s_barrier")
    for beta in range(4):
        rb, cb = beta >> 1, beta & 1
        a(f"s_cmp_eq_u32 s{S_W}, {beta}")
        a(f"s_cbranch_scc1 g2_skipw{beta}")
        for q in range(4):
            a(f"ds_write_b128 v12, v[{acc(rb,cb)+4*q}:{acc(rb,cb)+4*q+3}] offset:{beta*16384 + q*1024}")
        a.label(f"g2_skipw{beta}")
    for beta in range(4):
        rb, cb = beta >> 1, beta & 1
        a(f"s_cmp_lg_u32 s{S_W}, {beta}")
        a(f"s_cbranch_scc1 g2_skipm{beta}")
        for r in range(16):
            a(f"v_mov_b32 v{24+r}, v{acc(rb,cb)+r}")
        a.label(f"g2_skipm{beta}")
    a("s_waitcnt lgkmcnt(0)")
    a("s_barrier")
    st.stamp()
    a(f"s_lshl_b32 s{S_TMP}, s{S_W}, 14")
    a(f"v_add_u32 v12, s{S_TMP}, v11")
    for k in range(1, 4):
        a(f"s_add_u32 s{S_TMP}, s{S_W}, {k}")
        a(f"s_and_b32 s{S_TMP}, s{S_TMP}, 3")
        a(f"s_lshl_b32 s{S_TMP}, s{S_TMP}, 12")
        a(f"v_add_u32 v13, s{S_TMP}, v12")
        for q in range(4):
            a(f"ds_read_b128 v[{64+16*(k-1)+4*q}:{64+16*(k-1)+4*q+3}], v13 offset:{q*1024}")
    a("v_lshrrev_b32 v10, 4, v0")
    a("v_lshrrev_b32 v13, 2, v0")
    a("v_and_b32 v13, 3, v13")
    a("v_and_b32 v14, 3, v0")
    a("v_lshrrev_b32 v15, 1, v10")
    a("v_lshlrev_b32 v15, 3, v15")
    a("v_add_u32 v15, v15, v13")
    a("v_lshlrev_b32 v15, 7, v15")
    a("v_and_b32 v16, 1, v10")
    a("v_lshlrev_b32 v16, 5, v16")
    a("v_add_u32 v15, v15, v16")
    a("v_lshlrev_b32 v14, 3, v14")
    a("v_add_u32 v15, v15, v14")
    a(f"s_lshr_b32 s{S_TMP}, s{S_W}, 1")
    a(f"s_lshl_b32 s{S_TMP}, s{S_TMP}, 12")
    a(f"s_and_b32 s{S_TMP2}, s{S_W}, 1")
    a(f"s_lshl_b32 s{S_TMP2}, s{S_TMP2}, 6")
    a(f"s_add_u32 s{S_TMP}, s{S_TMP}, s{S_TMP2}")
    a(f"s_add_u32 s{S_TMP}, s{S_TMP}, {ATL}")
    a(f"v_add_u32 v15, s{S_TMP}, v15")
    OT = 0
    a("v_and_b32 v10, 31, v0")
    a("v_lshrrev_b32 v11, 5, v0")
    a(f"s_and_b32 s{S_TMP}, s{S_W}, 1")
    a(f"s_lshl_b32 s{S_TMP}, s{S_TMP}, 5")
    a(f"v_add_u32 v10, s{S_TMP}, v10")
    a(f"s_lshr_b32 s{S_TMP2}, s{S_W}, 1")
    a(f"s_lshl_b32 s{S_TMP2}, s{S_TMP2}, 2")
    a(f"v_add_u32 v11, s{S_TMP2}, v11")
    a("v_and_b32 v12, 7, v10")
    a("v_xor_b32 v11, v11, v12")
    a("v_lshlrev_b32 v10, 7, v10")
    a("v_lshlrev_b32 v12, 4, v11")
    a("v_add_u32 v13, v10, v12")
    a("v_xor_b32 v12, 32, v12")
    a("v_add_u32 v14, v10, v12")
    a("v_lshrrev_b32 v10, 3, v0")
    a("v_and_b32 v11, 7, v0")
    a("v_xor_b32 v11, v11, v10")
    a("v_lshlrev_b32 v11, 4, v11")
    a("v_mul_u32_u24 v10, 896, v10")
    a("v_add_u32 v10, v10, v11")
    a("v_lshlrev_b32 v12, 4, v0")
    a(f"v_add_u32 v12, s{S_L}, v12")
    a(f"s_lshl_b32 s{S_TMP}, s{S_W}, 4")
    a(f"s_add_u32 s{S_TMP}, s{S_TMP}, s{S_T0}")
    a(f"s_mul_i32 s{S_TMP}, s{S_TMP}, 896")
    a(f"s_lshl_b32 s{S_TMP2}, s{S_D0}, 1")
    a(f"s_add_u32 s{S_TMP2}, s{S_TMP2}, s{S_TMP}")
    a("s_mov_b32 s39, 0xffff0000")
    a("s_waitcnt lgkmcnt(0)")
    for r in range(16):
        a(f"v_add_f32 v{24+r}, v{24+r}, v{64+r}")
        a(f"v_add_f32 v{80+r}, v{80+r}, v{96+r}")
    for r in range(16):
        a(f"v_add_f32 v{24+r}, v{24+r}, v{80+r}")
    for p in range(8):
        a(f"v_cvt_pk_bf16_f32 v52, v{24+2*p}, v{25+2*p}")
        a(f"v_lshlrev_b32 v{64+2*p}, 16, v52")
        a(f"v_and_b32 v{65+2*p}, s39, v52")
    a("s_waitcnt vmcnt(0)")
    a(f"v_sub_f32 v9, 1.0, v{V_G}")
    a("v_cvt_pk_bf16_f32 v9, v9, v9")
    a("v_lshlrev_b32 v9, 16, v9")
    for p in range(8):
        a(f"v_mul_f32 v53, v9, v{64+2*p}")
        a(f"v_mul_f32 v54, v9, v{65+2*p}")
        a(f"v_cvt_pk_bf16_f32 v52, v53, v54")
        a(f"v_lshlrev_b32 v{64+2*p}, 16, v52")
        a(f"v_and_b32 v{65+2*p}, s39, v52")
    a("s_waitcnt vmcnt(0)")
    a("s_barrier")
    for Q in range(2):
        for h2 in range(2):
            a(f"ds_read_b64_tr_b16 v[{44+4*Q+2*h2}:{44+4*Q+2*h2+1}], v15 offset:{(16*Q+4*h2)*128}")
    a("s_waitcnt lgkmcnt(0)")
    for Q in range(2):
        for p in range(4):
            av = 44 + 4*Q + p; bb = 64 + 8*Q + 2*p
            a(f"v_lshlrev_b32 v55, 16, v{av}")
            a(f"v_and_b32 v56, s39, v{av}")
            a(f"v_mul_f32 v55, v{V_G}, v55")
            a(f"v_mul_f32 v56, v{V_G}, v56")
            a(f"v_cvt_pk_bf16_f32 v55, v55, v56")
            a(f"v_lshlrev_b32 v56, 16, v55")
            a(f"v_and_b32 v55, s39, v55")
            a(f"v_add_f32 v53, v{bb}, v56")
            a(f"v_add_f32 v54, v{bb+1}, v55")
            a(f"v_cvt_pk_bf16_f32 v{24+4*Q+p}, v53, v54")
        a(f"ds_write_b128 v{13+Q}, v[{24+4*Q}:{27+4*Q}] offset:{OT}")
    a("s_waitcnt lgkmcnt(0)")
    a("s_barrier")
    a(f"ds_read_b128 v[32:35], v12 offset:{OT}")
    a(f"ds_read_b128 v[36:39], v12 offset:{OT+1024}")
    for i in range(2):
        a(f"s_waitcnt lgkmcnt({1-i})")
        a(f"s_add_u32 s{S_TMP}, s{S_TMP2}, {8*i*896}")
        a(f"buffer_store_dwordx4 v[{32+4*i}:{35+4*i}], v10, s[{SRD_O}:{SRD_O+3}], s{S_TMP} offen")
    st.stamp()
    for _ in range(diagdelay): a("s_sleep 32")
    dbg_event(a, 5)
    if st.on: a("s_waitcnt vmcnt(0)")
    st.stamp(real=True)
    st.flush(S_W)
```

```python
from asmlib import *

STG = 14848
ESTR = 272
FOFF = 21*ESTR
UBASE = 59392
XT = 66560
KCSZ = 16640; CPSZ = 4160
XCH = 18432

def cmul(a, dr, di, xr, xi, cr, ci, nci):
    a(f"v_mul_f32 v{dr}, v{xr}, v{cr}")
    a(f"v_mul_f32 v{di}, v{xr}, v{ci}")
    a(f"v_fmac_f32 v{dr}, v{xi}, v{nci}")
    a(f"v_fmac_f32 v{di}, v{xi}, v{cr}")

def side(a, st, s_cp, gate=True, sleep=4, pf=True, p0early=True, latetile=True, lategate=True, lateparam=True):
    S_W = 4; S_D = 5; S_HALF = 6; S_CHL = 7
    SRD_P = 8; SRD_UT = 12; SRD_AT = 16; SRD_F = 20
    S_TMP = 24; S_TMP2 = 25; S_SC = 26; S_ISC = 27
    P0 = 28
    P_WS = 44; P_DBG = 46
    S_STG = 48; S_U = 49; S_KC = 50; S_DSK = 51; S_LDT = 52
    P_X = 54
    WA, RA, VT, UD, TA, TB, KCW, VA, VB, XW, XR, UR, ATO, VM = 216, 220, 222, 223, 227, 236, 237, 238, 239, 240, 241, 242, 243, 244
    PK = [104, 160]; D = 88
    a.c("---- side role ----")
    a(f"s_load_dwordx8 s[{P0}:{P0+7}], s[0:1], {KA['are']}")
    a(f"s_load_dwordx8 s[{P0+8}:{P0+15}], s[0:1], {KA['cre']}")
    a(f"s_load_dwordx2 s[{P_WS}:{P_WS+1}], s[0:1], {KA['ws']}")
    a(f"s_load_dwordx2 s[{P_DBG}:{P_DBG+1}], s[0:1], {KA['dbg']}")
    a(f"s_load_dwordx2 s[{P_X}:{P_X+1}], s[0:1], {KA['u']}")
    a(f"s_and_b32 s{S_HALF}, s{S_W}, 1")
    a(f"s_lshr_b32 s{S_CHL}, s{S_W}, 1")
    a(f"s_lshl_b32 s{S_D}, s{s_cp}, 1")
    a(f"s_add_u32 s{S_D}, s{S_D}, s{S_CHL}")
    a(f"s_lshl_b32 s{S_TMP}, s{S_D}, 9")
    a(f"s_lshl_b32 s{S_TMP2}, s{S_HALF}, 8")
    a(f"s_add_u32 s{S_TMP}, s{S_TMP}, s{S_TMP2}")
    a("v_lshlrev_b32 v2, 2, v0")
    a("v_lshrrev_b32 v5, 4, v0")
    a("v_lshrrev_b32 v6, 3, v0")
    a("v_mul_u32_u24 v6, 896, v6")
    a("v_and_b32 v7, 7, v0")
    a("v_xor_b32 v7, v7, v5")
    a("v_lshlrev_b32 v7, 4, v7")
    a("v_add_u32 v3, v6, v7")
    a("v_xor_b32 v7, 64, v7")
    a("v_add_u32 v4, v6, v7")
    a("s_and_b32 s56, s2, 31")
    a("s_lshr_b32 s57, s2, 5")
    a("s_lshl_b32 s58, s56, 6")
    a(f"s_lshl_b32 s59, s{S_W}, 4")
    a("s_add_u32 s58, s58, s59")
    a("s_mul_i32 s58, s58, 896")
    a("s_lshl_b32 s59, s57, 7")
    a("s_add_u32 s58, s58, s59")
    a("s_waitcnt lgkmcnt(0)")
    srd_from(a, SRD_F, P_WS, SZ_F, WS_F)
    a("v_mov_b32 v255, v2")
    a(f"s_mov_b32 s92, s{S_TMP}")
    def param_loads():
        a(f"s_mov_b32 s{SRD_P+2}, {448*256*2}")
        a(f"s_mov_b32 s{SRD_P+3}, 0x20000")
        for i in range(6):
            a(f"s_mov_b32 s{SRD_P}, s{P0+2*i}")
            a(f"s_mov_b32 s{SRD_P+1}, s{P0+2*i+1}")
            a(f"buffer_load_dword v{10+i}, v255, s[{SRD_P}:{SRD_P+3}], s92 offen")
            a("s_nop 0")
    if not lateparam: param_loads()
    a(f"s_lshl_b32 s{S_TMP2}, s{s_cp}, 2")
    a(f"s_load_dword s{S_LDT}, s[{P0+12}:{P0+13}], s{S_TMP2}")
    a(f"s_load_dword s{S_DSK}, s[{P0+14}:{P0+15}], s{S_TMP2}")
    srd_from(a, SRD_UT, P_X, 2048*448*2)
    a(f"s_lshl_b32 s59, s{S_W}, 11")
    a(f"s_add_u32 s59, s59, {XT}")
    def tile_dma(v0_):
        for i in range(2):
            a(f"s_add_u32 m0, s59, {i*1024}")
            a(f"s_add_u32 s{S_TMP}, s58, {8*i*896}")
            a(f"buffer_load_dwordx4 v{v0_+i}, s[{SRD_UT}:{SRD_UT+3}], s{S_TMP} offen lds")
    if latetile:
        a("v_mov_b32 v251, v3"); a("v_mov_b32 v252, v4")
    else:
        tile_dma(3)
    NPF = 0
    if pf == 1:
        NPF = 4
        a("s_lshr_b32 s40, s2, 3")
        a("s_lshl_b32 s40, s40, 2")
        a(f"s_add_u32 s40, s40, s{S_W}")
        a("s_cmp_ge_u32 s40, 96")
        a("s_cbranch_scc1 side_pf_none")
        a(f"s_load_dwordx4 s[28:31], s[0:1], {KA['wg']}")
        a("s_and_b32 s41, s2, 7")
        a("s_cmp_ge_u32 s40, 48")
        a("s_cbranch_scc1 side_pf_w")
        a("s_lshl_b32 s42, s40, 6")
        a("v_add_u32 v3, s42, v0")
        a("s_mov_b32 s43, 21846")
        a("v_mul_u32_u24 v4, s43, v3")
        a("v_lshrrev_b32 v4, 16, v4")
        a("v_mul_u32_u24 v5, 3, v4")
        a("v_sub_u32 v5, v3, v5")
        a("v_mul_u32_u24 v4, 896, v4")
        a("v_lshlrev_b32 v5, 6, v5")
        a("v_add_u32 v4, v4, v5")
        a("s_and_b32 s42, s41, 1")
        a(f"s_mul_i32 s42, s42, {1024*896}")
        a("s_add_u32 s42, s42, 128")
        for q in range(4):
            a(f"buffer_load_dword v{251+q}, v4, s[{SRD_UT}:{SRD_UT+3}], s42 offen")
            a("s_add_u32 s42, s42, 192")
        a("s_waitcnt lgkmcnt(0)")
        a("s_branch side_pf_done")
        a.label("side_pf_w")
        a("s_sub_u32 s40, s40, 48")
        a("s_lshr_b32 s42, s40, 1")
        a("s_lshl_b32 s42, s42, 6")
        a("v_add_u32 v3, s42, v0")
        a("v_lshrrev_b32 v4, 4, v3")
        a("v_and_b32 v3, 15, v3")
        a("v_mul_u32_u24 v4, 3584, v4")
        a("v_lshlrev_b32 v3, 6, v3")
        a("v_add_u32 v4, v4, v3")
        a("s_lshr_b32 s42, s41, 1")
        a("s_lshr_b32 s43, s42, 1")
        a("s_mul_i32 s43, s43, 7")
        a("s_and_b32 s42, s42, 1")
        a("s_lshl_b32 s42, s42, 2")
        a("s_add_u32 s42, s42, s43")
        a("s_lshl_b32 s42, s42, 8")
        a(f"s_add_u32 s42, s42, {64*3584}")
        a("s_and_b32 s40, s40, 1")
        a("s_waitcnt lgkmcnt(0)")
        a("s_cmp_eq_u32 s40, 0")
        a("s_cselect_b32 s32, s28, s30")
        a("s_cselect_b32 s33, s29, s31")
        a(f"s_mov_b32 s34, {448*1792*2}")
        a("s_mov_b32 s35, 0x20000")
        for q in range(4):
            a(f"buffer_load_dword v{251+q}, v4, s[32:35], s42 offen")
            a(f"s_add_u32 s42, s42, {96*3584}")
        a("s_branch side_pf_done")
        a.label("side_pf_none")
        for q in range(4):
            a(f"buffer_load_dword v{251+q}, v2, s[{SRD_UT}:{SRD_UT+3}], 0 offen")
        a.label("side_pf_done")
    srd_from(a, SRD_AT, P_WS, SZ_AT, WS_AT)
    a(f"s_mul_i32 s{S_STG}, s{S_W}, {STG}")
    a(f"s_lshl_b32 s{S_U}, s{S_CHL}, 13")
    a(f"s_add_u32 s{S_U}, s{S_U}, {UBASE}")
    a(f"s_mul_i32 s{S_KC}, s{S_CHL}, {KCSZ}")
    a("v_and_b32 v3, 31, v0")
    a(f"v_mul_u32_u24 v3, {ESTR}, v3")
    a("v_lshrrev_b32 v4, 5, v0")
    a("v_lshlrev_b32 v4, 4, v4")
    a("v_add_u32 v3, v3, v4")
    a(f"v_add_u32 v{RA}, s{S_STG}, v3")
    a("v_lshrrev_b32 v3, 4, v0")
    a("v_lshrrev_b32 v4, 2, v0")
    a("v_and_b32 v4, 3, v4")
    a("v_and_b32 v5, 3, v0")
    a("v_lshrrev_b32 v7, 1, v3")
    a(f"v_mul_u32_u24 v8, {CPSZ}, v4")
    a("v_and_b32 v9, 1, v3")
    a("v_lshlrev_b32 v9, 5, v9")
    a("v_add_u32 v8, v8, v9")
    a("v_and_b32 v9, 1, v5")
    a("v_lshlrev_b32 v9, 4, v9")
    a("v_add_u32 v8, v8, v9")
    a("v_lshrrev_b32 v9, 1, v5")
    a("v_lshlrev_b32 v9, 3, v9")
    a("v_add_u32 v8, v8, v9")
    a("v_lshlrev_b32 v9, 4, v7")
    a("v_sub_u32 v8, v8, v9")
    a(f"s_lshl_b32 s{S_TMP}, s{S_HALF}, 10")
    a(f"s_add_u32 s{S_TMP}, s{S_TMP}, s{S_KC}")
    a(f"s_add_u32 s{S_TMP}, s{S_TMP}, 24")
    a(f"v_add_u32 v{VA}, s{S_TMP}, v8")
    a("v_lshlrev_b32 v8, 3, v3")
    a("v_add_u32 v8, v8, v4")
    a("v_lshlrev_b32 v8, 7, v8")
    a("v_and_b32 v9, 1, v5")
    a("v_lshlrev_b32 v9, 3, v9")
    a("v_add_u32 v8, v8, v9")
    a(f"v_add_u32 v8, {XT}, v8")
    a("v_lshrrev_b32 v9, 1, v5")
    a(f"s_lshl_b32 s{S_TMP}, s{S_W}, 1")
    a(f"v_add_u32 v9, s{S_TMP}, v9")
    a("v_and_b32 v1, 1, v3")
    a("v_lshlrev_b32 v1, 2, v1")
    a("v_lshrrev_b32 v4, 1, v4")
    a("v_add_u32 v1, v1, v4")
    a("v_xor_b32 v9, v9, v1")
    a("v_lshlrev_b32 v1, 4, v9")
    a("v_add_u32 v245, v8, v1")
    a("v_xor_b32 v9, 2, v9")
    a("v_lshlrev_b32 v1, 4, v9")
    a("v_add_u32 v246, v8, v1")
    a("v_add_u32 v246, 512, v246")
    a("v_and_b32 v3, 15, v0")
    a("v_lshrrev_b32 v4, 4, v0")
    a("v_and_b32 v5, 7, v3")
    a("v_xor_b32 v5, v5, v4")
    a("v_lshlrev_b32 v7, 7, v3")
    a(f"v_add_u32 v7, s59, v7")
    a("v_lshlrev_b32 v8, 4, v5")
    a("v_add_u32 v247, v7, v8")
    a("v_xor_b32 v8, 64, v8")
    a("v_add_u32 v248, v7, v8")
    a("v_lshlrev_b32 v249, 4, v0")
    a("v_add_u32 v249, s59, v249")
    a("v_lshrrev_b32 v3, 3, v0")
    a("v_and_b32 v4, 7, v0")
    a("v_xor_b32 v4, v4, v3")
    a("v_lshlrev_b32 v4, 4, v4")
    a("v_lshlrev_b32 v3, 12, v3")
    a("v_add_u32 v250, v3, v4")
    a("v_and_b32 v7, 31, v0")
    a("v_lshlrev_b32 v7, 2, v7")
    a("v_lshrrev_b32 v8, 5, v0")
    a("v_lshlrev_b32 v9, 9, v8")
    a("v_add_u32 v9, v7, v9")
    a(f"v_add_u32 v{VT}, s{S_STG}, v9")
    a("v_and_b32 v3, 31, v0")
    a("v_mul_u32_u24 v4, 80, v3")
    a("v_lshlrev_b32 v5, 4, v8")
    a("v_add_u32 v4, v4, v5")
    a(f"s_mul_i32 s{S_TMP}, s{S_HALF}, {80*16}")
    a(f"s_sub_u32 s{S_TMP}, s{S_U}, s{S_TMP}")
    a(f"s_add_u32 s{S_TMP}, s{S_TMP}, {80*16}")
    a(f"v_add_u32 v{VB}, s{S_TMP}, v4")
    a(f"s_mul_i32 s{S_TMP}, s{S_CHL}, {XCH}")
    a(f"s_lshl_b32 s{S_TMP2}, s{S_HALF}, 12")
    a("v_lshlrev_b32 v4, 4, v0")
    a(f"v_add_u32 v4, s{S_TMP}, v4")
    a(f"v_add_u32 v{XW}, s{S_TMP2}, v4")
    a(f"s_xor_b32 s{S_TMP2}, s{S_TMP2}, 4096")
    a(f"v_add_u32 v{XR}, s{S_TMP2}, v4")
    a("v_and_b32 v3, 31, v0")
    a("v_lshrrev_b32 v8, 5, v0")
    a("v_mul_u32_u24 v7, 80, v3")
    a("v_lshlrev_b32 v5, 4, v8")
    a("v_add_u32 v7, v7, v5")
    a(f"s_mul_i32 s{S_TMP}, s{S_HALF}, {80*32}")
    a(f"s_add_u32 s{S_TMP}, s{S_TMP}, s{S_U}")
    a(f"s_add_u32 s{S_TMP}, s{S_TMP}, {80*31}")
    a(f"v_add_u32 v{UR}, s{S_TMP}, v7")
    a("v_lshlrev_b32 v7, 6, v3")
    a("v_add_u32 v7, v7, v5")
    a(f"s_mul_i32 s56, s{S_CHL}, {XCH}")
    a(f"s_lshl_b32 s{S_TMP}, s{S_HALF}, 11")
    a(f"s_add_u32 s56, s56, s{S_TMP}")
    a("s_add_u32 s56, s56, 8192")
    a(f"v_add_u32 v{ATO}, s56, v7")
    a(f"s_lshl_b32 s{S_TMP}, s{S_HALF}, 8")
    a(f"v_add_u32 v3, s{S_TMP}, v0")
    a("s_mov_b32 s53, 52429")
    for ii in range(4):
        a("v_mul_u32_u24 v4, s53, v3")
        a("v_lshrrev_b32 v4, 18, v4")
        a("v_mul_u32_u24 v5, 5, v4")
        a("v_sub_u32 v5, v3, v5")
        a("v_subrev_u32 v4, 31, v4")
        a("v_lshlrev_b32 v7, 6, v4")
        a("v_lshlrev_b32 v8, 4, v5")
        a("v_add_u32 v7, v7, v8")
        a("v_cmp_gt_u32 vcc, 64, v4")
        a("v_cmp_gt_u32 s[56:57], 4, v5") if False else a("v_cmp_gt_u32 s[40:41], 4, v5")
        a("s_and_b64 vcc, vcc, s[40:41]")
        a("v_mov_b32 v8, 0x80000000")
        a("s_nop 0")
        a(f"v_cndmask_b32 v{UD+ii}, v8, v7, vcc")
        if ii < 3: a("v_add_u32 v3, 64, v3")
    a(f"s_mul_i32 s{S_TMP}, s{S_CHL}, {2*STG}")
    a("v_and_b32 v3, 31, v0")
    a("v_lshlrev_b32 v3, 2, v3")
    a(f"v_add_u32 v3, s{S_TMP}, v3")
    a("v_cmp_gt_u32 vcc, 32, v0")
    r1 = [8*128, 8*128, 16*128, 17*128, 17*128, 17*128, 18*128, 8*128+4]
    for i in range(8):
        a(f"v_mov_b32 v4, {r1[i]}")
        a(f"v_mov_b32 v5, {i*128}")
        a("v_cndmask_b32 v4, v4, v5, vcc")
        a(f"v_add_u32 v{TA+i}, v3, v4")
    a("v_cmp_eq_u32 s[40:41], 32, v0")
    a("v_mov_b32 v4, 1024")
    a("v_mov_b32 v5, 892")
    a("v_cndmask_b32 v4, v4, v5, vcc")
    a("v_mov_b32 v5, 1020")
    a("v_cndmask_b32 v4, v4, v5, s[40:41]")
    a(f"v_add_u32 v{TA+8}, v3, v4")
    a(f"v_lshlrev_b32 v{TB}, 2, v0")
    a(f"v_add_u32 v{TB}, s{S_TMP}, v{TB}")
    a(f"s_lshl_b32 s{S_TMP}, s{S_HALF}, 7")
    a(f"v_add_u32 v{VM}, s{S_TMP}, v0")
    a(f"v_lshlrev_b32 v{KCW}, 4, v{VM}")
    a(f"s_add_u32 s{S_TMP}, s{S_KC}, 64")
    a(f"v_add_u32 v{KCW}, s{S_TMP}, v{KCW}")
    if lateparam: param_loads()
    if pf == 2:
        NPF = 12
        a(f"s_load_dwordx4 s[28:31], s[0:1], {KA['wg']}")
        a(f"s_load_dwordx2 s[36:37], s[0:1], {KA['u']}")
        a("s_lshr_b32 s93, s2, 3")
        a("s_lshl_b32 s93, s93, 2")
        a(f"s_add_u32 s93, s93, s{S_W}")
        a("s_and_b32 s94, s2, 7")
        a("s_lshr_b32 s95, s94, 1")
        a("s_lshr_b32 s96, s95, 1")
        a("s_mul_i32 s96, s96, 7")
        a("s_and_b32 s95, s95, 1")
        a("s_lshl_b32 s95, s95, 2")
        a("s_add_u32 s95, s95, s96")
        a("s_lshl_b32 s95, s95, 8")
        a("s_lshr_b32 s96, s93, 1")
        a("s_add_u32 s96, s96, 96")
        a("s_mul_i32 s96, s96, 3584")
        a("s_add_u32 s95, s95, s96")
        a("v_lshlrev_b32 v3, 4, v0")
        a("v_lshrrev_b32 v4, 3, v0")
        a("v_mul_u32_u24 v4, 896, v4")
        a("v_and_b32 v5, 7, v0")
        a("v_lshlrev_b32 v5, 4, v5")
        a("v_add_u32 v4, v4, v5")
        a("s_and_b32 s94, s94, 1")
        a(f"s_mul_i32 s94, s94, {1024*896}")
        a("s_waitcnt lgkmcnt(0)")
        a("s_and_b32 s96, s93, 1")
        a("s_cmp_eq_u32 s96, 0")
        a("s_cselect_b32 s32, s28, s30")
        a("s_cselect_b32 s33, s29, s31")
        a(f"s_mov_b32 s34, {448*1792*2}"); a("s_mov_b32 s35, 0x20000")
        a(f"s_mov_b32 s38, {2048*448*2}"); a("s_mov_b32 s39, 0x20000")
        for i in range(6):
            a(f"buffer_load_dwordx4 v[80:83], v3, s[32:35], s95 offen")
            a(f"s_add_u32 s95, s95, {56*3584}")
            a(f"s_add_u32 s96, s93, {112*i}")
            a("s_lshr_b32 s97, s96, 7")
            a("s_and_b32 s96, s96, 127")
            a(f"s_mul_i32 s96, s96, {8*896}")
            a("s_lshl_b32 s97, s97, 7")
            a("s_add_u32 s96, s96, s97")
            a("s_add_u32 s96, s96, s94")
            a("s_add_u32 s96, s96, 256")
            if i == 5:
                a("s_cmp_ge_u32 s97, 640")
                a(f"s_cselect_b32 s96, {2048*448*2}, s96")
            a(f"buffer_load_dwordx4 v[84:87], v4, s[36:39], s96 offen")
    a("s_waitcnt lgkmcnt(0)")
    for r in (S_LDT, S_DSK):
        a(f"s_lshl_b32 s{S_TMP}, s{r}, 16")
        a(f"s_and_b32 s{S_TMP2}, s{r}, 0xffff0000")
        a(f"s_cmp_eq_u32 s{S_CHL}, 0")
        a(f"s_cselect_b32 s{r}, s{S_TMP}, s{S_TMP2}")
    a(f"v_mov_b32 v6, s{S_LDT}")
    a("v_mul_f32 v7, 0x3fb8aa3b, v6")
    a("s_mov_b32 s53, 0x3fb8aa3b")
    a("v_fma_f32 v8, v6, s53, -v7")
    a("v_fmac_f32 v8, 0x32a57060, v6")
    a("v_exp_f32 v7, v7")
    a("v_mul_f32 v8, 0x3f317218, v8")
    a("s_nop 0")
    a("v_fmac_f32 v7, v7, v8")
    a("v_cvt_pk_bf16_f32 v7, v7, v7")
    a("v_lshlrev_b32 v6, 16, v7")
    st.stamp()
    a(f"s_waitcnt vmcnt({NPF + (0 if latetile else 0)})")
    st.stamp()
    if latetile: tile_dma(251)
    a("s_mov_b32 s54, 0xffff0000")
    for p in range(2):
        def ex(dst, src):
            if p == 0: a(f"v_lshlrev_b32 v{dst}, 16, v{src}")
            else: a(f"v_and_b32 v{dst}, s54, v{src}")
        ex(24, 10); ex(25, 11); ex(26, 12); ex(27, 13); ex(28, 14); ex(29, 15)
        a("v_mul_f32 v24, v6, v24")
        a("v_mul_f32 v25, v6, v25")
        a("v_mul_f32 v26, v6, v26")
        a("v_mul_f32 v27, v6, v27")
        wr, wi = 16+2*p, 17+2*p
        a(f"v_mul_f32 v{wr}, v28, v26")
        a(f"v_fma_f32 v{wr}, -v29, v27, v{wr}")
        a(f"v_mul_f32 v{wi}, v28, v27")
        a(f"v_fmac_f32 v{wi}, v29, v26")
        a(f"v_mul_f32 v{20+2*p}, 0x3fb8aa3b, v24")
        a(f"v_mul_f32 v{21+2*p}, 0.15915494, v25")
        a(f"v_mul_f32 v30, 0x45000000, v{20+2*p}")
        a("v_max_f32 v30, 0, v30")
        a("v_exp_f32 v30, v30")
        a(f"v_max_f32 v31, |v{wr}|, |v{wi}|")
        if p == 0: a("v_mul_f32 v9, v30, v31")
        else:
            a("v_mul_f32 v30, v30, v31")
            a("v_max_f32 v9, v9, v30")
    for ctrl in ("row_shr:1", "row_shr:2", "row_shr:4", "row_shr:8", "row_bcast:15 row_mask:0xa", "row_bcast:31 row_mask:0xc"):
        a("s_nop 1")
        if "row_mask" in ctrl: a(f"v_max_f32_dpp v9, v9, v9 {ctrl} bank_mask:0xf")
        else: a(f"v_max_f32_dpp v9, v9, v9 {ctrl} row_mask:0xf bank_mask:0xf")
    a("s_nop 1")
    a(f"v_readlane_b32 s{S_TMP}, v9, 63")
    a("s_nop 3")
    a(f"s_lshr_b32 s{S_TMP}, s{S_TMP}, 23")
    a(f"s_max_u32 s{S_TMP}, s{S_TMP}, 8")
    a(f"s_min_u32 s{S_TMP}, s{S_TMP}, 254")
    a(f"s_sub_u32 s{S_SC}, 261, s{S_TMP}")
    a(f"s_lshl_b32 s{S_SC}, s{S_SC}, 23")
    a(f"s_sub_u32 s{S_ISC}, s{S_TMP}, 7")
    a(f"s_lshl_b32 s{S_ISC}, s{S_ISC}, 23")
    def vpass(p, mid=None):
        e2, ph = 20+2*p, 21+2*p
        def polar(r, i, ni, mult):
            if mult == 1:
                a(f"v_exp_f32 v40, v{e2}")
                a(f"v_fract_f32 v41, v{ph}")
            else:
                a(f"v_mul_f32 v40, {mult}, v{e2}")
                a(f"v_mul_f32 v41, {mult}, v{ph}")
                a(f"v_exp_f32 v40, v40")
                a(f"v_fract_f32 v41, v41")
            a(f"v_cos_f32 v42, v41")
            a(f"v_sin_f32 v43, v41")
            a("s_nop 0")
            a(f"v_mul_f32 v{r}, v40, v42")
            a(f"v_mul_f32 v{i}, v40, v43")
            a(f"v_sub_f32 v{ni}, 0, v{i}")
        polar(24, 25, 26, 1)
        polar(33, 34, 35, "0x43800000")
        polar(36, 37, 38, "0x41000000")
        cmul(a, 27, 28, 24, 25, 24, 25, 26); a("v_sub_f32 v29, 0, v28")
        cmul(a, 30, 31, 27, 28, 27, 28, 29); a("v_sub_f32 v32, 0, v31")
        wr, wi = 16+2*p, 17+2*p
        def put(idx, r, i):
            a(f"v_cvt_pk_f16_f32 v{PK[p]+idx}, v{r}, v{i}")
        Gc = (33, 35, 34); z2c = (27, 29, 28); z4c = (30, 32, 31); zc = (24, 26, 25)
        a(f"v_mul_f32 v48, s{S_SC}, v{wr}")
        a(f"v_mul_f32 v49, s{S_SC}, v{wi}")
        a("v_sub_f32 v49, 0, v49")
        put(0, 48, 49)
        cur = (48, 49); bufs = [(44, 45), (46, 47)]
        for row in range(1, 8):
            nx = bufs[row % 2]
            cmul(a, nx[0], nx[1], cur[0], cur[1], *zc); cur = nx
            put(row, *cur)
        cmul(a, 50, 51, 48, 49, *Gc); put(8, 50, 51)
        cmul(a, 44, 45, 50, 51, *z2c); put(16, 44, 45)
        cmul(a, 46, 47, 44, 45, *z2c); put(17, 46, 47)
        cmul(a, 44, 45, 46, 47, *z2c); put(18, 44, 45)
        cmul(a, 48, 49, 50, 51, *Gc); put(9, 48, 49)
        cmul(a, 44, 45, 48, 49, *z4c); put(19, 44, 45)
        cmul(a, 50, 51, 48, 49, *Gc); put(10, 50, 51)
        cmul(a, 44, 45, 50, 51, *z4c); put(20, 44, 45)
        cur = (50, 51); other = (48, 49)
        for row in range(11, 16):
            cmul(a, other[0], other[1], cur[0], cur[1], *Gc)
            cur, other = other, cur
            put(row, *cur)
        if mid: mid()
        a(f"v_mov_b32 v{PK[p]+21}, 0x3c00")
        put(22, 36, 37)
        cur = (36, 37)
        for j in range(2, 32):
            nx = bufs[j % 2]
            cmul(a, nx[0], nx[1], cur[0], cur[1], 36, 37, 38); cur = nx
            put(21 + j, *cur)
    FA = [24, PK[0]]; FBk = [56, PK[0] + 32]
    def writes(p):
        return [f"ds_write_addtid_b32 v{PK[p]+row} offset:{row*ESTR}" for row in range(21)] + \
               [f"ds_write_addtid_b32 v{PK[p]+21+row} offset:{FOFF + row*ESTR}" for row in range(32)]
    def freads(p):
        R = []
        for kk in range(8):
            R.append(f"ds_read_b128 v[{FA[p]+4*kk}:{FA[p]+4*kk+3}], v{RA} offset:{32*kk}")
            R.append(f"ds_read_b128 v[{FBk[p]+4*kk}:{FBk[p]+4*kk+3}], v{RA} offset:{FOFF + 32*kk}")
        return R
    def mf(p, kk):
        c = "0" if (p == 0 and kk == 0) else f"v[{D}:{D+15}]"
        return f"v_mfma_f32_32x32x16_f16 v[{D}:{D+15}], v[{FA[p]+4*kk}:{FA[p]+4*kk+3}], v[{FBk[p]+4*kk}:{FBk[p]+4*kk+3}], {c}"
    def ldspass(p):
        a(f"s_mov_b32 m0, s{S_STG}")
        a("s_nop 0")
        for l in writes(p): a(l)
        for l in freads(p): a(l)
        for kk in range(8):
            a(f"s_waitcnt lgkmcnt({14 - 2*kk})")
            a(mf(p, kk))
    def uflag():
        a("s_waitcnt vmcnt(0)")
        a("s_barrier")
        a(f"s_cmp_lg_u32 s{S_W}, 0")
        a("s_cbranch_scc1 side_uflagged")
        wait_tag(a, "side_wr", P_DBG, 53, 57, 1, 2)
        a("s_lshr_b32 s57, s2, 5")
        a("s_lshl_b32 s57, s57, 5")
        a(f"s_add_u32 s57, s57, {L_U}")
        a("s_lshl_b32 s57, s57, 7")
        a("s_and_b32 s58, s2, 31")
        a("s_lshl_b32 s58, s58, 2")
        a("s_add_u32 s57, s57, s58")
        set_flags(a, SRD_F, 57, 53, 32, 128, 1, 2)
        a.label("side_uflagged")
    vpass(0)
    a("s_waitcnt vmcnt(0)" if not NPF else f"s_waitcnt vmcnt(0)")
    a("s_barrier")
    for o in range(2):
        a(f"ds_read_b64_tr_b16 v[{56+4*o}:{57+4*o}], v245 offset:{o*4096}")
        a(f"ds_read_b64_tr_b16 v[{58+4*o}:{59+4*o}], v246 offset:{o*4096}")
    srd_from(a, SRD_UT, P_WS, SZ_UT, WS_UT)
    a("s_waitcnt lgkmcnt(0)")
    a("s_barrier")
    a("ds_write_b128 v247, v[56:59]")
    a("ds_write_b128 v248, v[60:63]")
    a("s_lshr_b32 s57, s2, 5")
    a("s_lshl_b32 s57, s57, 6")
    a(f"s_lshl_b32 s58, s{S_W}, 4")
    a("s_add_u32 s57, s57, s58")
    a("s_lshl_b32 s57, s57, 12")
    a("s_and_b32 s58, s2, 31")
    a("s_lshl_b32 s58, s58, 7")
    a("s_add_u32 s57, s57, s58")
    a("s_waitcnt lgkmcnt(0)")
    a("ds_read_b128 v[56:59], v249")
    a("ds_read_b128 v[60:63], v249 offset:1024")
    a("s_waitcnt lgkmcnt(1)")
    a(f"buffer_store_dwordx4 v[56:59], v250, s[{SRD_UT}:{SRD_UT+3}], s57 offen sc1")
    a("s_add_u32 s57, s57, 32768")
    a("s_waitcnt lgkmcnt(0)")
    a(f"buffer_store_dwordx4 v[60:63], v250, s[{SRD_UT}:{SRD_UT+3}], s57 offen sc1")
    if p0early: ldspass(0)
    vpass(1, uflag)
    st.stamp()
    a(f"s_cmp_lg_u32 s{S_W}, 0")
    a("s_cbranch_scc1 side_uready")
    a(f"s_add_u32 s57, s{s_cp}, {L_U}")
    a("s_lshl_b32 s57, s57, 7")
    wait_flags(a, "side_wu", SRD_F, 57, 32, 53, S_TMP, 58, 1, 2, sleep=sleep)
    a.label("side_uready")
    a("s_barrier")
    a(f"s_lshl_b32 s{S_TMP2}, s{S_D}, 12")
    a(f"s_lshl_b32 s55, s{S_HALF}, 12")
    a(f"s_add_u32 s55, s55, s{S_U}")
    for ii in range(4):
        a(f"s_add_u32 m0, s55, {ii*1024}")
        a("s_nop 0")
        a(f"buffer_load_dwordx4 v{UD+ii}, s[{SRD_UT}:{SRD_UT+3}], s{S_TMP2} offen sc1 lds")
    def do_gate():
        a(f"s_cmp_lg_u32 s{S_W}, 0")
        a("s_cbranch_scc1 side_gated")
        a(f"s_add_u32 s57, s2, {L_M}")
        a("s_lshl_b32 s57, s57, 7")
        wait_flags(a, "side_wm", SRD_F, 57, 1, 53, S_TMP, 58, 1, 2, sleep=sleep)
        a.label("side_gated")
        a("s_barrier")
    if gate and not lategate: do_gate()
    st.stamp()
    if p0early:
        ldspass(1)
    else:
        a(f"s_mov_b32 m0, s{S_STG}")
        a("s_nop 0")
        for l in writes(0): a(l)
        for l in freads(0): a(l)
        W1 = writes(1)
        for l in W1[:15]: a(l)
        a("s_waitcnt lgkmcnt(15)")
        W1 = W1[15:]
        for kk in range(8):
            a(mf(0, kk))
            for l in W1[:5]: a(l)
            W1 = W1[5:]
        for l in W1: a(l)
        for l in freads(1): a(l)
        for kk in range(8):
            a(f"s_waitcnt lgkmcnt({14 - 2*kk})")
            a(mf(1, kk))
    a("s_nop 15")
    a("s_nop 3")
    for r in range(12):
        q, rr = r // 4, r % 4
        a(f"v_mul_f32 v{D+r}, s{S_ISC}, v{D+r}")
        a(f"ds_write_b32 v{VT}, v{D+r} offset:{(8*q + rr)*128}")
    a("s_waitcnt lgkmcnt(0)")
    a("s_barrier")
    st.stamp()
    a(f"s_cmp_eq_u32 s{S_HALF}, 0")
    a("s_cbranch_scc0 side_exp_h1")
    for i in range(9):
        a(f"ds_read_b32 v{24+i}, v{TA+i}")
        a(f"ds_read_b32 v{40+i}, v{TA+i} offset:{STG}")
    for i, o in enumerate((1024+128, 2432, 1024+132)):
        a(f"ds_read_b32 v{33+i}, v{TB} offset:{o}")
        a(f"ds_read_b32 v{49+i}, v{TB} offset:{o+STG}")
    a("v_cmp_eq_u32 vcc, 0, v0")
    a("v_mov_b32 v11, 0")
    a("s_waitcnt lgkmcnt(0)")
    for i in range(12):
        a(f"v_add_f32 v{24+i}, v{24+i}, v{40+i}")
    a(f"v_cndmask_b32 v32, v32, v11, vcc")
    for i in range(4):
        a(f"v_cvt_pk_bf16_f32 v{40+i}, v{24+2*i}, v{24+2*i+1}")
    a(f"v_cvt_pk_bf16_f32 v44, v32, v24")
    for i in range(1, 4):
        a(f"v_cvt_pk_bf16_f32 v{44+i}, v{24+2*i-1}, v{24+2*i}")
    a("v_cvt_pk_bf16_f32 v48, v33, v33")
    a("v_cvt_pk_bf16_f32 v49, v33, v34")
    a("v_cvt_pk_bf16_f32 v50, v34, v34")
    a("v_cvt_pk_bf16_f32 v51, v35, v35")
    a("v_mov_b32 v52, v48")
    a("v_mov_b32 v53, v48")
    a("v_mov_b32 v54, v50")
    a("v_cvt_pk_bf16_f32 v55, v34, v35")
    a("s_branch side_exp_join")
    a.label("side_exp_h1")
    o = 1024 + 4*96
    for sl in range(2):
        a(f"ds_read_b32 v{24+2*sl}, v{TB} offset:{o + 256*sl}")
        a(f"ds_read_b32 v{40+2*sl}, v{TB} offset:{o + 256*sl + STG}")
        a(f"ds_read_b32 v{25+2*sl}, v{TB} offset:{o + 256*sl + 4}")
        a(f"ds_read_b32 v{41+2*sl}, v{TB} offset:{o + 256*sl + 4 + STG}")
    a("v_and_b32 v11, 1, v0")
    a("v_cmp_eq_u32 vcc, 0, v11")
    a("s_waitcnt lgkmcnt(0)")
    for i in range(4):
        a(f"v_add_f32 v{24+i}, v{24+i}, v{40+i}")
    for sl in range(2):
        f0, f8 = 24+2*sl, 25+2*sl
        o0 = 40 + 8*sl
        a(f"v_cndmask_b32 v12, v{f8}, v{f0}, vcc")
        a(f"v_cvt_pk_bf16_f32 v{o0}, v{f0}, v{f0}")
        a(f"v_cvt_pk_bf16_f32 v{o0+3}, v{f8}, v{f8}")
        a(f"v_cvt_pk_bf16_f32 v{o0+2}, v12, v{f8}")
        a(f"v_cvt_pk_bf16_f32 v{o0+6}, v{f0}, v12")
        a(f"v_mov_b32 v{o0+1}, v{o0}")
        a(f"v_mov_b32 v{o0+4}, v{o0}")
        a(f"v_mov_b32 v{o0+5}, v{o0}")
        a(f"v_mov_b32 v{o0+7}, v{o0+3}")
    a.label("side_exp_join")
    a("s_barrier")
    a(f"s_cmp_eq_u32 s{S_HALF}, 0")
    a("s_cbranch_scc0 side_nozero")
    a("v_lshrrev_b32 v10, 3, v0")
    a("v_and_b32 v11, 7, v0")
    a(f"v_mul_u32_u24 v10, {CPSZ}, v10")
    a("v_lshlrev_b32 v12, 4, v11")
    a("v_add_u32 v10, v10, v12")
    a(f"v_add_u32 v10, s{S_KC}, v10")
    a("v_mov_b32 v56, 0"); a("v_mov_b32 v57, 0"); a("v_mov_b32 v58, 0"); a("v_mov_b32 v59, 0")
    a("v_cmp_gt_u32 vcc, 5, v11")
    a("v_cmp_gt_u32 s[40:41], 32, v0")
    a("s_and_b64 vcc, vcc, s[40:41]")
    a("s_and_saveexec_b64 s[40:41], vcc")
    a("ds_write_b128 v10, v[56:59]")
    a("s_mov_b64 exec, s[40:41]")
    a.label("side_nozero")
    for sl in range(2):
        o0 = 40 + 8*sl; ob = 1024*sl
        a(f"ds_write_b128 v{KCW}, v[{o0}:{o0+3}] offset:{ob}")
        a(f"ds_write_b128 v{KCW}, v[{o0+4}:{o0+7}] offset:{ob + CPSZ}")
    a(f"v_add_u32 v11, {2*CPSZ+4}, v{KCW}")
    a(f"v_add_u32 v12, {3*CPSZ+4}, v{KCW}")
    for sl in range(2):
        o0 = 40 + 8*sl
        if sl == 1:
            a("v_add_u32 v11, 1024, v11"); a("v_add_u32 v12, 1024, v12")
        a(f"ds_write2_b32 v11, v{o0}, v{o0+1} offset0:0 offset1:1")
        a(f"ds_write2_b32 v11, v{o0+2}, v{o0+3} offset0:2 offset1:3")
        a(f"ds_write2_b32 v12, v{o0+4}, v{o0+5} offset0:0 offset1:1")
        a(f"ds_write2_b32 v12, v{o0+6}, v{o0+7} offset0:2 offset1:3")
    a("s_waitcnt vmcnt(0) lgkmcnt(0)")
    if gate and lategate: do_gate()
    else: a("s_barrier")
    st.stamp()
    ACC0, ACC1 = 96, 112
    FB = [24, 40, 56]
    steps = [(dl, s) for dl in range(16) for s in range(2)]
    def reads(i):
        dl, s = steps[i]; fb = FB[i % 3]
        base = 64*dl + 40 - 32*s
        return [f"ds_read_b128 v[{fb+8}:{fb+11}], v{VB} offset:{80*(15-dl) + 32*s}",
                f"ds_read_b64_tr_b16 v[{fb}:{fb+1}], v{VA} offset:{base}",
                f"ds_read_b64_tr_b16 v[{fb+2}:{fb+3}], v{VA} offset:{base - 8}",
                f"ds_read_b128 v[{fb+12}:{fb+15}], v{VB} offset:{80*(15-dl) + 32*s + 2560}",
                f"ds_read_b64_tr_b16 v[{fb+4}:{fb+5}], v{VA} offset:{base + 2048}",
                f"ds_read_b64_tr_b16 v[{fb+6}:{fb+7}], v{VA} offset:{base + 2048 - 8}"]
    for r in reads(0): a(r)
    for r in reads(1): a(r)
    n = len(steps)
    for i in range(n):
        fb = FB[i % 3]
        a(f"s_waitcnt lgkmcnt({6 if i + 1 < n else 0})")
        R = reads(i + 2) if i + 2 < n else []
        c0 = "0" if i == 0 else f"v[{ACC0}:{ACC0+15}]"
        c1 = "0" if i == 0 else f"v[{ACC1}:{ACC1+15}]"
        a(f"v_mfma_f32_32x32x16_bf16 v[{ACC0}:{ACC0+15}], v[{fb}:{fb+3}], v[{fb+8}:{fb+11}], {c0}")
        for r in R[:2]: a(r)
        a(f"v_mfma_f32_32x32x16_bf16 v[{ACC1}:{ACC1+15}], v[{fb}:{fb+3}], v[{fb+12}:{fb+15}], {c1}")
        for r in R[2:4]: a(r)
        a(f"v_mfma_f32_32x32x16_bf16 v[{ACC1}:{ACC1+15}], v[{fb+4}:{fb+7}], v[{fb+8}:{fb+11}], v[{ACC1}:{ACC1+15}]")
        for r in R[4:]: a(r)
    st.stamp()
    a("s_nop 15")
    a("s_barrier")
    a(f"s_cmp_eq_u32 s{S_HALF}, 0")
    a("s_cbranch_scc0 side_x_h1")
    for q in range(4):
        a(f"ds_write_b128 v{XW}, v[{ACC1+4*q}:{ACC1+4*q+3}] offset:{q*1024}")
    a("s_branch side_x_j")
    a.label("side_x_h1")
    for q in range(4):
        a(f"ds_write_b128 v{XW}, v[{ACC0+4*q}:{ACC0+4*q+3}] offset:{q*1024}")
    for r in range(16):
        a(f"v_mov_b32 v{ACC0+r}, v{ACC1+r}")
    a.label("side_x_j")
    a("s_mov_b32 s54, 0xffff0000")
    a(f"s_lshl_b32 s{S_TMP}, s{S_D}, 12")
    a(f"s_lshl_b32 s{S_TMP2}, s{S_HALF}, 11")
    a(f"s_add_u32 s{S_TMP}, s{S_TMP}, s{S_TMP2}")
    a("s_waitcnt lgkmcnt(0)")
    a("s_barrier")
    for q in range(4):
        a(f"ds_read_b128 v[{24+4*q}:{27+4*q}], v{XR} offset:{q*1024}")
    for Q in range(2):
        a(f"ds_read_b128 v[{40+4*Q}:{43+4*Q}], v{UR} offset:{32*Q}")
    a("s_waitcnt lgkmcnt(2)")
    for r in range(16):
        a(f"v_add_f32 v{24+r}, v{24+r}, v{ACC0+r}")
    a("s_waitcnt lgkmcnt(0)")
    for Q in range(2):
        ob = 72 + 4*Q
        for i in range(4):
            y0 = 24 + 8*Q + 2*i
            a(f"v_cvt_pk_bf16_f32 v64, v{y0}, v{y0+1}")
            a(f"v_lshlrev_b32 v65, 16, v{40+4*Q+i}")
            a(f"v_and_b32 v66, s54, v{40+4*Q+i}")
            a(f"v_mul_f32 v65, s{S_DSK}, v65")
            a(f"v_mul_f32 v66, s{S_DSK}, v66")
            a(f"v_cvt_pk_bf16_f32 v65, v65, v66")
            a(f"v_lshlrev_b32 v66, 16, v64")
            a(f"v_and_b32 v64, s54, v64")
            a(f"v_lshlrev_b32 v67, 16, v65")
            a(f"v_and_b32 v65, s54, v65")
            a(f"v_add_f32 v66, v66, v67")
            a(f"v_add_f32 v64, v64, v65")
            a(f"v_cvt_pk_bf16_f32 v{ob+i}, v66, v64")
        a(f"ds_write_b128 v{ATO}, v[{ob}:{ob+3}] offset:{32*Q}")
    a("v_lshlrev_b32 v10, 4, v0")
    a(f"v_add_u32 v11, s56, v10")
    a("s_waitcnt lgkmcnt(0)")
    for i in range(2):
        a(f"ds_read_b128 v[{24+4*i}:{27+4*i}], v11 offset:{1024*i}")
    for i in range(2):
        a(f"s_waitcnt lgkmcnt({1-i})")
        a(f"buffer_store_dwordx4 v[{24+4*i}:{27+4*i}], v10, s[{SRD_AT}:{SRD_AT+3}], s{S_TMP} offen offset:{1024*i} sc1")
    a("s_waitcnt vmcnt(0)")
    st.stamp()
    a("s_barrier")
    a(f"s_cmp_lg_u32 s{S_W}, 0")
    a("s_cbranch_scc1 side_done")
    a(f"s_lshr_b32 s{S_TMP}, s{s_cp}, 5")
    a(f"s_add_u32 s{S_TMP}, s{S_TMP}, {L_A}")
    a(f"s_lshl_b32 s{S_TMP}, s{S_TMP}, 7")
    a(f"s_and_b32 s{S_TMP2}, s{s_cp}, 31")
    a(f"s_lshl_b32 s{S_TMP2}, s{S_TMP2}, 2")
    a(f"s_add_u32 s{S_TMP}, s{S_TMP}, s{S_TMP2}")
    set_flags(a, SRD_F, S_TMP, 53, 32, 896, 10, 11)
    a.label("side_done")
    dbg_event(a, 6)
    st.stamp(real=True)
    st.flush(S_W)
```

```python
from asmlib import *

STG = 14848
ESTR = 272
FOFF = 21*ESTR
UBASE = 59392
XT = 66560
KCSZ = 16640; CPSZ = 4160
XCH = 18432

def cmul(a, dr, di, xr, xi, cr, ci, nci):
    a(f"v_mul_f32 v{dr}, v{xr}, v{cr}")
    a(f"v_mul_f32 v{di}, v{xr}, v{ci}")
    a(f"v_fmac_f32 v{dr}, v{xi}, v{nci}")
    a(f"v_fmac_f32 v{di}, v{xi}, v{cr}")

def side(a, st, s_cp, gate=True, sleep=4, pf=True, p0early=True, latetile=True, lategate=True, lateparam=True, tlb=0, sprio=0):
    S_W = 4; S_D = 5; S_HALF = 6; S_CHL = 7
    SRD_P = 8; SRD_UT = 12; SRD_AT = 16; SRD_F = 20
    S_TMP = 24; S_TMP2 = 25; S_SC = 26; S_ISC = 27
    P0 = 28
    P_WS = 44; P_DBG = 46
    S_STG = 48; S_U = 49; S_KC = 50; S_DSK = 51; S_LDT = 52
    P_X = 54
    WA, RA, VT, UD, TA, TB, KCW, VA, VB, XW, XR, UR, ATO, VM = 216, 220, 222, 223, 227, 236, 237, 238, 239, 240, 241, 242, 243, 244
    PK = [104, 160]; D = 88
    a.c("---- side role ----")
    a(f"s_load_dwordx8 s[{P0}:{P0+7}], s[0:1], {KA['are']}")
    a(f"s_load_dwordx8 s[{P0+8}:{P0+15}], s[0:1], {KA['cre']}")
    a(f"s_load_dwordx2 s[{P_WS}:{P_WS+1}], s[0:1], {KA['ws']}")
    a(f"s_load_dwordx2 s[{P_DBG}:{P_DBG+1}], s[0:1], {KA['dbg']}")
    a(f"s_load_dwordx2 s[{P_X}:{P_X+1}], s[0:1], {KA['u']}")
    a(f"s_and_b32 s{S_HALF}, s{S_W}, 1")
    a(f"s_lshr_b32 s{S_CHL}, s{S_W}, 1")
    a(f"s_lshl_b32 s{S_D}, s{s_cp}, 1")
    a(f"s_add_u32 s{S_D}, s{S_D}, s{S_CHL}")
    a(f"s_lshl_b32 s{S_TMP}, s{S_D}, 9")
    a(f"s_lshl_b32 s{S_TMP2}, s{S_HALF}, 8")
    a(f"s_add_u32 s{S_TMP}, s{S_TMP}, s{S_TMP2}")
    a("v_lshlrev_b32 v2, 2, v0")
    a("v_lshrrev_b32 v5, 4, v0")
    a("v_lshrrev_b32 v6, 3, v0")
    a("v_mul_u32_u24 v6, 896, v6")
    a("v_and_b32 v7, 7, v0")
    a("v_xor_b32 v7, v7, v5")
    a("v_lshlrev_b32 v7, 4, v7")
    a("v_add_u32 v3, v6, v7")
    a("v_xor_b32 v7, 64, v7")
    a("v_add_u32 v4, v6, v7")
    a("s_and_b32 s56, s2, 31")
    a("s_lshr_b32 s57, s2, 5")
    a("s_lshl_b32 s58, s56, 6")
    a(f"s_lshl_b32 s59, s{S_W}, 4")
    a("s_add_u32 s58, s58, s59")
    a("s_mul_i32 s58, s58, 896")
    a("s_lshl_b32 s59, s57, 7")
    a("s_add_u32 s58, s58, s59")
    a("s_waitcnt lgkmcnt(0)")
    srd_from(a, SRD_F, P_WS, SZ_F, WS_F)
    if tlb:
        a("s_lshr_b32 s93, s2, 3")
        a("s_lshl_b32 s93, s93, 2")
        a(f"s_add_u32 s93, s93, s{S_W}")
        a("s_cmp_ge_u32 s93, 72")
        a("s_cbranch_scc1 side_tlb_done")
        a(f"s_load_dwordx2 s[94:95], s[0:1], {KA['out']}")
        a(f"s_load_dwordx2 s[96:97], s[0:1], {KA['wd']}")
        a(f"s_mov_b32 s100, s{P_WS}"); a(f"s_mov_b32 s101, s{P_WS+1}")
        a(f"s_mov_b32 s99, {WS_F + SZ_F}")
        a("s_waitcnt lgkmcnt(0)")
        a("s_cmp_ge_u32 s93, 58")
        a("s_cselect_b32 s100, s94, s100"); a("s_cselect_b32 s101, s95, s101")
        a(f"s_cselect_b32 s99, {2048*448*2}, s99")
        a("s_cselect_b32 s98, 58, 0")
        a("s_cmp_ge_u32 s93, 65")
        a("s_cselect_b32 s100, s96, s100"); a("s_cselect_b32 s101, s97, s101")
        a(f"s_cselect_b32 s99, {1792*448*2}, s99")
        a("s_cselect_b32 s98, 65, s98")
        a("s_sub_u32 s93, s93, s98")
        a("s_lshl_b32 s93, s93, 18")
        a("v_lshlrev_b32 v254, 12, v0")
        a("s_mov_b32 s96, s100"); a("s_mov_b32 s97, s101"); a("s_mov_b32 s98, s99"); a("s_mov_b32 s99, 0x20000")
        a("buffer_load_dword v253, v254, s[96:99], s93 offen")
        a.label("side_tlb_done")
    a("v_mov_b32 v255, v2")
    a(f"s_mov_b32 s92, s{S_TMP}")
    def param_loads():
        a(f"s_mov_b32 s{SRD_P+2}, {448*256*2}")
        a(f"s_mov_b32 s{SRD_P+3}, 0x20000")
        for i in range(6):
            a(f"s_mov_b32 s{SRD_P}, s{P0+2*i}")
            a(f"s_mov_b32 s{SRD_P+1}, s{P0+2*i+1}")
            a(f"buffer_load_dword v{10+i}, v255, s[{SRD_P}:{SRD_P+3}], s92 offen")
            a("s_nop 0")
    if not lateparam: param_loads()
    a(f"s_lshl_b32 s{S_TMP2}, s{s_cp}, 2")
    a(f"s_load_dword s{S_LDT}, s[{P0+12}:{P0+13}], s{S_TMP2}")
    a(f"s_load_dword s{S_DSK}, s[{P0+14}:{P0+15}], s{S_TMP2}")
    srd_from(a, SRD_UT, P_X, 2048*448*2)
    a(f"s_lshl_b32 s59, s{S_W}, 11")
    a(f"s_add_u32 s59, s59, {XT}")
    def tile_dma(v0_):
        for i in range(2):
            a(f"s_add_u32 m0, s59, {i*1024}")
            a(f"s_add_u32 s{S_TMP}, s58, {8*i*896}")
            a(f"buffer_load_dwordx4 v{v0_+i}, s[{SRD_UT}:{SRD_UT+3}], s{S_TMP} offen lds")
    if latetile:
        a("v_mov_b32 v251, v3"); a("v_mov_b32 v252, v4")
    else:
        tile_dma(3)
    NPF = 0
    if pf == 1:
        NPF = 4
        a("s_lshr_b32 s40, s2, 3")
        a("s_lshl_b32 s40, s40, 2")
        a(f"s_add_u32 s40, s40, s{S_W}")
        a("s_cmp_ge_u32 s40, 96")
        a("s_cbranch_scc1 side_pf_none")
        a(f"s_load_dwordx4 s[28:31], s[0:1], {KA['wg']}")
        a("s_and_b32 s41, s2, 7")
        a("s_cmp_ge_u32 s40, 48")
        a("s_cbranch_scc1 side_pf_w")
        a("s_lshl_b32 s42, s40, 6")
        a("v_add_u32 v3, s42, v0")
        a("s_mov_b32 s43, 21846")
        a("v_mul_u32_u24 v4, s43, v3")
        a("v_lshrrev_b32 v4, 16, v4")
        a("v_mul_u32_u24 v5, 3, v4")
        a("v_sub_u32 v5, v3, v5")
        a("v_mul_u32_u24 v4, 896, v4")
        a("v_lshlrev_b32 v5, 6, v5")
        a("v_add_u32 v4, v4, v5")
        a("s_and_b32 s42, s41, 1")
        a(f"s_mul_i32 s42, s42, {1024*896}")
        a("s_add_u32 s42, s42, 128")
        for q in range(4):
            a(f"buffer_load_dword v{251+q}, v4, s[{SRD_UT}:{SRD_UT+3}], s42 offen")
            a("s_add_u32 s42, s42, 192")
        a("s_waitcnt lgkmcnt(0)")
        a("s_branch side_pf_done")
        a.label("side_pf_w")
        a("s_sub_u32 s40, s40, 48")
        a("s_lshr_b32 s42, s40, 1")
        a("s_lshl_b32 s42, s42, 6")
        a("v_add_u32 v3, s42, v0")
        a("v_lshrrev_b32 v4, 4, v3")
        a("v_and_b32 v3, 15, v3")
        a("v_mul_u32_u24 v4, 3584, v4")
        a("v_lshlrev_b32 v3, 6, v3")
        a("v_add_u32 v4, v4, v3")
        a("s_lshr_b32 s42, s41, 1")
        a("s_lshr_b32 s43, s42, 1")
        a("s_mul_i32 s43, s43, 7")
        a("s_and_b32 s42, s42, 1")
        a("s_lshl_b32 s42, s42, 2")
        a("s_add_u32 s42, s42, s43")
        a("s_lshl_b32 s42, s42, 8")
        a(f"s_add_u32 s42, s42, {64*3584}")
        a("s_and_b32 s40, s40, 1")
        a("s_waitcnt lgkmcnt(0)")
        a("s_cmp_eq_u32 s40, 0")
        a("s_cselect_b32 s32, s28, s30")
        a("s_cselect_b32 s33, s29, s31")
        a(f"s_mov_b32 s34, {448*1792*2}")
        a("s_mov_b32 s35, 0x20000")
        for q in range(4):
            a(f"buffer_load_dword v{251+q}, v4, s[32:35], s42 offen")
            a(f"s_add_u32 s42, s42, {96*3584}")
        a("s_branch side_pf_done")
        a.label("side_pf_none")
        for q in range(4):
            a(f"buffer_load_dword v{251+q}, v2, s[{SRD_UT}:{SRD_UT+3}], 0 offen")
        a.label("side_pf_done")
    srd_from(a, SRD_AT, P_WS, SZ_AT, WS_AT)
    a(f"s_mul_i32 s{S_STG}, s{S_W}, {STG}")
    a(f"s_lshl_b32 s{S_U}, s{S_CHL}, 13")
    a(f"s_add_u32 s{S_U}, s{S_U}, {UBASE}")
    a(f"s_mul_i32 s{S_KC}, s{S_CHL}, {KCSZ}")
    a("v_and_b32 v3, 31, v0")
    a(f"v_mul_u32_u24 v3, {ESTR}, v3")
    a("v_lshrrev_b32 v4, 5, v0")
    a("v_lshlrev_b32 v4, 4, v4")
    a("v_add_u32 v3, v3, v4")
    a(f"v_add_u32 v{RA}, s{S_STG}, v3")
    a("v_lshrrev_b32 v3, 4, v0")
    a("v_lshrrev_b32 v4, 2, v0")
    a("v_and_b32 v4, 3, v4")
    a("v_and_b32 v5, 3, v0")
    a("v_lshrrev_b32 v7, 1, v3")
    a(f"v_mul_u32_u24 v8, {CPSZ}, v4")
    a("v_and_b32 v9, 1, v3")
    a("v_lshlrev_b32 v9, 5, v9")
    a("v_add_u32 v8, v8, v9")
    a("v_and_b32 v9, 1, v5")
    a("v_lshlrev_b32 v9, 4, v9")
    a("v_add_u32 v8, v8, v9")
    a("v_lshrrev_b32 v9, 1, v5")
    a("v_lshlrev_b32 v9, 3, v9")
    a("v_add_u32 v8, v8, v9")
    a("v_lshlrev_b32 v9, 4, v7")
    a("v_sub_u32 v8, v8, v9")
    a(f"s_lshl_b32 s{S_TMP}, s{S_HALF}, 10")
    a(f"s_add_u32 s{S_TMP}, s{S_TMP}, s{S_KC}")
    a(f"s_add_u32 s{S_TMP}, s{S_TMP}, 24")
    a(f"v_add_u32 v{VA}, s{S_TMP}, v8")
    a("v_lshlrev_b32 v8, 3, v3")
    a("v_add_u32 v8, v8, v4")
    a("v_lshlrev_b32 v8, 7, v8")
    a("v_and_b32 v9, 1, v5")
    a("v_lshlrev_b32 v9, 3, v9")
    a("v_add_u32 v8, v8, v9")
    a(f"v_add_u32 v8, {XT}, v8")
    a("v_lshrrev_b32 v9, 1, v5")
    a(f"s_lshl_b32 s{S_TMP}, s{S_W}, 1")
    a(f"v_add_u32 v9, s{S_TMP}, v9")
    a("v_and_b32 v1, 1, v3")
    a("v_lshlrev_b32 v1, 2, v1")
    a("v_lshrrev_b32 v4, 1, v4")
    a("v_add_u32 v1, v1, v4")
    a("v_xor_b32 v9, v9, v1")
    a("v_lshlrev_b32 v1, 4, v9")
    a("v_add_u32 v245, v8, v1")
    a("v_xor_b32 v9, 2, v9")
    a("v_lshlrev_b32 v1, 4, v9")
    a("v_add_u32 v246, v8, v1")
    a("v_add_u32 v246, 512, v246")
    a("v_and_b32 v3, 15, v0")
    a("v_lshrrev_b32 v4, 4, v0")
    a("v_and_b32 v5, 7, v3")
    a("v_xor_b32 v5, v5, v4")
    a("v_lshlrev_b32 v7, 7, v3")
    a(f"v_add_u32 v7, s59, v7")
    a("v_lshlrev_b32 v8, 4, v5")
    a("v_add_u32 v247, v7, v8")
    a("v_xor_b32 v8, 64, v8")
    a("v_add_u32 v248, v7, v8")
    a("v_lshlrev_b32 v249, 4, v0")
    a("v_add_u32 v249, s59, v249")
    a("v_lshrrev_b32 v3, 3, v0")
    a("v_and_b32 v4, 7, v0")
    a("v_xor_b32 v4, v4, v3")
    a("v_lshlrev_b32 v4, 4, v4")
    a("v_lshlrev_b32 v3, 12, v3")
    a("v_add_u32 v250, v3, v4")
    a("v_and_b32 v7, 31, v0")
    a("v_lshlrev_b32 v7, 2, v7")
    a("v_lshrrev_b32 v8, 5, v0")
    a("v_lshlrev_b32 v9, 9, v8")
    a("v_add_u32 v9, v7, v9")
    a(f"v_add_u32 v{VT}, s{S_STG}, v9")
    a("v_and_b32 v3, 31, v0")
    a("v_mul_u32_u24 v4, 80, v3")
    a("v_lshlrev_b32 v5, 4, v8")
    a("v_add_u32 v4, v4, v5")
    a(f"s_mul_i32 s{S_TMP}, s{S_HALF}, {80*16}")
    a(f"s_sub_u32 s{S_TMP}, s{S_U}, s{S_TMP}")
    a(f"s_add_u32 s{S_TMP}, s{S_TMP}, {80*16}")
    a(f"v_add_u32 v{VB}, s{S_TMP}, v4")
    a(f"s_mul_i32 s{S_TMP}, s{S_CHL}, {XCH}")
    a(f"s_lshl_b32 s{S_TMP2}, s{S_HALF}, 12")
    a("v_lshlrev_b32 v4, 4, v0")
    a(f"v_add_u32 v4, s{S_TMP}, v4")
    a(f"v_add_u32 v{XW}, s{S_TMP2}, v4")
    a(f"s_xor_b32 s{S_TMP2}, s{S_TMP2}, 4096")
    a(f"v_add_u32 v{XR}, s{S_TMP2}, v4")
    a("v_and_b32 v3, 31, v0")
    a("v_lshrrev_b32 v8, 5, v0")
    a("v_mul_u32_u24 v7, 80, v3")
    a("v_lshlrev_b32 v5, 4, v8")
    a("v_add_u32 v7, v7, v5")
    a(f"s_mul_i32 s{S_TMP}, s{S_HALF}, {80*32}")
    a(f"s_add_u32 s{S_TMP}, s{S_TMP}, s{S_U}")
    a(f"s_add_u32 s{S_TMP}, s{S_TMP}, {80*31}")
    a(f"v_add_u32 v{UR}, s{S_TMP}, v7")
    a("v_lshlrev_b32 v7, 6, v3")
    a("v_add_u32 v7, v7, v5")
    a(f"s_mul_i32 s56, s{S_CHL}, {XCH}")
    a(f"s_lshl_b32 s{S_TMP}, s{S_HALF}, 11")
    a(f"s_add_u32 s56, s56, s{S_TMP}")
    a("s_add_u32 s56, s56, 8192")
    a(f"v_add_u32 v{ATO}, s56, v7")
    a(f"s_lshl_b32 s{S_TMP}, s{S_HALF}, 8")
    a(f"v_add_u32 v3, s{S_TMP}, v0")
    a("s_mov_b32 s53, 52429")
    for ii in range(4):
        a("v_mul_u32_u24 v4, s53, v3")
        a("v_lshrrev_b32 v4, 18, v4")
        a("v_mul_u32_u24 v5, 5, v4")
        a("v_sub_u32 v5, v3, v5")
        a("v_subrev_u32 v4, 31, v4")
        a("v_lshlrev_b32 v7, 6, v4")
        a("v_lshlrev_b32 v8, 4, v5")
        a("v_add_u32 v7, v7, v8")
        a("v_cmp_gt_u32 vcc, 64, v4")
        a("v_cmp_gt_u32 s[56:57], 4, v5") if False else a("v_cmp_gt_u32 s[40:41], 4, v5")
        a("s_and_b64 vcc, vcc, s[40:41]")
        a("v_mov_b32 v8, 0x80000000")
        a("s_nop 0")
        a(f"v_cndmask_b32 v{UD+ii}, v8, v7, vcc")
        if ii < 3: a("v_add_u32 v3, 64, v3")
    a(f"s_mul_i32 s{S_TMP}, s{S_CHL}, {2*STG}")
    a("v_and_b32 v3, 31, v0")
    a("v_lshlrev_b32 v3, 2, v3")
    a(f"v_add_u32 v3, s{S_TMP}, v3")
    a("v_cmp_gt_u32 vcc, 32, v0")
    r1 = [8*128, 8*128, 16*128, 17*128, 17*128, 17*128, 18*128, 8*128+4]
    for i in range(8):
        a(f"v_mov_b32 v4, {r1[i]}")
        a(f"v_mov_b32 v5, {i*128}")
        a("v_cndmask_b32 v4, v4, v5, vcc")
        a(f"v_add_u32 v{TA+i}, v3, v4")
    a("v_cmp_eq_u32 s[40:41], 32, v0")
    a("v_mov_b32 v4, 1024")
    a("v_mov_b32 v5, 892")
    a("v_cndmask_b32 v4, v4, v5, vcc")
    a("v_mov_b32 v5, 1020")
    a("v_cndmask_b32 v4, v4, v5, s[40:41]")
    a(f"v_add_u32 v{TA+8}, v3, v4")
    a(f"v_lshlrev_b32 v{TB}, 2, v0")
    a(f"v_add_u32 v{TB}, s{S_TMP}, v{TB}")
    a(f"s_lshl_b32 s{S_TMP}, s{S_HALF}, 7")
    a(f"v_add_u32 v{VM}, s{S_TMP}, v0")
    a(f"v_lshlrev_b32 v{KCW}, 4, v{VM}")
    a(f"s_add_u32 s{S_TMP}, s{S_KC}, 64")
    a(f"v_add_u32 v{KCW}, s{S_TMP}, v{KCW}")
    if lateparam: param_loads()
    if pf == 2:
        NPF = 12
        a(f"s_load_dwordx4 s[28:31], s[0:1], {KA['wg']}")
        a(f"s_load_dwordx2 s[36:37], s[0:1], {KA['u']}")
        a("s_lshr_b32 s93, s2, 3")
        a("s_lshl_b32 s93, s93, 2")
        a(f"s_add_u32 s93, s93, s{S_W}")
        a("s_and_b32 s94, s2, 7")
        a("s_lshr_b32 s95, s94, 1")
        a("s_lshr_b32 s96, s95, 1")
        a("s_mul_i32 s96, s96, 7")
        a("s_and_b32 s95, s95, 1")
        a("s_lshl_b32 s95, s95, 2")
        a("s_add_u32 s95, s95, s96")
        a("s_lshl_b32 s95, s95, 8")
        a("s_lshr_b32 s96, s93, 1")
        a("s_add_u32 s96, s96, 96")
        a("s_mul_i32 s96, s96, 3584")
        a("s_add_u32 s95, s95, s96")
        a("v_lshlrev_b32 v3, 4, v0")
        a("v_lshrrev_b32 v4, 3, v0")
        a("v_mul_u32_u24 v4, 896, v4")
        a("v_and_b32 v5, 7, v0")
        a("v_lshlrev_b32 v5, 4, v5")
        a("v_add_u32 v4, v4, v5")
        a("s_and_b32 s94, s94, 1")
        a(f"s_mul_i32 s94, s94, {1024*896}")
        a("s_waitcnt lgkmcnt(0)")
        a("s_and_b32 s96, s93, 1")
        a("s_cmp_eq_u32 s96, 0")
        a("s_cselect_b32 s32, s28, s30")
        a("s_cselect_b32 s33, s29, s31")
        a(f"s_mov_b32 s34, {448*1792*2}"); a("s_mov_b32 s35, 0x20000")
        a(f"s_mov_b32 s38, {2048*448*2}"); a("s_mov_b32 s39, 0x20000")
        for i in range(6):
            a(f"buffer_load_dwordx4 v[80:83], v3, s[32:35], s95 offen")
            a(f"s_add_u32 s95, s95, {56*3584}")
            a(f"s_add_u32 s96, s93, {112*i}")
            a("s_lshr_b32 s97, s96, 7")
            a("s_and_b32 s96, s96, 127")
            a(f"s_mul_i32 s96, s96, {8*896}")
            a("s_lshl_b32 s97, s97, 7")
            a("s_add_u32 s96, s96, s97")
            a("s_add_u32 s96, s96, s94")
            a("s_add_u32 s96, s96, 256")
            if i == 5:
                a("s_cmp_ge_u32 s97, 640")
                a(f"s_cselect_b32 s96, {2048*448*2}, s96")
            a(f"buffer_load_dwordx4 v[84:87], v4, s[36:39], s96 offen")
    a("s_waitcnt lgkmcnt(0)")
    for r in (S_LDT, S_DSK):
        a(f"s_lshl_b32 s{S_TMP}, s{r}, 16")
        a(f"s_and_b32 s{S_TMP2}, s{r}, 0xffff0000")
        a(f"s_cmp_eq_u32 s{S_CHL}, 0")
        a(f"s_cselect_b32 s{r}, s{S_TMP}, s{S_TMP2}")
    a(f"v_mov_b32 v6, s{S_LDT}")
    a("v_mul_f32 v7, 0x3fb8aa3b, v6")
    a("s_mov_b32 s53, 0x3fb8aa3b")
    a("v_fma_f32 v8, v6, s53, -v7")
    a("v_fmac_f32 v8, 0x32a57060, v6")
    a("v_exp_f32 v7, v7")
    a("v_mul_f32 v8, 0x3f317218, v8")
    a("s_nop 0")
    a("v_fmac_f32 v7, v7, v8")
    a("v_cvt_pk_bf16_f32 v7, v7, v7")
    a("v_lshlrev_b32 v6, 16, v7")
    st.stamp()
    a(f"s_waitcnt vmcnt({NPF + (0 if latetile else 0)})")
    st.stamp()
    if latetile: tile_dma(251)
    a("s_mov_b32 s54, 0xffff0000")
    for p in range(2):
        def ex(dst, src):
            if p == 0: a(f"v_lshlrev_b32 v{dst}, 16, v{src}")
            else: a(f"v_and_b32 v{dst}, s54, v{src}")
        ex(24, 10); ex(25, 11); ex(26, 12); ex(27, 13); ex(28, 14); ex(29, 15)
        a("v_mul_f32 v24, v6, v24")
        a("v_mul_f32 v25, v6, v25")
        a("v_mul_f32 v26, v6, v26")
        a("v_mul_f32 v27, v6, v27")
        wr, wi = 16+2*p, 17+2*p
        a(f"v_mul_f32 v{wr}, v28, v26")
        a(f"v_fma_f32 v{wr}, -v29, v27, v{wr}")
        a(f"v_mul_f32 v{wi}, v28, v27")
        a(f"v_fmac_f32 v{wi}, v29, v26")
        a(f"v_mul_f32 v{20+2*p}, 0x3fb8aa3b, v24")
        a(f"v_mul_f32 v{21+2*p}, 0.15915494, v25")
        a(f"v_mul_f32 v30, 0x45000000, v{20+2*p}")
        a("v_max_f32 v30, 0, v30")
        a("v_exp_f32 v30, v30")
        a(f"v_max_f32 v31, |v{wr}|, |v{wi}|")
        if p == 0: a("v_mul_f32 v9, v30, v31")
        else:
            a("v_mul_f32 v30, v30, v31")
            a("v_max_f32 v9, v9, v30")
    for ctrl in ("row_shr:1", "row_shr:2", "row_shr:4", "row_shr:8", "row_bcast:15 row_mask:0xa", "row_bcast:31 row_mask:0xc"):
        a("s_nop 1")
        if "row_mask" in ctrl: a(f"v_max_f32_dpp v9, v9, v9 {ctrl} bank_mask:0xf")
        else: a(f"v_max_f32_dpp v9, v9, v9 {ctrl} row_mask:0xf bank_mask:0xf")
    a("s_nop 1")
    a(f"v_readlane_b32 s{S_TMP}, v9, 63")
    a("s_nop 3")
    a(f"s_lshr_b32 s{S_TMP}, s{S_TMP}, 23")
    a(f"s_max_u32 s{S_TMP}, s{S_TMP}, 8")
    a(f"s_min_u32 s{S_TMP}, s{S_TMP}, 254")
    a(f"s_sub_u32 s{S_SC}, 261, s{S_TMP}")
    a(f"s_lshl_b32 s{S_SC}, s{S_SC}, 23")
    a(f"s_sub_u32 s{S_ISC}, s{S_TMP}, 7")
    a(f"s_lshl_b32 s{S_ISC}, s{S_ISC}, 23")
    def vpass(p, mid=None):
        e2, ph = 20+2*p, 21+2*p
        def polar(r, i, ni, mult):
            if mult == 1:
                a(f"v_exp_f32 v40, v{e2}")
                a(f"v_fract_f32 v41, v{ph}")
            else:
                a(f"v_mul_f32 v40, {mult}, v{e2}")
                a(f"v_mul_f32 v41, {mult}, v{ph}")
                a(f"v_exp_f32 v40, v40")
                a(f"v_fract_f32 v41, v41")
            a(f"v_cos_f32 v42, v41")
            a(f"v_sin_f32 v43, v41")
            a("s_nop 0")
            a(f"v_mul_f32 v{r}, v40, v42")
            a(f"v_mul_f32 v{i}, v40, v43")
            a(f"v_sub_f32 v{ni}, 0, v{i}")
        polar(24, 25, 26, 1)
        polar(33, 34, 35, "0x43800000")
        polar(36, 37, 38, "0x41000000")
        cmul(a, 27, 28, 24, 25, 24, 25, 26); a("v_sub_f32 v29, 0, v28")
        cmul(a, 30, 31, 27, 28, 27, 28, 29); a("v_sub_f32 v32, 0, v31")
        wr, wi = 16+2*p, 17+2*p
        def put(idx, r, i):
            a(f"v_cvt_pk_f16_f32 v{PK[p]+idx}, v{r}, v{i}")
        Gc = (33, 35, 34); z2c = (27, 29, 28); z4c = (30, 32, 31); zc = (24, 26, 25)
        a(f"v_mul_f32 v48, s{S_SC}, v{wr}")
        a(f"v_mul_f32 v49, s{S_SC}, v{wi}")
        a("v_sub_f32 v49, 0, v49")
        put(0, 48, 49)
        cur = (48, 49); bufs = [(44, 45), (46, 47)]
        for row in range(1, 8):
            nx = bufs[row % 2]
            cmul(a, nx[0], nx[1], cur[0], cur[1], *zc); cur = nx
            put(row, *cur)
        cmul(a, 50, 51, 48, 49, *Gc); put(8, 50, 51)
        cmul(a, 44, 45, 50, 51, *z2c); put(16, 44, 45)
        cmul(a, 46, 47, 44, 45, *z2c); put(17, 46, 47)
        cmul(a, 44, 45, 46, 47, *z2c); put(18, 44, 45)
        cmul(a, 48, 49, 50, 51, *Gc); put(9, 48, 49)
        cmul(a, 44, 45, 48, 49, *z4c); put(19, 44, 45)
        cmul(a, 50, 51, 48, 49, *Gc); put(10, 50, 51)
        cmul(a, 44, 45, 50, 51, *z4c); put(20, 44, 45)
        cur = (50, 51); other = (48, 49)
        for row in range(11, 16):
            cmul(a, other[0], other[1], cur[0], cur[1], *Gc)
            cur, other = other, cur
            put(row, *cur)
        if mid: mid()
        a(f"v_mov_b32 v{PK[p]+21}, 0x3c00")
        put(22, 36, 37)
        cur = (36, 37)
        for j in range(2, 32):
            nx = bufs[j % 2]
            cmul(a, nx[0], nx[1], cur[0], cur[1], 36, 37, 38); cur = nx
            put(21 + j, *cur)
    FA = [24, PK[0]]; FBk = [56, PK[0] + 32]
    def writes(p):
        return [f"ds_write_addtid_b32 v{PK[p]+row} offset:{row*ESTR}" for row in range(21)] + \
               [f"ds_write_addtid_b32 v{PK[p]+21+row} offset:{FOFF + row*ESTR}" for row in range(32)]
    def freads(p):
        R = []
        for kk in range(8):
            R.append(f"ds_read_b128 v[{FA[p]+4*kk}:{FA[p]+4*kk+3}], v{RA} offset:{32*kk}")
            R.append(f"ds_read_b128 v[{FBk[p]+4*kk}:{FBk[p]+4*kk+3}], v{RA} offset:{FOFF + 32*kk}")
        return R
    def mf(p, kk):
        c = "0" if (p == 0 and kk == 0) else f"v[{D}:{D+15}]"
        return f"v_mfma_f32_32x32x16_f16 v[{D}:{D+15}], v[{FA[p]+4*kk}:{FA[p]+4*kk+3}], v[{FBk[p]+4*kk}:{FBk[p]+4*kk+3}], {c}"
    def ldspass(p):
        a(f"s_mov_b32 m0, s{S_STG}")
        a("s_nop 0")
        for l in writes(p): a(l)
        for l in freads(p): a(l)
        for kk in range(8):
            a(f"s_waitcnt lgkmcnt({14 - 2*kk})")
            a(mf(p, kk))
    def uflag():
        a("s_waitcnt vmcnt(0)")
        a("s_barrier")
        a(f"s_cmp_lg_u32 s{S_W}, 0")
        a("s_cbranch_scc1 side_uflagged")
        wait_tag(a, "side_wr", P_DBG, 53, 57, 1, 2)
        a("s_lshr_b32 s57, s2, 5")
        a("s_lshl_b32 s57, s57, 5")
        a(f"s_add_u32 s57, s57, {L_U}")
        a("s_lshl_b32 s57, s57, 7")
        a("s_and_b32 s58, s2, 31")
        a("s_lshl_b32 s58, s58, 2")
        a("s_add_u32 s57, s57, s58")
        set_flags(a, SRD_F, 57, 53, 32, 128, 1, 2)
        a.label("side_uflagged")
    vpass(0)
    a("s_waitcnt vmcnt(0)" if not NPF else f"s_waitcnt vmcnt(0)")
    a("s_barrier")
    for o in range(2):
        a(f"ds_read_b64_tr_b16 v[{56+4*o}:{57+4*o}], v245 offset:{o*4096}")
        a(f"ds_read_b64_tr_b16 v[{58+4*o}:{59+4*o}], v246 offset:{o*4096}")
    srd_from(a, SRD_UT, P_WS, SZ_UT, WS_UT)
    a("s_waitcnt lgkmcnt(0)")
    a("s_barrier")
    a("ds_write_b128 v247, v[56:59]")
    a("ds_write_b128 v248, v[60:63]")
    a("s_lshr_b32 s57, s2, 5")
    a("s_lshl_b32 s57, s57, 6")
    a(f"s_lshl_b32 s58, s{S_W}, 4")
    a("s_add_u32 s57, s57, s58")
    a("s_lshl_b32 s57, s57, 12")
    a("s_and_b32 s58, s2, 31")
    a("s_lshl_b32 s58, s58, 7")
    a("s_add_u32 s57, s57, s58")
    a("s_waitcnt lgkmcnt(0)")
    a("ds_read_b128 v[56:59], v249")
    a("ds_read_b128 v[60:63], v249 offset:1024")
    a("s_waitcnt lgkmcnt(1)")
    a(f"buffer_store_dwordx4 v[56:59], v250, s[{SRD_UT}:{SRD_UT+3}], s57 offen sc1")
    a("s_add_u32 s57, s57, 32768")
    a("s_waitcnt lgkmcnt(0)")
    a(f"buffer_store_dwordx4 v[60:63], v250, s[{SRD_UT}:{SRD_UT+3}], s57 offen sc1")
    if p0early: ldspass(0)
    vpass(1, uflag)
    st.stamp()
    a(f"s_cmp_lg_u32 s{S_W}, 0")
    a("s_cbranch_scc1 side_uready")
    a(f"s_add_u32 s57, s{s_cp}, {L_U}")
    a("s_lshl_b32 s57, s57, 7")
    wait_flags(a, "side_wu", SRD_F, 57, 32, 53, S_TMP, 58, 1, 2, sleep=sleep)
    a.label("side_uready")
    a("s_barrier")
    a(f"s_lshl_b32 s{S_TMP2}, s{S_D}, 12")
    a(f"s_lshl_b32 s55, s{S_HALF}, 12")
    a(f"s_add_u32 s55, s55, s{S_U}")
    for ii in range(4):
        a(f"s_add_u32 m0, s55, {ii*1024}")
        a("s_nop 0")
        a(f"buffer_load_dwordx4 v{UD+ii}, s[{SRD_UT}:{SRD_UT+3}], s{S_TMP2} offen sc1 lds")
    def do_gate():
        a(f"s_cmp_lg_u32 s{S_W}, 0")
        a("s_cbranch_scc1 side_gated")
        a(f"s_add_u32 s57, s2, {L_M}")
        a("s_lshl_b32 s57, s57, 7")
        wait_flags(a, "side_wm", SRD_F, 57, 1, 53, S_TMP, 58, 1, 2, sleep=sleep)
        a.label("side_gated")
        a("s_barrier")
    if gate and not lategate: do_gate()
    st.stamp()
    if p0early:
        ldspass(1)
    else:
        a(f"s_mov_b32 m0, s{S_STG}")
        a("s_nop 0")
        for l in writes(0): a(l)
        for l in freads(0): a(l)
        W1 = writes(1)
        for l in W1[:15]: a(l)
        a("s_waitcnt lgkmcnt(15)")
        W1 = W1[15:]
        for kk in range(8):
            a(mf(0, kk))
            for l in W1[:5]: a(l)
            W1 = W1[5:]
        for l in W1: a(l)
        for l in freads(1): a(l)
        for kk in range(8):
            a(f"s_waitcnt lgkmcnt({14 - 2*kk})")
            a(mf(1, kk))
    a("s_nop 15")
    a("s_nop 3")
    for r in range(12):
        q, rr = r // 4, r % 4
        a(f"v_mul_f32 v{D+r}, s{S_ISC}, v{D+r}")
        a(f"ds_write_b32 v{VT}, v{D+r} offset:{(8*q + rr)*128}")
    a("s_waitcnt lgkmcnt(0)")
    a("s_barrier")
    st.stamp()
    a(f"s_cmp_eq_u32 s{S_HALF}, 0")
    a("s_cbranch_scc0 side_exp_h1")
    for i in range(9):
        a(f"ds_read_b32 v{24+i}, v{TA+i}")
        a(f"ds_read_b32 v{40+i}, v{TA+i} offset:{STG}")
    for i, o in enumerate((1024+128, 2432, 1024+132)):
        a(f"ds_read_b32 v{33+i}, v{TB} offset:{o}")
        a(f"ds_read_b32 v{49+i}, v{TB} offset:{o+STG}")
    a("v_cmp_eq_u32 vcc, 0, v0")
    a("v_mov_b32 v11, 0")
    a("s_waitcnt lgkmcnt(0)")
    for i in range(12):
        a(f"v_add_f32 v{24+i}, v{24+i}, v{40+i}")
    a(f"v_cndmask_b32 v32, v32, v11, vcc")
    for i in range(4):
        a(f"v_cvt_pk_bf16_f32 v{40+i}, v{24+2*i}, v{24+2*i+1}")
    a(f"v_cvt_pk_bf16_f32 v44, v32, v24")
    for i in range(1, 4):
        a(f"v_cvt_pk_bf16_f32 v{44+i}, v{24+2*i-1}, v{24+2*i}")
    a("v_cvt_pk_bf16_f32 v48, v33, v33")
    a("v_cvt_pk_bf16_f32 v49, v33, v34")
    a("v_cvt_pk_bf16_f32 v50, v34, v34")
    a("v_cvt_pk_bf16_f32 v51, v35, v35")
    a("v_mov_b32 v52, v48")
    a("v_mov_b32 v53, v48")
    a("v_mov_b32 v54, v50")
    a("v_cvt_pk_bf16_f32 v55, v34, v35")
    a("s_branch side_exp_join")
    a.label("side_exp_h1")
    o = 1024 + 4*96
    for sl in range(2):
        a(f"ds_read_b32 v{24+2*sl}, v{TB} offset:{o + 256*sl}")
        a(f"ds_read_b32 v{40+2*sl}, v{TB} offset:{o + 256*sl + STG}")
        a(f"ds_read_b32 v{25+2*sl}, v{TB} offset:{o + 256*sl + 4}")
        a(f"ds_read_b32 v{41+2*sl}, v{TB} offset:{o + 256*sl + 4 + STG}")
    a("v_and_b32 v11, 1, v0")
    a("v_cmp_eq_u32 vcc, 0, v11")
    a("s_waitcnt lgkmcnt(0)")
    for i in range(4):
        a(f"v_add_f32 v{24+i}, v{24+i}, v{40+i}")
    for sl in range(2):
        f0, f8 = 24+2*sl, 25+2*sl
        o0 = 40 + 8*sl
        a(f"v_cndmask_b32 v12, v{f8}, v{f0}, vcc")
        a(f"v_cvt_pk_bf16_f32 v{o0}, v{f0}, v{f0}")
        a(f"v_cvt_pk_bf16_f32 v{o0+3}, v{f8}, v{f8}")
        a(f"v_cvt_pk_bf16_f32 v{o0+2}, v12, v{f8}")
        a(f"v_cvt_pk_bf16_f32 v{o0+6}, v{f0}, v12")
        a(f"v_mov_b32 v{o0+1}, v{o0}")
        a(f"v_mov_b32 v{o0+4}, v{o0}")
        a(f"v_mov_b32 v{o0+5}, v{o0}")
        a(f"v_mov_b32 v{o0+7}, v{o0+3}")
    a.label("side_exp_join")
    a("s_barrier")
    a(f"s_cmp_eq_u32 s{S_HALF}, 0")
    a("s_cbranch_scc0 side_nozero")
    a("v_lshrrev_b32 v10, 3, v0")
    a("v_and_b32 v11, 7, v0")
    a(f"v_mul_u32_u24 v10, {CPSZ}, v10")
    a("v_lshlrev_b32 v12, 4, v11")
    a("v_add_u32 v10, v10, v12")
    a(f"v_add_u32 v10, s{S_KC}, v10")
    a("v_mov_b32 v56, 0"); a("v_mov_b32 v57, 0"); a("v_mov_b32 v58, 0"); a("v_mov_b32 v59, 0")
    a("v_cmp_gt_u32 vcc, 5, v11")
    a("v_cmp_gt_u32 s[40:41], 32, v0")
    a("s_and_b64 vcc, vcc, s[40:41]")
    a("s_and_saveexec_b64 s[40:41], vcc")
    a("ds_write_b128 v10, v[56:59]")
    a("s_mov_b64 exec, s[40:41]")
    a.label("side_nozero")
    for sl in range(2):
        o0 = 40 + 8*sl; ob = 1024*sl
        a(f"ds_write_b128 v{KCW}, v[{o0}:{o0+3}] offset:{ob}")
        a(f"ds_write_b128 v{KCW}, v[{o0+4}:{o0+7}] offset:{ob + CPSZ}")
    a(f"v_add_u32 v11, {2*CPSZ+4}, v{KCW}")
    a(f"v_add_u32 v12, {3*CPSZ+4}, v{KCW}")
    for sl in range(2):
        o0 = 40 + 8*sl
        if sl == 1:
            a("v_add_u32 v11, 1024, v11"); a("v_add_u32 v12, 1024, v12")
        a(f"ds_write2_b32 v11, v{o0}, v{o0+1} offset0:0 offset1:1")
        a(f"ds_write2_b32 v11, v{o0+2}, v{o0+3} offset0:2 offset1:3")
        a(f"ds_write2_b32 v12, v{o0+4}, v{o0+5} offset0:0 offset1:1")
        a(f"ds_write2_b32 v12, v{o0+6}, v{o0+7} offset0:2 offset1:3")
    a("s_waitcnt vmcnt(0) lgkmcnt(0)")
    if gate and lategate: do_gate()
    else: a("s_barrier")
    if sprio: a(f"s_setprio {sprio}")
    st.stamp()
    ACC0, ACC1 = 96, 112
    FB = [24, 40, 56]
    steps = [(dl, s) for dl in range(16) for s in range(2)]
    def reads(i):
        dl, s = steps[i]; fb = FB[i % 3]
        base = 64*dl + 40 - 32*s
        return [f"ds_read_b128 v[{fb+8}:{fb+11}], v{VB} offset:{80*(15-dl) + 32*s}",
                f"ds_read_b64_tr_b16 v[{fb}:{fb+1}], v{VA} offset:{base}",
                f"ds_read_b64_tr_b16 v[{fb+2}:{fb+3}], v{VA} offset:{base - 8}",
                f"ds_read_b128 v[{fb+12}:{fb+15}], v{VB} offset:{80*(15-dl) + 32*s + 2560}",
                f"ds_read_b64_tr_b16 v[{fb+4}:{fb+5}], v{VA} offset:{base + 2048}",
                f"ds_read_b64_tr_b16 v[{fb+6}:{fb+7}], v{VA} offset:{base + 2048 - 8}"]
    for r in reads(0): a(r)
    for r in reads(1): a(r)
    n = len(steps)
    for i in range(n):
        fb = FB[i % 3]
        a(f"s_waitcnt lgkmcnt({6 if i + 1 < n else 0})")
        R = reads(i + 2) if i + 2 < n else []
        c0 = "0" if i == 0 else f"v[{ACC0}:{ACC0+15}]"
        c1 = "0" if i == 0 else f"v[{ACC1}:{ACC1+15}]"
        a(f"v_mfma_f32_32x32x16_bf16 v[{ACC0}:{ACC0+15}], v[{fb}:{fb+3}], v[{fb+8}:{fb+11}], {c0}")
        for r in R[:2]: a(r)
        a(f"v_mfma_f32_32x32x16_bf16 v[{ACC1}:{ACC1+15}], v[{fb}:{fb+3}], v[{fb+12}:{fb+15}], {c1}")
        for r in R[2:4]: a(r)
        a(f"v_mfma_f32_32x32x16_bf16 v[{ACC1}:{ACC1+15}], v[{fb+4}:{fb+7}], v[{fb+8}:{fb+11}], v[{ACC1}:{ACC1+15}]")
        for r in R[4:]: a(r)
    st.stamp()
    if sprio: a("s_setprio 0")
    a("s_nop 15")
    a("s_barrier")
    a(f"s_cmp_eq_u32 s{S_HALF}, 0")
    a("s_cbranch_scc0 side_x_h1")
    for q in range(4):
        a(f"ds_write_b128 v{XW}, v[{ACC1+4*q}:{ACC1+4*q+3}] offset:{q*1024}")
    a("s_branch side_x_j")
    a.label("side_x_h1")
    for q in range(4):
        a(f"ds_write_b128 v{XW}, v[{ACC0+4*q}:{ACC0+4*q+3}] offset:{q*1024}")
    for r in range(16):
        a(f"v_mov_b32 v{ACC0+r}, v{ACC1+r}")
    a.label("side_x_j")
    a("s_mov_b32 s54, 0xffff0000")
    a(f"s_lshl_b32 s{S_TMP}, s{S_D}, 12")
    a(f"s_lshl_b32 s{S_TMP2}, s{S_HALF}, 11")
    a(f"s_add_u32 s{S_TMP}, s{S_TMP}, s{S_TMP2}")
    a("s_waitcnt lgkmcnt(0)")
    a("s_barrier")
    for q in range(4):
        a(f"ds_read_b128 v[{24+4*q}:{27+4*q}], v{XR} offset:{q*1024}")
    for Q in range(2):
        a(f"ds_read_b128 v[{40+4*Q}:{43+4*Q}], v{UR} offset:{32*Q}")
    a("s_waitcnt lgkmcnt(2)")
    for r in range(16):
        a(f"v_add_f32 v{24+r}, v{24+r}, v{ACC0+r}")
    a("s_waitcnt lgkmcnt(0)")
    for Q in range(2):
        ob = 72 + 4*Q
        for i in range(4):
            y0 = 24 + 8*Q + 2*i
            a(f"v_cvt_pk_bf16_f32 v64, v{y0}, v{y0+1}")
            a(f"v_lshlrev_b32 v65, 16, v{40+4*Q+i}")
            a(f"v_and_b32 v66, s54, v{40+4*Q+i}")
            a(f"v_mul_f32 v65, s{S_DSK}, v65")
            a(f"v_mul_f32 v66, s{S_DSK}, v66")
            a(f"v_cvt_pk_bf16_f32 v65, v65, v66")
            a(f"v_lshlrev_b32 v66, 16, v64")
            a(f"v_and_b32 v64, s54, v64")
            a(f"v_lshlrev_b32 v67, 16, v65")
            a(f"v_and_b32 v65, s54, v65")
            a(f"v_add_f32 v66, v66, v67")
            a(f"v_add_f32 v64, v64, v65")
            a(f"v_cvt_pk_bf16_f32 v{ob+i}, v66, v64")
        a(f"ds_write_b128 v{ATO}, v[{ob}:{ob+3}] offset:{32*Q}")
    a("v_lshlrev_b32 v10, 4, v0")
    a(f"v_add_u32 v11, s56, v10")
    a("s_waitcnt lgkmcnt(0)")
    for i in range(2):
        a(f"ds_read_b128 v[{24+4*i}:{27+4*i}], v11 offset:{1024*i}")
    for i in range(2):
        a(f"s_waitcnt lgkmcnt({1-i})")
        a(f"buffer_store_dwordx4 v[{24+4*i}:{27+4*i}], v10, s[{SRD_AT}:{SRD_AT+3}], s{S_TMP} offen offset:{1024*i} sc1")
    a("s_waitcnt vmcnt(0)")
    st.stamp()
    a("s_barrier")
    a(f"s_cmp_lg_u32 s{S_W}, 0")
    a("s_cbranch_scc1 side_done")
    a(f"s_lshr_b32 s{S_TMP}, s{s_cp}, 5")
    a(f"s_add_u32 s{S_TMP}, s{S_TMP}, {L_A}")
    a(f"s_lshl_b32 s{S_TMP}, s{S_TMP}, 7")
    a(f"s_and_b32 s{S_TMP2}, s{s_cp}, 31")
    a(f"s_lshl_b32 s{S_TMP2}, s{S_TMP2}, 2")
    a(f"s_add_u32 s{S_TMP}, s{S_TMP}, s{S_TMP2}")
    set_flags(a, SRD_F, S_TMP, 53, 32, 896, 10, 11)
    a.label("side_done")
    dbg_event(a, 6)
    st.stamp(real=True)
    st.flush(S_W)
```

```python
from asmlib import *

def aux(a, st, s_ax, s_k, s_j, mshift=0, wdpf=True, publish=None):
    S_W = 4; S_T0 = 5
    SRD_X = 8; SRD_GW = 12; SRD_G = 20; SRD_F = 52
    S_TMP = 24; S_TMP2 = 25
    P0 = 28
    a.c("---- aux role (gate) ----")
    a(f"s_lshl_b32 s{S_T0}, s{s_ax}, 6")
    a(f"s_load_dwordx2 s[{P0}:{P0+1}], s[0:1], {KA['u']}")
    a(f"s_load_dwordx2 s[{P0+2}:{P0+3}], s[0:1], {KA['ws']}")
    a(f"s_load_dwordx2 s[{P0+4}:{P0+5}], s[0:1], {KA['gw']}")
    a(f"s_load_dwordx2 s[{P0+6}:{P0+7}], s[0:1], {KA['dbg']}")
    a("v_lshrrev_b32 v10, 4, v0")
    a("v_lshrrev_b32 v11, 3, v0")
    a("v_mul_u32_u24 v11, 896, v11")
    a("v_and_b32 v12, 7, v0")
    a("v_xor_b32 v13, v12, v10")
    a("v_lshlrev_b32 v13, 4, v13")
    a("v_add_u32 v2, v11, v13")
    a("v_xor_b32 v13, 64, v13")
    a("v_add_u32 v3, v11, v13")
    a(f"v_add_u32 v3, {8*896 - 1024}, v3")
    a("v_lshlrev_b32 v4, 4, v0")
    a(f"s_lshl_b32 s{S_TMP}, s{S_W}, 4")
    a(f"s_add_u32 s{S_TMP2}, s{S_T0}, s{S_TMP}")
    a(f"s_mul_i32 s26, s{S_TMP2}, 896")
    a(f"s_lshl_b32 s27, s{S_W}, 11")
    a("s_waitcnt lgkmcnt(0)")
    srd_from(a, SRD_X, P0, 2048*448*2)
    srd_from(a, SRD_GW, P0+4, 448*2)
    for k in range(7):
        a(f"s_add_u32 m0, s27, {k*8192}")
        a(f"s_add_u32 s{S_TMP}, s26, {128*k}")
        a(f"buffer_load_dwordx4 v2, s[{SRD_X}:{SRD_X+3}], s{S_TMP} offen lds")
        a(f"buffer_load_dwordx4 v3, s[{SRD_X}:{SRD_X+3}], s{S_TMP} offen offset:1024 lds")
    a(f"s_lshl_b32 s{S_TMP}, s{S_W}, 10")
    a(f"s_add_u32 m0, s{S_TMP}, 57344")
    a("s_nop 0")
    a(f"buffer_load_dwordx4 v4, s[{SRD_GW}:{SRD_GW+3}], 0 offen lds")
    a("v_lshrrev_b32 v10, 2, v0")
    a(f"s_lshl_b32 s26, s{S_W}, 4")
    a("v_add_u32 v10, s26, v10")
    a("v_lshrrev_b32 v11, 1, v10")
    a("v_and_b32 v11, 7, v11")
    a("v_and_b32 v12, 3, v0")
    a("v_lshlrev_b32 v14, 1, v12")
    a("v_xor_b32 v14, v14, v11")
    a("v_lshlrev_b32 v13, 7, v10")
    a("v_lshlrev_b32 v14, 4, v14")
    a("v_add_u32 v18, v13, v14")
    a("v_xor_b32 v14, 16, v14")
    a("v_add_u32 v19, v13, v14")
    a("v_lshlrev_b32 v17, 5, v12")
    a(f"s_add_u32 s{S_TMP}, s{S_TMP}, 57344")
    a(f"v_add_u32 v17, s{S_TMP}, v17")
    GW = 64; GX = 120
    if publish:
        a("v_mov_b32 v21, 0")
        publish(a, P0+6)
    if wdpf:
        a(f"s_load_dwordx2 s[44:45], s[0:1], {KA['wd']}")
        a(f"s_lshl_b32 s58, s{s_j}, 2")
        a(f"s_add_u32 s58, s58, s{S_W}")
        a("s_mul_i32 s58, s58, 100352")
        a("v_lshlrev_b32 v60, 4, v0")
        a("s_waitcnt lgkmcnt(0)")
        a(f"s_mov_b32 s46, {1792*448*2}"); a("s_mov_b32 s47, 0x20000")
    srd_from(a, SRD_G, P0+2, SZ_G, WS_G)
    srd_from(a, SRD_F, P0+2, SZ_F, WS_F)
    a(f"s_cmp_lg_u32 s{S_W}, 0")
    a("s_cbranch_scc1 aux_mf_done")
    wait_tag(a, "aux_wr", P0+6, 37, S_TMP2, 10, 11)
    a(f"s_sub_u32 s{S_TMP2}, s{s_j}, {mshift}")
    a(f"s_cmp_ge_u32 s{S_TMP2}, 28")
    a("s_cbranch_scc1 aux_mf_done")
    a(f"s_lshl_b32 s{S_TMP}, s{S_TMP2}, 3")
    a(f"s_add_u32 s{S_TMP}, s{S_TMP}, s{s_k}")
    a(f"s_add_u32 s{S_TMP}, s{S_TMP}, {L_M}")
    a(f"s_lshl_b32 s{S_TMP}, s{S_TMP}, 7")
    set_flags(a, SRD_F, S_TMP, 37, 1, 0, 10, 11)
    a.label("aux_mf_done")
    st.stamp()
    a("s_waitcnt vmcnt(0)")
    st.stamp()
    for k in range(7):
        a(f"ds_read_b128 v[{GX+8*k}:{GX+8*k+3}], v18 offset:{k*8192}")
        a(f"ds_read_b128 v[{GX+8*k+4}:{GX+8*k+7}], v19 offset:{k*8192}")
        a(f"ds_read_b128 v[{GW+8*k}:{GW+8*k+3}], v17 offset:{128*k}")
        a(f"ds_read_b128 v[{GW+8*k+4}:{GW+8*k+7}], v17 offset:{128*k+16}")
    a("s_waitcnt lgkmcnt(0)")
    a("v_mov_b32 v20, 0")
    a("v_mov_b32 v21, 0")
    a("s_mov_b32 s36, 0xffff0000")
    for k in range(7):
        for j in range(8):
            if wdpf and j % 4 == 0:
                for i in range(7):
                    a(f"buffer_load_dwordx4 v[{200+4*i}:{203+4*i}], v60, s[44:47], s58 offen")
                    a("s_add_u32 s58, s58, 1024")
            x = GX + 8*k + j; g = GW + 8*k + j
            acc = 20 + (j & 1)
            a(f"v_lshlrev_b32 v22, 16, v{x}")
            a(f"v_and_b32 v{x}, s36, v{x}")
            a(f"v_lshlrev_b32 v23, 16, v{g}")
            a(f"v_and_b32 v{g}, s36, v{g}")
            a(f"v_mul_f32 v22, v22, v23")
            a(f"v_mul_f32 v{x}, v{x}, v{g}")
            a(f"v_cvt_pk_bf16_f32 v22, v22, v{x}")
            a(f"v_lshlrev_b32 v23, 16, v22")
            a(f"v_and_b32 v22, s36, v22")
            a(f"v_add_f32 v20, v20, v23")
            a(f"v_add_f32 v20, v20, v22")
    a("s_nop 1")
    a("v_add_f32_dpp v20, v20, v20 quad_perm:[1,0,3,2] row_mask:0xf bank_mask:0xf")
    a("s_nop 1")
    a("v_add_f32_dpp v20, v20, v20 quad_perm:[2,3,0,1] row_mask:0xf bank_mask:0xf")
    a("v_cvt_pk_bf16_f32 v20, v20, v20")
    a("v_lshlrev_b32 v20, 16, v20")
    a("v_mul_f32 v20, 0xbfb8aa3b, v20")
    a("v_exp_f32 v20, v20")
    a("s_nop 0")
    a("v_add_f32 v20, 1.0, v20")
    a("v_rcp_f32 v20, v20")
    a("s_nop 0")
    a("v_cvt_pk_bf16_f32 v20, v20, v20")
    a("v_lshlrev_b32 v20, 16, v20")
    a("v_lshrrev_b32 v10, 2, v0")
    a("v_lshlrev_b32 v10, 2, v10")
    a(f"s_lshl_b32 s{S_TMP}, s{S_W}, 4")
    a(f"s_add_u32 s{S_TMP}, s{S_TMP}, s{S_T0}")
    a(f"s_lshl_b32 s{S_TMP}, s{S_TMP}, 2")
    a("v_and_b32 v11, 3, v0")
    a("v_cmp_eq_u32 vcc, 0, v11")
    a("s_and_saveexec_b64 s[38:39], vcc")
    a(f"buffer_store_dword v20, v10, s[{SRD_G}:{SRD_G+3}], s{S_TMP} offen sc1")
    a("s_mov_b64 exec, s[38:39]")
    a("s_waitcnt vmcnt(0)")
    st.stamp()
    a("s_barrier")
    a(f"s_cmp_lg_u32 s{S_W}, 0")
    a("s_cbranch_scc1 aux_done")
    a(f"s_mul_i32 s{S_TMP}, s{s_ax}, {7*128}")
    a(f"s_add_u32 s{S_TMP}, s{S_TMP}, 56")
    set_flags(a, SRD_F, S_TMP, 37, 7, 128, 10, 11)
    a.label("aux_done")
```

```python
from asmlib import *
import gemm1, gemm1b, aux2, side2, gemm2

def publish(a, s_dbg):
    a("s_cmp_lg_u32 s2, 224")
    a("s_cbranch_scc1 pub_skip")
    a("s_cmp_lg_u32 s4, 0")
    a("s_cbranch_scc1 pub_skip")
    a("s_memrealtime s[58:59]") if False else None
    a("s_memrealtime s[46:47]")
    a("s_waitcnt lgkmcnt(0)")
    a("s_or_b32 s46, s46, 1")
    a("v_mov_b32 v22, s46")
    a("s_mov_b64 exec, 1")
    a(f"global_store_dword v21, v22, s[{s_dbg}:{s_dbg+1}] sc1")
    a("s_mov_b64 exec, -1")
    a.label("pub_skip")

NIPF = 3
def fused(opts):
    stamps = opts.get("stamps", False)
    gemm2.SLEEP = opts.get('sleep', 2)
    gemm2.TWOPASS = bool(opts.get('tp', 0)); gemm2.EARLY_AREA = [8, 9, 4, 5, 6, 7] if gemm2.TWOPASS else [4, 5, 8, 9, 6, 7]
    gemm2.RESIDENT = (opts.get('np', 0) == 0)
    Stamps.ALLREAL = not opts.get('cyc')
    import asmlib; asmlib.DBGEV = bool(opts.get('dbgev'))
    a = Asm()
    st = Stamps(a, 60 if not stamps else 60, stamps)
    a("s_cmp_ge_u32 s2, 480")
    a("s_cbranch_scc1 f_exit")
    st.stamp(real=True); st.stamp()
    for _ in range(opts.get('dd0', 0)): a("s_sleep 32")
    if opts.get("mainfirst", 0):
        a("s_add_u32 s3, s2, 224")
        a("s_sub_u32 s5, s2, 256")
        a("s_cmp_lt_u32 s2, 256")
        a("s_cselect_b32 s2, s3, s5")
    a("v_lshrrev_b32 v1, 6, v0")
    a("v_and_b32 v0, 63, v0")
    a("v_readfirstlane_b32 s4, v1")
    a("s_nop 3")
    if opts.get("ipf", 1):
        a("s_cmp_ge_u32 s2, 8")
        a("s_cbranch_scc1 f_noipf")
        a("s_getpc_b64 s[96:97]")
        a.label("f_ipf_base")
        a("v_lshlrev_b32 v2, 6, v0")
        a("s_lshl_b32 s98, s4, 12")
        a("v_add_u32 v2, s98, v2")
        a("s_mov_b32 s99, f_code_end - f_ipf_base - 4")
        for i in range(NIPF):
            a("v_min_u32 v3, s99, v2")
            a(f"global_load_dword v{200+i}, v3, s[96:97]")
            a("v_add_u32 v2, 0x4000, v2")
        a.label("f_noipf")
    a("s_cmp_lt_u32 s2, 224")
    a("s_cbranch_scc1 f_side" if not opts.get("noside") else "s_cbranch_scc1 f_exit")
    if opts.get("prio"): a(f"s_setprio {opts['prio']}")
    dbg_event(a, 0)
    a("s_sub_u32 s3, s2, 224")
    a("s_and_b32 s40, s3, 7")
    a("s_lshr_b32 s41, s3, 3")
    a("s_sub_u32 s44, s41, 4")
    a("s_cmp_ge_u32 s41, 8")
    a("s_cselect_b32 s45, s44, 28")
    a("s_cmp_lt_u32 s41, 4")
    a("s_cselect_b32 s45, s41, s45")
    a("s_lshl_b32 s3, s45, 3")
    a("s_add_u32 s3, s3, s40")
    a("s_cbranch_scc1 f_aux") if False else None
    a("s_cmp_lt_u32 s41, 4")
    a("s_cbranch_scc1 f_aux")
    a("s_mul_i32 s46, s44, 37")
    a("s_lshr_b32 s46, s46, 8")
    a("s_mul_i32 s47, s46, 7")
    a("s_sub_u32 s47, s44, s47")
    a("s_lshr_b32 s48, s40, 1")
    a("s_lshl_b32 s48, s48, 2")
    a("s_add_u32 s48, s48, s46")
    a("s_and_b32 s49, s40, 1")
    a("s_mul_i32 s49, s49, 7")
    a("s_add_u32 s49, s49, s47")
    rotc = opts.get("rotc", 6)
    a("s_add_u32 s50, s48, s49")
    if rotc == 1: a("s_mov_b32 s50, 0")
    elif rotc == 2:
        a("s_and_b32 s50, s50, 1"); a("s_mul_i32 s50, s50, 4")
    elif rotc == 4:
        a("s_and_b32 s50, s50, 3"); a("s_lshl_b32 s50, s50, 1")
    elif rotc == 6:
        a("s_mul_i32 s51, s50, 43"); a("s_lshr_b32 s51, s51, 8"); a("s_mul_i32 s51, s51, 6"); a("s_sub_u32 s50, s50, s51")
    elif rotc == 3:
        a("s_mul_i32 s51, s50, 86"); a("s_lshr_b32 s51, s51, 8"); a("s_mul_i32 s51, s51, 3"); a("s_sub_u32 s50, s50, s51"); a("s_lshl_b32 s50, s50, 1")
    else:
        a("s_mul_i32 s51, s50, 37"); a("s_lshr_b32 s51, s51, 8"); a("s_mul_i32 s51, s51, 7"); a("s_sub_u32 s50, s50, s51")
    msh = (0 if opts.get('mainfirst', 0) else 4)
    if gemm2.TWOPASS:
        gemm1b.gemm1(a, st, 48, 49, 50, exact_round=opts.get('exact', 0), NPRO=opts.get('npro', 4), s_k=40, s_j=41, MFU=opts.get('mfu', 24), publish=None, tail=gemm2, s_main=3, mshift=msh, pstamps=opts.get('pst', 0), ust=opts.get('ust', 0))
    else:
        gemm1.gemm1(a, st, 48, 49, 50, exact_round=opts.get('exact', 0), NPRO=opts.get('npro', 4), unitstamps=opts.get('ust', 0), s_k=40, s_j=41, MFU=opts.get('mfu', 13), hybrid=opts.get('hyb', 1), publish=None, tail=gemm2, s_main=3, mshift=msh)
    a("s_branch f_g2")
    a.label("f_aux")
    a("s_lshl_b32 s48, s40, 2")
    a("s_add_u32 s48, s48, s41")
    n0 = st.n; st.n = 2
    aux2.aux(a, st, 48, 40, 41, mshift=(0 if opts.get('mainfirst', 0) else 4), wdpf=opts.get('wdpf', 1), publish=publish)
    st.n = 6; st.stamp(); st.n = n0
    gemm2.setup_w(a, 3)
    if opts.get('early', 1):
        a("s_barrier")
        for p in range(6):
            for g in gemm2.dma_w_lines(gemm2.EARLY_AREA[p]*8192, p):
                for l in g: a(l)
        a("s_waitcnt vmcnt(0)")
        gemm2.pre_dma(a)
        a("s_mov_b32 s58, 0")
    a.label("f_g2")
    a("s_lshr_b32 s41, s3, 3")
    a("s_cmp_ge_u32 s41, 28" if not opts.get("nog2") else "s_cmp_ge_u32 s41, 0")
    a("s_cbranch_scc1 f_early")
    a("s_and_b32 s40, s3, 7")
    a("s_lshl_b32 s40, s40, 2")
    a("s_and_b32 s42, s41, 3")
    a("s_add_u32 s44, s40, s42")
    a("s_lshr_b32 s45, s41, 2")
    gemm2.gemm2(a, st, 44, 45, rot=opts.get('rot2', 1), NP=opts.get('np', 0), prio=opts.get('prio2', 0), early=opts.get('early', 1), sst=opts.get('sst', 0), hsc1=opts.get('hsc1', 1), print_sched=opts.get('ps', 0), diagdelay=opts.get('dd', 0), NREG=opts.get('nreg', 16))
    a("s_endpgm")
    a.label("f_early")
    a("s_waitcnt vmcnt(0)")
    a("s_barrier")
    gemm2.h_flag(a, 52, "fe")
    if stamps:
        n0 = st.n; st.n = 7; st.flush(4); st.n = n0
    a("s_endpgm")
    a.label("f_side")
    a("s_and_b32 s40, s2, 7")
    a("s_lshr_b32 s41, s2, 3")
    a("s_mul_i32 s3, s40, 28")
    a("s_add_u32 s3, s3, s41")
    st2 = Stamps(a, 60, stamps); st2.n = 2
    side2.side(a, st2, 3, gate=opts.get('gate', 1), sleep=opts.get('ssleep', 4), pf=opts.get('pf', 0), p0early=opts.get('p0e', 1), latetile=opts.get('lt', 1), lategate=opts.get('lg', 0), lateparam=opts.get('lp', 1), tlb=opts.get('tlb', 0))
    a.label("f_exit")
    a("s_endpgm")
    a.label("f_code_end")
    return a
```

```python
from asmlib import *

def gemm1(a, st, s_ti, s_tj, s_rot, exact_round=False, NW=4, NPRO=3, s_k=None, s_j=None, MFU=24, publish=None, tail=None, s_main=None, mshift=0, pstamps=False, ust=False):
    S_W = 4
    S_T0 = 5; S_F0 = 6
    SRD_X = 8; SRD_W = 12; SRD_H = 16
    S_XCUR = 20; S_WCUR = 21; S_XL = 22; S_WL = 23
    S_TMP = 24; S_TMP2 = 25; S_XB = 26; S_WB = 27
    P0 = 28
    WB_L = 0; XB_L = 32768; NX = 3
    assert NW == 4
    a.c("---- GEMM1 role (two passes) ----")
    a(f"s_load_dwordx2 s[{P0}:{P0+1}], s[0:1], {KA['u']}")
    a(f"s_load_dwordx4 s[{P0+4}:{P0+7}], s[0:1], {KA['wg']}")
    a(f"s_load_dwordx2 s[{P0+2}:{P0+3}], s[0:1], {KA['ws']}")
    a(f"s_lshl_b32 s{S_T0}, s{s_ti}, 7")
    a(f"s_lshl_b32 s{S_F0}, s{s_tj}, 7")
    V_DW = 72; V_DX = 74
    a("v_lshrrev_b32 v10, 4, v0")
    a("v_lshrrev_b32 v11, 3, v0")
    a("v_and_b32 v12, 7, v0")
    a("v_and_b32 v13, 1, v10")
    a("v_lshlrev_b32 v13, 1, v13")
    a("v_xor_b32 v13, v13, v12")
    a(f"s_lshr_b32 s{S_TMP}, s{S_W}, 1")
    a(f"s_lshl_b32 s{S_TMP2}, s{S_TMP}, 2")
    a(f"v_xor_b32 v13, s{S_TMP2}, v13")
    a("v_lshlrev_b32 v13, 4, v13")
    a("v_mul_u32_u24 v14, 3584, v11")
    a(f"v_add_u32 v{V_DW}, v14, v13")
    a(f"v_add_u32 v{V_DW+1}, {8*3584 - 1024}, v{V_DW}")
    a("v_mul_u32_u24 v14, 896, v11")
    a("v_xor_b32 v13, v12, v10")
    a("v_lshlrev_b32 v13, 4, v13")
    a("v_add_u32 v15, v14, v13")
    a("v_xor_b32 v13, 64, v13")
    a("v_add_u32 v16, v14, v13")
    for i in range(4):
        a(f"v_add_u32 v{V_DX+i}, {i*(8*896 - 1024)}, v{15 + (i & 1)}")
    a(f"s_lshl_b32 s{S_TMP2}, s{S_W}, 5")
    a(f"s_add_u32 s{S_XB}, s{S_T0}, s{S_TMP2}")
    a(f"s_mul_i32 s{S_XB}, s{S_XB}, 896")
    a(f"s_lshl_b32 s{S_XL}, s{S_W}, 12")
    a(f"s_add_u32 s{S_XL}, s{S_XL}, {XB_L}")
    a(f"s_and_b32 s{S_TMP2}, s{S_W}, 1")
    a(f"s_mul_i32 s{S_WB}, s{S_TMP2}, {16*3584}")
    a(f"s_lshl_b32 s{S_WL}, s{S_F0}, 1")
    a(f"s_add_u32 s{S_WB}, s{S_WB}, s{S_WL}")
    a(f"s_lshl_b32 s{S_WL}, s{S_TMP}, 12")
    a(f"s_lshl_b32 s{S_TMP2}, s{S_TMP2}, 11")
    a(f"s_add_u32 s{S_WL}, s{S_WL}, s{S_TMP2}")
    a(f"s_lshl_b32 s58, s{s_rot}, 7")
    a(f"s_add_u32 s58, s58, 128")
    a(f"s_mul_i32 s59, s{s_rot}, {64*3584}")
    a(f"s_add_u32 s59, s59, {64*3584}")
    a(f"s_mov_b32 s{S_XCUR}, s{S_XB}")
    a(f"s_mov_b32 s{S_WCUR}, s{S_WB}")
    a(f"s_add_u32 s48, s{S_WB}, {448*3584}")
    a(f"s_add_u32 s49, s{S_WB}, {64*3584}")
    a(f"s_add_u32 s50, s{S_XB}, 896")
    a(f"s_add_u32 s51, s{S_XB}, 128")
    a("s_waitcnt lgkmcnt(0)")
    srd_from(a, SRD_X, P0, 2048*448*2)
    a(f"s_cmp_eq_u32 s{S_TMP}, 0")
    a(f"s_cselect_b32 s{SRD_W}, s{P0+4}, s{P0+6}")
    a(f"s_cselect_b32 s{SRD_W+1}, s{P0+5}, s{P0+7}")
    a(f"s_mov_b32 s{SRD_W+2}, {448*1792*2}")
    a(f"s_mov_b32 s{SRD_W+3}, 0x20000")

    NU = 28
    vm = []
    def w_lines(g):
        u = g % 14
        g0 = [f"s_add_u32 m0, s{S_WL}, {WB_L + (g % NW)*8192}", "s_nop 0",
              f"buffer_load_dwordx4 v{V_DW}, s[{SRD_W}:{SRD_W+3}], s{S_WCUR} offen lds"]
        g1 = [f"buffer_load_dwordx4 v{V_DW+1}, s[{SRD_W}:{SRD_W+3}], s{S_WCUR} offen offset:1024 lds"]
        if u == 13:
            g1 += [f"s_add_u32 s{S_WB}, s{S_WB}, 128", f"s_mov_b32 s{S_WCUR}, s{S_WB}", "s_add_u32 s48, s48, 128", "s_add_u32 s49, s49, 128"]
        elif u == 1:
            g1 += [f"s_add_u32 s{S_WCUR}, s{S_WB}, s59"]
        else:
            g1 += [f"s_add_u32 s{S_WCUR}, s{S_WCUR}, {32*3584}",
                   f"s_cmp_eq_u32 s{S_WCUR}, s48",
                   f"s_cselect_b32 s{S_WCUR}, s49, s{S_WCUR}"]
        vm.append(("W", g))
        return [g0, g1]
    def x_lines(v):
        vv = v % 7
        out = []
        for i in range(4):
            g = [f"s_add_u32 m0, s{S_XL}, {(v % NX)*16384}", "s_nop 0"] if i == 0 else []
            g.append(f"buffer_load_dwordx4 v{V_DX+i}, s[{SRD_X}:{SRD_X+3}], s{S_XCUR} offen offset:{i*1024} lds")
            if i == 3:
                if vv == 6: g += [f"s_mov_b32 s{S_XCUR}, s{S_XB}"]
                elif vv == 0: g += [f"s_add_u32 s{S_XCUR}, s{S_XB}, s58"]
                else:
                    g += [f"s_add_u32 s{S_XCUR}, s{S_XCUR}, 128",
                          f"s_cmp_eq_u32 s{S_XCUR}, s50",
                          f"s_cselect_b32 s{S_XCUR}, s51, s{S_XCUR}"]
            out.append(g)
        vm.append(("X", v))
        return out
    def cnt(g): return {"W": 2, "X": 4, "F": 1, "T": 2, "H": 4}[g[0]]
    def wait_for(needs):
        last = max(vm.index(n) for n in needs)
        a(f"s_waitcnt vmcnt({sum(cnt(g) for g in vm[last+1:])})")
    def emit(groups):
        for g in groups:
            for l in g: a(l)
    order = [("X",0),("W",0),("W",1),("X",1),("W",2),("W",3),("X",2)]
    order = [d for d in order if d[0] == "X" or d[1] < NW]
    lines_of = lambda d: (x_lines(d[1]) if d[0] == "X" else w_lines(d[1]))
    for d in order[:NPRO]: emit(lines_of(d))
    late = order[NPRO:]
    srd_from(a, SRD_H, P0+2, SZ_H, WS_H)
    SRD_F = 52
    srd_from(a, SRD_F, P0+2, SZ_F, WS_F)
    a(f"s_load_dwordx2 s[{P0}:{P0+1}], s[0:1], {KA['dbg']}")
    a(f"s_sub_u32 s57, s{s_j}, {mshift}")
    a(f"s_lshl_b32 s56, s57, 3")
    a(f"s_add_u32 s56, s56, s{s_k}")
    a(f"s_add_u32 s56, s56, {L_M}")
    a("s_lshl_b32 s56, s56, 7")
    a(f"s_cmp_lt_u32 s57, 28")
    a(f"s_cselect_b32 s56, s56, {SZ_F}")
    a("v_mov_b32 v21, 0")
    a("s_waitcnt lgkmcnt(0)")
    if publish: publish(a, P0)

    V_AW = 5
    V_AX = 14
    a("v_lshrrev_b32 v10, 4, v0")
    a("v_lshrrev_b32 v11, 2, v0")
    a("v_and_b32 v11, 3, v11")
    a("v_and_b32 v12, 3, v0")
    a("v_lshrrev_b32 v13, 1, v10")
    a("v_and_b32 v10, 1, v10")
    a("v_lshlrev_b32 v18, 12, v10")
    a("v_lshlrev_b32 v9, 3, v13")
    a("v_add_u32 v9, v9, v11")
    a("v_lshlrev_b32 v9, 7, v9")
    a("v_add_u32 v18, v18, v9")
    a("v_lshrrev_b32 v9, 1, v12")
    a("v_lshlrev_b32 v9, 3, v9")
    a("v_add_u32 v18, v18, v9")
    a("v_and_b32 v9, 1, v12")
    a("v_lshrrev_b32 v11, 1, v11")
    a("v_lshlrev_b32 v11, 1, v11")
    a("v_xor_b32 v9, v9, v11")
    a("v_lshlrev_b32 v10, 2, v10")
    a("v_xor_b32 v9, v9, v10")
    a(f"s_lshr_b32 s{S_TMP}, s{S_W}, 1")
    a(f"s_lshl_b32 s{S_TMP}, s{S_TMP}, 2")
    for rb in range(2):
        a(f"s_add_u32 s{S_TMP2}, s{S_TMP}, {2*rb}")
        a(f"v_xor_b32 v13, s{S_TMP2}, v9")
        a("v_lshlrev_b32 v13, 4, v13")
        a(f"v_add_u32 v{V_AW+rb}, v18, v13")
    a("v_and_b32 v10, 31, v0")
    a("v_lshrrev_b32 v11, 5, v0")
    a("v_lshrrev_b32 v12, 1, v10")
    a("v_and_b32 v12, 7, v12")
    a("v_xor_b32 v12, v12, v11")
    a(f"s_and_b32 s{S_TMP2}, s{S_W}, 1")
    a(f"s_lshl_b32 s{S_TMP2}, s{S_TMP2}, 13")
    a("v_lshlrev_b32 v9, 7, v10")
    a(f"v_add_u32 v9, s{S_TMP2}, v9")
    for ks in range(4):
        a(f"v_xor_b32 v13, {2*ks}, v12")
        a("v_lshlrev_b32 v13, 4, v13")
        a("v_add_u32 v13, v9, v13")
        a(f"v_add_u32 v{V_AX+ks}, {XB_L}, v13")
    a("v_and_b32 v12, 7, v10")
    a("v_xor_b32 v12, v12, v11")
    for rb in range(2):
        a(f"s_add_u32 s{S_TMP2}, s{S_TMP}, {2*rb}")
        a(f"v_xor_b32 v13, s{S_TMP2}, v12")
        a("v_lshlrev_b32 v13, 4, v13")
        a(f"v_add_u32 v{80+rb}, v9, v13")
    a(f"s_lshl_b32 s{S_TMP}, s{S_W}, 12")
    a("v_lshlrev_b32 v84, 4, v0")
    a(f"v_add_u32 v84, s{S_TMP}, v84")
    a("v_lshrrev_b32 v10, 3, v0")
    a("v_and_b32 v11, 7, v0")
    a("v_xor_b32 v11, v11, v10")
    a("v_lshlrev_b32 v11, 4, v11")
    a("v_mul_u32_u24 v13, 3584, v10")
    a("v_add_u32 v85, v11, v13")
    a(f"s_lshl_b32 s{S_TMP2}, s{S_W}, 5")
    a(f"s_add_u32 s{S_TMP2}, s{S_TMP2}, s{S_T0}")
    a(f"s_mul_i32 s36, s{S_TMP2}, 3584")
    a(f"s_lshl_b32 s{S_TMP}, s{S_F0}, 1")
    a(f"s_add_u32 s36, s36, s{S_TMP}")
    FR = [24, 40]
    ACC = [128, 192]
    ORD = [(0,0),(1,0),(0,1),(1,1)]
    def acc(p, rb, cb): return ACC[p] + 16*(2*rb + cb)
    def reads(step):
        g = step // 2; s = step % 2; v = step // 4; ks = step % 4
        fb = FR[step % 2]
        def A(rb): return [f"ds_read_b64_tr_b16 v[{fb+4*rb+2*h2}:{fb+4*rb+2*h2+1}], v{V_AW+rb} offset:{WB_L + (g % NW)*8192 + (16*s+4*h2)*128}" for h2 in range(2)]
        def B(cb): return [f"ds_read_b128 v[{fb+8+4*cb}:{fb+8+4*cb+3}], v{V_AX+ks} offset:{(v % NX)*16384 + cb*4096}"]
        return B(0) + A(0) + A(1) + B(1)
    def mfmas(step):
        p = step // 28; fb = FR[step % 2]
        M = []
        for rb, cb in ORD:
            c = "0" if step % 28 == 0 else f"v[{acc(p,rb,cb)}:{acc(p,rb,cb)+15}]"
            M.append(f"v_mfma_f32_32x32x16_bf16 v[{acc(p,rb,cb)}:{acc(p,rb,cb)+15}], v[{fb+4*rb}:{fb+4*rb+3}], v[{fb+8+4*cb}:{fb+8+4*cb+3}], {c}")
        return M
    def epilogue(p, base):
        for n, (rb, cb) in enumerate(ORD):
            A0 = acc(p, rb, cb); o = 88 + 4*(n % 2)
            for q in range(4):
                g0, g1, u0, u1 = A0+2*q, A0+2*q+1, A0+8+2*q, A0+8+2*q+1
                if exact_round:
                    a(f"v_cvt_pk_bf16_f32 v96, v{g0}, v{g1}")
                    a(f"v_cvt_pk_bf16_f32 v97, v{u0}, v{u1}")
                    a(f"v_lshlrev_b32 v98, 16, v96")
                    a(f"v_and_b32 v99, 0xffff0000, v96")
                    a(f"v_lshlrev_b32 v100, 16, v97")
                    a(f"v_and_b32 v101, 0xffff0000, v97")
                    a(f"v_mul_f32 v98, v98, v100")
                    a(f"v_mul_f32 v99, v99, v101")
                    a(f"v_cvt_pk_bf16_f32 v{o+q}, v98, v99")
                else:
                    a(f"v_mul_f32 v98, v{g0}, v{u0}")
                    a(f"v_mul_f32 v99, v{g1}, v{u1}")
                    a(f"v_cvt_pk_bf16_f32 v{o+q}, v98, v99")
            a(f"ds_write_b128 v{80+rb}, v[{o}:{o+3}] offset:{base + cb*4096}")
        a("s_waitcnt lgkmcnt(0)")
        a("s_barrier")
        for i in range(4):
            a(f"ds_read_b128 v[{104+4*i}:{107+4*i}], v84 offset:{base + i*1024}")
        for i in range(4):
            a(f"s_waitcnt lgkmcnt({3-i})")
            a(f"s_add_u32 s{S_TMP}, s36, {8*i*3584 + 128*p}")
            a(f"buffer_store_dwordx4 v[{104+4*i}:{107+4*i}], v85, s[{SRD_H}:{SRD_H+3}], s{S_TMP} offen sc1")
        vm.append(("H", p))
    def tag_check(name):
        a("v_readfirstlane_b32 s37, v23")
        a("s_nop 3")
        a("s_cmp_lg_u32 s37, 0")
        a(f"s_cbranch_scc1 {name}_fast")
        wait_tag(a, name, P0, 37, S_TMP2, 21, 23)
        a("v_mov_b32 v21, 0")
        a.label(name + "_fast")
    if tail:
        tail.setup_w(a, s_main)
        tail.setup_g2(a, s_main)
    st.stamp()
    wait_for([("X",0),("W",0)])
    a("s_barrier")
    st.stamp()
    dbg_event(a, 1)
    for r in reads(0): a(r)
    for d in late: emit(lines_of(d))
    pend = []
    for g in range(NU):
        for s in range(2):
            step = 2*g + s
            a("s_waitcnt lgkmcnt(0)")
            if s == 1:
                need = []
                if g + 1 < NU: need = [("W", g+1), ("X", (g+1)//2)]
                if need: wait_for(need)
                a("s_barrier")
                if ust and g in (1, 3, 5, 7, 9, 11, 13, 15, 17, 19, 23, 27): st.stamp()
                assert not pend
                if g == 6:
                    a(f"global_load_dword v23, v21, s[{P0}:{P0+1}] sc1")
                    vm.append(("F", 1))
                if g == 17:
                    tag_check("g1_t1")
                    a(f"s_lshr_b32 s{S_TMP}, s{S_T0}, 7")
                    a(f"s_mul_i32 s57, s{S_TMP}, {14*128}")
                    a(f"s_lshr_b32 s{S_TMP2}, s{S_F0}, 5")
                    a(f"s_add_u32 s57, s57, s{S_TMP2}")
                    a("v_lshlrev_b32 v22, 7, v0")
                    a("v_mov_b32 v9, s37")
                    a("s_mov_b64 exec, 0x3fff")
                    a(f"buffer_store_dword v9, v22, s[{SRD_F}:{SRD_F+3}], s57 offen sc1")
                    a("s_mov_b64 exec, -1")
                    vm.append(("F", 2))
                if g == MFU:
                    a("v_mov_b32 v22, s37")
                    a("s_mov_b64 exec, 1")
                    a(f"buffer_store_dword v22, v21, s[{SRD_F}:{SRD_F+3}], s56 offen sc1")
                    a("s_mov_b64 exec, -1")
                    vm.append(("F", 0))
                if g + NW < NU: pend += w_lines(g + NW)
                if g % 2 == 1 and (g//2) + NX < 14 and g != 13: pend += x_lines(g//2 + NX)
                if tail and g in (23, 25, 27):
                    p0 = {23: 0, 25: 2, 27: 4}[g]
                    for p in (p0, p0+1):
                        pend += tail.dma_w_lines(tail.EARLY_AREA[p]*8192, p)
                        vm.append(("T", p))
            M = mfmas(step)
            R = reads(step + 1) if step + 1 < 2*NU else []
            ri = 0
            for mi, m in enumerate(M):
                a(m)
                if pend:
                    for line in pend.pop(0): a(line)
                for _ in range(2):
                    if ri < len(R):
                        a(R[ri]); ri += 1
        if g == 13:
            assert not pend
            if pstamps: st.stamp()
            a("s_nop 7")
            epilogue(0, XB_L)
            emit(x_lines(9))
            if pstamps: st.stamp()
    if ust:
        st.flush(S_W); a("s_endpgm"); st.n = 4
    dbg_event(a, 2)
    st.stamp()
    a("s_barrier")
    epilogue(1, 0)
    st.stamp()
    a("s_barrier")
    tail.pre_dma(a)
    a("s_add_u32 s57, s57, 64")
    a("s_mov_b32 s58, 1")
```

```python
from asmlib import *

NSLOT = 5
SLEEP = 2
NS = 28

SRD_WD = 92; S_WCUR = 96; S_WLIM = 97; S_L2 = 98; V_W0 = 20; V_W1 = 19
S_R = 38; S_PH = 39; S_WB = 47
TWOPASS = False
EARLY_AREA = [4, 5, 8, 9, 6, 7]
def setup_w(a, s_main, rot=True):
    a(f"s_load_dwordx2 s[{SRD_WD}:{SRD_WD+1}], s[0:1], {KA['wd']}")
    a("v_lshrrev_b32 v10, 4, v0")
    a("v_lshrrev_b32 v11, 3, v0")
    a("v_and_b32 v12, 7, v0")
    a("v_and_b32 v13, 1, v10")
    a("v_lshlrev_b32 v13, 2, v13")
    a("v_xor_b32 v13, v13, v12")
    a("v_lshlrev_b32 v13, 4, v13")
    a("v_mul_u32_u24 v12, 896, v11")
    a(f"v_add_u32 v{V_W0}, v12, v13")
    a(f"v_add_u32 v{V_W1}, {8*896 - 1024}, v{V_W0}")
    a(f"s_lshr_b32 s99, s{s_main}, 3")
    a("s_and_b32 s100, s99, 3")
    a("s_mul_i32 s100, s100, 3")
    a("s_lshr_b32 s99, s99, 2")
    a("s_lshl_b32 s101, s99, 1")
    a("s_add_u32 s100, s100, s101")
    a("s_sub_u32 s101, s100, 14")
    a("s_cmp_ge_u32 s100, 14")
    a("s_cselect_b32 s100, s101, s100")
    if not rot: a("s_mov_b32 s100, 0")
    a(f"s_mov_b32 s{S_R}, s100")
    a(f"s_and_b32 s101, s{s_main}, 1")
    a(f"s_mul_i32 s{S_PH}, s101, 14")
    a(f"s_lshl_b32 s101, s4, 4")
    a(f"s_mul_i32 s{S_WB}, s101, 896")
    a("s_lshl_b32 s99, s99, 7")
    a(f"s_add_u32 s{S_WB}, s{S_WB}, s99")
    if TWOPASS:
        a(f"s_add_u32 s{S_WLIM}, s{S_WB}, {28*64*896}")
        a(f"s_mul_i32 s99, s100, {128*896}")
        a(f"s_add_u32 s{S_WCUR}, s{S_WB}, s99")
    else:
        a(f"s_add_u32 s99, s{S_PH}, 14")
        a(f"s_mul_i32 s99, s99, {64*896}")
        a(f"s_add_u32 s{S_WLIM}, s{S_WB}, s99")
        a(f"s_add_u32 s99, s{S_PH}, s100")
        a(f"s_mul_i32 s99, s99, {64*896}")
        a(f"s_add_u32 s{S_WCUR}, s{S_WB}, s99")
    a(f"s_lshl_b32 s{S_L2}, s4, 11")
    a("s_waitcnt lgkmcnt(0)")
    a(f"s_mov_b32 s{SRD_WD+2}, {1792*448*2}")
    a(f"s_mov_b32 s{SRD_WD+3}, 0x20000")

def advance(cur, lim, step, i, base_reg, tmp):
    if TWOPASS:
        if i == 13:
            return [f"s_mul_i32 s{tmp}, s{S_R}, {2*step}", f"s_add_u32 s{cur}, s{base_reg}, s{tmp}", f"s_add_u32 s{cur}, s{cur}, {step}",
                    f"s_add_u32 s{lim}, s{base_reg}, {29*step}"]
        return [f"s_add_u32 s{cur}, s{cur}, {2*step}", f"s_sub_u32 s{tmp}, s{cur}, {28*step}",
                f"s_cmp_ge_u32 s{cur}, s{lim}", f"s_cselect_b32 s{cur}, s{tmp}, s{cur}"]
    if i == 13:
        return [f"s_sub_u32 s{tmp}, 14, s{S_PH}", f"s_mul_i32 s{tmp}, s{tmp}, {step}", f"s_add_u32 s{cur}, s{base_reg}, s{tmp}",
                f"s_add_u32 s{lim}, s{base_reg}, {28*step}"]
    n = 14 if i < 13 else 28
    return [f"s_add_u32 s{cur}, s{cur}, {step}", f"s_sub_u32 s{tmp}, s{cur}, {n*step}",
            f"s_cmp_ge_u32 s{cur}, s{lim}", f"s_cselect_b32 s{cur}, s{tmp}, s{cur}"]

def dma_w_lines(ldsoff, i):
    g0 = [f"s_add_u32 m0, s{S_L2}, {ldsoff}", "s_nop 0",
          f"buffer_load_dwordx4 v{V_W0}, s[{SRD_WD}:{SRD_WD+3}], s{S_WCUR} offen lds"]
    g1 = [f"buffer_load_dwordx4 v{V_W1}, s[{SRD_WD}:{SRD_WD+3}], s{S_WCUR} offen offset:1024 lds"] + advance(S_WCUR, S_WLIM, 64*896, i, S_WB, 99)
    return [g0, g1]

RESIDENT = False
def pre_dma(a):
    if RESIDENT: return
    for p in range(6, 10):
        for g in dma_w_lines((p-6)*8192, p):
            for l in g: a(l)

def h_flag(a, srd_f, tag):
    a("s_cmp_lg_u32 s4, 0")
    a(f"s_cbranch_scc1 {tag}_flagged")
    a("s_cmp_eq_u32 s58, 0")
    a(f"s_cbranch_scc1 {tag}_flagged")
    set_flags(a, srd_f, 57, 37, 14, 128, 10, 11)
    a.label(f"{tag}_flagged")
    dbg_event(a, 3)

def gemm2(a, st, s_tt, s_ct, rot=True, NP=16, prio=0, early=True, sst=False, hsc1=True, print_sched=False, diagdelay=0, NREG=16):
    S_W = 4; S_T0 = 5; S_D0 = 6
    SRD_H = 8; SRD_AT = 16; SRD_O = 20
    S_TMP = 24; S_TMP2 = 25; S_HCUR = 26
    P0 = 28
    S_L = 36; S_HLIM = 27; SRD_G = 52; SRD_F = 48; S_HB = 40; S_LINE = 41
    a.c("---- GEMM2 role ----")
    if sst: st.n = 1
    else: st.n = 6
    a(f"s_load_dwordx2 s[{P0+2}:{P0+3}], s[0:1], {KA['ws']}")
    a(f"s_load_dwordx2 s[{P0+4}:{P0+5}], s[0:1], {KA['out']}")
    if prio: a(f"s_setprio {prio}")
    a(f"s_lshl_b32 s{S_T0}, s{s_tt}, 6")
    a(f"s_lshl_b32 s{S_D0}, s{s_ct}, 6")
    V_H0, V_H1 = 2, 3
    a("v_lshrrev_b32 v10, 4, v0")
    a("v_lshrrev_b32 v11, 3, v0")
    a("v_and_b32 v12, 7, v0")
    a("v_xor_b32 v13, v12, v10")
    a("v_lshlrev_b32 v13, 4, v13")
    a("v_mul_u32_u24 v14, 3584, v11")
    a(f"v_add_u32 v{V_H0}, v14, v13")
    a("v_xor_b32 v13, 64, v13")
    a(f"v_add_u32 v{V_H1}, v14, v13")
    a(f"v_add_u32 v{V_H1}, {8*3584 - 1024}, v{V_H1}")
    a(f"s_lshl_b32 s{S_TMP}, s{S_W}, 4")
    a(f"s_add_u32 s{S_HB}, s{S_T0}, s{S_TMP}")
    a(f"s_mul_i32 s{S_HB}, s{S_HB}, 3584")
    if TWOPASS:
        a(f"s_add_u32 s{S_HLIM}, s{S_HB}, 3584")
        a(f"s_lshl_b32 s{S_TMP}, s{S_R}, 8")
        a(f"s_add_u32 s{S_HCUR}, s{S_HB}, s{S_TMP}")
    else:
        a(f"s_add_u32 s{S_TMP}, s{S_PH}, 14")
        a(f"s_lshl_b32 s{S_TMP}, s{S_TMP}, 7")
        a(f"s_add_u32 s{S_HLIM}, s{S_HB}, s{S_TMP}")
        a(f"s_add_u32 s{S_TMP}, s{S_PH}, s{S_R}")
        a(f"s_lshl_b32 s{S_TMP}, s{S_TMP}, 7")
        a(f"s_add_u32 s{S_HCUR}, s{S_HB}, s{S_TMP}")
    a(f"s_lshl_b32 s{S_L}, s{S_W}, 11")
    a(f"s_mul_i32 s{S_LINE}, s{s_tt}, 7")
    a(f"s_add_u32 s{S_LINE}, s{S_LINE}, s{s_ct}")
    a(f"s_lshl_b32 s{S_LINE}, s{S_LINE}, 7")
    if TWOPASS: a("s_mov_b32 s46, 0x3fff")
    else:
        a(f"s_lshr_b32 s46, s{S_PH}, 1")
        a("s_lshl_b32 s46, 0x7f, s46")
    a("s_waitcnt lgkmcnt(0)")
    vm = []
    def dma_w(ldsoff, key):
        vm.append(key)
        return dma_w_lines(ldsoff, key[1])
    def dma_h(u, ar):
        g0 = [f"s_add_u32 m0, s{S_L}, {ar*8192}", "s_nop 0",
              f"buffer_load_dwordx4 v{V_H0}, s[{SRD_H}:{SRD_H+3}], s{S_HCUR} offen {'sc1' if hsc1 else ''} lds"]
        g1 = [f"buffer_load_dwordx4 v{V_H1}, s[{SRD_H}:{SRD_H+3}], s{S_HCUR} offen offset:1024 {'sc1' if hsc1 else ''} lds"] + advance(S_HCUR, S_HLIM, 128, u, S_HB, S_TMP2)
        vm.append(("H", u))
        return [g0, g1]
    def emit(groups):
        for g in groups:
            for l in g: a(l)
    def wait_for(needs):
        last = max(vm.index(n) for n in needs)
        a(f"s_waitcnt vmcnt({sum((1 if g[0] == 'S' else 2) for g in vm[last+1:])})")
    NB = 10
    area = EARLY_AREA + [0, 1, 2, 3]
    if not RESIDENT:
        for p in range(6, 10): vm.append(("P", p))
    srd_from(a, SRD_H, P0+2, SZ_H, WS_H)
    srd_from(a, SRD_AT, P0+2, SZ_AT, WS_AT)
    srd_from(a, SRD_O, P0+4, 2048*448*2)
    srd_from(a, SRD_G, P0+2, SZ_G, WS_G)
    srd_from(a, SRD_F, P0+2, SZ_F, WS_F)
    V_B = 5; V_A0 = 6; V_A1 = 7
    a("v_and_b32 v10, 31, v0")
    a("v_lshrrev_b32 v11, 5, v0")
    a("v_lshrrev_b32 v12, 1, v10")
    a("v_and_b32 v12, 7, v12")
    a(f"s_lshl_b32 s{S_TMP}, s{S_W}, 1")
    a(f"v_add_u32 v11, s{S_TMP}, v11")
    a("v_xor_b32 v12, v12, v11")
    a("v_lshlrev_b32 v12, 4, v12")
    a("v_lshlrev_b32 v10, 7, v10")
    a(f"v_add_u32 v{V_B}, v10, v12")
    a("v_lshrrev_b32 v10, 4, v0")
    a("v_lshrrev_b32 v11, 2, v0")
    a("v_and_b32 v11, 3, v11")
    a("v_and_b32 v12, 3, v0")
    a("v_lshrrev_b32 v13, 1, v10")
    a("v_lshlrev_b32 v13, 3, v13")
    a("v_add_u32 v13, v13, v11")
    a(f"s_lshl_b32 s{S_TMP}, s{S_W}, 4")
    a(f"v_add_u32 v13, s{S_TMP}, v13")
    a("v_lshlrev_b32 v13, 7, v13")
    a("v_lshrrev_b32 v14, 1, v12")
    a("v_lshlrev_b32 v14, 3, v14")
    a("v_add_u32 v13, v13, v14")
    a("v_and_b32 v14, 1, v10")
    a("v_lshlrev_b32 v14, 1, v14")
    a("v_and_b32 v15, 1, v12")
    a("v_add_u32 v14, v14, v15")
    a("v_lshrrev_b32 v15, 1, v11")
    a("v_lshlrev_b32 v15, 2, v15")
    a("v_xor_b32 v14, v14, v15")
    a("v_lshlrev_b32 v15, 4, v14")
    a(f"v_add_u32 v{V_A0}, v13, v15")
    a("v_xor_b32 v15, 64, v15")
    a(f"v_add_u32 v{V_A1}, v13, v15")
    a(f"v_add_u32 v16, 0x10000, v{V_B}")
    a(f"v_add_u32 v17, 0x10000, v{V_A0}")
    a(f"v_add_u32 v18, 0x10000, v{V_A1}")
    PRE = 128
    def a_reads(dst, off):
        va0, va1 = V_A0, V_A1
        if off >= 65536: off -= 65536; va0, va1 = 17, 18
        return [f"ds_read_b64_tr_b16 v[{dst}:{dst+1}], v{va0} offset:{off}",
                f"ds_read_b64_tr_b16 v[{dst+2}:{dst+3}], v{va0} offset:{off+512}",
                f"ds_read_b64_tr_b16 v[{dst+4}:{dst+5}], v{va1} offset:{off}",
                f"ds_read_b64_tr_b16 v[{dst+6}:{dst+7}], v{va1} offset:{off+512}"]
    def b_reads(dst, off):
        vb = V_B
        if off >= 65536: off -= 65536; vb = 16
        return [f"ds_read_b128 v[{dst}:{dst+3}], v{vb} offset:{off}",
                f"ds_read_b128 v[{dst+4}:{dst+7}], v{vb} offset:{off+4096}"]
    assert NP in (0, 10, 16) and (NP == 0) == RESIDENT
    R0, R1 = (6, 6 + NREG) if RESIDENT else (0, NP)
    if NP:
        for p in range(6):
            for r in a_reads(PRE + 8*p, area[p]*8192): a(r)
        a("s_waitcnt lgkmcnt(0)")
    a(f"s_waitcnt vmcnt({8 if NP else 0})")
    st.stamp()
    a("s_barrier")
    h_flag(a, SRD_F, "g2")
    if NP == 16:
        for p in range(10, 16):
            emit(dma_w(EARLY_AREA[p-10]*8192, ("P", p)))
    if NP:
        wait_for([("P", 9)])
        a("s_barrier")
        for p in range(6, 10):
            for r in a_reads(PRE + 8*p, area[p]*8192): a(r)
    if NP == 16:
        wait_for([("P", 15)])
        a("s_barrier")
        for p in range(10, 16):
            for r in a_reads(PRE + 8*p, EARLY_AREA[p-10]*8192): a(r)
    if RESIDENT and NREG:
        for p in range(R0, min(R0 + 4, R1)):
            emit(dma_w(((p - R0) % 4)*8192, ("P", p)))
        for p in range(R0, R1):
            wait_for([("P", p)])
            for r in a_reads(PRE + 8*(p - R0), ((p - R0) % 4)*8192): a(r)
            if p + 4 < R1:
                a("s_waitcnt lgkmcnt(0)")
                emit(dma_w(((p - R0) % 4)*8192, ("P", p + 4)))
    a("s_waitcnt lgkmcnt(0)")
    st.stamp()
    a(f"s_cmp_lg_u32 s{S_W}, 0")
    a("s_cbranch_scc1 g2_hready")
    wait_flags(a, "g2_wh", SRD_F, S_LINE, 14, 37, S_TMP, 43, 10, 11, sleep=SLEEP, s_mask=46)
    a.label("g2_hready")
    a("s_barrier")
    st.stamp()
    NINIT = 5
    FLAGST = 8
    MAXLD = 2
    sched = {}
    if RESIDENT:
        NINIT = 4
        where = {("H", u): u for u in range(NINIT)}
        for u in range(6): where[("W", u)] = EARLY_AREA[u]
        free = []
        nh, nw = NINIT, R1
    else:
        where = {("H", u): u for u in range(NINIT)}
        free = list(range(NINIT, 10))
        nh, nw = NINIT, NP
    for u in range(NS):
        free.append(where[("H", u)])
        if not (R0 <= u < R1): free.append(where[("W", u)])
        sched[u] = []
        lim = 3 if u < 3 else MAXLD
        while free and len(sched[u]) < lim:
            canh = nh < NS and (nh < 14 or u >= FLAGST)
            canw = nw < NS
            if not (canh or canw): break
            key = ("H", nh) if (canh and (not canw or nh <= nw)) else ("W", nw)
            cand = sorted(free, key=lambda x: (x >= 8 and key[1] >= 22, free.index(x)))
            ar = cand[0]; free.remove(ar); where[key] = ar
            sched[u].append(key)
            if key[0] == "H": nh += 1
            else: nw += 1
    assert nh == NS and nw == NS
    for u in range(NS):
        for key in sched[u]: assert key[1] - u >= 2, (u, key)
    if print_sched: print(sched)
    last_use = {ar: max(k[1] for k, v in where.items() if v == ar) for ar in (8, 9)}
    AT_AREA = min(last_use, key=last_use.get)
    AT_STAGE = max(last_use[AT_AREA], 23)
    assert AT_STAGE <= 25, (last_use, where)
    for u in range(NINIT):
        emit(dma_h(u, u))
    FR = [24, 40]
    ACC = 64
    def acc(rb, cb): return ACC + 16*(2*rb + cb)
    def reads(u):
        fb = FR[u % 2]
        R = b_reads(fb+8, where[("H", u)]*8192)
        if not (R0 <= u < R1):
            Ar = a_reads(fb, where[("W", u)]*8192)
            R = [R[0]] + Ar[:2] + [R[1]] + Ar[2:]
        return R
    def needs(u):
        return [("H", u)] + ([("W", u)] if ("W", u) in vm else [])
    V_FL = 21
    last_flag = [None]
    def flag_load(s_off):
        a(f"buffer_load_dword v{V_FL}, v22, s[{SRD_F}:{SRD_F+3}], s{s_off} offen sc1")
        vm.append(("S", 100 + len(vm)))
        last_flag[0] = vm[-1]
    def flag_check(name, s_off, nwords, mask=None):
        mask = mask or hex((1 << nwords) - 1)
        a(f"s_mov_b32 s45, {mask}")
        a(f"s_cmp_lg_u32 s{S_W}, 0")
        a(f"s_cbranch_scc1 {name}_done")
        wait_for([last_flag[0]])
        a(f"v_cmp_eq_u32 vcc, s37, v{V_FL}")
        a("s_nop 2")
        a(f"s_and_b32 s{S_TMP}, vcc_lo, {mask}")
        a(f"s_cmp_eq_u32 s{S_TMP}, {mask}")
        a(f"s_cbranch_scc1 {name}_done")
        wait_flags(a, name, SRD_F, s_off, nwords, 37, S_TMP, 43, 10, 11, sleep=SLEEP, s_mask=45)
        a.label(name + "_done")
    a("v_and_b32 v22, 31, v0")
    a("v_lshlrev_b32 v22, 2, v22")
    a(f"s_add_u32 s42, s{S_LINE}, {L_A*128}")
    ATL = AT_AREA*8192
    V_G = 8
    def at_loads():
        a("v_and_b32 v9, 31, v0")
        a(f"s_and_b32 s{S_TMP}, s{S_W}, 1")
        a(f"s_lshl_b32 s{S_TMP}, s{S_TMP}, 5")
        a(f"s_add_u32 s{S_TMP}, s{S_TMP}, s{S_T0}")
        a(f"v_add_u32 v9, s{S_TMP}, v9")
        a("v_lshlrev_b32 v9, 2, v9")
        a(f"buffer_load_dword v{V_G}, v9, s[{SRD_G}:{SRD_G+3}], 0 offen sc1")
        a("v_lshrrev_b32 v9, 3, v0")
        a("v_lshlrev_b32 v9, 12, v9")
        a("v_and_b32 v12, 7, v0")
        a("v_lshlrev_b32 v12, 4, v12")
        a("v_add_u32 v9, v9, v12")
        a(f"s_lshl_b32 s{S_TMP}, s{S_W}, 4")
        a(f"s_add_u32 s{S_TMP}, s{S_TMP}, s{S_D0}")
        a(f"s_lshl_b32 s{S_TMP}, s{S_TMP}, 12")
        a(f"s_lshl_b32 s{S_TMP2}, s{S_T0}, 1")
        a(f"s_add_u32 s{S_TMP2}, s{S_TMP2}, s{S_TMP}")
        for i in range(2):
            a(f"s_add_u32 m0, s{S_L}, {ATL + i*1024}")
            a(f"s_add_u32 s{S_TMP}, s{S_TMP2}, {8*i*4096}")
            a(f"buffer_load_dwordx4 v9, s[{SRD_AT}:{SRD_AT+3}], s{S_TMP} offen sc1 lds")
        for i in range(3): vm.append(("S", i))
    wait_for(needs(0))
    a("s_barrier")
    st.stamp()
    dbg_event(a, 4)
    for r in reads(0): a(r)
    for u in range(NS):
        fb = FR[u % 2]
        if sst == 2 and u in (6, 20): st.stamp()
        a("s_waitcnt lgkmcnt(0)")
        if sst == 2 and u in (6, 20): st.stamp()
        if u + 1 < NS: wait_for(needs(u+1))
        if sst == 2 and u in (6, 20): st.stamp()
        if u == FLAGST: flag_check("g2_wh2", S_LINE, 32, "0x3fff4000" if TWOPASS else "0x7fff")
        if u == AT_STAGE: flag_check("g2_wa", 42, 32)
        a("s_barrier")
        if u == FLAGST - 4: flag_load(S_LINE)
        if u == AT_STAGE - 5: flag_load(42)
        if sst == 1 and u in (2, 5, 8, 9, 12, 16, 20, 24): st.stamp()
        if sst == 2 and u in (6, 7, 20, 21): st.stamp()
        if u == AT_STAGE:
            at_loads()
        D = []
        for key in sched.get(u, []):
            D += dma_h(key[1], where[key]) if key[0] == "H" else dma_w(where[key]*8192, key)
        R = reads(u + 1) if u + 1 < NS else []
        M = []
        for (rb, cb) in ((0,0),(0,1),(1,0),(1,1)):
            c = "0" if u == 0 else f"v[{acc(rb,cb)}:{acc(rb,cb)+15}]"
            A = (PRE + 8*(u - R0) + 4*rb) if R0 <= u < R1 else (fb + 4*rb)
            M.append(f"v_mfma_f32_32x32x16_bf16 v[{acc(rb,cb)}:{acc(rb,cb)+15}], v[{A}:{A+3}], v[{fb+8+4*cb}:{fb+8+4*cb+3}], {c}")
        seq = []
        nD = len(D); per = [D[0:2], D[2:4], D[4:5], D[5:6]] if nD > 4 else [D[0:1], D[1:2], D[2:3], D[3:4]]
        for g in per[0]: seq += g
        seq += R[:2]
        seq.append(M[0])
        for g in per[1]: seq += g
        seq += R[2:4]
        seq.append(M[1])
        for g in per[2]: seq += g
        seq += R[4:]
        seq.append(M[2])
        for g in per[3]: seq += g
        seq.append(M[3])
        for l in seq: a(l)
    st.stamp()
    if sst:
        st.flush(S_W); a("s_endpgm"); return
    a("v_lshlrev_b32 v11, 4, v0")
    a(f"s_lshl_b32 s{S_TMP}, s{S_W}, 12")
    a(f"v_add_u32 v12, s{S_TMP}, v11")
    a("s_nop 7")
    a("s_barrier")
    for beta in range(4):
        rb, cb = beta >> 1, beta & 1
        a(f"s_cmp_eq_u32 s{S_W}, {beta}")
        a(f"s_cbranch_scc1 g2_skipw{beta}")
        for q in range(4):
            a(f"ds_write_b128 v12, v[{acc(rb,cb)+4*q}:{acc(rb,cb)+4*q+3}] offset:{beta*16384 + q*1024}")
        a.label(f"g2_skipw{beta}")
    for beta in range(4):
        rb, cb = beta >> 1, beta & 1
        a(f"s_cmp_lg_u32 s{S_W}, {beta}")
        a(f"s_cbranch_scc1 g2_skipm{beta}")
        for r in range(16):
            a(f"v_mov_b32 v{24+r}, v{acc(rb,cb)+r}")
        a.label(f"g2_skipm{beta}")
    a("s_waitcnt lgkmcnt(0)")
    a("s_barrier")
    st.stamp()
    a(f"s_lshl_b32 s{S_TMP}, s{S_W}, 14")
    a(f"v_add_u32 v12, s{S_TMP}, v11")
    for k in range(1, 4):
        a(f"s_add_u32 s{S_TMP}, s{S_W}, {k}")
        a(f"s_and_b32 s{S_TMP}, s{S_TMP}, 3")
        a(f"s_lshl_b32 s{S_TMP}, s{S_TMP}, 12")
        a(f"v_add_u32 v13, s{S_TMP}, v12")
        for q in range(4):
            a(f"ds_read_b128 v[{64+16*(k-1)+4*q}:{64+16*(k-1)+4*q+3}], v13 offset:{q*1024}")
    a("v_lshrrev_b32 v10, 4, v0")
    a("v_lshrrev_b32 v13, 2, v0")
    a("v_and_b32 v13, 3, v13")
    a("v_and_b32 v14, 3, v0")
    a("v_lshrrev_b32 v15, 1, v10")
    a("v_lshlrev_b32 v15, 3, v15")
    a("v_add_u32 v15, v15, v13")
    a("v_lshlrev_b32 v15, 7, v15")
    a("v_and_b32 v16, 1, v10")
    a("v_lshlrev_b32 v16, 5, v16")
    a("v_add_u32 v15, v15, v16")
    a("v_lshlrev_b32 v14, 3, v14")
    a("v_add_u32 v15, v15, v14")
    a(f"s_lshr_b32 s{S_TMP}, s{S_W}, 1")
    a(f"s_lshl_b32 s{S_TMP}, s{S_TMP}, 12")
    a(f"s_and_b32 s{S_TMP2}, s{S_W}, 1")
    a(f"s_lshl_b32 s{S_TMP2}, s{S_TMP2}, 6")
    a(f"s_add_u32 s{S_TMP}, s{S_TMP}, s{S_TMP2}")
    a(f"s_add_u32 s{S_TMP}, s{S_TMP}, {ATL}")
    a(f"v_add_u32 v15, s{S_TMP}, v15")
    OT = 0
    a("v_and_b32 v10, 31, v0")
    a("v_lshrrev_b32 v11, 5, v0")
    a(f"s_and_b32 s{S_TMP}, s{S_W}, 1")
    a(f"s_lshl_b32 s{S_TMP}, s{S_TMP}, 5")
    a(f"v_add_u32 v10, s{S_TMP}, v10")
    a(f"s_lshr_b32 s{S_TMP2}, s{S_W}, 1")
    a(f"s_lshl_b32 s{S_TMP2}, s{S_TMP2}, 2")
    a(f"v_add_u32 v11, s{S_TMP2}, v11")
    a("v_and_b32 v12, 7, v10")
    a("v_xor_b32 v11, v11, v12")
    a("v_lshlrev_b32 v10, 7, v10")
    a("v_lshlrev_b32 v12, 4, v11")
    a("v_add_u32 v13, v10, v12")
    a("v_xor_b32 v12, 32, v12")
    a("v_add_u32 v14, v10, v12")
    a("v_lshrrev_b32 v10, 3, v0")
    a("v_and_b32 v11, 7, v0")
    a("v_xor_b32 v11, v11, v10")
    a("v_lshlrev_b32 v11, 4, v11")
    a("v_mul_u32_u24 v10, 896, v10")
    a("v_add_u32 v10, v10, v11")
    a("v_lshlrev_b32 v12, 4, v0")
    a(f"v_add_u32 v12, s{S_L}, v12")
    a(f"s_lshl_b32 s{S_TMP}, s{S_W}, 4")
    a(f"s_add_u32 s{S_TMP}, s{S_TMP}, s{S_T0}")
    a(f"s_mul_i32 s{S_TMP}, s{S_TMP}, 896")
    a(f"s_lshl_b32 s{S_TMP2}, s{S_D0}, 1")
    a(f"s_add_u32 s{S_TMP2}, s{S_TMP2}, s{S_TMP}")
    a("s_mov_b32 s39, 0xffff0000")
    a("s_waitcnt lgkmcnt(0)")
    for r in range(16):
        a(f"v_add_f32 v{24+r}, v{24+r}, v{64+r}")
        a(f"v_add_f32 v{80+r}, v{80+r}, v{96+r}")
    for r in range(16):
        a(f"v_add_f32 v{24+r}, v{24+r}, v{80+r}")
    for p in range(8):
        a(f"v_cvt_pk_bf16_f32 v52, v{24+2*p}, v{25+2*p}")
        a(f"v_lshlrev_b32 v{64+2*p}, 16, v52")
        a(f"v_and_b32 v{65+2*p}, s39, v52")
    a("s_waitcnt vmcnt(0)")
    a(f"v_sub_f32 v9, 1.0, v{V_G}")
    a("v_cvt_pk_bf16_f32 v9, v9, v9")
    a("v_lshlrev_b32 v9, 16, v9")
    for p in range(8):
        a(f"v_mul_f32 v53, v9, v{64+2*p}")
        a(f"v_mul_f32 v54, v9, v{65+2*p}")
        a(f"v_cvt_pk_bf16_f32 v52, v53, v54")
        a(f"v_lshlrev_b32 v{64+2*p}, 16, v52")
        a(f"v_and_b32 v{65+2*p}, s39, v52")
    a("s_waitcnt vmcnt(0)")
    a("s_barrier")
    for Q in range(2):
        for h2 in range(2):
            a(f"ds_read_b64_tr_b16 v[{44+4*Q+2*h2}:{44+4*Q+2*h2+1}], v15 offset:{(16*Q+4*h2)*128}")
    a("s_waitcnt lgkmcnt(0)")
    for Q in range(2):
        for p in range(4):
            av = 44 + 4*Q + p; bb = 64 + 8*Q + 2*p
            a(f"v_lshlrev_b32 v55, 16, v{av}")
            a(f"v_and_b32 v56, s39, v{av}")
            a(f"v_mul_f32 v55, v{V_G}, v55")
            a(f"v_mul_f32 v56, v{V_G}, v56")
            a(f"v_cvt_pk_bf16_f32 v55, v55, v56")
            a(f"v_lshlrev_b32 v56, 16, v55")
            a(f"v_and_b32 v55, s39, v55")
            a(f"v_add_f32 v53, v{bb}, v56")
            a(f"v_add_f32 v54, v{bb+1}, v55")
            a(f"v_cvt_pk_bf16_f32 v{24+4*Q+p}, v53, v54")
        a(f"ds_write_b128 v{13+Q}, v[{24+4*Q}:{27+4*Q}] offset:{OT}")
    a("s_waitcnt lgkmcnt(0)")
    a("s_barrier")
    a(f"ds_read_b128 v[32:35], v12 offset:{OT}")
    a(f"ds_read_b128 v[36:39], v12 offset:{OT+1024}")
    for i in range(2):
        a(f"s_waitcnt lgkmcnt({1-i})")
        a(f"s_add_u32 s{S_TMP}, s{S_TMP2}, {8*i*896}")
        a(f"buffer_store_dwordx4 v[{32+4*i}:{35+4*i}], v10, s[{SRD_O}:{SRD_O+3}], s{S_TMP} offen")
    st.stamp()
    for _ in range(diagdelay): a("s_sleep 32")
    dbg_event(a, 5)
    if st.on: a("s_waitcnt vmcnt(0)")
    st.stamp(real=True)
    st.flush(S_W)
```

```python
from asmlib import *

def aux(a, st, s_ax, s_k, s_j, mshift=0, wdpf=True, publish=None):
    S_W = 4; S_T0 = 5
    SRD_X = 8; SRD_GW = 12; SRD_G = 20; SRD_F = 52
    S_TMP = 24; S_TMP2 = 25
    P0 = 28
    a.c("---- aux role (gate) ----")
    a(f"s_lshl_b32 s{S_T0}, s{s_ax}, 6")
    a(f"s_load_dwordx2 s[{P0}:{P0+1}], s[0:1], {KA['u']}")
    a(f"s_load_dwordx2 s[{P0+2}:{P0+3}], s[0:1], {KA['ws']}")
    a(f"s_load_dwordx2 s[{P0+4}:{P0+5}], s[0:1], {KA['gw']}")
    a(f"s_load_dwordx2 s[{P0+6}:{P0+7}], s[0:1], {KA['dbg']}")
    a("v_lshrrev_b32 v10, 4, v0")
    a("v_lshrrev_b32 v11, 3, v0")
    a("v_mul_u32_u24 v11, 896, v11")
    a("v_and_b32 v12, 7, v0")
    a("v_xor_b32 v13, v12, v10")
    a("v_lshlrev_b32 v13, 4, v13")
    a("v_add_u32 v2, v11, v13")
    a("v_xor_b32 v13, 64, v13")
    a("v_add_u32 v3, v11, v13")
    a(f"v_add_u32 v3, {8*896 - 1024}, v3")
    a("v_lshlrev_b32 v4, 4, v0")
    a(f"s_lshl_b32 s{S_TMP}, s{S_W}, 4")
    a(f"s_add_u32 s{S_TMP2}, s{S_T0}, s{S_TMP}")
    a(f"s_mul_i32 s26, s{S_TMP2}, 896")
    a(f"s_lshl_b32 s27, s{S_W}, 11")
    a("s_waitcnt lgkmcnt(0)")
    srd_from(a, SRD_X, P0, 2048*448*2)
    srd_from(a, SRD_GW, P0+4, 448*2)
    for k in range(7):
        a(f"s_add_u32 m0, s27, {k*8192}")
        a(f"s_add_u32 s{S_TMP}, s26, {128*k}")
        a(f"buffer_load_dwordx4 v2, s[{SRD_X}:{SRD_X+3}], s{S_TMP} offen lds")
        a(f"buffer_load_dwordx4 v3, s[{SRD_X}:{SRD_X+3}], s{S_TMP} offen offset:1024 lds")
    a(f"s_lshl_b32 s{S_TMP}, s{S_W}, 10")
    a(f"s_add_u32 m0, s{S_TMP}, 57344")
    a("s_nop 0")
    a(f"buffer_load_dwordx4 v4, s[{SRD_GW}:{SRD_GW+3}], 0 offen lds")
    a("v_lshrrev_b32 v10, 2, v0")
    a(f"s_lshl_b32 s26, s{S_W}, 4")
    a("v_add_u32 v10, s26, v10")
    a("v_lshrrev_b32 v11, 1, v10")
    a("v_and_b32 v11, 7, v11")
    a("v_and_b32 v12, 3, v0")
    a("v_lshlrev_b32 v14, 1, v12")
    a("v_xor_b32 v14, v14, v11")
    a("v_lshlrev_b32 v13, 7, v10")
    a("v_lshlrev_b32 v14, 4, v14")
    a("v_add_u32 v18, v13, v14")
    a("v_xor_b32 v14, 16, v14")
    a("v_add_u32 v19, v13, v14")
    a("v_lshlrev_b32 v17, 5, v12")
    a(f"s_add_u32 s{S_TMP}, s{S_TMP}, 57344")
    a(f"v_add_u32 v17, s{S_TMP}, v17")
    GW = 64; GX = 120
    if wdpf == 2:
        a(f"s_load_dwordx2 s[44:45], s[0:1], {KA['wd']}")
        a(f"s_lshl_b32 s58, s{s_ax}, 2")
        a(f"s_add_u32 s58, s58, s{S_W}")
        a("s_mul_i32 s58, s58, 13312")
        a("v_lshlrev_b32 v60, 4, v0")
        a("s_waitcnt lgkmcnt(0)")
        a(f"s_mov_b32 s46, {1792*448*2}"); a("s_mov_b32 s47, 0x20000")
        for i in range(13):
            a(f"buffer_load_dwordx4 v[{200+4*(i%8)}:{203+4*(i%8)}], v60, s[44:47], s58 offen")
            a("s_add_u32 s58, s58, 1024")
    if wdpf == 1:
        a(f"s_load_dwordx2 s[44:45], s[0:1], {KA['wd']}")
        a(f"s_lshl_b32 s58, s{s_j}, 2")
        a(f"s_add_u32 s58, s58, s{S_W}")
        a("s_mul_i32 s58, s58, 100352")
        a("v_lshlrev_b32 v60, 4, v0")
        a("s_waitcnt lgkmcnt(0)")
        a(f"s_mov_b32 s46, {1792*448*2}"); a("s_mov_b32 s47, 0x20000")
    srd_from(a, SRD_G, P0+2, SZ_G, WS_G)
    srd_from(a, SRD_F, P0+2, SZ_F, WS_F)
    a(f"s_cmp_lg_u32 s{S_W}, 0")
    a("s_cbranch_scc1 aux_mf_done")
    wait_tag(a, "aux_wr", P0+6, 37, S_TMP2, 10, 11)
    a(f"s_sub_u32 s{S_TMP2}, s{s_j}, {mshift}")
    a(f"s_cmp_ge_u32 s{S_TMP2}, 28")
    a("s_cbranch_scc1 aux_mf_done")
    a(f"s_lshl_b32 s{S_TMP}, s{S_TMP2}, 3")
    a(f"s_add_u32 s{S_TMP}, s{S_TMP}, s{s_k}")
    a(f"s_add_u32 s{S_TMP}, s{S_TMP}, {L_M}")
    a(f"s_lshl_b32 s{S_TMP}, s{S_TMP}, 7")
    set_flags(a, SRD_F, S_TMP, 37, 1, 0, 10, 11)
    a.label("aux_mf_done")
    st.stamp()
    a("s_waitcnt vmcnt(0)")
    st.stamp()
    for k in range(7):
        a(f"ds_read_b128 v[{GX+8*k}:{GX+8*k+3}], v18 offset:{k*8192}")
        a(f"ds_read_b128 v[{GX+8*k+4}:{GX+8*k+7}], v19 offset:{k*8192}")
        a(f"ds_read_b128 v[{GW+8*k}:{GW+8*k+3}], v17 offset:{128*k}")
        a(f"ds_read_b128 v[{GW+8*k+4}:{GW+8*k+7}], v17 offset:{128*k+16}")
    a("s_waitcnt lgkmcnt(0)")
    a("v_mov_b32 v20, 0")
    a("v_mov_b32 v21, 0")
    a("s_mov_b32 s36, 0xffff0000")
    for k in range(7):
        for j in range(8):
            if wdpf == 1 and j % 4 == 0:
                for i in range(7):
                    a(f"buffer_load_dwordx4 v[{200+4*i}:{203+4*i}], v60, s[44:47], s58 offen")
                    a("s_add_u32 s58, s58, 1024")
            x = GX + 8*k + j; g = GW + 8*k + j
            acc = 20 + (j & 1)
            a(f"v_lshlrev_b32 v22, 16, v{x}")
            a(f"v_and_b32 v{x}, s36, v{x}")
            a(f"v_lshlrev_b32 v23, 16, v{g}")
            a(f"v_and_b32 v{g}, s36, v{g}")
            a(f"v_mul_f32 v22, v22, v23")
            a(f"v_mul_f32 v{x}, v{x}, v{g}")
            a(f"v_cvt_pk_bf16_f32 v22, v22, v{x}")
            a(f"v_lshlrev_b32 v23, 16, v22")
            a(f"v_and_b32 v22, s36, v22")
            a(f"v_add_f32 v20, v20, v23")
            a(f"v_add_f32 v20, v20, v22")
    a("s_nop 1")
    a("v_add_f32_dpp v20, v20, v20 quad_perm:[1,0,3,2] row_mask:0xf bank_mask:0xf")
    a("s_nop 1")
    a("v_add_f32_dpp v20, v20, v20 quad_perm:[2,3,0,1] row_mask:0xf bank_mask:0xf")
    a("v_cvt_pk_bf16_f32 v20, v20, v20")
    a("v_lshlrev_b32 v20, 16, v20")
    a("v_mul_f32 v20, 0xbfb8aa3b, v20")
    a("v_exp_f32 v20, v20")
    a("s_nop 0")
    a("v_add_f32 v20, 1.0, v20")
    a("v_rcp_f32 v20, v20")
    a("s_nop 0")
    a("v_cvt_pk_bf16_f32 v20, v20, v20")
    a("v_lshlrev_b32 v20, 16, v20")
    a("v_lshrrev_b32 v10, 2, v0")
    a("v_lshlrev_b32 v10, 2, v10")
    a(f"s_lshl_b32 s{S_TMP}, s{S_W}, 4")
    a(f"s_add_u32 s{S_TMP}, s{S_TMP}, s{S_T0}")
    a(f"s_lshl_b32 s{S_TMP}, s{S_TMP}, 2")
    a("v_and_b32 v11, 3, v0")
    a("v_cmp_eq_u32 vcc, 0, v11")
    a("s_and_saveexec_b64 s[38:39], vcc")
    a(f"buffer_store_dword v20, v10, s[{SRD_G}:{SRD_G+3}], s{S_TMP} offen sc1")
    a("s_mov_b64 exec, s[38:39]")
    a("s_waitcnt vmcnt(0)")
    st.stamp()
    a("s_barrier")
    a(f"s_cmp_lg_u32 s{S_W}, 0")
    a("s_cbranch_scc1 aux_done")
    a(f"s_mul_i32 s{S_TMP}, s{s_ax}, {7*128}")
    a(f"s_add_u32 s{S_TMP}, s{S_TMP}, 56")
    set_flags(a, SRD_F, S_TMP, 37, 7, 128, 10, 11)
    a.label("aux_done")
```

```python
from asmlib import *
import gemm1, gemm1b, aux2, side2, gemm2

def publish(a):
    a("s_cmp_lg_u32 s2, 0")
    a("s_cbranch_scc1 pub_skip")
    a("s_cmp_lg_u32 s4, 0")
    a("s_cbranch_scc1 pub_skip")
    a(f"s_load_dwordx2 s[44:45], s[0:1], {KA['dbg']}")
    a("s_memrealtime s[46:47]")
    a("s_waitcnt lgkmcnt(0)")
    a("s_or_b32 s46, s46, 1")
    a("v_mov_b32 v22, s46")
    a("v_mov_b32 v21, 0")
    a("s_mov_b64 exec, 1")
    a("global_store_dword v21, v22, s[44:45] sc1")
    a("s_mov_b64 exec, -1")
    a.label("pub_skip")

NIPF = 3
def fused(opts):
    stamps = opts.get("stamps", False)
    gemm2.SLEEP = opts.get('sleep', 2)
    gemm2.TWOPASS = bool(opts.get('tp', 0)); gemm2.EARLY_AREA = [8, 9, 4, 5, 6, 7] if gemm2.TWOPASS else [4, 5, 8, 9, 6, 7]
    gemm2.RESIDENT = (opts.get('np', 0) == 0)
    Stamps.ALLREAL = not opts.get('cyc')
    import asmlib; asmlib.DBGEV = bool(opts.get('dbgev'))
    a = Asm()
    st = Stamps(a, 60 if not stamps else 60, stamps)
    a("s_cmp_ge_u32 s2, 480")
    a("s_cbranch_scc1 f_exit")
    st.stamp(real=True); st.stamp()
    for _ in range(opts.get('dd0', 0)): a("s_sleep 32")
    if opts.get("mainfirst", 0):
        a("s_add_u32 s3, s2, 224")
        a("s_sub_u32 s5, s2, 256")
        a("s_cmp_lt_u32 s2, 256")
        a("s_cselect_b32 s2, s3, s5")
    a("v_lshrrev_b32 v1, 6, v0")
    a("v_and_b32 v0, 63, v0")
    a("v_readfirstlane_b32 s4, v1")
    a("s_nop 3")
    publish(a)
    if opts.get("ipf", 1):
        a("s_cmp_ge_u32 s2, 8")
        a("s_cbranch_scc1 f_noipf")
        a("s_getpc_b64 s[96:97]")
        a.label("f_ipf_base")
        a("v_lshlrev_b32 v2, 6, v0")
        a("s_lshl_b32 s98, s4, 12")
        a("v_add_u32 v2, s98, v2")
        a("s_mov_b32 s99, f_code_end - f_ipf_base - 4")
        for i in range(NIPF):
            a("v_min_u32 v3, s99, v2")
            a(f"global_load_dword v{200+i}, v3, s[96:97]")
            a("v_add_u32 v2, 0x4000, v2")
        a.label("f_noipf")
    a("s_cmp_lt_u32 s2, 224")
    a("s_cbranch_scc1 f_side" if not opts.get("noside") else "s_cbranch_scc1 f_exit")
    if opts.get("prio"): a(f"s_setprio {opts['prio']}")
    dbg_event(a, 0)
    a("s_sub_u32 s3, s2, 224")
    a("s_and_b32 s40, s3, 7")
    a("s_lshr_b32 s41, s3, 3")
    a("s_sub_u32 s44, s41, 4")
    a("s_cmp_ge_u32 s41, 8")
    a("s_cselect_b32 s45, s44, 28")
    a("s_cmp_lt_u32 s41, 4")
    a("s_cselect_b32 s45, s41, s45")
    a("s_lshl_b32 s3, s45, 3")
    a("s_add_u32 s3, s3, s40")
    a("s_cbranch_scc1 f_aux") if False else None
    a("s_cmp_lt_u32 s41, 4")
    a("s_cbranch_scc1 f_aux")
    a("s_mul_i32 s46, s44, 37")
    a("s_lshr_b32 s46, s46, 8")
    a("s_mul_i32 s47, s46, 7")
    a("s_sub_u32 s47, s44, s47")
    a("s_lshr_b32 s48, s40, 1")
    a("s_lshl_b32 s48, s48, 2")
    a("s_add_u32 s48, s48, s46")
    a("s_and_b32 s49, s40, 1")
    a("s_mul_i32 s49, s49, 7")
    a("s_add_u32 s49, s49, s47")
    rotc = opts.get("rotc", 6)
    a("s_add_u32 s50, s48, s49")
    if rotc == 1: a("s_mov_b32 s50, 0")
    elif rotc == 2:
        a("s_and_b32 s50, s50, 1"); a("s_mul_i32 s50, s50, 4")
    elif rotc == 4:
        a("s_and_b32 s50, s50, 3"); a("s_lshl_b32 s50, s50, 1")
    elif rotc == 6:
        a("s_mul_i32 s51, s50, 43"); a("s_lshr_b32 s51, s51, 8"); a("s_mul_i32 s51, s51, 6"); a("s_sub_u32 s50, s50, s51")
    elif rotc == 3:
        a("s_mul_i32 s51, s50, 86"); a("s_lshr_b32 s51, s51, 8"); a("s_mul_i32 s51, s51, 3"); a("s_sub_u32 s50, s50, s51"); a("s_lshl_b32 s50, s50, 1")
    else:
        a("s_mul_i32 s51, s50, 37"); a("s_lshr_b32 s51, s51, 8"); a("s_mul_i32 s51, s51, 7"); a("s_sub_u32 s50, s50, s51")
    msh = (0 if opts.get('mainfirst', 0) else 4)
    if gemm2.TWOPASS:
        gemm1b.gemm1(a, st, 48, 49, 50, exact_round=opts.get('exact', 0), NPRO=opts.get('npro', 4), s_k=40, s_j=41, MFU=opts.get('mfu', 24), publish=None, tail=gemm2, s_main=3, mshift=msh, pstamps=opts.get('pst', 0), ust=opts.get('ust', 0))
    else:
        gemm1.gemm1(a, st, 48, 49, 50, exact_round=opts.get('exact', 0), NPRO=opts.get('npro', 4), unitstamps=opts.get('ust', 0), s_k=40, s_j=41, MFU=opts.get('mfu', 13), hybrid=opts.get('hyb', 1), publish=None, tail=gemm2, s_main=3, mshift=msh)
    a("s_branch f_g2")
    a.label("f_aux")
    a("s_lshl_b32 s48, s40, 2")
    a("s_add_u32 s48, s48, s41")
    n0 = st.n; st.n = 2
    aux2.aux(a, st, 48, 40, 41, mshift=(0 if opts.get('mainfirst', 0) else 4), wdpf=opts.get('wdpf', 2))
    st.n = 6; st.stamp(); st.n = n0
    gemm2.setup_w(a, 3)
    if opts.get('early', 1):
        a("s_barrier")
        for p in range(6):
            for g in gemm2.dma_w_lines(gemm2.EARLY_AREA[p]*8192, p):
                for l in g: a(l)
        a("s_waitcnt vmcnt(0)")
        gemm2.pre_dma(a)
        a("s_mov_b32 s58, 0")
    a.label("f_g2")
    a("s_lshr_b32 s41, s3, 3")
    a("s_cmp_ge_u32 s41, 28" if not opts.get("nog2") else "s_cmp_ge_u32 s41, 0")
    a("s_cbranch_scc1 f_early")
    a("s_and_b32 s40, s3, 7")
    a("s_lshl_b32 s40, s40, 2")
    a("s_and_b32 s42, s41, 3")
    a("s_add_u32 s44, s40, s42")
    a("s_lshr_b32 s45, s41, 2")
    gemm2.gemm2(a, st, 44, 45, rot=opts.get('rot2', 1), NP=opts.get('np', 0), prio=opts.get('prio2', 0), early=opts.get('early', 1), sst=opts.get('sst', 0), hsc1=opts.get('hsc1', 1), print_sched=opts.get('ps', 0), diagdelay=opts.get('dd', 0), NREG=opts.get('nreg', 16))
    a("s_endpgm")
    a.label("f_early")
    a("s_waitcnt vmcnt(0)")
    a("s_barrier")
    gemm2.h_flag(a, 52, "fe")
    if stamps:
        n0 = st.n; st.n = 7; st.flush(4); st.n = n0
    a("s_endpgm")
    a.label("f_side")
    a("s_and_b32 s40, s2, 7")
    a("s_lshr_b32 s41, s2, 3")
    a("s_mul_i32 s3, s40, 28")
    a("s_add_u32 s3, s3, s41")
    st2 = Stamps(a, 60, stamps); st2.n = 2
    side2.side(a, st2, 3, gate=opts.get('gate', 1), sleep=opts.get('ssleep', 4), pf=opts.get('pf', 0), p0early=opts.get('p0e', 1), latetile=opts.get('lt', 1), lategate=opts.get('lg', 0), lateparam=opts.get('lp', 1), tlb=opts.get('tlb', 0))
    a.label("f_exit")
    a("s_endpgm")
    a.label("f_code_end")
    return a
```

```python
from asmlib import *

NSLOT = 5
SLEEP = 2
NS = 28

SRD_WD = 92; S_WCUR = 96; S_WLIM = 97; S_L2 = 98; V_W0 = 20; V_W1 = 19
S_R = 38; S_PH = 39; S_WB = 47
TWOPASS = False
EARLY_AREA = [4, 5, 8, 9, 6, 7]
def setup_w(a, s_main, rot=True):
    a(f"s_load_dwordx2 s[{SRD_WD}:{SRD_WD+1}], s[0:1], {KA['wd']}")
    a("v_lshrrev_b32 v10, 4, v0")
    a("v_lshrrev_b32 v11, 3, v0")
    a("v_and_b32 v12, 7, v0")
    a("v_and_b32 v13, 1, v10")
    a("v_lshlrev_b32 v13, 2, v13")
    a("v_xor_b32 v13, v13, v12")
    a("v_lshlrev_b32 v13, 4, v13")
    a("v_mul_u32_u24 v12, 896, v11")
    a(f"v_add_u32 v{V_W0}, v12, v13")
    a(f"v_add_u32 v{V_W1}, {8*896 - 1024}, v{V_W0}")
    a(f"s_lshr_b32 s99, s{s_main}, 3")
    a("s_and_b32 s100, s99, 3")
    a("s_mul_i32 s100, s100, 3")
    a("s_lshr_b32 s99, s99, 2")
    a("s_lshl_b32 s101, s99, 1")
    a("s_add_u32 s100, s100, s101")
    a("s_sub_u32 s101, s100, 14")
    a("s_cmp_ge_u32 s100, 14")
    a("s_cselect_b32 s100, s101, s100")
    if not rot: a("s_mov_b32 s100, 0")
    a(f"s_mov_b32 s{S_R}, s100")
    a(f"s_and_b32 s101, s{s_main}, 1")
    a(f"s_mul_i32 s{S_PH}, s101, 14")
    a(f"s_lshl_b32 s101, s4, 4")
    a(f"s_mul_i32 s{S_WB}, s101, 896")
    a("s_lshl_b32 s99, s99, 7")
    a(f"s_add_u32 s{S_WB}, s{S_WB}, s99")
    if TWOPASS:
        a(f"s_add_u32 s{S_WLIM}, s{S_WB}, {28*64*896}")
        a(f"s_mul_i32 s99, s100, {128*896}")
        a(f"s_add_u32 s{S_WCUR}, s{S_WB}, s99")
    else:
        a(f"s_add_u32 s99, s{S_PH}, 14")
        a(f"s_mul_i32 s99, s99, {64*896}")
        a(f"s_add_u32 s{S_WLIM}, s{S_WB}, s99")
        a(f"s_add_u32 s99, s{S_PH}, s100")
        a(f"s_mul_i32 s99, s99, {64*896}")
        a(f"s_add_u32 s{S_WCUR}, s{S_WB}, s99")
    a(f"s_lshl_b32 s{S_L2}, s4, 11")
    a("s_waitcnt lgkmcnt(0)")
    a(f"s_mov_b32 s{SRD_WD+2}, {1792*448*2}")
    a(f"s_mov_b32 s{SRD_WD+3}, 0x20000")

def advance(cur, lim, step, i, base_reg, tmp):
    if TWOPASS:
        if i == 13:
            return [f"s_mul_i32 s{tmp}, s{S_R}, {2*step}", f"s_add_u32 s{cur}, s{base_reg}, s{tmp}", f"s_add_u32 s{cur}, s{cur}, {step}",
                    f"s_add_u32 s{lim}, s{base_reg}, {29*step}"]
        return [f"s_add_u32 s{cur}, s{cur}, {2*step}", f"s_sub_u32 s{tmp}, s{cur}, {28*step}",
                f"s_cmp_ge_u32 s{cur}, s{lim}", f"s_cselect_b32 s{cur}, s{tmp}, s{cur}"]
    if i == 13:
        return [f"s_sub_u32 s{tmp}, 14, s{S_PH}", f"s_mul_i32 s{tmp}, s{tmp}, {step}", f"s_add_u32 s{cur}, s{base_reg}, s{tmp}",
                f"s_add_u32 s{lim}, s{base_reg}, {28*step}"]
    n = 14 if i < 13 else 28
    return [f"s_add_u32 s{cur}, s{cur}, {step}", f"s_sub_u32 s{tmp}, s{cur}, {n*step}",
            f"s_cmp_ge_u32 s{cur}, s{lim}", f"s_cselect_b32 s{cur}, s{tmp}, s{cur}"]

def dma_w_lines(ldsoff, i):
    g0 = [f"s_add_u32 m0, s{S_L2}, {ldsoff}", "s_nop 0",
          f"buffer_load_dwordx4 v{V_W0}, s[{SRD_WD}:{SRD_WD+3}], s{S_WCUR} offen lds"]
    g1 = [f"buffer_load_dwordx4 v{V_W1}, s[{SRD_WD}:{SRD_WD+3}], s{S_WCUR} offen offset:1024 lds"] + advance(S_WCUR, S_WLIM, 64*896, i, S_WB, 99)
    return [g0, g1]

RESIDENT = False
def pre_dma(a):
    if RESIDENT: return
    for p in range(6, 10):
        for g in dma_w_lines((p-6)*8192, p):
            for l in g: a(l)

def h_flag(a, srd_f, tag):
    a("s_cmp_lg_u32 s4, 0")
    a(f"s_cbranch_scc1 {tag}_flagged")
    a("s_cmp_eq_u32 s58, 0")
    a(f"s_cbranch_scc1 {tag}_flagged")
    set_flags(a, srd_f, 57, 37, 14, 128, 10, 11)
    a.label(f"{tag}_flagged")
    dbg_event(a, 3)

def gemm2(a, st, s_tt, s_ct, rot=True, NP=16, prio=0, early=True, sst=False, hsc1=True, print_sched=False, diagdelay=0, NREG=16):
    S_W = 4; S_T0 = 5; S_D0 = 6
    SRD_H = 8; SRD_AT = 16; SRD_O = 20
    S_TMP = 24; S_TMP2 = 25; S_HCUR = 26
    P0 = 28
    S_L = 36; S_HLIM = 27; SRD_G = 52; SRD_F = 48; S_HB = 40; S_LINE = 41
    a.c("---- GEMM2 role ----")
    if sst: st.n = 1
    else: st.n = 6
    a(f"s_load_dwordx2 s[{P0+2}:{P0+3}], s[0:1], {KA['ws']}")
    a(f"s_load_dwordx2 s[{P0+4}:{P0+5}], s[0:1], {KA['out']}")
    if prio: a(f"s_setprio {prio}")
    a(f"s_lshl_b32 s{S_T0}, s{s_tt}, 6")
    a(f"s_lshl_b32 s{S_D0}, s{s_ct}, 6")
    V_H0, V_H1 = 2, 3
    a("v_lshrrev_b32 v10, 4, v0")
    a("v_lshrrev_b32 v11, 3, v0")
    a("v_and_b32 v12, 7, v0")
    a("v_xor_b32 v13, v12, v10")
    a("v_lshlrev_b32 v13, 4, v13")
    a("v_mul_u32_u24 v14, 3584, v11")
    a(f"v_add_u32 v{V_H0}, v14, v13")
    a("v_xor_b32 v13, 64, v13")
    a(f"v_add_u32 v{V_H1}, v14, v13")
    a(f"v_add_u32 v{V_H1}, {8*3584 - 1024}, v{V_H1}")
    a(f"s_lshl_b32 s{S_TMP}, s{S_W}, 4")
    a(f"s_add_u32 s{S_HB}, s{S_T0}, s{S_TMP}")
    a(f"s_mul_i32 s{S_HB}, s{S_HB}, 3584")
    if TWOPASS:
        a(f"s_add_u32 s{S_HLIM}, s{S_HB}, 3584")
        a(f"s_lshl_b32 s{S_TMP}, s{S_R}, 8")
        a(f"s_add_u32 s{S_HCUR}, s{S_HB}, s{S_TMP}")
    else:
        a(f"s_add_u32 s{S_TMP}, s{S_PH}, 14")
        a(f"s_lshl_b32 s{S_TMP}, s{S_TMP}, 7")
        a(f"s_add_u32 s{S_HLIM}, s{S_HB}, s{S_TMP}")
        a(f"s_add_u32 s{S_TMP}, s{S_PH}, s{S_R}")
        a(f"s_lshl_b32 s{S_TMP}, s{S_TMP}, 7")
        a(f"s_add_u32 s{S_HCUR}, s{S_HB}, s{S_TMP}")
    a(f"s_lshl_b32 s{S_L}, s{S_W}, 11")
    a(f"s_mul_i32 s{S_LINE}, s{s_tt}, 7")
    a(f"s_add_u32 s{S_LINE}, s{S_LINE}, s{s_ct}")
    a(f"s_lshl_b32 s{S_LINE}, s{S_LINE}, 7")
    if TWOPASS: a("s_mov_b32 s46, 0x3fff")
    else:
        a(f"s_lshr_b32 s46, s{S_PH}, 1")
        a("s_lshl_b32 s46, 0x7f, s46")
    a("s_waitcnt lgkmcnt(0)")
    vm = []
    def dma_w(ldsoff, key):
        vm.append(key)
        return dma_w_lines(ldsoff, key[1])
    def dma_h(u, ar):
        g0 = [f"s_add_u32 m0, s{S_L}, {ar*8192}", "s_nop 0",
              f"buffer_load_dwordx4 v{V_H0}, s[{SRD_H}:{SRD_H+3}], s{S_HCUR} offen {'sc1' if hsc1 else ''} lds"]
        g1 = [f"buffer_load_dwordx4 v{V_H1}, s[{SRD_H}:{SRD_H+3}], s{S_HCUR} offen offset:1024 {'sc1' if hsc1 else ''} lds"] + advance(S_HCUR, S_HLIM, 128, u, S_HB, S_TMP2)
        vm.append(("H", u))
        return [g0, g1]
    def emit(groups):
        for g in groups:
            for l in g: a(l)
    def wait_for(needs):
        last = max(vm.index(n) for n in needs)
        a(f"s_waitcnt vmcnt({sum((1 if g[0] == 'S' else 2) for g in vm[last+1:])})")
    NB = 10
    area = EARLY_AREA + [0, 1, 2, 3]
    if not RESIDENT:
        for p in range(6, 10): vm.append(("P", p))
    srd_from(a, SRD_H, P0+2, SZ_H, WS_H)
    srd_from(a, SRD_AT, P0+2, SZ_AT, WS_AT)
    srd_from(a, SRD_O, P0+4, 2048*448*2)
    srd_from(a, SRD_G, P0+2, SZ_G, WS_G)
    srd_from(a, SRD_F, P0+2, SZ_F, WS_F)
    V_B = 5; V_A0 = 6; V_A1 = 7
    a("v_and_b32 v10, 31, v0")
    a("v_lshrrev_b32 v11, 5, v0")
    a("v_lshrrev_b32 v12, 1, v10")
    a("v_and_b32 v12, 7, v12")
    a(f"s_lshl_b32 s{S_TMP}, s{S_W}, 1")
    a(f"v_add_u32 v11, s{S_TMP}, v11")
    a("v_xor_b32 v12, v12, v11")
    a("v_lshlrev_b32 v12, 4, v12")
    a("v_lshlrev_b32 v10, 7, v10")
    a(f"v_add_u32 v{V_B}, v10, v12")
    a("v_lshrrev_b32 v10, 4, v0")
    a("v_lshrrev_b32 v11, 2, v0")
    a("v_and_b32 v11, 3, v11")
    a("v_and_b32 v12, 3, v0")
    a("v_lshrrev_b32 v13, 1, v10")
    a("v_lshlrev_b32 v13, 3, v13")
    a("v_add_u32 v13, v13, v11")
    a(f"s_lshl_b32 s{S_TMP}, s{S_W}, 4")
    a(f"v_add_u32 v13, s{S_TMP}, v13")
    a("v_lshlrev_b32 v13, 7, v13")
    a("v_lshrrev_b32 v14, 1, v12")
    a("v_lshlrev_b32 v14, 3, v14")
    a("v_add_u32 v13, v13, v14")
    a("v_and_b32 v14, 1, v10")
    a("v_lshlrev_b32 v14, 1, v14")
    a("v_and_b32 v15, 1, v12")
    a("v_add_u32 v14, v14, v15")
    a("v_lshrrev_b32 v15, 1, v11")
    a("v_lshlrev_b32 v15, 2, v15")
    a("v_xor_b32 v14, v14, v15")
    a("v_lshlrev_b32 v15, 4, v14")
    a(f"v_add_u32 v{V_A0}, v13, v15")
    a("v_xor_b32 v15, 64, v15")
    a(f"v_add_u32 v{V_A1}, v13, v15")
    a(f"v_add_u32 v16, 0x10000, v{V_B}")
    a(f"v_add_u32 v17, 0x10000, v{V_A0}")
    a(f"v_add_u32 v18, 0x10000, v{V_A1}")
    PRE = 128
    def a_reads(dst, off):
        va0, va1 = V_A0, V_A1
        if off >= 65536: off -= 65536; va0, va1 = 17, 18
        return [f"ds_read_b64_tr_b16 v[{dst}:{dst+1}], v{va0} offset:{off}",
                f"ds_read_b64_tr_b16 v[{dst+2}:{dst+3}], v{va0} offset:{off+512}",
                f"ds_read_b64_tr_b16 v[{dst+4}:{dst+5}], v{va1} offset:{off}",
                f"ds_read_b64_tr_b16 v[{dst+6}:{dst+7}], v{va1} offset:{off+512}"]
    def b_reads(dst, off):
        vb = V_B
        if off >= 65536: off -= 65536; vb = 16
        return [f"ds_read_b128 v[{dst}:{dst+3}], v{vb} offset:{off}",
                f"ds_read_b128 v[{dst+4}:{dst+7}], v{vb} offset:{off+4096}"]
    assert NP in (0, 10, 16) and (NP == 0) == RESIDENT
    R0, R1 = (6, 6 + NREG) if RESIDENT else (0, NP)
    if NP:
        for p in range(6):
            for r in a_reads(PRE + 8*p, area[p]*8192): a(r)
        a("s_waitcnt lgkmcnt(0)")
        if NP == 16:
            for p in range(10, 16):
                emit(dma_w(EARLY_AREA[p-10]*8192, ("P", p)))
    a(f"s_waitcnt vmcnt({(8 + (12 if NP == 16 else 0)) if NP else 0})")
    st.stamp()
    a("s_barrier")
    h_flag(a, SRD_F, "g2")
    if NP:
        for p in range(6, NP):
            wait_for([("P", p)])
            for r in a_reads(PRE + 8*p, (area[p] if p < 10 else EARLY_AREA[p-10])*8192): a(r)
    if RESIDENT and NREG:
        for p in range(R0, min(R0 + 4, R1)):
            emit(dma_w(((p - R0) % 4)*8192, ("P", p)))
        for p in range(R0, R1):
            wait_for([("P", p)])
            for r in a_reads(PRE + 8*(p - R0), ((p - R0) % 4)*8192): a(r)
            if p + 4 < R1:
                a("s_waitcnt lgkmcnt(0)")
                emit(dma_w(((p - R0) % 4)*8192, ("P", p + 4)))
    a("s_waitcnt lgkmcnt(0)")
    st.stamp()
    a(f"s_cmp_lg_u32 s{S_W}, 0")
    a("s_cbranch_scc1 g2_hready")
    wait_flags(a, "g2_wh", SRD_F, S_LINE, 14, 37, S_TMP, 43, 10, 11, sleep=SLEEP, s_mask=46)
    a.label("g2_hready")
    a("s_barrier")
    st.stamp()
    NINIT = 5
    FLAGST = 8
    MAXLD = 2
    sched = {}
    if RESIDENT:
        NINIT = 4
        where = {("H", u): u for u in range(NINIT)}
        for u in range(6): where[("W", u)] = EARLY_AREA[u]
        free = []
        nh, nw = NINIT, R1
    else:
        where = {("H", u): u for u in range(NINIT)}
        free = list(range(NINIT, 10))
        nh, nw = NINIT, NP
    for u in range(NS):
        free.append(where[("H", u)])
        if not (R0 <= u < R1): free.append(where[("W", u)])
        sched[u] = []
        lim = 3 if u < 3 else MAXLD
        while free and len(sched[u]) < lim:
            canh = nh < NS and (nh < 14 or u >= FLAGST)
            canw = nw < NS
            if not (canh or canw): break
            key = ("H", nh) if (canh and (not canw or nh <= nw)) else ("W", nw)
            cand = sorted(free, key=lambda x: (x >= 8 and key[1] >= 22, free.index(x)))
            ar = cand[0]; free.remove(ar); where[key] = ar
            sched[u].append(key)
            if key[0] == "H": nh += 1
            else: nw += 1
    assert nh == NS and nw == NS
    for u in range(NS):
        for key in sched[u]: assert key[1] - u >= 2, (u, key)
    if print_sched: print(sched)
    last_use = {ar: max(k[1] for k, v in where.items() if v == ar) for ar in (8, 9)}
    AT_AREA = min(last_use, key=last_use.get)
    AT_STAGE = max(last_use[AT_AREA], 23)
    assert AT_STAGE <= 27, (last_use, where)
    for u in range(NINIT):
        emit(dma_h(u, u))
    FR = [24, 40]
    ACC = 64
    def acc(rb, cb): return ACC + 16*(2*rb + cb)
    def reads(u):
        fb = FR[u % 2]
        R = b_reads(fb+8, where[("H", u)]*8192)
        if not (R0 <= u < R1):
            Ar = a_reads(fb, where[("W", u)]*8192)
            R = [R[0]] + Ar[:2] + [R[1]] + Ar[2:]
        return R
    def needs(u):
        return [("H", u)] + ([("W", u)] if ("W", u) in vm else [])
    V_FL = 21
    last_flag = [None]
    def flag_load(s_off):
        a(f"buffer_load_dword v{V_FL}, v22, s[{SRD_F}:{SRD_F+3}], s{s_off} offen sc1")
        vm.append(("S", 100 + len(vm)))
        last_flag[0] = vm[-1]
    def flag_check(name, s_off, nwords, mask=None):
        mask = mask or hex((1 << nwords) - 1)
        a(f"s_mov_b32 s45, {mask}")
        a(f"s_cmp_lg_u32 s{S_W}, 0")
        a(f"s_cbranch_scc1 {name}_done")
        wait_for([last_flag[0]])
        a(f"v_cmp_eq_u32 vcc, s37, v{V_FL}")
        a("s_nop 2")
        a(f"s_and_b32 s{S_TMP}, vcc_lo, {mask}")
        a(f"s_cmp_eq_u32 s{S_TMP}, {mask}")
        a(f"s_cbranch_scc1 {name}_done")
        wait_flags(a, name, SRD_F, s_off, nwords, 37, S_TMP, 43, 10, 11, sleep=SLEEP, s_mask=45)
        a.label(name + "_done")
    a("v_and_b32 v22, 31, v0")
    a("v_lshlrev_b32 v22, 2, v22")
    a(f"s_add_u32 s42, s{S_LINE}, {L_A*128}")
    ATL = AT_AREA*8192
    V_G = 8
    def at_loads():
        a("v_and_b32 v9, 31, v0")
        a(f"s_and_b32 s{S_TMP}, s{S_W}, 1")
        a(f"s_lshl_b32 s{S_TMP}, s{S_TMP}, 5")
        a(f"s_add_u32 s{S_TMP}, s{S_TMP}, s{S_T0}")
        a(f"v_add_u32 v9, s{S_TMP}, v9")
        a("v_lshlrev_b32 v9, 2, v9")
        a(f"buffer_load_dword v{V_G}, v9, s[{SRD_G}:{SRD_G+3}], 0 offen sc1")
        a("v_lshrrev_b32 v9, 3, v0")
        a("v_lshlrev_b32 v9, 12, v9")
        a("v_and_b32 v12, 7, v0")
        a("v_lshlrev_b32 v12, 4, v12")
        a("v_add_u32 v9, v9, v12")
        a(f"s_lshl_b32 s{S_TMP}, s{S_W}, 4")
        a(f"s_add_u32 s{S_TMP}, s{S_TMP}, s{S_D0}")
        a(f"s_lshl_b32 s{S_TMP}, s{S_TMP}, 12")
        a(f"s_lshl_b32 s{S_TMP2}, s{S_T0}, 1")
        a(f"s_add_u32 s{S_TMP2}, s{S_TMP2}, s{S_TMP}")
        for i in range(2):
            a(f"s_add_u32 m0, s{S_L}, {ATL + i*1024}")
            a(f"s_add_u32 s{S_TMP}, s{S_TMP2}, {8*i*4096}")
            a(f"buffer_load_dwordx4 v9, s[{SRD_AT}:{SRD_AT+3}], s{S_TMP} offen sc1 lds")
        for i in range(3): vm.append(("S", i))
    wait_for(needs(0))
    a("s_barrier")
    st.stamp()
    dbg_event(a, 4)
    for r in reads(0): a(r)
    for u in range(NS):
        fb = FR[u % 2]
        if sst == 2 and u in (6, 20): st.stamp()
        a("s_waitcnt lgkmcnt(0)")
        if sst == 2 and u in (6, 20): st.stamp()
        if u + 1 < NS: wait_for(needs(u+1))
        if sst == 2 and u in (6, 20): st.stamp()
        if u == FLAGST: flag_check("g2_wh2", S_LINE, 32, "0x3fff4000" if TWOPASS else "0x7fff")
        if u == AT_STAGE: flag_check("g2_wa", 42, 32)
        a("s_barrier")
        if u == FLAGST - 4: flag_load(S_LINE)
        if u == AT_STAGE - 5: flag_load(42)
        if sst == 1 and u in (2, 5, 8, 9, 12, 16, 20, 24): st.stamp()
        if sst == 2 and u in (6, 7, 20, 21): st.stamp()
        if u == AT_STAGE:
            at_loads()
        D = []
        for key in sched.get(u, []):
            D += dma_h(key[1], where[key]) if key[0] == "H" else dma_w(where[key]*8192, key)
        R = reads(u + 1) if u + 1 < NS else []
        M = []
        for (rb, cb) in ((0,0),(0,1),(1,0),(1,1)):
            c = "0" if u == 0 else f"v[{acc(rb,cb)}:{acc(rb,cb)+15}]"
            A = (PRE + 8*(u - R0) + 4*rb) if R0 <= u < R1 else (fb + 4*rb)
            M.append(f"v_mfma_f32_32x32x16_bf16 v[{acc(rb,cb)}:{acc(rb,cb)+15}], v[{A}:{A+3}], v[{fb+8+4*cb}:{fb+8+4*cb+3}], {c}")
        seq = []
        nD = len(D); per = [D[0:2], D[2:4], D[4:5], D[5:6]] if nD > 4 else [D[0:1], D[1:2], D[2:3], D[3:4]]
        for g in per[0]: seq += g
        seq += R[:2]
        seq.append(M[0])
        for g in per[1]: seq += g
        seq += R[2:4]
        seq.append(M[1])
        for g in per[2]: seq += g
        seq += R[4:]
        seq.append(M[2])
        for g in per[3]: seq += g
        seq.append(M[3])
        for l in seq: a(l)
    st.stamp()
    if sst:
        st.flush(S_W); a("s_endpgm"); return
    a("v_lshlrev_b32 v11, 4, v0")
    a(f"s_lshl_b32 s{S_TMP}, s{S_W}, 12")
    a(f"v_add_u32 v12, s{S_TMP}, v11")
    a("s_nop 7")
    a("s_barrier")
    for beta in range(4):
        rb, cb = beta >> 1, beta & 1
        a(f"s_cmp_eq_u32 s{S_W}, {beta}")
        a(f"s_cbranch_scc1 g2_skipw{beta}")
        for q in range(4):
            a(f"ds_write_b128 v12, v[{acc(rb,cb)+4*q}:{acc(rb,cb)+4*q+3}] offset:{beta*16384 + q*1024}")
        a.label(f"g2_skipw{beta}")
    for beta in range(4):
        rb, cb = beta >> 1, beta & 1
        a(f"s_cmp_lg_u32 s{S_W}, {beta}")
        a(f"s_cbranch_scc1 g2_skipm{beta}")
        for r in range(16):
            a(f"v_mov_b32 v{24+r}, v{acc(rb,cb)+r}")
        a.label(f"g2_skipm{beta}")
    a("s_waitcnt lgkmcnt(0)")
    a("s_barrier")
    st.stamp()
    a(f"s_lshl_b32 s{S_TMP}, s{S_W}, 14")
    a(f"v_add_u32 v12, s{S_TMP}, v11")
    for k in range(1, 4):
        a(f"s_add_u32 s{S_TMP}, s{S_W}, {k}")
        a(f"s_and_b32 s{S_TMP}, s{S_TMP}, 3")
        a(f"s_lshl_b32 s{S_TMP}, s{S_TMP}, 12")
        a(f"v_add_u32 v13, s{S_TMP}, v12")
        for q in range(4):
            a(f"ds_read_b128 v[{64+16*(k-1)+4*q}:{64+16*(k-1)+4*q+3}], v13 offset:{q*1024}")
    a("v_lshrrev_b32 v10, 4, v0")
    a("v_lshrrev_b32 v13, 2, v0")
    a("v_and_b32 v13, 3, v13")
    a("v_and_b32 v14, 3, v0")
    a("v_lshrrev_b32 v15, 1, v10")
    a("v_lshlrev_b32 v15, 3, v15")
    a("v_add_u32 v15, v15, v13")
    a("v_lshlrev_b32 v15, 7, v15")
    a("v_and_b32 v16, 1, v10")
    a("v_lshlrev_b32 v16, 5, v16")
    a("v_add_u32 v15, v15, v16")
    a("v_lshlrev_b32 v14, 3, v14")
    a("v_add_u32 v15, v15, v14")
    a(f"s_lshr_b32 s{S_TMP}, s{S_W}, 1")
    a(f"s_lshl_b32 s{S_TMP}, s{S_TMP}, 12")
    a(f"s_and_b32 s{S_TMP2}, s{S_W}, 1")
    a(f"s_lshl_b32 s{S_TMP2}, s{S_TMP2}, 6")
    a(f"s_add_u32 s{S_TMP}, s{S_TMP}, s{S_TMP2}")
    a(f"s_add_u32 s{S_TMP}, s{S_TMP}, {ATL}")
    a(f"v_add_u32 v15, s{S_TMP}, v15")
    OT = 0
    a("v_and_b32 v10, 31, v0")
    a("v_lshrrev_b32 v11, 5, v0")
    a(f"s_and_b32 s{S_TMP}, s{S_W}, 1")
    a(f"s_lshl_b32 s{S_TMP}, s{S_TMP}, 5")
    a(f"v_add_u32 v10, s{S_TMP}, v10")
    a(f"s_lshr_b32 s{S_TMP2}, s{S_W}, 1")
    a(f"s_lshl_b32 s{S_TMP2}, s{S_TMP2}, 2")
    a(f"v_add_u32 v11, s{S_TMP2}, v11")
    a("v_and_b32 v12, 7, v10")
    a("v_xor_b32 v11, v11, v12")
    a("v_lshlrev_b32 v10, 7, v10")
    a("v_lshlrev_b32 v12, 4, v11")
    a("v_add_u32 v13, v10, v12")
    a("v_xor_b32 v12, 32, v12")
    a("v_add_u32 v14, v10, v12")
    a("v_lshrrev_b32 v10, 3, v0")
    a("v_and_b32 v11, 7, v0")
    a("v_xor_b32 v11, v11, v10")
    a("v_lshlrev_b32 v11, 4, v11")
    a("v_mul_u32_u24 v10, 896, v10")
    a("v_add_u32 v10, v10, v11")
    a("v_lshlrev_b32 v12, 4, v0")
    a(f"v_add_u32 v12, s{S_L}, v12")
    a(f"s_lshl_b32 s{S_TMP}, s{S_W}, 4")
    a(f"s_add_u32 s{S_TMP}, s{S_TMP}, s{S_T0}")
    a(f"s_mul_i32 s{S_TMP}, s{S_TMP}, 896")
    a(f"s_lshl_b32 s{S_TMP2}, s{S_D0}, 1")
    a(f"s_add_u32 s{S_TMP2}, s{S_TMP2}, s{S_TMP}")
    a("s_mov_b32 s39, 0xffff0000")
    a("s_waitcnt lgkmcnt(0)")
    for r in range(16):
        a(f"v_add_f32 v{24+r}, v{24+r}, v{64+r}")
        a(f"v_add_f32 v{80+r}, v{80+r}, v{96+r}")
    for r in range(16):
        a(f"v_add_f32 v{24+r}, v{24+r}, v{80+r}")
    for p in range(8):
        a(f"v_cvt_pk_bf16_f32 v52, v{24+2*p}, v{25+2*p}")
        a(f"v_lshlrev_b32 v{64+2*p}, 16, v52")
        a(f"v_and_b32 v{65+2*p}, s39, v52")
    a("s_waitcnt vmcnt(0)")
    a(f"v_sub_f32 v9, 1.0, v{V_G}")
    a("v_cvt_pk_bf16_f32 v9, v9, v9")
    a("v_lshlrev_b32 v9, 16, v9")
    for p in range(8):
        a(f"v_mul_f32 v53, v9, v{64+2*p}")
        a(f"v_mul_f32 v54, v9, v{65+2*p}")
        a(f"v_cvt_pk_bf16_f32 v52, v53, v54")
        a(f"v_lshlrev_b32 v{64+2*p}, 16, v52")
        a(f"v_and_b32 v{65+2*p}, s39, v52")
    a("s_waitcnt vmcnt(0)")
    a("s_barrier")
    for Q in range(2):
        for h2 in range(2):
            a(f"ds_read_b64_tr_b16 v[{44+4*Q+2*h2}:{44+4*Q+2*h2+1}], v15 offset:{(16*Q+4*h2)*128}")
    a("s_waitcnt lgkmcnt(0)")
    for Q in range(2):
        for p in range(4):
            av = 44 + 4*Q + p; bb = 64 + 8*Q + 2*p
            a(f"v_lshlrev_b32 v55, 16, v{av}")
            a(f"v_and_b32 v56, s39, v{av}")
            a(f"v_mul_f32 v55, v{V_G}, v55")
            a(f"v_mul_f32 v56, v{V_G}, v56")
            a(f"v_cvt_pk_bf16_f32 v55, v55, v56")
            a(f"v_lshlrev_b32 v56, 16, v55")
            a(f"v_and_b32 v55, s39, v55")
            a(f"v_add_f32 v53, v{bb}, v56")
            a(f"v_add_f32 v54, v{bb+1}, v55")
            a(f"v_cvt_pk_bf16_f32 v{24+4*Q+p}, v53, v54")
        a(f"ds_write_b128 v{13+Q}, v[{24+4*Q}:{27+4*Q}] offset:{OT}")
    a("s_waitcnt lgkmcnt(0)")
    a("s_barrier")
    a(f"ds_read_b128 v[32:35], v12 offset:{OT}")
    a(f"ds_read_b128 v[36:39], v12 offset:{OT+1024}")
    for i in range(2):
        a(f"s_waitcnt lgkmcnt({1-i})")
        a(f"s_add_u32 s{S_TMP}, s{S_TMP2}, {8*i*896}")
        a(f"buffer_store_dwordx4 v[{32+4*i}:{35+4*i}], v10, s[{SRD_O}:{SRD_O+3}], s{S_TMP} offen")
    st.stamp()
    for _ in range(diagdelay): a("s_sleep 32")
    dbg_event(a, 5)
    if st.on: a("s_waitcnt vmcnt(0)")
    st.stamp(real=True)
    st.flush(S_W)
```

```python
from asmlib import *
import gemm1, gemm1b, aux2, side2, gemm2

def publish(a):
    a("s_cmp_lg_u32 s2, 0")
    a("s_cbranch_scc1 pub_skip")
    a("s_cmp_lg_u32 s4, 0")
    a("s_cbranch_scc1 pub_skip")
    a(f"s_load_dwordx2 s[44:45], s[0:1], {KA['dbg']}")
    a("s_memrealtime s[46:47]")
    a("s_waitcnt lgkmcnt(0)")
    a("s_or_b32 s46, s46, 1")
    a("v_mov_b32 v22, s46")
    a("v_mov_b32 v21, 0")
    a("s_mov_b64 exec, 1")
    a("global_store_dword v21, v22, s[44:45] sc1")
    a("s_mov_b64 exec, -1")
    a.label("pub_skip")

NIPF = 3
def fused(opts):
    stamps = opts.get("stamps", False)
    gemm2.SLEEP = opts.get('sleep', 2)
    gemm2.TWOPASS = bool(opts.get('tp', 0)); gemm2.EARLY_AREA = [8, 9, 4, 5, 6, 7] if gemm2.TWOPASS else [4, 5, 8, 9, 6, 7]
    gemm2.RESIDENT = (opts.get('np', 0) == 0)
    gemm2.MAPB = bool(opts.get('mapb', 1))
    gemm2.NHST = 16 if opts.get('dual', 0) else 8
    gemm2.PIPE = bool(opts.get('pipe', 0))
    Stamps.ALLREAL = not opts.get('cyc')
    import asmlib; asmlib.DBGEV = bool(opts.get('dbgev'))
    a = Asm()
    st = Stamps(a, 60 if not stamps else 60, stamps)
    a("s_cmp_ge_u32 s2, 480")
    a("s_cbranch_scc1 f_exit")
    st.stamp(real=True); st.stamp()
    for _ in range(opts.get('dd0', 0)): a("s_sleep 32")
    if opts.get("mainfirst", 0):
        a("s_add_u32 s3, s2, 224")
        a("s_sub_u32 s5, s2, 256")
        a("s_cmp_lt_u32 s2, 256")
        a("s_cselect_b32 s2, s3, s5")
    a("v_lshrrev_b32 v1, 6, v0")
    a("v_and_b32 v0, 63, v0")
    a("v_readfirstlane_b32 s4, v1")
    a("s_nop 3")
    publish(a)
    if opts.get("ipf", 0):
        a("s_cmp_ge_u32 s2, 8")
        a("s_cbranch_scc1 f_noipf")
        a("s_getpc_b64 s[96:97]")
        a.label("f_ipf_base")
        a("v_lshlrev_b32 v2, 6, v0")
        a("s_lshl_b32 s98, s4, 12")
        a("v_add_u32 v2, s98, v2")
        a("s_mov_b32 s99, f_code_end - f_ipf_base - 4")
        for i in range(NIPF):
            a("v_min_u32 v3, s99, v2")
            a(f"global_load_dword v{200+i}, v3, s[96:97]")
            a("v_add_u32 v2, 0x4000, v2")
        a.label("f_noipf")
    a("s_cmp_lt_u32 s2, 224")
    a("s_cbranch_scc1 f_side" if not opts.get("noside") else "s_cbranch_scc1 f_exit")
    if opts.get("prio"): a(f"s_setprio {opts['prio']}")
    dbg_event(a, 0)
    if gemm2.MAPB:
        a("s_sub_u32 s3, s2, 224")
        a("s_and_b32 s40, s3, 7")
        a("s_lshr_b32 s41, s3, 3")
        a("s_sub_u32 s44, s41, 4")
        a("s_cmp_ge_u32 s41, 8")
        a("s_cselect_b32 s45, s44, 28")
        a("s_cmp_lt_u32 s41, 4")
        a("s_cselect_b32 s45, s41, s45")
        a("s_lshl_b32 s3, s45, 3")
        a("s_add_u32 s3, s3, s40")
        a("s_cbranch_scc1 f_aux") if False else None
        a("s_cmp_lt_u32 s41, 4")
        a("s_cbranch_scc1 f_aux")
        a("s_mul_i32 s46, s44, 37")
        a("s_lshr_b32 s46, s46, 8")
        a("s_mul_i32 s47, s46, 7")
        a("s_sub_u32 s47, s44, s47")
        a("s_lshr_b32 s48, s40, 1")
        a("s_lshl_b32 s48, s48, 2")
        a("s_add_u32 s48, s48, s46")
        a("s_and_b32 s49, s40, 1")
        a("s_mul_i32 s49, s49, 7")
        a("s_add_u32 s49, s49, s47")
    else:
        a("s_sub_u32 s3, s2, 224")
        a("s_and_b32 s40, s3, 7")
        a("s_lshr_b32 s41, s3, 3")
        a("s_and_b32 s42, s40, 1")
        a("s_lshr_b32 s43, s40, 1")
        a("s_lshr_b32 s44, s41, 3")
        a("s_and_b32 s45, s41, 7")
        a("s_and_b32 s46, s43, 1")
        a("s_sub_u32 s47, 4, s46")
        a("s_cmp_ge_u32 s44, s47")
        a("s_cbranch_scc1 f_aux")
        a("s_lshl_b32 s48, s42, 3")
        a("s_add_u32 s48, s48, s45")
        a("s_lshr_b32 s49, s43, 1")
        a("s_mul_i32 s49, s49, 7")
        a("s_lshl_b32 s46, s46, 2")
        a("s_add_u32 s49, s49, s46")
        a("s_add_u32 s49, s49, s44")
    rotc = opts.get("rotc", 6)
    a("s_add_u32 s50, s48, s49")
    if rotc == 1: a("s_mov_b32 s50, 0")
    elif rotc == 2:
        a("s_and_b32 s50, s50, 1"); a("s_mul_i32 s50, s50, 4")
    elif rotc == 4:
        a("s_and_b32 s50, s50, 3"); a("s_lshl_b32 s50, s50, 1")
    elif rotc == 6:
        a("s_mul_i32 s51, s50, 43"); a("s_lshr_b32 s51, s51, 8"); a("s_mul_i32 s51, s51, 6"); a("s_sub_u32 s50, s50, s51")
    elif rotc == 3:
        a("s_mul_i32 s51, s50, 86"); a("s_lshr_b32 s51, s51, 8"); a("s_mul_i32 s51, s51, 3"); a("s_sub_u32 s50, s50, s51"); a("s_lshl_b32 s50, s50, 1")
    else:
        a("s_mul_i32 s51, s50, 37"); a("s_lshr_b32 s51, s51, 8"); a("s_mul_i32 s51, s51, 7"); a("s_sub_u32 s50, s50, s51")
    msh = (0 if opts.get('mainfirst', 0) else 4)
    if gemm2.TWOPASS:
        gemm1b.gemm1(a, st, 48, 49, 50, exact_round=opts.get('exact', 0), NPRO=opts.get('npro', 4), s_k=40, s_j=41, MFU=opts.get('mfu', 24), publish=None, tail=gemm2, s_main=3, mshift=msh, pstamps=opts.get('pst', 0), ust=opts.get('ust', 0))
    else:
        gemm1.gemm1(a, st, 48, 49, 50, exact_round=opts.get('exact', 0), NPRO=opts.get('npro', 4), NW=opts.get('NW', 3), NX=opts.get('NX', 2), unitstamps=opts.get('ust', 0), s_k=40, s_j=41, MFU=opts.get('mfu', 13), hybrid=opts.get('hyb', 1), publish=None, tail=gemm2, s_main=3, mshift=msh, notag=opts.get('noside', 0), dual=opts.get('dual', 0))
    a("s_branch f_g2")
    a.label("f_aux")
    if gemm2.MAPB:
        a("s_lshl_b32 s48, s40, 2")
        a("s_add_u32 s48, s48, s41")
    else:
        a("s_lshr_b32 s48, s43, 1")
        a("s_lshl_b32 s48, s48, 1")
        a("s_add_u32 s48, s48, s42")
        a("s_lshl_b32 s48, s48, 3")
        a("s_add_u32 s48, s48, s45")
    n0 = st.n; st.n = 2
    aux2.aux(a, st, 48, 40, 41, mshift=(0 if opts.get('mainfirst', 0) else 4), wdpf=opts.get('wdpf', 2))
    st.n = 6; st.stamp(); st.n = n0
    gemm2.setup_w(a, 3)
    gemm2.setup_g2(a, 3)
    a(f"s_load_dwordx2 s[28:29], s[0:1], {KA['ws']}")
    a("s_waitcnt lgkmcnt(0)")
    srd_from(a, 16, 28, SZ_H, WS_H)
    if opts.get('early', 1):
        a("s_barrier")
        for p in range(6):
            for g in gemm2.dma_w_lines(gemm2.EARLY_AREA[p]*8192, p):
                for l in g: a(l)
        a("s_waitcnt vmcnt(0)")
        gemm2.pre_dma(a)
        a("s_mov_b32 s58, 0")
    a.label("f_g2")
    a("s_lshr_b32 s99, s3, 3")
    a("s_cmp_ge_u32 s99, 28" if not opts.get("nog2") else "s_cmp_ge_u32 s99, 0")
    a("s_cbranch_scc1 f_early")
    gemm2.gemm2(a, st, rot=opts.get('rot2', 1), NP=opts.get('np', 0), prio=opts.get('prio2', 3), early=opts.get('early', 1), sst=opts.get('sst', 0), hsc1=opts.get('hsc1', 1), print_sched=opts.get('ps', 0), diagdelay=opts.get('dd', 0), NREG=opts.get('nreg', 16), noat=opts.get('noat', 0), NINIT0=opts.get('ninit', 5), outflag=['', 'sc1', 'nt', 'sc0 sc1'][opts.get('of', 0)])
    a("s_endpgm")
    a.label("f_early")
    a("s_waitcnt vmcnt(0)")
    a("s_barrier")
    gemm2.h_flag(a, 52, "fe")
    if stamps:
        n0 = st.n; st.n = 7; st.flush(4); st.n = n0
    a("s_endpgm")
    a.label("f_side")
    a("s_and_b32 s40, s2, 7")
    a("s_lshr_b32 s41, s2, 3")
    a("s_mul_i32 s3, s40, 28")
    a("s_add_u32 s3, s3, s41")
    st2 = Stamps(a, 60, stamps); st2.n = 2
    side2.side(a, st2, 3, gate=opts.get('gate', 1), sleep=opts.get('ssleep', 4), pf=opts.get('pf', 0), p0early=opts.get('p0e', 1), latetile=opts.get('lt', 1), lategate=opts.get('lg', 0), lateparam=opts.get('lp', 1), tlb=opts.get('tlb', 0))
    a.label("f_exit")
    a("s_endpgm")
    a.label("f_code_end")
    return a
```

```python
from asmlib import *

NSLOT = 5
SLEEP = 2
NS = 28

SRD_WD = 92; S_WCUR = 96; S_WLIM = 97; S_L2 = 98; V_W0 = 20; V_W1 = 19
S_R = 38; S_PH = 39; S_WB = 47
TWOPASS = False
MAPB = True
EARLY_AREA = [4, 5, 8, 9, 6, 7]
def setup_w(a, s_main, rot=True):
    a(f"s_load_dwordx2 s[{SRD_WD}:{SRD_WD+1}], s[0:1], {KA['wd']}")
    a("v_lshrrev_b32 v10, 4, v0")
    a("v_lshrrev_b32 v11, 3, v0")
    a("v_and_b32 v12, 7, v0")
    a("v_and_b32 v13, 1, v10")
    a("v_lshlrev_b32 v13, 2, v13")
    a("v_xor_b32 v13, v13, v12")
    a("v_lshlrev_b32 v13, 4, v13")
    a("v_mul_u32_u24 v12, 896, v11")
    a(f"v_add_u32 v{V_W0}, v12, v13")
    a(f"v_add_u32 v{V_W1}, {8*896 - 1024}, v{V_W0}")
    a(f"s_lshr_b32 s99, s{s_main}, 3")
    a("s_and_b32 s100, s99, 3")
    a("s_mul_i32 s100, s100, 3")
    a("s_lshr_b32 s99, s99, 2")
    a("s_lshl_b32 s101, s99, 1")
    a("s_add_u32 s100, s100, s101")
    a("s_sub_u32 s101, s100, 14")
    a("s_cmp_ge_u32 s100, 14")
    a("s_cselect_b32 s100, s101, s100")
    if not rot: a("s_mov_b32 s100, 0")
    a(f"s_mov_b32 s{S_R}, s100")
    if MAPB:
        a(f"s_and_b32 s101, s{s_main}, 1")
        a(f"s_mul_i32 s{S_PH}, s101, 14")
    else:
        a(f"s_and_b32 s101, s{s_main}, 4")
        a("s_cmp_eq_u32 s101, 0")
        a(f"s_cselect_b32 s{S_PH}, 8, 0")
    a(f"s_lshl_b32 s101, s4, 4")
    a(f"s_mul_i32 s{S_WB}, s101, 896")
    a("s_lshl_b32 s99, s99, 7")
    a(f"s_add_u32 s{S_WB}, s{S_WB}, s99")
    if TWOPASS:
        a(f"s_add_u32 s{S_WLIM}, s{S_WB}, {28*64*896}")
        a(f"s_mul_i32 s99, s100, {128*896}")
        a(f"s_add_u32 s{S_WCUR}, s{S_WB}, s99")
    else:
        a(f"s_add_u32 s99, s{S_PH}, 14")
        a(f"s_mul_i32 s99, s99, {64*896}")
        a(f"s_add_u32 s{S_WLIM}, s{S_WB}, s99")
        a(f"s_add_u32 s99, s{S_PH}, s100")
        a(f"s_mul_i32 s99, s99, {64*896}")
        a(f"s_add_u32 s{S_WCUR}, s{S_WB}, s99")
    a(f"s_lshl_b32 s{S_L2}, s4, 11")
    a("s_waitcnt lgkmcnt(0)")
    a(f"s_mov_b32 s{SRD_WD+2}, {1792*448*2}")
    a(f"s_mov_b32 s{SRD_WD+3}, 0x20000")

def advance(cur, lim, step, i, base_reg, tmp):
    if TWOPASS:
        if i == 13:
            return [f"s_mul_i32 s{tmp}, s{S_R}, {2*step}", f"s_add_u32 s{cur}, s{base_reg}, s{tmp}", f"s_add_u32 s{cur}, s{cur}, {step}",
                    f"s_add_u32 s{lim}, s{base_reg}, {29*step}"]
        return [f"s_add_u32 s{cur}, s{cur}, {2*step}", f"s_sub_u32 s{tmp}, s{cur}, {28*step}",
                f"s_cmp_ge_u32 s{cur}, s{lim}", f"s_cselect_b32 s{cur}, s{tmp}, s{cur}"]
    if not MAPB:
        if i == 13:
            return [f"s_add_u32 s{tmp}, s{S_PH}, 14", f"s_mul_i32 s{tmp}, s{tmp}, {step}", f"s_add_u32 s{cur}, s{base_reg}, s{tmp}",
                    f"s_add_u32 s{lim}, s{base_reg}, {28*step}"]
        n = 14 if i < 13 else 28
        return [f"s_add_u32 s{cur}, s{cur}, {step}", f"s_sub_u32 s{tmp}, s{cur}, {n*step}",
                f"s_cmp_ge_u32 s{cur}, s{lim}", f"s_cselect_b32 s{cur}, s{tmp}, s{cur}"]
    if i == 13:
        return [f"s_sub_u32 s{tmp}, 28, s{S_PH}", f"s_mul_i32 s{tmp}, s{tmp}, {step}", f"s_add_u32 s{lim}, s{base_reg}, s{tmp}",
                f"s_sub_u32 s{tmp}, 14, s{S_PH}", f"s_add_u32 s{tmp}, s{tmp}, s{S_R}", f"s_mul_i32 s{tmp}, s{tmp}, {step}",
                f"s_add_u32 s{cur}, s{base_reg}, s{tmp}"]
    return [f"s_add_u32 s{cur}, s{cur}, {step}", f"s_sub_u32 s{tmp}, s{cur}, {14*step}",
            f"s_cmp_ge_u32 s{cur}, s{lim}", f"s_cselect_b32 s{cur}, s{tmp}, s{cur}"]

def dma_w_lines(ldsoff, i):
    g0 = [f"s_add_u32 m0, s{S_L2}, {ldsoff}", "s_nop 0",
          f"buffer_load_dwordx4 v{V_W0}, s[{SRD_WD}:{SRD_WD+3}], s{S_WCUR} offen lds"]
    g1 = [f"buffer_load_dwordx4 v{V_W1}, s[{SRD_WD}:{SRD_WD+3}], s{S_WCUR} offen offset:1024 lds"] + advance(S_WCUR, S_WLIM, 64*896, i, S_WB, 99)
    return [g0, g1]

RESIDENT = False
def pre_dma(a):
    if RESIDENT: return
    for p in range(6, 10):
        for g in dma_w_lines((p-6)*8192, p):
            for l in g: a(l)

S_HB = 40; S_LINE = 41; S_HCUR = 42; S_HLIM = 43; S_T0 = 44; S_D0 = 45; S_MASK = 46; SRD_F = 48; SRD_H = 16
def setup_g2(a, s_main):
    a(f"s_load_dwordx2 s[100:101], s[0:1], {KA['ws']}")
    a(f"s_and_b32 s99, s{s_main}, 7")
    a("s_lshl_b32 s99, s99, 2")
    a(f"s_lshr_b32 s{S_D0}, s{s_main}, 3")
    a(f"s_and_b32 s{S_T0}, s{S_D0}, 3")
    a(f"s_add_u32 s99, s99, s{S_T0}")
    a(f"s_lshr_b32 s{S_D0}, s{S_D0}, 2")
    a(f"s_mul_i32 s{S_LINE}, s99, 7")
    a(f"s_add_u32 s{S_LINE}, s{S_LINE}, s{S_D0}")
    a(f"s_lshl_b32 s{S_LINE}, s{S_LINE}, 7")
    a(f"s_lshl_b32 s{S_T0}, s99, 6")
    a(f"s_lshl_b32 s{S_D0}, s{S_D0}, 6")
    a("s_lshl_b32 s99, s4, 4")
    a(f"s_add_u32 s{S_HB}, s{S_T0}, s99")
    a(f"s_mul_i32 s{S_HB}, s{S_HB}, 3584")
    if TWOPASS:
        a(f"s_add_u32 s{S_HLIM}, s{S_HB}, 3584")
        a(f"s_lshl_b32 s99, s{S_R}, 8")
        a(f"s_add_u32 s{S_HCUR}, s{S_HB}, s99")
        a(f"s_mov_b32 s{S_MASK}, 0x3fff")
    else:
        a(f"s_add_u32 s99, s{S_PH}, 14")
        a("s_lshl_b32 s99, s99, 7")
        a(f"s_add_u32 s{S_HLIM}, s{S_HB}, s99")
        a(f"s_add_u32 s99, s{S_PH}, s{S_R}")
        a("s_lshl_b32 s99, s99, 7")
        a(f"s_add_u32 s{S_HCUR}, s{S_HB}, s99")
        a(f"s_lshr_b32 s{S_MASK}, s{S_PH}, 1")
        a(f"s_lshl_b32 s{S_MASK}, 0x7f, s{S_MASK}")
    a("v_lshrrev_b32 v10, 4, v0")
    a("v_lshrrev_b32 v11, 3, v0")
    a("v_and_b32 v12, 7, v0")
    a("v_xor_b32 v13, v12, v10")
    a("v_lshlrev_b32 v13, 4, v13")
    a("v_mul_u32_u24 v9, 3584, v11")
    a("v_add_u32 v86, v9, v13")
    a("v_xor_b32 v13, 64, v13")
    a("v_add_u32 v87, v9, v13")
    a(f"v_add_u32 v87, {8*3584 - 1024}, v87")
    a("v_and_b32 v10, 31, v0")
    a("v_lshrrev_b32 v11, 5, v0")
    a("v_lshrrev_b32 v12, 1, v10")
    a("v_and_b32 v12, 7, v12")
    a("s_lshl_b32 s99, s4, 1")
    a("v_add_u32 v11, s99, v11")
    a("v_xor_b32 v12, v12, v11")
    a("v_lshlrev_b32 v12, 4, v12")
    a("v_lshlrev_b32 v10, 7, v10")
    a("v_add_u32 v88, v10, v12")
    a("v_lshrrev_b32 v10, 4, v0")
    a("v_lshrrev_b32 v11, 2, v0")
    a("v_and_b32 v11, 3, v11")
    a("v_and_b32 v12, 3, v0")
    a("v_lshrrev_b32 v13, 1, v10")
    a("v_lshlrev_b32 v13, 3, v13")
    a("v_add_u32 v13, v13, v11")
    a("s_lshl_b32 s99, s4, 4")
    a("v_add_u32 v13, s99, v13")
    a("v_lshlrev_b32 v13, 7, v13")
    a("v_lshrrev_b32 v9, 1, v12")
    a("v_lshlrev_b32 v9, 3, v9")
    a("v_add_u32 v13, v13, v9")
    a("v_and_b32 v9, 1, v10")
    a("v_lshlrev_b32 v9, 1, v9")
    a("v_and_b32 v18, 1, v12")
    a("v_add_u32 v9, v9, v18")
    a("v_lshrrev_b32 v18, 1, v11")
    a("v_lshlrev_b32 v18, 2, v18")
    a("v_xor_b32 v9, v9, v18")
    a("v_lshlrev_b32 v18, 4, v9")
    a("v_add_u32 v89, v13, v18")
    a("v_xor_b32 v18, 64, v18")
    a("v_add_u32 v90, v13, v18")
    a("s_waitcnt lgkmcnt(0)")
    srd_from(a, SRD_F, 100, SZ_F, WS_F)

def h_flag(a, srd_f, tag):
    a("s_cmp_lg_u32 s4, 0")
    a(f"s_cbranch_scc1 {tag}_flagged")
    a("s_cmp_eq_u32 s58, 0")
    a(f"s_cbranch_scc1 {tag}_flagged")
    set_flags(a, srd_f, 57, 37, 14, 128, 10, 11)
    a.label(f"{tag}_flagged")
    dbg_event(a, 3)

def gemm2(a, st, rot=True, NP=16, prio=0, early=True, sst=False, hsc1=True, print_sched=False, diagdelay=0, NREG=16, noat=False, NINIT0=5, outflag=''):
    S_W = 4
    SRD_AT = 8; SRD_O = 12; SRD_G = 20
    S_TMP = 24; S_TMP2 = 25
    P0 = 28
    S_L = S_L2; S_AL = 33; S_CNT = 34; S_MK = 35
    a.c("---- GEMM2 role ----")
    if sst: st.n = 1
    else: st.n = 6
    a(f"s_load_dwordx2 s[{P0}:{P0+1}], s[0:1], {KA['ws']}")
    a(f"s_load_dwordx2 s[{P0+2}:{P0+3}], s[0:1], {KA['out']}")
    if prio: a(f"s_setprio {prio}")
    V_H0, V_H1 = 2, 3
    V_B = 5; V_A0 = 6; V_A1 = 7
    a("v_mov_b32 v2, v86"); a("v_mov_b32 v3, v87"); a("v_mov_b32 v5, v88"); a("v_mov_b32 v6, v89"); a("v_mov_b32 v7, v90")
    a(f"v_add_u32 v16, 0x10000, v{V_B}")
    a(f"v_add_u32 v17, 0x10000, v{V_A0}")
    a(f"v_add_u32 v18, 0x10000, v{V_A1}")
    vm = []
    def dma_w(ldsoff, key):
        vm.append(key)
        return dma_w_lines(ldsoff, key[1])
    def dma_h(u, ar):
        g0 = [f"s_add_u32 m0, s{S_L}, {ar*8192}", "s_nop 0",
              f"buffer_load_dwordx4 v{V_H0}, s[{SRD_H}:{SRD_H+3}], s{S_HCUR} offen {'sc1' if hsc1 else ''} lds"]
        g1 = [f"buffer_load_dwordx4 v{V_H1}, s[{SRD_H}:{SRD_H+3}], s{S_HCUR} offen offset:1024 {'sc1' if hsc1 else ''} lds"] + advance(S_HCUR, S_HLIM, 128, u, S_HB, S_TMP2)
        vm.append(("H", u))
        return [g0, g1]
    def emit(groups):
        for g in groups:
            for l in g: a(l)
    def wait_for(needs):
        last = max(vm.index(n) for n in needs)
        a(f"s_waitcnt vmcnt({sum((1 if g[0] == 'S' else 2) for g in vm[last+1:])})")
    NB = 10
    area = EARLY_AREA + [0, 1, 2, 3]
    if not RESIDENT:
        for p in range(6, 10): vm.append(("P", p))
    PRE = 128
    def a_reads(dst, off):
        va0, va1 = V_A0, V_A1
        if off >= 65536: off -= 65536; va0, va1 = 17, 18
        return [f"ds_read_b64_tr_b16 v[{dst}:{dst+1}], v{va0} offset:{off}",
                f"ds_read_b64_tr_b16 v[{dst+2}:{dst+3}], v{va0} offset:{off+512}",
                f"ds_read_b64_tr_b16 v[{dst+4}:{dst+5}], v{va1} offset:{off}",
                f"ds_read_b64_tr_b16 v[{dst+6}:{dst+7}], v{va1} offset:{off+512}"]
    def b_reads(dst, off):
        vb = V_B
        if off >= 65536: off -= 65536; vb = 16
        return [f"ds_read_b128 v[{dst}:{dst+3}], v{vb} offset:{off}",
                f"ds_read_b128 v[{dst+4}:{dst+7}], v{vb} offset:{off+4096}"]
    assert NP in (0, 10, 16) and (NP == 0) == RESIDENT
    R0, R1 = (6, 6 + NREG) if RESIDENT else (0, NP)
    a(f"s_waitcnt vmcnt({16 if NP else 8})")
    if NP:
        for p in range(6):
            for r in a_reads(PRE + 8*p, area[p]*8192): a(r)
        a("s_waitcnt lgkmcnt(0)")
        if NP == 16:
            for p in range(10, 16):
                emit(dma_w(EARLY_AREA[p-10]*8192, ("P", p)))
    a(f"s_waitcnt vmcnt({(8 + (12 if NP == 16 else 0)) if NP else 0})")
    st.stamp()
    a("s_barrier")
    h_flag(a, SRD_F, "g2")
    if NP:
        for p in range(6, NP):
            wait_for([("P", p)])
            for r in a_reads(PRE + 8*p, (area[p] if p < 10 else EARLY_AREA[p-10])*8192): a(r)
    if RESIDENT and NREG:
        for p in range(R0, min(R0 + 4, R1)):
            emit(dma_w(((p - R0) % 4)*8192, ("P", p)))
        for p in range(R0, R1):
            wait_for([("P", p)])
            for r in a_reads(PRE + 8*(p - R0), ((p - R0) % 4)*8192): a(r)
            if p + 4 < R1:
                a("s_waitcnt lgkmcnt(0)")
                emit(dma_w(((p - R0) % 4)*8192, ("P", p + 4)))
    a("s_waitcnt lgkmcnt(0)")
    st.stamp()
    a(f"s_cmp_lg_u32 s{S_W}, 0")
    a("s_cbranch_scc1 g2_hready")
    wait_flags(a, "g2_wh", SRD_F, S_LINE, 14, 37, S_TMP, S_CNT, 10, 11, sleep=SLEEP, s_mask=S_MASK)
    a.label("g2_hready")
    a("s_barrier")
    st.stamp()
    NINIT = NINIT0
    FLAGST = 8
    MAXLD = 2
    sched = {}
    if RESIDENT:
        NINIT = 4
        where = {("H", u): u for u in range(NINIT)}
        for u in range(6): where[("W", u)] = EARLY_AREA[u]
        free = []
        nh, nw = NINIT, R1
    else:
        where = {("H", u): u for u in range(NINIT)}
        free = list(range(NINIT, 10))
        nh, nw = NINIT, NP
    for u in range(NS):
        free.append(where[("H", u)])
        if not (R0 <= u < R1): free.append(where[("W", u)])
        sched[u] = []
        lim = 3 if u < 3 else MAXLD
        while free and len(sched[u]) < lim:
            canh = nh < NS and (nh < 14 or u >= FLAGST)
            canw = nw < NS
            if not (canh or canw): break
            key = ("H", nh) if (canh and (not canw or nh <= nw)) else ("W", nw)
            cand = sorted(free, key=lambda x: (x >= 8 and key[1] >= 22, free.index(x)))
            ar = cand[0]; free.remove(ar); where[key] = ar
            sched[u].append(key)
            if key[0] == "H": nh += 1
            else: nw += 1
    assert nh == NS and nw == NS
    for u in range(NS):
        for key in sched[u]: assert key[1] - u >= 2, (u, key)
    if print_sched: print(sched)
    last_use = {ar: max(k[1] for k, v in where.items() if v == ar) for ar in (8, 9)}
    AT_AREA = min(last_use, key=last_use.get)
    AT_STAGE = max(last_use[AT_AREA], 23)
    assert AT_STAGE <= 27, (last_use, where)
    for u in range(NINIT):
        emit(dma_h(u, u))
    FR = [24, 40]
    ACC = 64
    def acc(rb, cb): return ACC + 16*(2*rb + cb)
    def reads(u):
        fb = FR[u % 2]
        R = b_reads(fb+8, where[("H", u)]*8192)
        if not (R0 <= u < R1):
            Ar = a_reads(fb, where[("W", u)]*8192)
            R = [R[0]] + Ar[:2] + [R[1]] + Ar[2:]
        return R
    def needs(u):
        return [("H", u)] + ([("W", u)] if ("W", u) in vm else [])
    V_FL = 21
    last_flag = [None]
    def flag_load(s_off):
        a(f"buffer_load_dword v{V_FL}, v22, s[{SRD_F}:{SRD_F+3}], s{s_off} offen sc1")
        vm.append(("S", 100 + len(vm)))
        last_flag[0] = vm[-1]
    def flag_check(name, s_off, nwords, mask=None):
        mask = mask or hex((1 << nwords) - 1)
        a(f"s_mov_b32 s{S_MK}, {mask}")
        a(f"s_cmp_lg_u32 s{S_W}, 0")
        a(f"s_cbranch_scc1 {name}_done")
        wait_for([last_flag[0]])
        a(f"v_cmp_eq_u32 vcc, s37, v{V_FL}")
        a("s_nop 2")
        a(f"s_and_b32 s{S_TMP}, vcc_lo, {mask}")
        a(f"s_cmp_eq_u32 s{S_TMP}, {mask}")
        a(f"s_cbranch_scc1 {name}_done")
        wait_flags(a, name, SRD_F, s_off, nwords, 37, S_TMP, S_CNT, 10, 11, sleep=SLEEP, s_mask=S_MK)
        a.label(name + "_done")
    a("v_and_b32 v22, 31, v0")
    a("v_lshlrev_b32 v22, 2, v22")
    a(f"s_add_u32 s{S_AL}, s{S_LINE}, {L_A*128}")
    ATL = AT_AREA*8192
    V_G = 8
    def at_loads():
        a("v_and_b32 v9, 31, v0")
        a(f"s_and_b32 s{S_TMP}, s{S_W}, 1")
        a(f"s_lshl_b32 s{S_TMP}, s{S_TMP}, 5")
        a(f"s_add_u32 s{S_TMP}, s{S_TMP}, s{S_T0}")
        a(f"v_add_u32 v9, s{S_TMP}, v9")
        a("v_lshlrev_b32 v9, 2, v9")
        a(f"buffer_load_dword v{V_G}, v9, s[{SRD_G}:{SRD_G+3}], 0 offen sc1")
        a("v_lshrrev_b32 v9, 3, v0")
        a("v_lshlrev_b32 v9, 12, v9")
        a("v_and_b32 v12, 7, v0")
        a("v_lshlrev_b32 v12, 4, v12")
        a("v_add_u32 v9, v9, v12")
        a(f"s_lshl_b32 s{S_TMP}, s{S_W}, 4")
        a(f"s_add_u32 s{S_TMP}, s{S_TMP}, s{S_D0}")
        a(f"s_lshl_b32 s{S_TMP}, s{S_TMP}, 12")
        a(f"s_lshl_b32 s{S_TMP2}, s{S_T0}, 1")
        a(f"s_add_u32 s{S_TMP2}, s{S_TMP2}, s{S_TMP}")
        for i in range(2):
            a(f"s_add_u32 m0, s{S_L}, {ATL + i*1024}")
            a(f"s_add_u32 s{S_TMP}, s{S_TMP2}, {8*i*4096}")
            a(f"buffer_load_dwordx4 v9, s[{SRD_AT}:{SRD_AT+3}], s{S_TMP} offen sc1 lds")
        for i in range(3): vm.append(("S", i))
    wait_for(needs(0))
    a("s_barrier")
    st.stamp()
    dbg_event(a, 4)
    for r in reads(0): a(r)
    for u in range(NS):
        fb = FR[u % 2]
        if sst == 2 and u in (6, 20): st.stamp()
        a("s_waitcnt lgkmcnt(0)")
        if sst == 2 and u in (6, 20): st.stamp()
        if u + 1 < NS: wait_for(needs(u+1))
        if sst == 2 and u in (6, 20): st.stamp()
        if u == FLAGST: flag_check("g2_wh2", S_LINE, 32, "0x3fff4000" if TWOPASS else "0x7fff")
        if u == AT_STAGE and not noat: flag_check("g2_wa", S_AL, 32)
        a("s_barrier")
        if u == 12:
            srd_from(a, SRD_AT, P0, SZ_AT, WS_AT)
            srd_from(a, SRD_O, P0+2, 2048*448*2)
            srd_from(a, SRD_G, P0, SZ_G, WS_G)
        if u == FLAGST - 4: flag_load(S_LINE)
        if u == AT_STAGE - 5: flag_load(S_AL)
        if sst == 1 and u in (2, 5, 8, 11, 14, 17, 20, 23): st.stamp()
        if sst == 2 and u in (6, 7, 20, 21): st.stamp()
        if u == AT_STAGE:
            at_loads()
        D = []
        for key in sched.get(u, []):
            D += dma_h(key[1], where[key]) if key[0] == "H" else dma_w(where[key]*8192, key)
        R = reads(u + 1) if u + 1 < NS else []
        M = []
        for (rb, cb) in ((0,0),(0,1),(1,0),(1,1)):
            c = "0" if u == 0 else f"v[{acc(rb,cb)}:{acc(rb,cb)+15}]"
            A = (PRE + 8*(u - R0) + 4*rb) if R0 <= u < R1 else (fb + 4*rb)
            M.append(f"v_mfma_f32_32x32x16_bf16 v[{acc(rb,cb)}:{acc(rb,cb)+15}], v[{A}:{A+3}], v[{fb+8+4*cb}:{fb+8+4*cb+3}], {c}")
        seq = []
        nD = len(D); per = [D[0:2], D[2:4], D[4:5], D[5:6]] if nD > 4 else [D[0:1], D[1:2], D[2:3], D[3:4]]
        for g in per[0]: seq += g
        seq += R[:2]
        seq.append(M[0])
        for g in per[1]: seq += g
        seq += R[2:4]
        seq.append(M[1])
        for g in per[2]: seq += g
        seq += R[4:]
        seq.append(M[2])
        for g in per[3]: seq += g
        seq.append(M[3])
        for l in seq: a(l)
    st.stamp()
    if sst:
        st.flush(S_W); a("s_endpgm"); return
    a("v_lshlrev_b32 v11, 4, v0")
    a(f"s_lshl_b32 s{S_TMP}, s{S_W}, 12")
    a(f"v_add_u32 v12, s{S_TMP}, v11")
    a("s_nop 7")
    a("s_barrier")
    for beta in range(4):
        rb, cb = beta >> 1, beta & 1
        a(f"s_cmp_eq_u32 s{S_W}, {beta}")
        a(f"s_cbranch_scc1 g2_skipw{beta}")
        for q in range(4):
            a(f"ds_write_b128 v12, v[{acc(rb,cb)+4*q}:{acc(rb,cb)+4*q+3}] offset:{beta*16384 + q*1024}")
        a.label(f"g2_skipw{beta}")
    for beta in range(4):
        rb, cb = beta >> 1, beta & 1
        a(f"s_cmp_lg_u32 s{S_W}, {beta}")
        a(f"s_cbranch_scc1 g2_skipm{beta}")
        for r in range(16):
            a(f"v_mov_b32 v{24+r}, v{acc(rb,cb)+r}")
        a.label(f"g2_skipm{beta}")
    a("s_waitcnt lgkmcnt(0)")
    a("s_barrier")
    st.stamp()
    a(f"s_lshl_b32 s{S_TMP}, s{S_W}, 14")
    a(f"v_add_u32 v12, s{S_TMP}, v11")
    for k in range(1, 4):
        a(f"s_add_u32 s{S_TMP}, s{S_W}, {k}")
        a(f"s_and_b32 s{S_TMP}, s{S_TMP}, 3")
        a(f"s_lshl_b32 s{S_TMP}, s{S_TMP}, 12")
        a(f"v_add_u32 v13, s{S_TMP}, v12")
        for q in range(4):
            a(f"ds_read_b128 v[{64+16*(k-1)+4*q}:{64+16*(k-1)+4*q+3}], v13 offset:{q*1024}")
    a("v_lshrrev_b32 v10, 4, v0")
    a("v_lshrrev_b32 v13, 2, v0")
    a("v_and_b32 v13, 3, v13")
    a("v_and_b32 v14, 3, v0")
    a("v_lshrrev_b32 v15, 1, v10")
    a("v_lshlrev_b32 v15, 3, v15")
    a("v_add_u32 v15, v15, v13")
    a("v_lshlrev_b32 v15, 7, v15")
    a("v_and_b32 v16, 1, v10")
    a("v_lshlrev_b32 v16, 5, v16")
    a("v_add_u32 v15, v15, v16")
    a("v_lshlrev_b32 v14, 3, v14")
    a("v_add_u32 v15, v15, v14")
    a(f"s_lshr_b32 s{S_TMP}, s{S_W}, 1")
    a(f"s_lshl_b32 s{S_TMP}, s{S_TMP}, 12")
    a(f"s_and_b32 s{S_TMP2}, s{S_W}, 1")
    a(f"s_lshl_b32 s{S_TMP2}, s{S_TMP2}, 6")
    a(f"s_add_u32 s{S_TMP}, s{S_TMP}, s{S_TMP2}")
    a(f"s_add_u32 s{S_TMP}, s{S_TMP}, {ATL}")
    a(f"v_add_u32 v15, s{S_TMP}, v15")
    OT = 0
    a("v_and_b32 v10, 31, v0")
    a("v_lshrrev_b32 v11, 5, v0")
    a(f"s_and_b32 s{S_TMP}, s{S_W}, 1")
    a(f"s_lshl_b32 s{S_TMP}, s{S_TMP}, 5")
    a(f"v_add_u32 v10, s{S_TMP}, v10")
    a(f"s_lshr_b32 s{S_TMP2}, s{S_W}, 1")
    a(f"s_lshl_b32 s{S_TMP2}, s{S_TMP2}, 2")
    a(f"v_add_u32 v11, s{S_TMP2}, v11")
    a("v_and_b32 v12, 7, v10")
    a("v_xor_b32 v11, v11, v12")
    a("v_lshlrev_b32 v10, 7, v10")
    a("v_lshlrev_b32 v12, 4, v11")
    a("v_add_u32 v13, v10, v12")
    a("v_xor_b32 v12, 32, v12")
    a("v_add_u32 v14, v10, v12")
    a("v_lshrrev_b32 v10, 3, v0")
    a("v_and_b32 v11, 7, v0")
    a("v_xor_b32 v11, v11, v10")
    a("v_lshlrev_b32 v11, 4, v11")
    a("v_mul_u32_u24 v10, 896, v10")
    a("v_add_u32 v10, v10, v11")
    a("v_lshlrev_b32 v12, 4, v0")
    a(f"v_add_u32 v12, s{S_L}, v12")
    a(f"s_lshl_b32 s{S_TMP}, s{S_W}, 4")
    a(f"s_add_u32 s{S_TMP}, s{S_TMP}, s{S_T0}")
    a(f"s_mul_i32 s{S_TMP}, s{S_TMP}, 896")
    a(f"s_lshl_b32 s{S_TMP2}, s{S_D0}, 1")
    a(f"s_add_u32 s{S_TMP2}, s{S_TMP2}, s{S_TMP}")
    a("s_mov_b32 s39, 0xffff0000")
    a("s_waitcnt lgkmcnt(0)")
    for r in range(16):
        a(f"v_add_f32 v{24+r}, v{24+r}, v{64+r}")
        a(f"v_add_f32 v{80+r}, v{80+r}, v{96+r}")
    for r in range(16):
        a(f"v_add_f32 v{24+r}, v{24+r}, v{80+r}")
    for p in range(8):
        a(f"v_cvt_pk_bf16_f32 v52, v{24+2*p}, v{25+2*p}")
        a(f"v_lshlrev_b32 v{64+2*p}, 16, v52")
        a(f"v_and_b32 v{65+2*p}, s39, v52")
    a("s_waitcnt vmcnt(0)")
    a(f"v_sub_f32 v9, 1.0, v{V_G}")
    a("v_cvt_pk_bf16_f32 v9, v9, v9")
    a("v_lshlrev_b32 v9, 16, v9")
    for p in range(8):
        a(f"v_mul_f32 v53, v9, v{64+2*p}")
        a(f"v_mul_f32 v54, v9, v{65+2*p}")
        a(f"v_cvt_pk_bf16_f32 v52, v53, v54")
        a(f"v_lshlrev_b32 v{64+2*p}, 16, v52")
        a(f"v_and_b32 v{65+2*p}, s39, v52")
    a("s_waitcnt vmcnt(0)")
    a("s_barrier")
    for Q in range(2):
        for h2 in range(2):
            a(f"ds_read_b64_tr_b16 v[{44+4*Q+2*h2}:{44+4*Q+2*h2+1}], v15 offset:{(16*Q+4*h2)*128}")
    a("s_waitcnt lgkmcnt(0)")
    for Q in range(2):
        for p in range(4):
            av = 44 + 4*Q + p; bb = 64 + 8*Q + 2*p
            a(f"v_lshlrev_b32 v55, 16, v{av}")
            a(f"v_and_b32 v56, s39, v{av}")
            a(f"v_mul_f32 v55, v{V_G}, v55")
            a(f"v_mul_f32 v56, v{V_G}, v56")
            a(f"v_cvt_pk_bf16_f32 v55, v55, v56")
            a(f"v_lshlrev_b32 v56, 16, v55")
            a(f"v_and_b32 v55, s39, v55")
            a(f"v_add_f32 v53, v{bb}, v56")
            a(f"v_add_f32 v54, v{bb+1}, v55")
            a(f"v_cvt_pk_bf16_f32 v{24+4*Q+p}, v53, v54")
        a(f"ds_write_b128 v{13+Q}, v[{24+4*Q}:{27+4*Q}] offset:{OT}")
    a("s_waitcnt lgkmcnt(0)")
    a("s_barrier")
    a(f"ds_read_b128 v[32:35], v12 offset:{OT}")
    a(f"ds_read_b128 v[36:39], v12 offset:{OT+1024}")
    for i in range(2):
        a(f"s_waitcnt lgkmcnt({1-i})")
        a(f"s_add_u32 s{S_TMP}, s{S_TMP2}, {8*i*896}")
        a(f"buffer_store_dwordx4 v[{32+4*i}:{35+4*i}], v10, s[{SRD_O}:{SRD_O+3}], s{S_TMP} offen {outflag}")
    st.stamp()
    for _ in range(diagdelay): a("s_sleep 32")
    dbg_event(a, 5)
    if st.on: a("s_waitcnt vmcnt(0)")
    st.stamp(real=True)
    st.flush(S_W)
```

```python
class Asm:
    def __init__(self):
        self.L = []
    def __call__(self, s=""):
        for line in s.split("\n"):
            line = line.strip()
            if line:
                self.L.append("    " + line)
    def label(self, n):
        self.L.append(n + ":")
    def c(self, s):
        self.L.append("    ; " + s)
    def text(self):
        return "\n".join(self.L)

def vr(a, n=1):
    return f"v{a}" if n == 1 else f"v[{a}:{a+n-1}]"
def sr(a, n=1):
    return f"s{a}" if n == 1 else f"s[{a}:{a+n-1}]"

KA = dict(u=0, are=8, aim=16, bre=24, bim=32, cre=40, cim=48, ldt=56, dskip=64, bx=72, wg=80, wu=88, wd=96, gw=104, out=112, dbg=120, ws=128)

WS_H  = 0x000000; SZ_H = 2048*1792*2
WS_UT = 0x700000; SZ_UT = 448*2048*2
WS_AT = 0x8C0000; SZ_AT = 448*2048*2
WS_KX = 0xA80000; KX_ROW = 2112*2; SZ_KX = 448*2*KX_ROW
WS_G  = 0xE20000; SZ_G = 2048*4

def srd_from(a, dst, src, size, off=0):
    if off:
        a(f"s_add_u32 s{dst}, s{src}, {off}")
        a(f"s_addc_u32 s{dst+1}, s{src+1}, 0")
    else:
        a(f"s_mov_b32 s{dst}, s{src}")
        a(f"s_mov_b32 s{dst+1}, s{src+1}")
    a(f"s_mov_b32 s{dst+2}, {size}")
    a(f"s_mov_b32 s{dst+3}, 0x20000")

def kdesc(name, vgpr, sgpr=102, accum=None):
    accum = accum or ((vgpr + 3) // 4 * 4)
    return f""".section .rodata,"a"
.p2align 6
.amdhsa_kernel {name}
  .amdhsa_next_free_vgpr {vgpr}
  .amdhsa_next_free_sgpr {sgpr}
  .amdhsa_accum_offset {accum}
  .amdhsa_group_segment_fixed_size 0
  .amdhsa_kernarg_size 136
  .amdhsa_user_sgpr_count 2
  .amdhsa_user_sgpr_kernarg_segment_ptr 1
  .amdhsa_system_sgpr_workgroup_id_x 1
  .amdhsa_float_denorm_mode_32 3
.end_amdhsa_kernel
.text
"""

WS_STAMP = 0x2000000
class Stamps:
    ALLREAL = False
    def __init__(self, a, base, on):
        self.a, self.base, self.on, self.n = a, base, on, 0
    def stamp(self, real=False):
        if not self.on: return
        real = real or Stamps.ALLREAL
        self.a(f"s_mem{'real' if real else ''}time s[{self.base+2*self.n}:{self.base+2*self.n+1}]")
        self.n += 1
    def flush(self, wave_sgpr, tmp0=92):
        if not self.on: return
        a = self.a
        a("s_waitcnt lgkmcnt(0) vmcnt(0)")
        a(f"s_load_dwordx2 s[{tmp0}:{tmp0+1}], s[0:1], {KA['ws']}")
        a("s_waitcnt lgkmcnt(0)")
        a(f"s_add_u32 s{tmp0}, s{tmp0}, {WS_STAMP}")
        a(f"s_addc_u32 s{tmp0+1}, s{tmp0+1}, 0")
        a(f"s_mov_b32 s{tmp0+2}, 0x100000")
        a(f"s_mov_b32 s{tmp0+3}, 0x20000")
        a(f"s_lshl_b32 s{tmp0+4}, s2, 8")
        a(f"s_lshl_b32 s{tmp0+5}, s{wave_sgpr}, 6")
        a(f"s_add_u32 s{tmp0+4}, s{tmp0+4}, s{tmp0+5}")
        a(f"v_mov_b32 v250, 0")
        for k in range(16):
            a(f"v_mov_b32 v251, s{self.base+2*k}")
            a(f"buffer_store_dword v251, v250, s[{tmp0}:{tmp0+3}], s{tmp0+4} offen offset:{4*k}")
        a("s_waitcnt vmcnt(0)")

FLAG_AUX = 0
FLAG_H = 16
FLAG_A = 128

WS_F = 0xE30000; SZ_F = 896*128
L_H = 0
L_A = 224
L_U = 448
L_M = 672
SPIN_MAX = 400000

def wait_tag(a, name, s_dbg, s_tag, s_cnt, v0_, v1_):
    a(f"v_mov_b32 v{v0_}, 0")
    a(f"s_mov_b32 s{s_cnt}, 0")
    a.label(name)
    a(f"global_load_dword v{v1_}, v{v0_}, s[{s_dbg}:{s_dbg+1}] sc1")
    a("s_waitcnt vmcnt(0)")
    a(f"v_readfirstlane_b32 s{s_tag}, v{v1_}")
    a(f"s_add_u32 s{s_cnt}, s{s_cnt}, 1")
    a(f"s_cmp_ge_u32 s{s_cnt}, {SPIN_MAX}")
    a(f"s_cbranch_scc1 {name}_ok")
    a(f"s_cmp_lg_u32 s{s_tag}, 0")
    a(f"s_cbranch_scc1 {name}_ok")
    a("s_sleep 8")
    a(f"s_branch {name}")
    a.label(name + "_ok")

def wait_flags(a, name, srd_f, s_line_off, nwords, s_tag, s_tmp, s_cnt, v0_, v1_, sleep=2, s_mask=None):
    mask = f"s{s_mask}" if s_mask is not None else hex((1 << nwords) - 1)
    a(f"v_and_b32 v{v0_}, 31, v0")
    a(f"v_lshlrev_b32 v{v0_}, 2, v{v0_}")
    a(f"s_mov_b32 s{s_cnt}, 0")
    a.label(name)
    a(f"buffer_load_dword v{v1_}, v{v0_}, s[{srd_f}:{srd_f+3}], s{s_line_off} offen sc1")
    a("s_waitcnt vmcnt(0)")
    a(f"v_cmp_eq_u32 vcc, s{s_tag}, v{v1_}")
    a(f"s_add_u32 s{s_cnt}, s{s_cnt}, 1")
    a(f"s_cmp_ge_u32 s{s_cnt}, {SPIN_MAX}")
    a(f"s_cbranch_scc1 {name}_ok")
    a(f"s_and_b32 s{s_tmp}, vcc_lo, {mask}")
    a(f"s_cmp_eq_u32 s{s_tmp}, {mask}")
    a(f"s_cbranch_scc1 {name}_ok")
    if sleep: a(f"s_sleep {sleep}")
    a(f"s_branch {name}")
    a.label(name + "_ok")

def set_flags(a, srd_f, s_off, s_tag, nlanes, lane_stride, v0_, v1_):
    if nlanes == 1: a(f"v_mov_b32 v{v0_}, 0")
    else: a(f"v_mul_u32_u24 v{v0_}, {lane_stride}, v0")
    a(f"v_mov_b32 v{v1_}, s{s_tag}")
    a(f"s_mov_b64 exec, {hex((1 << nlanes) - 1)}")
    a(f"buffer_store_dword v{v1_}, v{v0_}, s[{srd_f}:{srd_f+3}], s{s_off} offen sc1")
    a("s_mov_b64 exec, -1")

DBGEV = False
DBG_IDS = (232, 238)
def dbg_event(a, word, invert=False):
    if not DBGEV: return
    lab = f"dbgev_{len(a.L)}"
    a("s_cmp_lg_u32 s4, 0")
    a(f"s_cbranch_scc1 {lab}")
    a("s_mov_b32 s88, 0")
    a("s_cmp_eq_u32 s2, 232"); a("s_cselect_b32 s88, 1, s88")
    a("s_cmp_eq_u32 s2, 8"); a("s_cselect_b32 s88, 1, s88")
    a("s_cmp_eq_u32 s2, 238"); a("s_cselect_b32 s88, 8, s88")
    a("s_cmp_eq_u32 s2, 14"); a("s_cselect_b32 s88, 8, s88")
    a("s_cmp_eq_u32 s88, 0")
    a(f"s_cbranch_scc1 {lab}")
    a(f"s_add_u32 s88, s88, {word}")
    a("s_lshl_b32 s88, s88, 2")
    a("v_mov_b32 v13, s88")
    a("s_memrealtime s[88:89]")
    a(f"s_load_dwordx2 s[90:91], s[0:1], {KA['dbg']}")
    a("s_waitcnt lgkmcnt(0)")
    a("v_mov_b32 v12, s88")
    a("s_mov_b64 exec, 1")
    a("global_store_dword v13, v12, s[90:91] sc1")
    a("s_mov_b64 exec, -1")
    a.label(lab)

def wait_flags2(a, name, srd_f, s_line_off, s_tag, s_mask, s_tmp, s_cnt, v0_, v1_, v2_):
    a(f"v_and_b32 v{v0_}, 31, v0")
    a(f"v_lshlrev_b32 v{v0_}, 2, v{v0_}")
    a(f"s_mov_b32 s{s_cnt}, 0")
    a(f"buffer_load_dword v{v1_}, v{v0_}, s[{srd_f}:{srd_f+3}], s{s_line_off} offen sc1")
    a.label(name)
    a("s_sleep 4")
    a(f"buffer_load_dword v{v2_}, v{v0_}, s[{srd_f}:{srd_f+3}], s{s_line_off} offen sc1")
    a("s_waitcnt vmcnt(1)")
    a(f"v_cmp_eq_u32 vcc, s{s_tag}, v{v1_}")
    a(f"s_add_u32 s{s_cnt}, s{s_cnt}, 1")
    a(f"s_cmp_ge_u32 s{s_cnt}, {SPIN_MAX}")
    a(f"s_cbranch_scc1 {name}_ok")
    a(f"s_and_b32 s{s_tmp}, vcc_lo, s{s_mask}")
    a(f"s_cmp_eq_u32 s{s_tmp}, s{s_mask}")
    a(f"s_cbranch_scc1 {name}_ok")
    a("s_sleep 4")
    a(f"buffer_load_dword v{v1_}, v{v0_}, s[{srd_f}:{srd_f+3}], s{s_line_off} offen sc1")
    a("s_waitcnt vmcnt(1)")
    a(f"v_cmp_eq_u32 vcc, s{s_tag}, v{v2_}")
    a("s_nop 1")
    a(f"s_and_b32 s{s_tmp}, vcc_lo, s{s_mask}")
    a(f"s_cmp_eq_u32 s{s_tmp}, s{s_mask}")
    a(f"s_cbranch_scc0 {name}_again")
    a(f"s_branch {name}_ok")
    a.label(name + "_again")
    a("s_waitcnt vmcnt(0)")
    a(f"v_cmp_eq_u32 vcc, s{s_tag}, v{v1_}")
    a("s_nop 1")
    a(f"s_and_b32 s{s_tmp}, vcc_lo, s{s_mask}")
    a(f"s_cmp_eq_u32 s{s_tmp}, s{s_mask}")
    a(f"s_cbranch_scc1 {name}_ok")
    a(f"buffer_load_dword v{v1_}, v{v0_}, s[{srd_f}:{srd_f+3}], s{s_line_off} offen sc1")
    a(f"s_branch {name}")
    a.label(name + "_ok")
```

```python
from asmlib import *

def gemm1(a, st, s_ti, s_tj, s_rot, exact_round=True, NW=3, NX=2, sc1=True, NPRO=5, unitstamps=False, s_k=None, s_j=None, MFU=11, hybrid=True, publish=None, tail=None, s_main=None, mshift=0, notag=False, dual=False, prioU=None, tagU=6, tagsc=True):
    S_W = 4
    S_T0 = 5; S_F0 = 6
    SRD_X = 8; SRD_W = 12; SRD_H = 16
    S_XCUR = 20; S_WCUR = 21; S_XL = 22; S_WL = 23
    S_TMP = 24; S_TMP2 = 25; S_XLIM = 26; S_WLIM = 27
    P0 = 28
    a.c("---- GEMM1 role ----")
    a(f"s_load_dwordx2 s[{P0}:{P0+1}], s[0:1], {KA['u']}")
    a(f"s_load_dwordx4 s[{P0+4}:{P0+7}], s[0:1], {KA['wg']}")
    a(f"s_load_dwordx2 s[{P0+2}:{P0+3}], s[0:1], {KA['ws']}")
    a(f"s_lshl_b32 s{S_T0}, s{s_ti}, 7")
    a(f"s_lshl_b32 s{S_F0}, s{s_tj}, 7")
    V_DW = 2; V_DX0 = 3; V_DX1 = 4
    V_DWI = 72; V_DXI = 76
    a("v_lshrrev_b32 v10, 4, v0")
    a("v_and_b32 v11, 15, v0")
    a("v_lshlrev_b32 v12, 1, v10")
    a("v_xor_b32 v11, v11, v12")
    a(f"s_lshr_b32 s{S_TMP}, s{S_W}, 1")
    a(f"s_lshl_b32 s{S_TMP2}, s{S_TMP}, 3")
    a(f"v_xor_b32 v11, s{S_TMP2}, v11")
    a("v_lshlrev_b32 v11, 4, v11")
    a("v_mul_u32_u24 v12, 3584, v10")
    a(f"v_add_u32 v{V_DW}, v11, v12")
    a("v_lshrrev_b32 v11, 3, v0")
    a("v_mul_u32_u24 v11, 896, v11")
    a("v_and_b32 v12, 7, v0")
    a("v_xor_b32 v13, v12, v10")
    a("v_lshlrev_b32 v13, 4, v13")
    a(f"v_add_u32 v{V_DX0}, v11, v13")
    a("v_xor_b32 v13, 64, v13")
    a(f"v_add_u32 v{V_DX1}, v11, v13")
    for i in range(4):
        a(f"v_add_u32 v{V_DWI+i}, {i*(4*3584 - 1024)}, v{V_DW}")
        a(f"v_add_u32 v{V_DXI+i}, {i*(8*896 - 1024)}, v{V_DX0 + (i & 1)}")
    a(f"s_lshl_b32 s{S_TMP2}, s{S_W}, 5")
    a(f"s_add_u32 s{S_XCUR}, s{S_T0}, s{S_TMP2}")
    a(f"s_mul_i32 s{S_XCUR}, s{S_XCUR}, 896")
    a(f"s_add_u32 s{S_XLIM}, s{S_XCUR}, 896")
    a(f"s_lshl_b32 s{S_TMP2}, s{s_rot}, 7")
    if hybrid:
        a(f"s_add_u32 s58, s{S_XCUR}, s{S_TMP2}")
        a(f"s_add_u32 s58, s58, 128")
    else:
        a(f"s_add_u32 s{S_XCUR}, s{S_XCUR}, s{S_TMP2}")
    a(f"s_lshl_b32 s{S_XL}, s{S_W}, 12")
    a(f"s_add_u32 s{S_XL}, s{S_XL}, {NW*16384}")
    a(f"s_and_b32 s{S_TMP2}, s{S_W}, 1")
    a(f"s_mul_i32 s{S_WCUR}, s{S_TMP2}, {16*3584}")
    a(f"s_lshl_b32 s{S_WL}, s{S_F0}, 1")
    a(f"s_add_u32 s{S_WCUR}, s{S_WCUR}, s{S_WL}")
    a(f"s_add_u32 s{S_WLIM}, s{S_WCUR}, {448*3584}")
    a(f"s_mul_i32 s{S_WL}, s{s_rot}, {64*3584}")
    if hybrid:
        a(f"s_add_u32 s59, s{S_WCUR}, s{S_WL}")
        a(f"s_add_u32 s59, s59, {64*3584}")
    else:
        a(f"s_add_u32 s{S_WCUR}, s{S_WCUR}, s{S_WL}")
    a(f"s_lshl_b32 s{S_WL}, s{S_TMP}, 13")
    a(f"s_lshl_b32 s{S_TMP2}, s{S_TMP2}, 12")
    a(f"s_add_u32 s{S_WL}, s{S_WL}, s{S_TMP2}")
    a("s_waitcnt lgkmcnt(0)")
    srd_from(a, SRD_X, P0, 2048*448*2)
    a(f"s_cmp_eq_u32 s{S_TMP}, 0")
    a(f"s_cselect_b32 s{SRD_W}, s{P0+4}, s{P0+6}")
    a(f"s_cselect_b32 s{SRD_W+1}, s{P0+5}, s{P0+7}")
    a(f"s_mov_b32 s{SRD_W+2}, {448*1792*2}")
    a(f"s_mov_b32 s{SRD_W+3}, 0x20000")

    vm = []
    def dma_instrs(d):
        kind, idx = d
        out = []
        for i in range(4):
            if kind == "W":
                g = [f"s_add_u32 m0, s{S_WL}, {(idx % NW)*16384}"] if i == 0 else []
                g.append(f"buffer_load_dwordx4 v{V_DWI+i}, s[{SRD_W}:{SRD_W+3}], s{S_WCUR} offen offset:{i*1024} lds")
                if i == 3 and hybrid and idx == 1:
                    g += [f"s_mov_b32 s{S_WCUR}, s59"]
                elif i == 3:
                    g += [f"s_add_u32 s{S_WCUR}, s{S_WCUR}, {32*3584}",
                          f"s_sub_u32 s{S_TMP2}, s{S_WCUR}, {(384 if hybrid else 448)*3584}",
                          f"s_cmp_ge_u32 s{S_WCUR}, s{S_WLIM}",
                          f"s_cselect_b32 s{S_WCUR}, s{S_TMP2}, s{S_WCUR}"]
            else:
                g = [f"s_add_u32 m0, s{S_XL}, {(idx % NX)*16384}"] if i == 0 else []
                g.append(f"buffer_load_dwordx4 v{V_DXI+i}, s[{SRD_X}:{SRD_X+3}], s{S_XCUR} offen offset:{i*1024} lds")
                if i == 3 and hybrid and idx == 0:
                    g += [f"s_mov_b32 s{S_XCUR}, s58"]
                elif i == 3:
                    g += [f"s_add_u32 s{S_XCUR}, s{S_XCUR}, 128",
                          f"s_sub_u32 s{S_TMP2}, s{S_XCUR}, {768 if hybrid else 896}",
                          f"s_cmp_ge_u32 s{S_XCUR}, s{S_XLIM}",
                          f"s_cselect_b32 s{S_XCUR}, s{S_TMP2}, s{S_XCUR}"]
            if i == 0: g.insert(1, "s_nop 0")
            out.append(g)
        vm.append(d)
        return out
    def wait_for(needs):
        last = max(vm.index(n) for n in needs)
        a(f"s_waitcnt vmcnt({sum((1 if g[0] == 'F' else 2 if g[0] == 'T' else 4) for g in vm[last+1:])})")
    order = [("X",0),("W",0),("W",1),("X",1),("W",2),("W",3),("X",2),("W",4),("W",5)]
    order = [d for d in order if (d[0] == "W" and d[1] < NW) or (d[0] == "X" and d[1] < NX)]
    for d in order[:NPRO]:
        for g in dma_instrs(d):
            for l in g: a(l)
    late = order[NPRO:]
    srd_from(a, SRD_H, P0+2, SZ_H, WS_H)
    SRD_F = 52
    srd_from(a, SRD_F, P0+2, SZ_F, WS_F)
    a(f"s_load_dwordx2 s[{P0}:{P0+1}], s[0:1], {KA['dbg']}")
    a(f"s_sub_u32 s57, s{s_j}, {mshift}")
    a(f"s_lshl_b32 s56, s57, 3")
    a(f"s_add_u32 s56, s56, s{s_k}")
    a(f"s_add_u32 s56, s56, {L_M}")
    a("s_lshl_b32 s56, s56, 7")
    a(f"s_cmp_lt_u32 s57, 28")
    a(f"s_cselect_b32 s56, s56, {SZ_F}")
    a("v_mov_b32 v21, 0")
    a("s_waitcnt lgkmcnt(0)")
    if publish: publish(a, P0)

    V_AW = 5
    V_AX = 14
    a("v_lshrrev_b32 v10, 4, v0")
    a("v_lshrrev_b32 v11, 2, v0")
    a("v_and_b32 v11, 3, v11")
    a("v_and_b32 v12, 3, v0")
    a("v_lshrrev_b32 v13, 1, v10")
    a("v_and_b32 v10, 1, v10")
    a("v_lshlrev_b32 v18, 13, v10")
    a("v_lshlrev_b32 v19, 3, v13")
    a("v_add_u32 v19, v19, v11")
    a("v_lshlrev_b32 v19, 8, v19")
    a("v_add_u32 v18, v18, v19")
    a("v_lshrrev_b32 v19, 1, v12")
    a("v_lshlrev_b32 v19, 3, v19")
    a("v_add_u32 v18, v18, v19")
    a("v_and_b32 v19, 1, v12")
    a("v_lshlrev_b32 v20, 1, v11")
    a("v_xor_b32 v19, v19, v20")
    a("v_lshlrev_b32 v20, 3, v10")
    a("v_xor_b32 v19, v19, v20")
    a(f"s_lshr_b32 s{S_TMP}, s{S_W}, 1")
    a(f"s_lshl_b32 s{S_TMP}, s{S_TMP}, 3")
    for rb in range(4):
        a(f"s_add_u32 s{S_TMP2}, s{S_TMP}, {rb*2}")
        a(f"v_xor_b32 v20, s{S_TMP2}, v19")
        a("v_lshlrev_b32 v20, 4, v20")
        a(f"v_add_u32 v{V_AW+rb}, v18, v20")
    a("v_and_b32 v10, 31, v0")
    a("v_lshrrev_b32 v11, 5, v0")
    a("v_lshrrev_b32 v12, 1, v10")
    a("v_and_b32 v12, 7, v12")
    a("v_xor_b32 v12, v12, v11")
    a(f"s_and_b32 s{S_TMP}, s{S_W}, 1")
    a(f"s_lshl_b32 s{S_TMP}, s{S_TMP}, 13")
    a(f"s_add_u32 s{S_TMP}, s{S_TMP}, {NW*16384}")
    a("v_lshlrev_b32 v10, 7, v10")
    a(f"v_add_u32 v10, s{S_TMP}, v10")
    for ks in range(4):
        a(f"v_xor_b32 v13, {2*ks}, v12")
        a("v_lshlrev_b32 v13, 4, v13")
        a(f"v_add_u32 v{V_AX+ks}, v10, v13")

    FR = [24, 48]
    ACC = 128
    def acc(rb, cb): return ACC + 16*(rb*2 + cb)
    def reads(step):
        u = step // 2; s = step % 2; v = step // 4; ks = step % 4
        fb = FR[step % 2]
        R = []
        def ra(rb):
            for h2 in range(2):
                R.append(f"ds_read_b64_tr_b16 v[{fb+4*rb+2*h2}:{fb+4*rb+2*h2+1}], v{V_AW+rb} offset:{(u%NW)*16384 + (16*s+4*h2)*256}")
        def rbb(cb):
            R.append(f"ds_read_b128 v[{fb+16+4*cb}:{fb+16+4*cb+3}], v{V_AX+ks} offset:{(v%NX)*16384 + cb*4096}")
        rbb(0); ra(0); ra(1); rbb(1); ra(2); ra(3)
        return R
    def mfmas(step):
        fb = FR[step % 2]
        M = []
        for (rb, cb) in [(0,0),(1,0),(0,1),(1,1),(2,0),(2,1),(3,0),(3,1)]:
            c = "0" if step == 0 else f"v[{acc(rb,cb)}:{acc(rb,cb)+15}]"
            M.append(f"v_mfma_f32_32x32x16_bf16 v[{acc(rb,cb)}:{acc(rb,cb)+15}], v[{fb+4*rb}:{fb+4*rb+3}], v[{fb+16+4*cb}:{fb+16+4*cb+3}], {c}")
        return M
    a("v_and_b32 v10, 31, v0")
    a("v_lshrrev_b32 v11, 5, v0")
    a("v_and_b32 v12, 7, v10")
    a("v_xor_b32 v12, v12, v11")
    a(f"s_lshl_b32 s{S_TMP}, s{S_W}, 13")
    a("v_lshlrev_b32 v10, 7, v10")
    a(f"v_add_u32 v10, s{S_TMP}, v10")
    for rb in range(4):
        a(f"v_xor_b32 v13, {2*rb}, v12")
        a("v_lshlrev_b32 v13, 4, v13")
        a(f"v_add_u32 v{91+rb}, v10, v13")
    a("v_lshrrev_b32 v10, 3, v0")
    a("v_and_b32 v11, 7, v0")
    a("v_xor_b32 v11, v11, v10")
    a("v_lshlrev_b32 v11, 4, v11")
    a("v_mul_u32_u24 v13, 3584, v10")
    a("v_add_u32 v95, v11, v13")
    a("v_lshlrev_b32 v96, 4, v0")
    a(f"v_add_u32 v96, s{S_TMP}, v96")
    a(f"s_and_b32 s{S_TMP2}, s{S_W}, 1")
    a(f"s_lshl_b32 s{S_TMP2}, s{S_TMP2}, 6")
    a(f"s_add_u32 s{S_TMP2}, s{S_TMP2}, s{S_T0}")
    a(f"s_mul_i32 s{S_TMP2}, s{S_TMP2}, 3584")
    a(f"s_lshr_b32 s{S_TMP}, s{S_W}, 1")
    a(f"s_lshl_b32 s{S_TMP}, s{S_TMP}, 6")
    a(f"s_add_u32 s{S_TMP}, s{S_TMP}, s{S_F0}")
    a(f"s_lshl_b32 s{S_TMP}, s{S_TMP}, 1")
    a(f"s_add_u32 s{S_TMP2}, s{S_TMP2}, s{S_TMP}")
    a(f"s_mov_b32 s30, s{S_TMP2}")
    if tail:
        tail.setup_w(a, s_main)
        tail.setup_g2(a, s_main)
    if not unitstamps: st.stamp()
    wait_for([("X",0),("W",0)])
    a("s_barrier")
    st.stamp()
    dbg_event(a, 1)
    if st.on: a("s_memtime s[88:89]")
    for r in reads(0): a(r)
    pend = []
    for d in late:
        for g in dma_instrs(d):
            for l in g: a(l)
    for u in range(14):
        for s in range(2):
            step = 2*u + s
            a("s_waitcnt lgkmcnt(0)")
            if s == 1:
                need = []
                if u + 1 < 14: need = [("W", u+1), ("X", (u+1)//2)]
                if need: wait_for(need)
                a("s_barrier")
                if unitstamps and (u < 11 if unitstamps == 1 else u >= 3): st.stamp()
                assert not pend
                if prioU is not None and u == prioU: a("s_setprio 3")
                dmas = []
                if u + NW < 14: dmas.append(("W", u+NW))
                if u % 2 == 1 and (u//2) + NX < 7: dmas.append(("X", u//2 + NX))
                if u == tagU:
                    a(f"global_load_dword v23, v21, s[{P0}:{P0+1}] {'sc1' if tagsc else ''}")
                    vm.append(("F", 1))
                if u == MFU and not notag:
                    a("v_readfirstlane_b32 s37, v23")
                    a("s_nop 3")
                    a("s_cmp_lg_u32 s37, 0")
                    a("s_cbranch_scc1 g1_mf_fast")
                    wait_tag(a, "g1_wr", P0, 37, S_TMP2, 21, 23)
                    a("v_mov_b32 v21, 0")
                    a.label("g1_mf_fast")
                    a("v_mov_b32 v22, s37")
                    a("s_mov_b64 exec, 1")
                    a(f"buffer_store_dword v22, v21, s[{SRD_F}:{SRD_F+3}], s56 offen sc1")
                    a("s_mov_b64 exec, -1")
                    vm.append(("F", 0))
                for d in dmas: pend += dma_instrs(d)
                if tail and NW == 3 and u in (11, 13):
                    for p in ((0, 1, 2, 3) if u == 11 else (4, 5)):
                        pend += tail.dma_w_lines(tail.EARLY_AREA[p]*8192, p)
                        vm.append(("T", p))
            M = mfmas(step)
            R = reads(step + 1) if step + 1 < 28 else []
            ri = 0
            for mi, m in enumerate(M):
                a(m)
                if pend and mi % 2 == 1:
                    for line in pend.pop(0): a(line)
                for _ in range(2):
                    if ri < len(R):
                        a(R[ri]); ri += 1
    dbg_event(a, 2)
    if unitstamps:
        st.stamp(); st.flush(S_W); a("s_endpgm"); st.n = 4
    st.stamp()
    if st.on: a("s_memtime s[90:91]")
    a("s_mov_b32 s36, 0xffff0000")
    a("s_nop 7")
    def half(cb):
        for rb in range(4):
            A0 = acc(rb, cb)
            o = 24 + 4*(rb % 2)
            for p in range(4):
                g0, g1, u0, u1 = A0+2*p, A0+2*p+1, A0+8+2*p, A0+8+2*p+1
                if exact_round:
                    a(f"v_cvt_pk_bf16_f32 v32, v{g0}, v{g1}")
                    a(f"v_cvt_pk_bf16_f32 v33, v{u0}, v{u1}")
                    a(f"v_lshlrev_b32 v34, 16, v32")
                    a(f"v_and_b32 v35, s36, v32")
                    a(f"v_lshlrev_b32 v36, 16, v33")
                    a(f"v_and_b32 v37, s36, v33")
                    a(f"v_mul_f32 v34, v34, v36")
                    a(f"v_mul_f32 v35, v35, v37")
                    a(f"v_cvt_pk_bf16_f32 v{o+p}, v34, v35")
                else:
                    a(f"v_mul_f32 v34, v{g0}, v{u0}")
                    a(f"v_mul_f32 v35, v{g1}, v{u1}")
                    a(f"v_cvt_pk_bf16_f32 v{o+p}, v34, v35")
            a(f"ds_write_b128 v{91+rb}, v[{o}:{o+3}] offset:{cb*4096}")
    def readback(cb):
        for i in range(4):
            a(f"ds_read_b128 v[{40+16*cb+4*i}:{43+16*cb+4*i}], v96 offset:{cb*4096 + i*1024}")
    def stores(cb, younger):
        for i in range(4):
            a(f"s_waitcnt lgkmcnt({younger + 3 - i})")
            a(f"s_add_u32 s{S_TMP}, s30, {(32*cb + 8*i)*3584}")
            a(f"buffer_store_dwordx4 v[{40+16*cb+4*i}:{43+16*cb+4*i}], v95, s[{SRD_H}:{SRD_H+3}], s{S_TMP} offen {'sc1' if sc1 else ''}")
            if dual: a(f"buffer_store_dwordx4 v[{40+16*cb+4*i}:{43+16*cb+4*i}], v95, s[{SRD_H}:{SRD_H+3}], s{S_TMP} offen {['', '', 'nt'][dual]}")
    half(0)
    readback(0)
    half(1)
    readback(1)
    stores(0, 8)
    stores(1, 0)
    if MFU >= 14:
        a("v_readfirstlane_b32 s37, v23")
        a("s_nop 3")
        a("s_cmp_lg_u32 s37, 0")
        a("s_cbranch_scc1 g1_mf_fast")
        wait_tag(a, "g1_wr", P0, 37, S_TMP2, 21, 23)
        a("v_mov_b32 v21, 0")
        a.label("g1_mf_fast")
        a("v_mov_b32 v22, s37")
        a("s_mov_b64 exec, 1")
        a(f"buffer_store_dword v22, v21, s[{SRD_F}:{SRD_F+3}], s56 offen sc1")
        a("s_mov_b64 exec, -1")
    st.stamp()
    a("s_barrier")
    tail.pre_dma(a)
    a(f"s_lshr_b32 s{S_TMP}, s{S_T0}, 7")
    a(f"s_mul_i32 s57, s{S_TMP}, {14*128}")
    a(f"s_lshr_b32 s{S_TMP2}, s{S_F0}, 5")
    a(f"s_add_u32 s57, s57, s{S_TMP2}")
    a("s_mov_b32 s58, 1")
```

```python
from asmlib import *

NSLOT = 5
SLEEP = 2
NS = 28

SRD_WD = 92; S_WCUR = 96; S_WLIM = 97; S_L2 = 98; V_W0 = 20; V_W1 = 19
S_R = 38; S_PH = 39; S_WB = 47
TWOPASS = False
MAPB = True
EARLY_AREA = [4, 5, 8, 9, 6, 7]
def setup_w(a, s_main, rot=True):
    a(f"s_load_dwordx2 s[{SRD_WD}:{SRD_WD+1}], s[0:1], {KA['wd']}")
    a("v_lshrrev_b32 v10, 4, v0")
    a("v_lshrrev_b32 v11, 3, v0")
    a("v_and_b32 v12, 7, v0")
    a("v_and_b32 v13, 1, v10")
    a("v_lshlrev_b32 v13, 2, v13")
    a("v_xor_b32 v13, v13, v12")
    a("v_lshlrev_b32 v13, 4, v13")
    a("v_mul_u32_u24 v12, 896, v11")
    a(f"v_add_u32 v{V_W0}, v12, v13")
    a(f"v_add_u32 v{V_W1}, {8*896 - 1024}, v{V_W0}")
    a(f"s_lshr_b32 s99, s{s_main}, 3")
    a("s_and_b32 s100, s99, 3")
    a("s_mul_i32 s100, s100, 3")
    a("s_lshr_b32 s99, s99, 2")
    a("s_lshl_b32 s101, s99, 1")
    a("s_add_u32 s100, s100, s101")
    a("s_sub_u32 s101, s100, 14")
    a("s_cmp_ge_u32 s100, 14")
    a("s_cselect_b32 s100, s101, s100")
    if not rot: a("s_mov_b32 s100, 0")
    a(f"s_mov_b32 s{S_R}, s100")
    if MAPB:
        a(f"s_and_b32 s101, s{s_main}, 1")
        a(f"s_mul_i32 s{S_PH}, s101, 14")
    else:
        a(f"s_and_b32 s101, s{s_main}, 4")
        a("s_cmp_eq_u32 s101, 0")
        a(f"s_cselect_b32 s{S_PH}, 8, 0")
    a(f"s_lshl_b32 s101, s4, 4")
    a(f"s_mul_i32 s{S_WB}, s101, 896")
    a("s_lshl_b32 s99, s99, 7")
    a(f"s_add_u32 s{S_WB}, s{S_WB}, s99")
    if TWOPASS:
        a(f"s_add_u32 s{S_WLIM}, s{S_WB}, {28*64*896}")
        a(f"s_mul_i32 s99, s100, {128*896}")
        a(f"s_add_u32 s{S_WCUR}, s{S_WB}, s99")
    else:
        a(f"s_add_u32 s99, s{S_PH}, 14")
        a(f"s_mul_i32 s99, s99, {64*896}")
        a(f"s_add_u32 s{S_WLIM}, s{S_WB}, s99")
        a(f"s_add_u32 s99, s{S_PH}, s100")
        a(f"s_mul_i32 s99, s99, {64*896}")
        a(f"s_add_u32 s{S_WCUR}, s{S_WB}, s99")
    a(f"s_lshl_b32 s{S_L2}, s4, 11")
    a("s_waitcnt lgkmcnt(0)")
    a(f"s_mov_b32 s{SRD_WD+2}, {1792*448*2}")
    a(f"s_mov_b32 s{SRD_WD+3}, 0x20000")

def advance(cur, lim, step, i, base_reg, tmp):
    if TWOPASS:
        if i == 13:
            return [f"s_mul_i32 s{tmp}, s{S_R}, {2*step}", f"s_add_u32 s{cur}, s{base_reg}, s{tmp}", f"s_add_u32 s{cur}, s{cur}, {step}",
                    f"s_add_u32 s{lim}, s{base_reg}, {29*step}"]
        return [f"s_add_u32 s{cur}, s{cur}, {2*step}", f"s_sub_u32 s{tmp}, s{cur}, {28*step}",
                f"s_cmp_ge_u32 s{cur}, s{lim}", f"s_cselect_b32 s{cur}, s{tmp}, s{cur}"]
    if not MAPB:
        if i == 13:
            return [f"s_add_u32 s{tmp}, s{S_PH}, 14", f"s_mul_i32 s{tmp}, s{tmp}, {step}", f"s_add_u32 s{cur}, s{base_reg}, s{tmp}",
                    f"s_add_u32 s{lim}, s{base_reg}, {28*step}"]
        n = 14 if i < 13 else 28
        return [f"s_add_u32 s{cur}, s{cur}, {step}", f"s_sub_u32 s{tmp}, s{cur}, {n*step}",
                f"s_cmp_ge_u32 s{cur}, s{lim}", f"s_cselect_b32 s{cur}, s{tmp}, s{cur}"]
    if i == 13:
        return [f"s_sub_u32 s{tmp}, 28, s{S_PH}", f"s_mul_i32 s{tmp}, s{tmp}, {step}", f"s_add_u32 s{lim}, s{base_reg}, s{tmp}",
                f"s_sub_u32 s{tmp}, 14, s{S_PH}", f"s_add_u32 s{tmp}, s{tmp}, s{S_R}", f"s_mul_i32 s{tmp}, s{tmp}, {step}",
                f"s_add_u32 s{cur}, s{base_reg}, s{tmp}"]
    return [f"s_add_u32 s{cur}, s{cur}, {step}", f"s_sub_u32 s{tmp}, s{cur}, {14*step}",
            f"s_cmp_ge_u32 s{cur}, s{lim}", f"s_cselect_b32 s{cur}, s{tmp}, s{cur}"]

def dma_w_lines(ldsoff, i):
    g0 = [f"s_add_u32 m0, s{S_L2}, {ldsoff}", "s_nop 0",
          f"buffer_load_dwordx4 v{V_W0}, s[{SRD_WD}:{SRD_WD+3}], s{S_WCUR} offen lds"]
    g1 = [f"buffer_load_dwordx4 v{V_W1}, s[{SRD_WD}:{SRD_WD+3}], s{S_WCUR} offen offset:1024 lds"] + advance(S_WCUR, S_WLIM, 64*896, i, S_WB, 99)
    return [g0, g1]

RESIDENT = False
def pre_dma(a):
    if RESIDENT: return
    for p in range(6, 10):
        for g in dma_w_lines((p-6)*8192, p):
            for l in g: a(l)

S_HB = 40; S_LINE = 41; S_HCUR = 42; S_HLIM = 43; S_T0 = 44; S_D0 = 45; S_MASK = 46; SRD_F = 48; SRD_H = 16
def setup_g2(a, s_main):
    a(f"s_load_dwordx2 s[100:101], s[0:1], {KA['ws']}")
    a(f"s_and_b32 s99, s{s_main}, 7")
    a("s_lshl_b32 s99, s99, 2")
    a(f"s_lshr_b32 s{S_D0}, s{s_main}, 3")
    a(f"s_and_b32 s{S_T0}, s{S_D0}, 3")
    a(f"s_add_u32 s99, s99, s{S_T0}")
    a(f"s_lshr_b32 s{S_D0}, s{S_D0}, 2")
    a(f"s_mul_i32 s{S_LINE}, s99, 7")
    a(f"s_add_u32 s{S_LINE}, s{S_LINE}, s{S_D0}")
    a(f"s_lshl_b32 s{S_LINE}, s{S_LINE}, 7")
    a(f"s_lshl_b32 s{S_T0}, s99, 6")
    a(f"s_lshl_b32 s{S_D0}, s{S_D0}, 6")
    a("s_lshl_b32 s99, s4, 4")
    a(f"s_add_u32 s{S_HB}, s{S_T0}, s99")
    a(f"s_mul_i32 s{S_HB}, s{S_HB}, 3584")
    if TWOPASS:
        a(f"s_add_u32 s{S_HLIM}, s{S_HB}, 3584")
        a(f"s_lshl_b32 s99, s{S_R}, 8")
        a(f"s_add_u32 s{S_HCUR}, s{S_HB}, s99")
        a(f"s_mov_b32 s{S_MASK}, 0x3fff")
    else:
        a(f"s_add_u32 s99, s{S_PH}, 14")
        a("s_lshl_b32 s99, s99, 7")
        a(f"s_add_u32 s{S_HLIM}, s{S_HB}, s99")
        a(f"s_add_u32 s99, s{S_PH}, s{S_R}")
        a("s_lshl_b32 s99, s99, 7")
        a(f"s_add_u32 s{S_HCUR}, s{S_HB}, s99")
        a(f"s_lshr_b32 s{S_MASK}, s{S_PH}, 1")
        a(f"s_lshl_b32 s{S_MASK}, 0x7f, s{S_MASK}")
    a("v_lshrrev_b32 v10, 4, v0")
    a("v_lshrrev_b32 v11, 3, v0")
    a("v_and_b32 v12, 7, v0")
    a("v_xor_b32 v13, v12, v10")
    a("v_lshlrev_b32 v13, 4, v13")
    a("v_mul_u32_u24 v9, 3584, v11")
    a("v_add_u32 v86, v9, v13")
    a("v_xor_b32 v13, 64, v13")
    a("v_add_u32 v87, v9, v13")
    a(f"v_add_u32 v87, {8*3584 - 1024}, v87")
    a("v_and_b32 v10, 31, v0")
    a("v_lshrrev_b32 v11, 5, v0")
    a("v_lshrrev_b32 v12, 1, v10")
    a("v_and_b32 v12, 7, v12")
    a("s_lshl_b32 s99, s4, 1")
    a("v_add_u32 v11, s99, v11")
    a("v_xor_b32 v12, v12, v11")
    a("v_lshlrev_b32 v12, 4, v12")
    a("v_lshlrev_b32 v10, 7, v10")
    a("v_add_u32 v88, v10, v12")
    a("v_lshrrev_b32 v10, 4, v0")
    a("v_lshrrev_b32 v11, 2, v0")
    a("v_and_b32 v11, 3, v11")
    a("v_and_b32 v12, 3, v0")
    a("v_lshrrev_b32 v13, 1, v10")
    a("v_lshlrev_b32 v13, 3, v13")
    a("v_add_u32 v13, v13, v11")
    a("s_lshl_b32 s99, s4, 4")
    a("v_add_u32 v13, s99, v13")
    a("v_lshlrev_b32 v13, 7, v13")
    a("v_lshrrev_b32 v9, 1, v12")
    a("v_lshlrev_b32 v9, 3, v9")
    a("v_add_u32 v13, v13, v9")
    a("v_and_b32 v9, 1, v10")
    a("v_lshlrev_b32 v9, 1, v9")
    a("v_and_b32 v18, 1, v12")
    a("v_add_u32 v9, v9, v18")
    a("v_lshrrev_b32 v18, 1, v11")
    a("v_lshlrev_b32 v18, 2, v18")
    a("v_xor_b32 v9, v9, v18")
    a("v_lshlrev_b32 v18, 4, v9")
    a("v_add_u32 v89, v13, v18")
    a("v_xor_b32 v18, 64, v18")
    a("v_add_u32 v90, v13, v18")
    a("s_waitcnt lgkmcnt(0)")
    srd_from(a, SRD_F, 100, SZ_F, WS_F)

def h_flag(a, srd_f, tag):
    a("s_cmp_lg_u32 s4, 0")
    a(f"s_cbranch_scc1 {tag}_flagged")
    a("s_cmp_eq_u32 s58, 0")
    a(f"s_cbranch_scc1 {tag}_flagged")
    set_flags(a, srd_f, 57, 37, 14, 128, 10, 11)
    a.label(f"{tag}_flagged")
    dbg_event(a, 3)

def gemm2(a, st, rot=True, NP=16, prio=0, early=True, sst=False, hsc1=True, print_sched=False, diagdelay=0, NREG=16, noat=False, NINIT0=5, outflag=''):
    S_W = 4
    SRD_AT = 8; SRD_O = 12; SRD_G = 20
    S_TMP = 24; S_TMP2 = 25
    P0 = 28
    S_L = S_L2; S_AL = 33; S_CNT = 34; S_MK = 35
    a.c("---- GEMM2 role ----")
    if sst: st.n = 1
    else: st.n = 6
    a(f"s_load_dwordx2 s[{P0}:{P0+1}], s[0:1], {KA['ws']}")
    a(f"s_load_dwordx2 s[{P0+2}:{P0+3}], s[0:1], {KA['out']}")
    if prio: a(f"s_setprio {prio}")
    V_H0, V_H1 = 2, 3
    V_B = 5; V_A0 = 6; V_A1 = 7
    a("v_mov_b32 v2, v86"); a("v_mov_b32 v3, v87"); a("v_mov_b32 v5, v88"); a("v_mov_b32 v6, v89"); a("v_mov_b32 v7, v90")
    a(f"v_add_u32 v16, 0x10000, v{V_B}")
    a(f"v_add_u32 v17, 0x10000, v{V_A0}")
    a(f"v_add_u32 v18, 0x10000, v{V_A1}")
    vm = []
    def dma_w(ldsoff, key):
        vm.append(key)
        return dma_w_lines(ldsoff, key[1])
    def dma_h(u, ar):
        g0 = [f"s_add_u32 m0, s{S_L}, {ar*8192}", "s_nop 0",
              f"buffer_load_dwordx4 v{V_H0}, s[{SRD_H}:{SRD_H+3}], s{S_HCUR} offen {'sc1' if hsc1 else ''} lds"]
        g1 = [f"buffer_load_dwordx4 v{V_H1}, s[{SRD_H}:{SRD_H+3}], s{S_HCUR} offen offset:1024 {'sc1' if hsc1 else ''} lds"] + advance(S_HCUR, S_HLIM, 128, u, S_HB, S_TMP2)
        vm.append(("H", u))
        return [g0, g1]
    def emit(groups):
        for g in groups:
            for l in g: a(l)
    def wait_for(needs):
        last = max(vm.index(n) for n in needs)
        a(f"s_waitcnt vmcnt({sum((1 if g[0] == 'S' else 2) for g in vm[last+1:])})")
    NB = 10
    area = EARLY_AREA + [0, 1, 2, 3]
    if not RESIDENT:
        for p in range(6, 10): vm.append(("P", p))
    PRE = 128
    def a_reads(dst, off):
        va0, va1 = V_A0, V_A1
        if off >= 65536: off -= 65536; va0, va1 = 17, 18
        return [f"ds_read_b64_tr_b16 v[{dst}:{dst+1}], v{va0} offset:{off}",
                f"ds_read_b64_tr_b16 v[{dst+2}:{dst+3}], v{va0} offset:{off+512}",
                f"ds_read_b64_tr_b16 v[{dst+4}:{dst+5}], v{va1} offset:{off}",
                f"ds_read_b64_tr_b16 v[{dst+6}:{dst+7}], v{va1} offset:{off+512}"]
    def b_reads(dst, off):
        vb = V_B
        if off >= 65536: off -= 65536; vb = 16
        return [f"ds_read_b128 v[{dst}:{dst+3}], v{vb} offset:{off}",
                f"ds_read_b128 v[{dst+4}:{dst+7}], v{vb} offset:{off+4096}"]
    assert NP in (0, 10, 16) and (NP == 0) == RESIDENT
    R0, R1 = (6, 6 + NREG) if RESIDENT else (0, NP)
    a(f"s_waitcnt vmcnt({16 if NP else 8})")
    if NP:
        for p in range(6):
            for r in a_reads(PRE + 8*p, area[p]*8192): a(r)
        a("s_waitcnt lgkmcnt(0)")
        if NP == 16:
            for p in range(10, 16):
                emit(dma_w(EARLY_AREA[p-10]*8192, ("P", p)))
    a(f"s_waitcnt vmcnt({(8 + (12 if NP == 16 else 0)) if NP else 0})")
    st.stamp()
    a("s_barrier")
    h_flag(a, SRD_F, "g2")
    if NP:
        for p in range(6, NP):
            wait_for([("P", p)])
            for r in a_reads(PRE + 8*p, (area[p] if p < 10 else EARLY_AREA[p-10])*8192): a(r)
    if RESIDENT and NREG:
        for p in range(R0, min(R0 + 4, R1)):
            emit(dma_w(((p - R0) % 4)*8192, ("P", p)))
        for p in range(R0, R1):
            wait_for([("P", p)])
            for r in a_reads(PRE + 8*(p - R0), ((p - R0) % 4)*8192): a(r)
            if p + 4 < R1:
                a("s_waitcnt lgkmcnt(0)")
                emit(dma_w(((p - R0) % 4)*8192, ("P", p + 4)))
    a("s_waitcnt lgkmcnt(0)")
    NINIT = NINIT0
    FLAGST = 8
    MAXLD = 2
    sched = {}
    if RESIDENT:
        NINIT = 4
        where = {("H", u): u for u in range(NINIT)}
        for u in range(6): where[("W", u)] = EARLY_AREA[u]
        free = []
        nh, nw = NINIT, R1
    else:
        where = {("H", u): u for u in range(NINIT)}
        free = list(range(NINIT, 10))
        nh, nw = NINIT, NP
    for u in range(NS):
        free.append(where[("H", u)])
        if not (R0 <= u < R1): free.append(where[("W", u)])
        sched[u] = []
        lim = 3 if u < 3 else MAXLD
        while free and len(sched[u]) < lim:
            canh = nh < NS and (nh < 14 or u >= FLAGST)
            canw = nw < NS
            if not (canh or canw): break
            key = ("H", nh) if (canh and (not canw or nh <= nw)) else ("W", nw)
            cand = sorted(free, key=lambda x: (x >= 8 and key[1] >= 22, free.index(x)))
            ar = cand[0]; free.remove(ar); where[key] = ar
            sched[u].append(key)
            if key[0] == "H": nh += 1
            else: nw += 1
    assert nh == NS and nw == NS
    for u in range(NS):
        for key in sched[u]: assert key[1] - u >= 2, (u, key)
    if print_sched: print(sched)
    last_use = {ar: max(k[1] for k, v in where.items() if v == ar) for ar in (8, 9)}
    AT_AREA = min(last_use, key=last_use.get)
    AT_STAGE = max(last_use[AT_AREA], 23)
    assert AT_STAGE <= 27, (last_use, where)
    ATL = AT_AREA*8192
    OT = 0
    a("v_lshlrev_b32 v11, 4, v0")
    a(f"s_lshl_b32 s{S_TMP}, s{S_W}, 12")
    a(f"v_add_u32 v56, s{S_TMP}, v11")
    a(f"s_lshl_b32 s{S_TMP}, s{S_W}, 14")
    a(f"v_add_u32 v12, s{S_TMP}, v11")
    for k in range(1, 4):
        a(f"s_add_u32 s{S_TMP}, s{S_W}, {k}")
        a(f"s_and_b32 s{S_TMP}, s{S_TMP}, 3")
        a(f"s_lshl_b32 s{S_TMP}, s{S_TMP}, 12")
        a(f"v_add_u32 v{56+k}, s{S_TMP}, v12")
    a("v_lshrrev_b32 v10, 4, v0")
    a("v_lshrrev_b32 v13, 2, v0")
    a("v_and_b32 v13, 3, v13")
    a("v_and_b32 v14, 3, v0")
    a("v_lshrrev_b32 v15, 1, v10")
    a("v_lshlrev_b32 v15, 3, v15")
    a("v_add_u32 v15, v15, v13")
    a("v_lshlrev_b32 v15, 7, v15")
    a("v_and_b32 v9, 1, v10")
    a("v_lshlrev_b32 v9, 5, v9")
    a("v_add_u32 v15, v15, v9")
    a("v_lshlrev_b32 v14, 3, v14")
    a("v_add_u32 v15, v15, v14")
    a(f"s_lshr_b32 s{S_TMP}, s{S_W}, 1")
    a(f"s_lshl_b32 s{S_TMP}, s{S_TMP}, 12")
    a(f"s_and_b32 s{S_TMP2}, s{S_W}, 1")
    a(f"s_lshl_b32 s{S_TMP2}, s{S_TMP2}, 6")
    a(f"s_add_u32 s{S_TMP}, s{S_TMP}, s{S_TMP2}")
    a(f"s_add_u32 s{S_TMP}, s{S_TMP}, {ATL}")
    a(f"v_add_u32 v60, s{S_TMP}, v15")
    a("v_and_b32 v10, 31, v0")
    a("v_lshrrev_b32 v11, 5, v0")
    a(f"s_and_b32 s{S_TMP}, s{S_W}, 1")
    a(f"s_lshl_b32 s{S_TMP}, s{S_TMP}, 5")
    a(f"v_add_u32 v10, s{S_TMP}, v10")
    a(f"s_lshr_b32 s{S_TMP2}, s{S_W}, 1")
    a(f"s_lshl_b32 s{S_TMP2}, s{S_TMP2}, 2")
    a(f"v_add_u32 v11, s{S_TMP2}, v11")
    a("v_and_b32 v12, 7, v10")
    a("v_xor_b32 v11, v11, v12")
    a("v_lshlrev_b32 v10, 7, v10")
    a("v_lshlrev_b32 v12, 4, v11")
    a("v_add_u32 v61, v10, v12")
    a("v_xor_b32 v12, 32, v12")
    a("v_add_u32 v62, v10, v12")
    a("v_lshrrev_b32 v10, 3, v0")
    a("v_and_b32 v11, 7, v0")
    a("v_xor_b32 v11, v11, v10")
    a("v_lshlrev_b32 v11, 4, v11")
    a("v_mul_u32_u24 v10, 896, v10")
    a("v_add_u32 v23, v10, v11")
    a("v_lshlrev_b32 v12, 4, v0")
    a(f"v_add_u32 v63, s{S_L}, v12")
    a(f"s_lshl_b32 s{S_TMP}, s{S_W}, 4")
    a(f"s_add_u32 s{S_TMP}, s{S_TMP}, s{S_T0}")
    a(f"s_mul_i32 s{S_TMP}, s{S_TMP}, 896")
    a(f"s_lshl_b32 s32, s{S_D0}, 1")
    a(f"s_add_u32 s32, s32, s{S_TMP}")
    st.stamp()
    a(f"s_cmp_lg_u32 s{S_W}, 0")
    a("s_cbranch_scc1 g2_hready")
    wait_flags(a, "g2_wh", SRD_F, S_LINE, 14, 37, S_TMP, S_CNT, 10, 11, sleep=SLEEP, s_mask=S_MASK)
    a.label("g2_hready")
    a("s_barrier")
    st.stamp()
    for u in range(NINIT):
        emit(dma_h(u, u))
    FR = [24, 40]
    ACC = 64
    def acc(rb, cb): return ACC + 16*(2*rb + cb)
    def reads(u):
        fb = FR[u % 2]
        R = b_reads(fb+8, where[("H", u)]*8192)
        if not (R0 <= u < R1):
            Ar = a_reads(fb, where[("W", u)]*8192)
            R = [R[0]] + Ar[:2] + [R[1]] + Ar[2:]
        return R
    def needs(u):
        return [("H", u)] + ([("W", u)] if ("W", u) in vm else [])
    V_FL = 21
    last_flag = [None]
    def flag_load(s_off):
        a(f"buffer_load_dword v{V_FL}, v22, s[{SRD_F}:{SRD_F+3}], s{s_off} offen sc1")
        vm.append(("S", 100 + len(vm)))
        last_flag[0] = vm[-1]
    def flag_check(name, s_off, nwords, mask=None):
        mask = mask or hex((1 << nwords) - 1)
        a(f"s_mov_b32 s{S_MK}, {mask}")
        a(f"s_cmp_lg_u32 s{S_W}, 0")
        a(f"s_cbranch_scc1 {name}_done")
        wait_for([last_flag[0]])
        a(f"v_cmp_eq_u32 vcc, s37, v{V_FL}")
        a("s_nop 2")
        a(f"s_and_b32 s{S_TMP}, vcc_lo, {mask}")
        a(f"s_cmp_eq_u32 s{S_TMP}, {mask}")
        a(f"s_cbranch_scc1 {name}_done")
        wait_flags(a, name, SRD_F, s_off, nwords, 37, S_TMP, S_CNT, 10, 11, sleep=SLEEP, s_mask=S_MK)
        a.label(name + "_done")
    a("v_and_b32 v22, 31, v0")
    a("v_lshlrev_b32 v22, 2, v22")
    a(f"s_add_u32 s{S_AL}, s{S_LINE}, {L_A*128}")
    V_G = 8
    def at_loads():
        a("v_and_b32 v9, 31, v0")
        a(f"s_and_b32 s{S_TMP}, s{S_W}, 1")
        a(f"s_lshl_b32 s{S_TMP}, s{S_TMP}, 5")
        a(f"s_add_u32 s{S_TMP}, s{S_TMP}, s{S_T0}")
        a(f"v_add_u32 v9, s{S_TMP}, v9")
        a("v_lshlrev_b32 v9, 2, v9")
        a(f"buffer_load_dword v{V_G}, v9, s[{SRD_G}:{SRD_G+3}], 0 offen sc1")
        a("v_lshrrev_b32 v9, 3, v0")
        a("v_lshlrev_b32 v9, 12, v9")
        a("v_and_b32 v12, 7, v0")
        a("v_lshlrev_b32 v12, 4, v12")
        a("v_add_u32 v9, v9, v12")
        a(f"s_lshl_b32 s{S_TMP}, s{S_W}, 4")
        a(f"s_add_u32 s{S_TMP}, s{S_TMP}, s{S_D0}")
        a(f"s_lshl_b32 s{S_TMP}, s{S_TMP}, 12")
        a(f"s_lshl_b32 s{S_TMP2}, s{S_T0}, 1")
        a(f"s_add_u32 s{S_TMP2}, s{S_TMP2}, s{S_TMP}")
        for i in range(2):
            a(f"s_add_u32 m0, s{S_L}, {ATL + i*1024}")
            a(f"s_add_u32 s{S_TMP}, s{S_TMP2}, {8*i*4096}")
            a(f"buffer_load_dwordx4 v9, s[{SRD_AT}:{SRD_AT+3}], s{S_TMP} offen sc1 lds")
        for i in range(3): vm.append(("S", i))
    GA_STAGE = min(AT_STAGE + 2, NS - 1)
    assert GA_STAGE > AT_STAGE
    GA = 128
    def ga_prepare():
        for Q in range(2):
            for h2 in range(2):
                a(f"ds_read_b64_tr_b16 v[{144+4*Q+2*h2}:{144+4*Q+2*h2+1}], v60 offset:{(16*Q+4*h2)*128}")
    wait_for(needs(0))
    a("s_barrier")
    st.stamp()
    dbg_event(a, 4)
    for r in reads(0): a(r)
    for u in range(NS):
        fb = FR[u % 2]
        if sst == 2 and u in (6, 20): st.stamp()
        a("s_waitcnt lgkmcnt(0)")
        if sst == 2 and u in (6, 20): st.stamp()
        if u + 1 < NS: wait_for(needs(u+1))
        if sst == 2 and u in (6, 20): st.stamp()
        if u == FLAGST: flag_check("g2_wh2", S_LINE, 32, "0x3fff4000" if TWOPASS else "0x7fff")
        if u == AT_STAGE and not noat: flag_check("g2_wa", S_AL, 32)
        if u == GA_STAGE: wait_for([("S", 2)])
        a("s_barrier")
        if u == 12:
            srd_from(a, SRD_AT, P0, SZ_AT, WS_AT)
            srd_from(a, SRD_O, P0+2, 2048*448*2)
            srd_from(a, SRD_G, P0, SZ_G, WS_G)
        if u == FLAGST - 4: flag_load(S_LINE)
        if u == AT_STAGE - 5: flag_load(S_AL)
        if sst == 1 and u in (2, 5, 8, 11, 14, 17, 20, 23): st.stamp()
        if sst == 2 and u in (6, 7, 20, 21): st.stamp()
        if u == AT_STAGE:
            at_loads()
        if u == GA_STAGE:
            ga_prepare()
        D = []
        for key in sched.get(u, []):
            D += dma_h(key[1], where[key]) if key[0] == "H" else dma_w(where[key]*8192, key)
        R = reads(u + 1) if u + 1 < NS else []
        M = []
        for (rb, cb) in ((0,0),(0,1),(1,0),(1,1)):
            c = "0" if u == 0 else f"v[{acc(rb,cb)}:{acc(rb,cb)+15}]"
            A = (PRE + 8*(u - R0) + 4*rb) if R0 <= u < R1 else (fb + 4*rb)
            M.append(f"v_mfma_f32_32x32x16_bf16 v[{acc(rb,cb)}:{acc(rb,cb)+15}], v[{A}:{A+3}], v[{fb+8+4*cb}:{fb+8+4*cb+3}], {c}")
        seq = []
        nD = len(D); per = [D[0:2], D[2:4], D[4:5], D[5:6]] if nD > 4 else [D[0:1], D[1:2], D[2:3], D[3:4]]
        for g in per[0]: seq += g
        seq += R[:2]
        seq.append(M[0])
        for g in per[1]: seq += g
        seq += R[2:4]
        seq.append(M[1])
        for g in per[2]: seq += g
        seq += R[4:]
        seq.append(M[2])
        for g in per[3]: seq += g
        seq.append(M[3])
        for l in seq: a(l)
    st.stamp()
    if sst:
        st.flush(S_W); a("s_endpgm"); return
    a("s_mov_b32 s39, 0xffff0000")
    a("s_waitcnt lgkmcnt(0)")
    a(f"v_sub_f32 v152, 1.0, v{V_G}")
    for p in range(8):
        a(f"v_lshlrev_b32 v{GA+2*p}, 16, v{144+p}")
        a(f"v_and_b32 v{GA+2*p+1}, s39, v{144+p}")
    for r in range(16):
        a(f"v_mul_f32 v{GA+r}, v{V_G}, v{GA+r}")
    for beta in range(4):
        rb, cb = beta >> 1, beta & 1
        a(f"s_cmp_eq_u32 s{S_W}, {beta}")
        a(f"s_cbranch_scc1 g2_skipw{beta}")
        for q in range(4):
            a(f"ds_write_b128 v56, v[{acc(rb,cb)+4*q}:{acc(rb,cb)+4*q+3}] offset:{beta*16384 + q*1024}")
        a.label(f"g2_skipw{beta}")
    for beta in range(4):
        rb, cb = beta >> 1, beta & 1
        a(f"s_cmp_lg_u32 s{S_W}, {beta}")
        a(f"s_cbranch_scc1 g2_skipm{beta}")
        for r in range(16):
            a(f"v_fma_f32 v{GA+r}, v152, v{acc(rb,cb)+r}, v{GA+r}")
        a.label(f"g2_skipm{beta}")
    a("s_waitcnt lgkmcnt(0)")
    a("s_barrier")
    st.stamp()
    for k in range(1, 4):
        for q in range(4):
            a(f"ds_read_b128 v[{160+16*(k-1)+4*q}:{160+16*(k-1)+4*q+3}], v{56+k} offset:{q*1024}")
    for k in range(1, 4):
        a(f"s_waitcnt lgkmcnt({4*(3-k)})")
        for r in range(16):
            a(f"v_fmac_f32 v{GA+r}, v152, v{160+16*(k-1)+r}")
    for p in range(8):
        a(f"v_cvt_pk_bf16_f32 v{24+p}, v{GA+2*p}, v{GA+2*p+1}")
    a("s_barrier")
    for Q in range(2):
        a(f"ds_write_b128 v{61+Q}, v[{24+4*Q}:{27+4*Q}] offset:{OT}")
    a("s_waitcnt lgkmcnt(0)")
    a("s_barrier")
    a(f"ds_read_b128 v[32:35], v63 offset:{OT}")
    a(f"ds_read_b128 v[36:39], v63 offset:{OT+1024}")
    for i in range(2):
        a(f"s_waitcnt lgkmcnt({1-i})")
        a(f"s_add_u32 s{S_TMP}, s32, {8*i*896}")
        a(f"buffer_store_dwordx4 v[{32+4*i}:{35+4*i}], v23, s[{SRD_O}:{SRD_O+3}], s{S_TMP} offen {outflag}")
    st.stamp()
    for _ in range(diagdelay): a("s_sleep 32")
    dbg_event(a, 5)
    if st.on: a("s_waitcnt vmcnt(0)")
    st.stamp(real=True)
    st.flush(S_W)
```

```python
class Asm:
    def __init__(self):
        self.L = []
    def __call__(self, s=""):
        for line in s.split("\n"):
            line = line.strip()
            if line:
                self.L.append("    " + line)
    def label(self, n):
        self.L.append(n + ":")
    def c(self, s):
        self.L.append("    ; " + s)
    def text(self):
        return "\n".join(self.L)

def vr(a, n=1):
    return f"v{a}" if n == 1 else f"v[{a}:{a+n-1}]"
def sr(a, n=1):
    return f"s{a}" if n == 1 else f"s[{a}:{a+n-1}]"

KA = dict(u=0, are=8, aim=16, bre=24, bim=32, cre=40, cim=48, ldt=56, dskip=64, bx=72, wg=80, wu=88, wd=96, gw=104, out=112, dbg=120, ws=128)

WS_H  = 0x000000; SZ_H = 2048*1792*2
WS_UT = 0x700000; SZ_UT = 448*2048*2
WS_AT = 0x8C0000; SZ_AT = 448*2048*2
WS_KX = 0xA80000; KX_ROW = 2112*2; SZ_KX = 448*2*KX_ROW
WS_G  = 0xE20000; SZ_G = 2048*4

def srd_from(a, dst, src, size, off=0):
    if off:
        a(f"s_add_u32 s{dst}, s{src}, {off}")
        a(f"s_addc_u32 s{dst+1}, s{src+1}, 0")
    else:
        a(f"s_mov_b32 s{dst}, s{src}")
        a(f"s_mov_b32 s{dst+1}, s{src+1}")
    a(f"s_mov_b32 s{dst+2}, {size}")
    a(f"s_mov_b32 s{dst+3}, 0x20000")

def kdesc(name, vgpr, sgpr=102, accum=None):
    accum = accum or ((vgpr + 3) // 4 * 4)
    return f""".section .rodata,"a"
.p2align 6
.amdhsa_kernel {name}
  .amdhsa_next_free_vgpr {vgpr}
  .amdhsa_next_free_sgpr {sgpr}
  .amdhsa_accum_offset {accum}
  .amdhsa_group_segment_fixed_size 0
  .amdhsa_kernarg_size 136
  .amdhsa_user_sgpr_count 2
  .amdhsa_user_sgpr_kernarg_segment_ptr 1
  .amdhsa_system_sgpr_workgroup_id_x 1
  .amdhsa_float_denorm_mode_32 3
.end_amdhsa_kernel
.text
"""

WS_STAMP = 0x2000000
class Stamps:
    ALLREAL = False
    def __init__(self, a, base, on):
        self.a, self.base, self.on, self.n = a, base, on, 0
    def stamp(self, real=False):
        if not self.on: return
        real = real or Stamps.ALLREAL
        self.a(f"s_mem{'real' if real else ''}time s[{self.base+2*self.n}:{self.base+2*self.n+1}]")
        self.n += 1
    def flush(self, wave_sgpr, tmp0=92):
        if not self.on: return
        a = self.a
        a("s_waitcnt lgkmcnt(0) vmcnt(0)")
        a(f"s_load_dwordx2 s[{tmp0}:{tmp0+1}], s[0:1], {KA['ws']}")
        a("s_waitcnt lgkmcnt(0)")
        a(f"s_add_u32 s{tmp0}, s{tmp0}, {WS_STAMP}")
        a(f"s_addc_u32 s{tmp0+1}, s{tmp0+1}, 0")
        a(f"s_mov_b32 s{tmp0+2}, 0x100000")
        a(f"s_mov_b32 s{tmp0+3}, 0x20000")
        a(f"s_lshl_b32 s{tmp0+4}, s2, 8")
        a(f"s_lshl_b32 s{tmp0+5}, s{wave_sgpr}, 6")
        a(f"s_add_u32 s{tmp0+4}, s{tmp0+4}, s{tmp0+5}")
        a(f"v_mov_b32 v250, 0")
        for k in range(16):
            a(f"v_mov_b32 v251, s{self.base+2*k}")
            a(f"buffer_store_dword v251, v250, s[{tmp0}:{tmp0+3}], s{tmp0+4} offen offset:{4*k}")
        a("s_waitcnt vmcnt(0)")

FLAG_AUX = 0
FLAG_H = 16
FLAG_A = 128

WS_F = 0xE30000; SZ_F = 896*128
L_H = 0
L_A = 224
L_U = 448
L_M = 672
SPIN_MAX = 400000

def wait_tag(a, name, s_dbg, s_tag, s_cnt, v0_, v1_):
    a(f"v_mov_b32 v{v0_}, 0")
    a(f"s_mov_b32 s{s_cnt}, 0")
    a.label(name)
    a(f"global_load_dword v{v1_}, v{v0_}, s[{s_dbg}:{s_dbg+1}] sc1")
    a("s_waitcnt vmcnt(0)")
    a(f"v_readfirstlane_b32 s{s_tag}, v{v1_}")
    a(f"s_add_u32 s{s_cnt}, s{s_cnt}, 1")
    a(f"s_cmp_ge_u32 s{s_cnt}, {SPIN_MAX}")
    a(f"s_cbranch_scc1 {name}_ok")
    a(f"s_cmp_lg_u32 s{s_tag}, 0")
    a(f"s_cbranch_scc1 {name}_ok")
    a("s_sleep 8")
    a(f"s_branch {name}")
    a.label(name + "_ok")

def wait_flags(a, name, srd_f, s_line_off, nwords, s_tag, s_tmp, s_cnt, v0_, v1_, sleep=2, s_mask=None):
    mask = f"s{s_mask}" if s_mask is not None else hex((1 << nwords) - 1)
    a(f"v_and_b32 v{v0_}, 31, v0")
    a(f"v_lshlrev_b32 v{v0_}, 2, v{v0_}")
    a(f"s_mov_b32 s{s_cnt}, 0")
    a.label(name)
    a(f"buffer_load_dword v{v1_}, v{v0_}, s[{srd_f}:{srd_f+3}], s{s_line_off} offen sc1")
    a("s_waitcnt vmcnt(0)")
    a(f"v_cmp_eq_u32 vcc, s{s_tag}, v{v1_}")
    a(f"s_add_u32 s{s_cnt}, s{s_cnt}, 1")
    a(f"s_cmp_ge_u32 s{s_cnt}, {SPIN_MAX}")
    a(f"s_cbranch_scc1 {name}_ok")
    a(f"s_and_b32 s{s_tmp}, vcc_lo, {mask}")
    a(f"s_cmp_eq_u32 s{s_tmp}, {mask}")
    a(f"s_cbranch_scc1 {name}_ok")
    if sleep: a(f"s_sleep {sleep}")
    a(f"s_branch {name}")
    a.label(name + "_ok")

def set_flags(a, srd_f, s_off, s_tag, nlanes, lane_stride, v0_, v1_):
    if nlanes == 1: a(f"v_mov_b32 v{v0_}, 0")
    else: a(f"v_mul_u32_u24 v{v0_}, {lane_stride}, v0")
    a(f"v_mov_b32 v{v1_}, s{s_tag}")
    a(f"s_mov_b64 exec, {hex((1 << nlanes) - 1)}")
    a(f"buffer_store_dword v{v1_}, v{v0_}, s[{srd_f}:{srd_f+3}], s{s_off} offen sc1")
    a("s_mov_b64 exec, -1")

DBGEV = False
DBG_IDS = (232, 238)
def dbg_event(a, word, invert=False):
    if not DBGEV: return
    lab = f"dbgev_{len(a.L)}"
    a("s_cmp_lg_u32 s4, 0")
    a(f"s_cbranch_scc1 {lab}")
    a("s_mov_b32 s88, 0")
    a("s_cmp_eq_u32 s2, 232"); a("s_cselect_b32 s88, 1, s88")
    a("s_cmp_eq_u32 s2, 8"); a("s_cselect_b32 s88, 1, s88")
    a("s_cmp_eq_u32 s2, 238"); a("s_cselect_b32 s88, 8, s88")
    a("s_cmp_eq_u32 s2, 14"); a("s_cselect_b32 s88, 8, s88")
    a("s_cmp_eq_u32 s88, 0")
    a(f"s_cbranch_scc1 {lab}")
    a(f"s_add_u32 s88, s88, {word}")
    a("s_lshl_b32 s88, s88, 2")
    a("v_mov_b32 v13, s88")
    a("s_memrealtime s[88:89]")
    a(f"s_load_dwordx2 s[90:91], s[0:1], {KA['dbg']}")
    a("s_waitcnt lgkmcnt(0)")
    a("v_mov_b32 v12, s88")
    a("s_mov_b64 exec, 1")
    a("global_store_dword v13, v12, s[90:91] sc1")
    a("s_mov_b64 exec, -1")
    a.label(lab)

def wait_flags2(a, name, srd_f, s_line_off, s_tag, s_mask, s_tmp, s_cnt, v0_, v1_, v2_):
    def check(v):
        a(f"v_cmp_eq_u32 vcc, s{s_tag}, v{v}")
        a(f"s_add_u32 s{s_cnt}, s{s_cnt}, 1")
        a(f"s_cmp_ge_u32 s{s_cnt}, {SPIN_MAX}")
        a(f"s_cbranch_scc1 {name}_ok")
        a(f"s_and_b32 s{s_tmp}, vcc_lo, s{s_mask}")
        a(f"s_cmp_eq_u32 s{s_tmp}, s{s_mask}")
        a(f"s_cbranch_scc1 {name}_ok")
    ld = lambda v: a(f"buffer_load_dword v{v}, v{v0_}, s[{srd_f}:{srd_f+3}], s{s_line_off} offen sc1")
    a(f"v_and_b32 v{v0_}, 31, v0")
    a(f"v_lshlrev_b32 v{v0_}, 2, v{v0_}")
    a(f"s_mov_b32 s{s_cnt}, 0")
    ld(v1_)
    a("s_sleep 6")
    a.label(name)
    ld(v2_)
    a("s_waitcnt vmcnt(1)")
    check(v1_)
    ld(v1_)
    a("s_waitcnt vmcnt(1)")
    check(v2_)
    a(f"s_branch {name}")
    a.label(name + "_ok")
```

```python
from asmlib import *

NSLOT = 5
SLEEP = 2
NS = 28

SRD_WD = 92; S_WCUR = 96; S_WLIM = 97; S_L2 = 98; V_W0 = 20; V_W1 = 19
S_R = 38; S_PH = 39; S_WB = 47
TWOPASS = False
MAPB = True
EARLY_AREA = [4, 5, 8, 9, 6, 7]
def setup_w(a, s_main, rot=True):
    a(f"s_load_dwordx2 s[{SRD_WD}:{SRD_WD+1}], s[0:1], {KA['wd']}")
    a("v_lshrrev_b32 v10, 4, v0")
    a("v_lshrrev_b32 v11, 3, v0")
    a("v_and_b32 v12, 7, v0")
    a("v_and_b32 v13, 1, v10")
    a("v_lshlrev_b32 v13, 2, v13")
    a("v_xor_b32 v13, v13, v12")
    a("v_lshlrev_b32 v13, 4, v13")
    a("v_mul_u32_u24 v12, 896, v11")
    a(f"v_add_u32 v{V_W0}, v12, v13")
    a(f"v_add_u32 v{V_W1}, {8*896 - 1024}, v{V_W0}")
    a(f"s_lshr_b32 s99, s{s_main}, 3")
    a("s_and_b32 s100, s99, 3")
    a("s_mul_i32 s100, s100, 3")
    a("s_lshr_b32 s99, s99, 2")
    a("s_lshl_b32 s101, s99, 1")
    a("s_add_u32 s100, s100, s101")
    a("s_sub_u32 s101, s100, 14")
    a("s_cmp_ge_u32 s100, 14")
    a("s_cselect_b32 s100, s101, s100")
    if not rot: a("s_mov_b32 s100, 0")
    a(f"s_mov_b32 s{S_R}, s100")
    if MAPB:
        a(f"s_and_b32 s101, s{s_main}, 1")
        a(f"s_mul_i32 s{S_PH}, s101, 14")
    else:
        a(f"s_and_b32 s101, s{s_main}, 4")
        a("s_cmp_eq_u32 s101, 0")
        a(f"s_cselect_b32 s{S_PH}, 8, 0")
    a(f"s_lshl_b32 s101, s4, 4")
    a(f"s_mul_i32 s{S_WB}, s101, 896")
    a("s_lshl_b32 s99, s99, 7")
    a(f"s_add_u32 s{S_WB}, s{S_WB}, s99")
    if TWOPASS:
        a(f"s_add_u32 s{S_WLIM}, s{S_WB}, {28*64*896}")
        a(f"s_mul_i32 s99, s100, {128*896}")
        a(f"s_add_u32 s{S_WCUR}, s{S_WB}, s99")
    else:
        a(f"s_add_u32 s99, s{S_PH}, 14")
        a(f"s_mul_i32 s99, s99, {64*896}")
        a(f"s_add_u32 s{S_WLIM}, s{S_WB}, s99")
        a(f"s_add_u32 s99, s{S_PH}, s100")
        a(f"s_mul_i32 s99, s99, {64*896}")
        a(f"s_add_u32 s{S_WCUR}, s{S_WB}, s99")
    a(f"s_lshl_b32 s{S_L2}, s4, 11")
    a("s_waitcnt lgkmcnt(0)")
    a(f"s_mov_b32 s{SRD_WD+2}, {1792*448*2}")
    a(f"s_mov_b32 s{SRD_WD+3}, 0x20000")

def advance(cur, lim, step, i, base_reg, tmp):
    if TWOPASS:
        if i == 13:
            return [f"s_mul_i32 s{tmp}, s{S_R}, {2*step}", f"s_add_u32 s{cur}, s{base_reg}, s{tmp}", f"s_add_u32 s{cur}, s{cur}, {step}",
                    f"s_add_u32 s{lim}, s{base_reg}, {29*step}"]
        return [f"s_add_u32 s{cur}, s{cur}, {2*step}", f"s_sub_u32 s{tmp}, s{cur}, {28*step}",
                f"s_cmp_ge_u32 s{cur}, s{lim}", f"s_cselect_b32 s{cur}, s{tmp}, s{cur}"]
    if not MAPB:
        if i == 13:
            return [f"s_add_u32 s{tmp}, s{S_PH}, 14", f"s_mul_i32 s{tmp}, s{tmp}, {step}", f"s_add_u32 s{cur}, s{base_reg}, s{tmp}",
                    f"s_add_u32 s{lim}, s{base_reg}, {28*step}"]
        n = 14 if i < 13 else 28
        return [f"s_add_u32 s{cur}, s{cur}, {step}", f"s_sub_u32 s{tmp}, s{cur}, {n*step}",
                f"s_cmp_ge_u32 s{cur}, s{lim}", f"s_cselect_b32 s{cur}, s{tmp}, s{cur}"]
    if i == 13:
        return [f"s_sub_u32 s{tmp}, 28, s{S_PH}", f"s_mul_i32 s{tmp}, s{tmp}, {step}", f"s_add_u32 s{lim}, s{base_reg}, s{tmp}",
                f"s_sub_u32 s{tmp}, 14, s{S_PH}", f"s_add_u32 s{tmp}, s{tmp}, s{S_R}", f"s_mul_i32 s{tmp}, s{tmp}, {step}",
                f"s_add_u32 s{cur}, s{base_reg}, s{tmp}"]
    return [f"s_add_u32 s{cur}, s{cur}, {step}", f"s_sub_u32 s{tmp}, s{cur}, {14*step}",
            f"s_cmp_ge_u32 s{cur}, s{lim}", f"s_cselect_b32 s{cur}, s{tmp}, s{cur}"]

def dma_w_lines(ldsoff, i):
    g0 = [f"s_add_u32 m0, s{S_L2}, {ldsoff}", "s_nop 0",
          f"buffer_load_dwordx4 v{V_W0}, s[{SRD_WD}:{SRD_WD+3}], s{S_WCUR} offen lds"]
    g1 = [f"buffer_load_dwordx4 v{V_W1}, s[{SRD_WD}:{SRD_WD+3}], s{S_WCUR} offen offset:1024 lds"] + advance(S_WCUR, S_WLIM, 64*896, i, S_WB, 99)
    return [g0, g1]

RESIDENT = False
PIPE = False
NHST = 8
def pre_dma(a):
    if RESIDENT: return
    for p in range(6, 10):
        for g in dma_w_lines((p-6)*8192, p):
            for l in g: a(l)

S_HB = 40; S_LINE = 41; S_HCUR = 42; S_HLIM = 43; S_T0 = 44; S_D0 = 45; S_MASK = 46; SRD_F = 48; SRD_H = 16
def setup_g2(a, s_main):
    a(f"s_load_dwordx2 s[100:101], s[0:1], {KA['ws']}")
    a(f"s_and_b32 s99, s{s_main}, 7")
    a("s_lshl_b32 s99, s99, 2")
    a(f"s_lshr_b32 s{S_D0}, s{s_main}, 3")
    a(f"s_and_b32 s{S_T0}, s{S_D0}, 3")
    a(f"s_add_u32 s99, s99, s{S_T0}")
    a(f"s_lshr_b32 s{S_D0}, s{S_D0}, 2")
    a(f"s_mul_i32 s{S_LINE}, s99, 7")
    a(f"s_add_u32 s{S_LINE}, s{S_LINE}, s{S_D0}")
    a(f"s_lshl_b32 s{S_LINE}, s{S_LINE}, 7")
    a(f"s_lshl_b32 s{S_T0}, s99, 6")
    a(f"s_lshl_b32 s{S_D0}, s{S_D0}, 6")
    a("s_lshl_b32 s99, s4, 4")
    a(f"s_add_u32 s{S_HB}, s{S_T0}, s99")
    a(f"s_mul_i32 s{S_HB}, s{S_HB}, 3584")
    if TWOPASS:
        a(f"s_add_u32 s{S_HLIM}, s{S_HB}, 3584")
        a(f"s_lshl_b32 s99, s{S_R}, 8")
        a(f"s_add_u32 s{S_HCUR}, s{S_HB}, s99")
        a(f"s_mov_b32 s{S_MASK}, 0x3fff")
    else:
        a(f"s_add_u32 s99, s{S_PH}, 14")
        a("s_lshl_b32 s99, s99, 7")
        a(f"s_add_u32 s{S_HLIM}, s{S_HB}, s99")
        a(f"s_add_u32 s99, s{S_PH}, s{S_R}")
        a("s_lshl_b32 s99, s99, 7")
        a(f"s_add_u32 s{S_HCUR}, s{S_HB}, s99")
        a(f"s_lshr_b32 s{S_MASK}, s{S_PH}, 1")
        a(f"s_lshl_b32 s{S_MASK}, 0x7f, s{S_MASK}")
    a("v_lshrrev_b32 v10, 4, v0")
    a("v_lshrrev_b32 v11, 3, v0")
    a("v_and_b32 v12, 7, v0")
    a("v_xor_b32 v13, v12, v10")
    a("v_lshlrev_b32 v13, 4, v13")
    a("v_mul_u32_u24 v9, 3584, v11")
    a("v_add_u32 v86, v9, v13")
    a("v_xor_b32 v13, 64, v13")
    a("v_add_u32 v87, v9, v13")
    a(f"v_add_u32 v87, {8*3584 - 1024}, v87")
    a("v_and_b32 v10, 31, v0")
    a("v_lshrrev_b32 v11, 5, v0")
    a("v_lshrrev_b32 v12, 1, v10")
    a("v_and_b32 v12, 7, v12")
    a("s_lshl_b32 s99, s4, 1")
    a("v_add_u32 v11, s99, v11")
    a("v_xor_b32 v12, v12, v11")
    a("v_lshlrev_b32 v12, 4, v12")
    a("v_lshlrev_b32 v10, 7, v10")
    a("v_add_u32 v88, v10, v12")
    a("v_lshrrev_b32 v10, 4, v0")
    a("v_lshrrev_b32 v11, 2, v0")
    a("v_and_b32 v11, 3, v11")
    a("v_and_b32 v12, 3, v0")
    a("v_lshrrev_b32 v13, 1, v10")
    a("v_lshlrev_b32 v13, 3, v13")
    a("v_add_u32 v13, v13, v11")
    a("s_lshl_b32 s99, s4, 4")
    a("v_add_u32 v13, s99, v13")
    a("v_lshlrev_b32 v13, 7, v13")
    a("v_lshrrev_b32 v9, 1, v12")
    a("v_lshlrev_b32 v9, 3, v9")
    a("v_add_u32 v13, v13, v9")
    a("v_and_b32 v9, 1, v10")
    a("v_lshlrev_b32 v9, 1, v9")
    a("v_and_b32 v18, 1, v12")
    a("v_add_u32 v9, v9, v18")
    a("v_lshrrev_b32 v18, 1, v11")
    a("v_lshlrev_b32 v18, 2, v18")
    a("v_xor_b32 v9, v9, v18")
    a("v_lshlrev_b32 v18, 4, v9")
    a("v_add_u32 v89, v13, v18")
    a("v_xor_b32 v18, 64, v18")
    a("v_add_u32 v90, v13, v18")
    a("s_waitcnt lgkmcnt(0)")
    srd_from(a, SRD_F, 100, SZ_F, WS_F)

def h_flag(a, srd_f, tag):
    a("s_cmp_lg_u32 s4, 0")
    a(f"s_cbranch_scc1 {tag}_flagged")
    a("s_cmp_eq_u32 s58, 0")
    a(f"s_cbranch_scc1 {tag}_flagged")
    set_flags(a, srd_f, 57, 37, 14, 128, 10, 11)
    a.label(f"{tag}_flagged")
    dbg_event(a, 3)

def gemm2(a, st, rot=True, NP=16, prio=0, early=True, sst=False, hsc1=True, print_sched=False, diagdelay=0, NREG=16, noat=False, NINIT0=5, outflag=''):
    S_W = 4
    SRD_AT = 8; SRD_O = 12; SRD_G = 20
    S_TMP = 24; S_TMP2 = 25
    P0 = 28
    S_L = S_L2; S_AL = 33; S_CNT = 34; S_MK = 35
    a.c("---- GEMM2 role ----")
    if sst: st.n = 1
    else: st.n = 6
    a(f"s_load_dwordx2 s[{P0}:{P0+1}], s[0:1], {KA['ws']}")
    a(f"s_load_dwordx2 s[{P0+2}:{P0+3}], s[0:1], {KA['out']}")
    if prio: a(f"s_setprio {prio}")
    V_H0, V_H1 = 2, 3
    V_B = 5; V_A0 = 6; V_A1 = 7
    a("v_mov_b32 v2, v86"); a("v_mov_b32 v3, v87"); a("v_mov_b32 v5, v88"); a("v_mov_b32 v6, v89"); a("v_mov_b32 v7, v90")
    a(f"v_add_u32 v16, 0x10000, v{V_B}")
    a(f"v_add_u32 v17, 0x10000, v{V_A0}")
    a(f"v_add_u32 v18, 0x10000, v{V_A1}")
    vm = []
    def dma_w(ldsoff, key):
        vm.append(key)
        return dma_w_lines(ldsoff, key[1])
    def dma_h(u, ar):
        g0 = [f"s_add_u32 m0, s{S_L}, {ar*8192}", "s_nop 0",
              f"buffer_load_dwordx4 v{V_H0}, s[{SRD_H}:{SRD_H+3}], s{S_HCUR} offen {'sc1' if hsc1 else ''} lds"]
        g1 = [f"buffer_load_dwordx4 v{V_H1}, s[{SRD_H}:{SRD_H+3}], s{S_HCUR} offen offset:1024 {'sc1' if hsc1 else ''} lds"] + advance(S_HCUR, S_HLIM, 128, u, S_HB, S_TMP2)
        vm.append(("H", u))
        return [g0, g1]
    def emit(groups):
        for g in groups:
            for l in g: a(l)
    def wait_for(needs):
        last = max(vm.index(n) for n in needs)
        a(f"s_waitcnt vmcnt({sum((1 if g[0] == 'S' else 2) for g in vm[last+1:])})")
    NB = 10
    area = EARLY_AREA + [0, 1, 2, 3]
    if not RESIDENT:
        for p in range(6, 10): vm.append(("P", p))
    PRE = 128
    def a_reads(dst, off):
        va0, va1 = V_A0, V_A1
        if off >= 65536: off -= 65536; va0, va1 = 17, 18
        return [f"ds_read_b64_tr_b16 v[{dst}:{dst+1}], v{va0} offset:{off}",
                f"ds_read_b64_tr_b16 v[{dst+2}:{dst+3}], v{va0} offset:{off+512}",
                f"ds_read_b64_tr_b16 v[{dst+4}:{dst+5}], v{va1} offset:{off}",
                f"ds_read_b64_tr_b16 v[{dst+6}:{dst+7}], v{va1} offset:{off+512}"]
    def b_reads(dst, off):
        vb = V_B
        if off >= 65536: off -= 65536; vb = 16
        return [f"ds_read_b128 v[{dst}:{dst+3}], v{vb} offset:{off}",
                f"ds_read_b128 v[{dst+4}:{dst+7}], v{vb} offset:{off+4096}"]
    assert NP in (0, 10, 16) and (NP == 0) == RESIDENT
    R0, R1 = (6, 6 + NREG) if RESIDENT else (0, NP)
    a(f"s_waitcnt vmcnt({NHST + (8 if NP else 0)})")
    if NP:
        for p in range(6):
            for r in a_reads(PRE + 8*p, area[p]*8192): a(r)
        a("s_waitcnt lgkmcnt(0)")
        if NP == 16:
            for p in range(10, 16):
                emit(dma_w(EARLY_AREA[p-10]*8192, ("P", p)))
    a(f"s_waitcnt vmcnt({(8 + (12 if NP == 16 else 0)) if NP else 0})")
    st.stamp()
    a("s_barrier")
    h_flag(a, SRD_F, "g2")
    if NP:
        for p in range(6, NP):
            wait_for([("P", p)])
            for r in a_reads(PRE + 8*p, (area[p] if p < 10 else EARLY_AREA[p-10])*8192): a(r)
    if RESIDENT and NREG:
        for p in range(R0, min(R0 + 4, R1)):
            emit(dma_w(((p - R0) % 4)*8192, ("P", p)))
        for p in range(R0, R1):
            wait_for([("P", p)])
            for r in a_reads(PRE + 8*(p - R0), ((p - R0) % 4)*8192): a(r)
            if p + 4 < R1:
                a("s_waitcnt lgkmcnt(0)")
                emit(dma_w(((p - R0) % 4)*8192, ("P", p + 4)))
    a("s_waitcnt lgkmcnt(0)")
    NINIT = NINIT0
    FLAGST = 8
    MAXLD = 2
    sched = {}
    if RESIDENT:
        NINIT = 4
        where = {("H", u): u for u in range(NINIT)}
        for u in range(6): where[("W", u)] = EARLY_AREA[u]
        free = []
        nh, nw = NINIT, R1
    else:
        where = {("H", u): u for u in range(NINIT)}
        free = list(range(NINIT, 10))
        nh, nw = NINIT, NP
    for u in range(NS):
        free.append(where[("H", u)])
        if not (R0 <= u < R1): free.append(where[("W", u)])
        sched[u] = []
        lim = 3 if u < 3 else MAXLD
        while free and len(sched[u]) < lim:
            canh = nh < NS and (nh < 14 or u >= FLAGST)
            canw = nw < NS
            if not (canh or canw): break
            key = ("H", nh) if (canh and (not canw or nh <= nw)) else ("W", nw)
            cand = sorted(free, key=lambda x: (x >= 8 and key[1] >= 22, free.index(x)))
            ar = cand[0]; free.remove(ar); where[key] = ar
            sched[u].append(key)
            if key[0] == "H": nh += 1
            else: nw += 1
    assert nh == NS and nw == NS
    for u in range(NS):
        for key in sched[u]: assert key[1] - u >= 2, (u, key)
    if print_sched: print(sched)
    last_use = {ar: max(k[1] for k, v in where.items() if v == ar) for ar in (8, 9)}
    AT_AREA = min(last_use, key=last_use.get)
    AT_STAGE = max(last_use[AT_AREA], 23)
    assert AT_STAGE <= 27, (last_use, where)
    ATL = AT_AREA*8192
    OT = 0
    a("v_lshlrev_b32 v11, 4, v0")
    a(f"s_lshl_b32 s{S_TMP}, s{S_W}, 12")
    a(f"v_add_u32 v56, s{S_TMP}, v11")
    a(f"s_lshl_b32 s{S_TMP}, s{S_W}, 14")
    a(f"v_add_u32 v12, s{S_TMP}, v11")
    for k in range(1, 4):
        a(f"s_add_u32 s{S_TMP}, s{S_W}, {k}")
        a(f"s_and_b32 s{S_TMP}, s{S_TMP}, 3")
        a(f"s_lshl_b32 s{S_TMP}, s{S_TMP}, 12")
        a(f"v_add_u32 v{56+k}, s{S_TMP}, v12")
    a("v_lshrrev_b32 v10, 4, v0")
    a("v_lshrrev_b32 v13, 2, v0")
    a("v_and_b32 v13, 3, v13")
    a("v_and_b32 v14, 3, v0")
    a("v_lshrrev_b32 v15, 1, v10")
    a("v_lshlrev_b32 v15, 3, v15")
    a("v_add_u32 v15, v15, v13")
    a("v_lshlrev_b32 v15, 7, v15")
    a("v_and_b32 v9, 1, v10")
    a("v_lshlrev_b32 v9, 5, v9")
    a("v_add_u32 v15, v15, v9")
    a("v_lshlrev_b32 v14, 3, v14")
    a("v_add_u32 v15, v15, v14")
    a(f"s_lshr_b32 s{S_TMP}, s{S_W}, 1")
    a(f"s_lshl_b32 s{S_TMP}, s{S_TMP}, 12")
    a(f"s_and_b32 s{S_TMP2}, s{S_W}, 1")
    a(f"s_lshl_b32 s{S_TMP2}, s{S_TMP2}, 6")
    a(f"s_add_u32 s{S_TMP}, s{S_TMP}, s{S_TMP2}")
    a(f"s_add_u32 s{S_TMP}, s{S_TMP}, {ATL}")
    a(f"v_add_u32 v60, s{S_TMP}, v15")
    a("v_and_b32 v10, 31, v0")
    a("v_lshrrev_b32 v11, 5, v0")
    a(f"s_and_b32 s{S_TMP}, s{S_W}, 1")
    a(f"s_lshl_b32 s{S_TMP}, s{S_TMP}, 5")
    a(f"v_add_u32 v10, s{S_TMP}, v10")
    a(f"s_lshr_b32 s{S_TMP2}, s{S_W}, 1")
    a(f"s_lshl_b32 s{S_TMP2}, s{S_TMP2}, 2")
    a(f"v_add_u32 v11, s{S_TMP2}, v11")
    a("v_and_b32 v12, 7, v10")
    a("v_xor_b32 v11, v11, v12")
    a("v_lshlrev_b32 v10, 7, v10")
    a("v_lshlrev_b32 v12, 4, v11")
    a("v_add_u32 v61, v10, v12")
    a("v_xor_b32 v12, 32, v12")
    a("v_add_u32 v62, v10, v12")
    a("v_lshrrev_b32 v10, 3, v0")
    a("v_and_b32 v11, 7, v0")
    a("v_xor_b32 v11, v11, v10")
    a("v_lshlrev_b32 v11, 4, v11")
    a("v_mul_u32_u24 v10, 896, v10")
    a("v_add_u32 v23, v10, v11")
    a("v_lshlrev_b32 v12, 4, v0")
    a(f"v_add_u32 v63, s{S_L}, v12")
    a(f"s_lshl_b32 s{S_TMP}, s{S_W}, 4")
    a(f"s_add_u32 s{S_TMP}, s{S_TMP}, s{S_T0}")
    a(f"s_mul_i32 s{S_TMP}, s{S_TMP}, 896")
    a(f"s_lshl_b32 s32, s{S_D0}, 1")
    a(f"s_add_u32 s32, s32, s{S_TMP}")
    st.stamp()
    a(f"s_cmp_lg_u32 s{S_W}, 0")
    a("s_cbranch_scc1 g2_hready")
    wait_flags2(a, "g2_wh", SRD_F, S_LINE, 37, S_MASK, S_TMP, S_CNT, 10, 13, 14) if PIPE else wait_flags(a, "g2_wh", SRD_F, S_LINE, 14, 37, S_TMP, S_CNT, 10, 11, sleep=SLEEP, s_mask=S_MASK)
    a.label("g2_hready")
    a("s_barrier")
    st.stamp()
    for u in range(NINIT):
        emit(dma_h(u, u))
    FR = [24, 40]
    ACC = 64
    def acc(rb, cb): return ACC + 16*(2*rb + cb)
    def reads(u):
        fb = FR[u % 2]
        R = b_reads(fb+8, where[("H", u)]*8192)
        if not (R0 <= u < R1):
            Ar = a_reads(fb, where[("W", u)]*8192)
            R = [R[0]] + Ar[:2] + [R[1]] + Ar[2:]
        return R
    def needs(u):
        return [("H", u)] + ([("W", u)] if ("W", u) in vm else [])
    V_FL = 21
    last_flag = [None]
    def flag_load(s_off):
        a(f"buffer_load_dword v{V_FL}, v22, s[{SRD_F}:{SRD_F+3}], s{s_off} offen sc1")
        vm.append(("S", 100 + len(vm)))
        last_flag[0] = vm[-1]
    def flag_check(name, s_off, nwords, mask=None):
        mask = mask or hex((1 << nwords) - 1)
        a(f"s_mov_b32 s{S_MK}, {mask}")
        a(f"s_cmp_lg_u32 s{S_W}, 0")
        a(f"s_cbranch_scc1 {name}_done")
        wait_for([last_flag[0]])
        a(f"v_cmp_eq_u32 vcc, s37, v{V_FL}")
        a("s_nop 2")
        a(f"s_and_b32 s{S_TMP}, vcc_lo, {mask}")
        a(f"s_cmp_eq_u32 s{S_TMP}, {mask}")
        a(f"s_cbranch_scc1 {name}_done")
        wait_flags(a, name, SRD_F, s_off, nwords, 37, S_TMP, S_CNT, 10, 11, sleep=SLEEP, s_mask=S_MK)
        a.label(name + "_done")
    a("v_and_b32 v22, 31, v0")
    a("v_lshlrev_b32 v22, 2, v22")
    a(f"s_add_u32 s{S_AL}, s{S_LINE}, {L_A*128}")
    V_G = 8
    def at_loads():
        a("v_and_b32 v9, 31, v0")
        a(f"s_and_b32 s{S_TMP}, s{S_W}, 1")
        a(f"s_lshl_b32 s{S_TMP}, s{S_TMP}, 5")
        a(f"s_add_u32 s{S_TMP}, s{S_TMP}, s{S_T0}")
        a(f"v_add_u32 v9, s{S_TMP}, v9")
        a("v_lshlrev_b32 v9, 2, v9")
        a(f"buffer_load_dword v{V_G}, v9, s[{SRD_G}:{SRD_G+3}], 0 offen sc1")
        a("v_lshrrev_b32 v9, 3, v0")
        a("v_lshlrev_b32 v9, 12, v9")
        a("v_and_b32 v12, 7, v0")
        a("v_lshlrev_b32 v12, 4, v12")
        a("v_add_u32 v9, v9, v12")
        a(f"s_lshl_b32 s{S_TMP}, s{S_W}, 4")
        a(f"s_add_u32 s{S_TMP}, s{S_TMP}, s{S_D0}")
        a(f"s_lshl_b32 s{S_TMP}, s{S_TMP}, 12")
        a(f"s_lshl_b32 s{S_TMP2}, s{S_T0}, 1")
        a(f"s_add_u32 s{S_TMP2}, s{S_TMP2}, s{S_TMP}")
        for i in range(2):
            a(f"s_add_u32 m0, s{S_L}, {ATL + i*1024}")
            a(f"s_add_u32 s{S_TMP}, s{S_TMP2}, {8*i*4096}")
            a(f"buffer_load_dwordx4 v9, s[{SRD_AT}:{SRD_AT+3}], s{S_TMP} offen sc1 lds")
        for i in range(3): vm.append(("S", i))
    GA_STAGE = min(AT_STAGE + 2, NS - 1)
    assert GA_STAGE > AT_STAGE
    GA = 128
    def ga_prepare():
        for Q in range(2):
            for h2 in range(2):
                a(f"ds_read_b64_tr_b16 v[{144+4*Q+2*h2}:{144+4*Q+2*h2+1}], v60 offset:{(16*Q+4*h2)*128}")
    wait_for(needs(0))
    a("s_barrier")
    st.stamp()
    dbg_event(a, 4)
    for r in reads(0): a(r)
    for u in range(NS):
        fb = FR[u % 2]
        if sst == 2 and u in (6, 20): st.stamp()
        a("s_waitcnt lgkmcnt(0)")
        if sst == 2 and u in (6, 20): st.stamp()
        if u + 1 < NS: wait_for(needs(u+1))
        if sst == 2 and u in (6, 20): st.stamp()
        if u == FLAGST: flag_check("g2_wh2", S_LINE, 32, "0x3fff4000" if TWOPASS else "0x7fff")
        if u == AT_STAGE and not noat: flag_check("g2_wa", S_AL, 32)
        if u == GA_STAGE: wait_for([("S", 2)])
        a("s_barrier")
        if u == 12:
            srd_from(a, SRD_AT, P0, SZ_AT, WS_AT)
            srd_from(a, SRD_O, P0+2, 2048*448*2)
            srd_from(a, SRD_G, P0, SZ_G, WS_G)
        if u == FLAGST - 4: flag_load(S_LINE)
        if u == AT_STAGE - 5: flag_load(S_AL)
        if sst == 1 and u in (2, 5, 8, 11, 14, 17, 20, 23): st.stamp()
        if sst == 2 and u in (6, 7, 20, 21): st.stamp()
        if u == AT_STAGE:
            at_loads()
        if u == GA_STAGE:
            ga_prepare()
        D = []
        for key in sched.get(u, []):
            D += dma_h(key[1], where[key]) if key[0] == "H" else dma_w(where[key]*8192, key)
        R = reads(u + 1) if u + 1 < NS else []
        M = []
        for (rb, cb) in ((0,0),(0,1),(1,0),(1,1)):
            c = "0" if u == 0 else f"v[{acc(rb,cb)}:{acc(rb,cb)+15}]"
            A = (PRE + 8*(u - R0) + 4*rb) if R0 <= u < R1 else (fb + 4*rb)
            M.append(f"v_mfma_f32_32x32x16_bf16 v[{acc(rb,cb)}:{acc(rb,cb)+15}], v[{A}:{A+3}], v[{fb+8+4*cb}:{fb+8+4*cb+3}], {c}")
        seq = []
        nD = len(D); per = [D[0:2], D[2:4], D[4:5], D[5:6]] if nD > 4 else [D[0:1], D[1:2], D[2:3], D[3:4]]
        for g in per[0]: seq += g
        seq += R[:2]
        seq.append(M[0])
        for g in per[1]: seq += g
        seq += R[2:4]
        seq.append(M[1])
        for g in per[2]: seq += g
        seq += R[4:]
        seq.append(M[2])
        for g in per[3]: seq += g
        seq.append(M[3])
        for l in seq: a(l)
    st.stamp()
    if sst:
        st.flush(S_W); a("s_endpgm"); return
    a("s_mov_b32 s39, 0xffff0000")
    a("s_waitcnt lgkmcnt(0)")
    a(f"v_sub_f32 v152, 1.0, v{V_G}")
    for p in range(8):
        a(f"v_lshlrev_b32 v{GA+2*p}, 16, v{144+p}")
        a(f"v_and_b32 v{GA+2*p+1}, s39, v{144+p}")
    for r in range(16):
        a(f"v_mul_f32 v{GA+r}, v{V_G}, v{GA+r}")
    for beta in range(4):
        rb, cb = beta >> 1, beta & 1
        a(f"s_cmp_eq_u32 s{S_W}, {beta}")
        a(f"s_cbranch_scc1 g2_skipw{beta}")
        for q in range(4):
            a(f"ds_write_b128 v56, v[{acc(rb,cb)+4*q}:{acc(rb,cb)+4*q+3}] offset:{beta*16384 + q*1024}")
        a.label(f"g2_skipw{beta}")
    for beta in range(4):
        rb, cb = beta >> 1, beta & 1
        a(f"s_cmp_lg_u32 s{S_W}, {beta}")
        a(f"s_cbranch_scc1 g2_skipm{beta}")
        for r in range(16):
            a(f"v_fma_f32 v{GA+r}, v152, v{acc(rb,cb)+r}, v{GA+r}")
        a.label(f"g2_skipm{beta}")
    a("s_waitcnt lgkmcnt(0)")
    a("s_barrier")
    st.stamp()
    for k in range(1, 4):
        for q in range(4):
            a(f"ds_read_b128 v[{160+16*(k-1)+4*q}:{160+16*(k-1)+4*q+3}], v{56+k} offset:{q*1024}")
    for k in range(1, 4):
        a(f"s_waitcnt lgkmcnt({4*(3-k)})")
        for r in range(16):
            a(f"v_fmac_f32 v{GA+r}, v152, v{160+16*(k-1)+r}")
    for p in range(8):
        a(f"v_cvt_pk_bf16_f32 v{24+p}, v{GA+2*p}, v{GA+2*p+1}")
    a("s_barrier")
    for Q in range(2):
        a(f"ds_write_b128 v{61+Q}, v[{24+4*Q}:{27+4*Q}] offset:{OT}")
    a("s_waitcnt lgkmcnt(0)")
    a("s_barrier")
    a(f"ds_read_b128 v[32:35], v63 offset:{OT}")
    a(f"ds_read_b128 v[36:39], v63 offset:{OT+1024}")
    for i in range(2):
        a(f"s_waitcnt lgkmcnt({1-i})")
        a(f"s_add_u32 s{S_TMP}, s32, {8*i*896}")
        a(f"buffer_store_dwordx4 v[{32+4*i}:{35+4*i}], v23, s[{SRD_O}:{SRD_O+3}], s{S_TMP} offen {outflag}")
    st.stamp()
    for _ in range(diagdelay): a("s_sleep 32")
    dbg_event(a, 5)
    if st.on: a("s_waitcnt vmcnt(0)")
    st.stamp(real=True)
    st.flush(S_W)
```

```python
from asmlib import *
import gemm1, gemm1b, aux2, side2, gemm2

def publish(a):
    a("s_cmp_lg_u32 s2, 0")
    a("s_cbranch_scc1 pub_skip")
    a("s_cmp_lg_u32 s4, 0")
    a("s_cbranch_scc1 pub_skip")
    a(f"s_load_dwordx2 s[44:45], s[0:1], {KA['dbg']}")
    a("s_memrealtime s[46:47]")
    a("s_waitcnt lgkmcnt(0)")
    a("s_or_b32 s46, s46, 1")
    a("v_mov_b32 v22, s46")
    a("v_mov_b32 v21, 0")
    a("s_mov_b64 exec, 1")
    a("global_store_dword v21, v22, s[44:45] sc1")
    a("s_mov_b64 exec, -1")
    a.label("pub_skip")

NIPF = 3
def fused(opts):
    stamps = opts.get("stamps", False)
    gemm2.SLEEP = opts.get('sleep', 2)
    gemm2.TWOPASS = bool(opts.get('tp', 0)); gemm2.EARLY_AREA = [8, 9, 4, 5, 6, 7] if gemm2.TWOPASS else [4, 5, 8, 9, 6, 7]
    gemm2.RESIDENT = (opts.get('np', 0) == 0)
    gemm2.MAPB = bool(opts.get('mapb', 1))
    gemm2.NHST = 16 if opts.get('dual', 0) else 8
    gemm2.PIPE = bool(opts.get('pipe', 0))
    Stamps.ALLREAL = not opts.get('cyc')
    import asmlib; asmlib.DBGEV = bool(opts.get('dbgev'))
    a = Asm()
    st = Stamps(a, 60 if not stamps else 60, stamps)
    a("s_cmp_ge_u32 s2, 480")
    a("s_cbranch_scc1 f_exit")
    st.stamp(real=True); st.stamp()
    for _ in range(opts.get('dd0', 0)): a("s_sleep 32")
    if opts.get("mainfirst", 0):
        a("s_add_u32 s3, s2, 224")
        a("s_sub_u32 s5, s2, 256")
        a("s_cmp_lt_u32 s2, 256")
        a("s_cselect_b32 s2, s3, s5")
    a("v_lshrrev_b32 v1, 6, v0")
    a("v_and_b32 v0, 63, v0")
    a("v_readfirstlane_b32 s4, v1")
    a("s_nop 3")
    publish(a)
    if opts.get("ipf", 0):
        a("s_cmp_ge_u32 s2, 8")
        a("s_cbranch_scc1 f_noipf")
        a("s_getpc_b64 s[96:97]")
        a.label("f_ipf_base")
        a("v_lshlrev_b32 v2, 6, v0")
        a("s_lshl_b32 s98, s4, 12")
        a("v_add_u32 v2, s98, v2")
        a("s_mov_b32 s99, f_code_end - f_ipf_base - 4")
        for i in range(NIPF):
            a("v_min_u32 v3, s99, v2")
            a(f"global_load_dword v{200+i}, v3, s[96:97]")
            a("v_add_u32 v2, 0x4000, v2")
        a.label("f_noipf")
    a("s_cmp_lt_u32 s2, 224")
    a("s_cbranch_scc1 f_side" if not opts.get("noside") else "s_cbranch_scc1 f_exit")
    if opts.get("prio"): a(f"s_setprio {opts['prio']}")
    dbg_event(a, 0)
    if gemm2.MAPB:
        a("s_sub_u32 s3, s2, 224")
        a("s_and_b32 s40, s3, 7")
        a("s_lshr_b32 s41, s3, 3")
        a("s_sub_u32 s44, s41, 4")
        a("s_cmp_ge_u32 s41, 8")
        a("s_cselect_b32 s45, s44, 28")
        a("s_cmp_lt_u32 s41, 4")
        a("s_cselect_b32 s45, s41, s45")
        a("s_lshl_b32 s3, s45, 3")
        a("s_add_u32 s3, s3, s40")
        a("s_cbranch_scc1 f_aux") if False else None
        a("s_cmp_lt_u32 s41, 4")
        a("s_cbranch_scc1 f_aux")
        a("s_mul_i32 s46, s44, 37")
        a("s_lshr_b32 s46, s46, 8")
        a("s_mul_i32 s47, s46, 7")
        a("s_sub_u32 s47, s44, s47")
        a("s_lshr_b32 s48, s40, 1")
        a("s_lshl_b32 s48, s48, 2")
        a("s_add_u32 s48, s48, s46")
        a("s_and_b32 s49, s40, 1")
        a("s_mul_i32 s49, s49, 7")
        a("s_add_u32 s49, s49, s47")
    else:
        a("s_sub_u32 s3, s2, 224")
        a("s_and_b32 s40, s3, 7")
        a("s_lshr_b32 s41, s3, 3")
        a("s_and_b32 s42, s40, 1")
        a("s_lshr_b32 s43, s40, 1")
        a("s_lshr_b32 s44, s41, 3")
        a("s_and_b32 s45, s41, 7")
        a("s_and_b32 s46, s43, 1")
        a("s_sub_u32 s47, 4, s46")
        a("s_cmp_ge_u32 s44, s47")
        a("s_cbranch_scc1 f_aux")
        a("s_lshl_b32 s48, s42, 3")
        a("s_add_u32 s48, s48, s45")
        a("s_lshr_b32 s49, s43, 1")
        a("s_mul_i32 s49, s49, 7")
        a("s_lshl_b32 s46, s46, 2")
        a("s_add_u32 s49, s49, s46")
        a("s_add_u32 s49, s49, s44")
    rotc = opts.get("rotc", 6)
    a("s_add_u32 s50, s48, s49")
    if opts.get("xrot", 0):
        a("s_lshr_b32 s51, s40, 1")
        a(f"s_mul_i32 s51, s51, {opts['xrot']}")
        a("s_add_u32 s50, s50, s51")
    if rotc == 1: a("s_mov_b32 s50, 0")
    elif rotc == 2:
        a("s_and_b32 s50, s50, 1"); a("s_mul_i32 s50, s50, 4")
    elif rotc == 4:
        a("s_and_b32 s50, s50, 3"); a("s_lshl_b32 s50, s50, 1")
    elif rotc == 6:
        a("s_mul_i32 s51, s50, 43"); a("s_lshr_b32 s51, s51, 8"); a("s_mul_i32 s51, s51, 6"); a("s_sub_u32 s50, s50, s51")
    elif rotc == 3:
        a("s_mul_i32 s51, s50, 86"); a("s_lshr_b32 s51, s51, 8"); a("s_mul_i32 s51, s51, 3"); a("s_sub_u32 s50, s50, s51"); a("s_lshl_b32 s50, s50, 1")
    else:
        a("s_mul_i32 s51, s50, 37"); a("s_lshr_b32 s51, s51, 8"); a("s_mul_i32 s51, s51, 7"); a("s_sub_u32 s50, s50, s51")
    msh = (0 if opts.get('mainfirst', 0) else 4)
    if gemm2.TWOPASS:
        gemm1b.gemm1(a, st, 48, 49, 50, exact_round=opts.get('exact', 0), NPRO=opts.get('npro', 4), s_k=40, s_j=41, MFU=opts.get('mfu', 24), publish=None, tail=gemm2, s_main=3, mshift=msh, pstamps=opts.get('pst', 0), ust=opts.get('ust', 0))
    else:
        gemm1.gemm1(a, st, 48, 49, 50, exact_round=opts.get('exact', 0), NPRO=opts.get('npro', 4), NW=opts.get('NW', 3), NX=opts.get('NX', 2), unitstamps=opts.get('ust', 0), s_k=40, s_j=41, MFU=opts.get('mfu', 13), hybrid=opts.get('hyb', 1), publish=None, tail=gemm2, s_main=3, mshift=msh, notag=opts.get('noside', 0), dual=opts.get('dual', 0), prioU=opts.get('prioU', None), tagU=opts.get('tagU', 6), tagsc=opts.get('tagsc', 1), early_m=opts.get('em1', 1))
    a("s_branch f_g2")
    a.label("f_aux")
    if gemm2.MAPB:
        a("s_lshl_b32 s48, s40, 2")
        a("s_add_u32 s48, s48, s41")
    else:
        a("s_lshr_b32 s48, s43, 1")
        a("s_lshl_b32 s48, s48, 1")
        a("s_add_u32 s48, s48, s42")
        a("s_lshl_b32 s48, s48, 3")
        a("s_add_u32 s48, s48, s45")
    n0 = st.n; st.n = 2
    aux2.aux(a, st, 48, 40, 41, mshift=(0 if opts.get('mainfirst', 0) else 4), wdpf=opts.get('wdpf', 2))
    st.n = 6; st.stamp(); st.n = n0
    gemm2.setup_w(a, 3)
    gemm2.setup_g2(a, 3)
    a(f"s_load_dwordx2 s[28:29], s[0:1], {KA['ws']}")
    a("s_waitcnt lgkmcnt(0)")
    srd_from(a, 16, 28, SZ_H, WS_H)
    if opts.get('early', 1):
        a("s_barrier")
        for p in range(6):
            for g in gemm2.dma_w_lines(gemm2.EARLY_AREA[p]*8192, p):
                for l in g: a(l)
        a("s_waitcnt vmcnt(0)")
        gemm2.pre_dma(a)
        a("s_mov_b32 s58, 0")
    a.label("f_g2")
    a("s_lshr_b32 s99, s3, 3")
    a("s_cmp_ge_u32 s99, 28" if not opts.get("nog2") else "s_cmp_ge_u32 s99, 0")
    a("s_cbranch_scc1 f_early")
    gemm2.gemm2(a, st, rot=opts.get('rot2', 1), NP=opts.get('np', 0), prio=opts.get('prio2', 3), early=opts.get('early', 1), sst=opts.get('sst', 0), hsc1=opts.get('hsc1', 1), print_sched=opts.get('ps', 0), diagdelay=opts.get('dd', 0), NREG=opts.get('nreg', 16), noat=opts.get('noat', 0), NINIT0=opts.get('ninit', 5), outflag=['', 'sc1', 'nt', 'sc0 sc1'][opts.get('of', 0)], early_m=opts.get('em2', 2))
    a("s_endpgm")
    a.label("f_early")
    a("s_waitcnt vmcnt(0)")
    a("s_barrier")
    gemm2.h_flag(a, 52, "fe")
    if stamps:
        n0 = st.n; st.n = 7; st.flush(4); st.n = n0
    a("s_endpgm")
    a.label("f_side")
    a("s_and_b32 s40, s2, 7")
    a("s_lshr_b32 s41, s2, 3")
    a("s_mul_i32 s3, s40, 28")
    a("s_add_u32 s3, s3, s41")
    st2 = Stamps(a, 60, stamps); st2.n = 2
    side2.side(a, st2, 3, gate=opts.get('gate', 1), sleep=opts.get('ssleep', 4), pf=opts.get('pf', 0), p0early=opts.get('p0e', 1), latetile=opts.get('lt', 1), lategate=opts.get('lg', 0), lateparam=opts.get('lp', 1), tlb=opts.get('tlb', 0), sprio=opts.get('sprio', 0), fsleep=opts.get('fsl', 0), combo=opts.get('combo', 0))
    a.label("f_exit")
    a("s_endpgm")
    a.label("f_code_end")
    return a
```

```python
class Asm:
    def __init__(self):
        self.L = []
    def __call__(self, s=""):
        for line in s.split("\n"):
            line = line.strip()
            if line:
                self.L.append("    " + line)
    def label(self, n):
        self.L.append(n + ":")
    def c(self, s):
        self.L.append("    ; " + s)
    def text(self):
        return "\n".join(self.L)

def vr(a, n=1):
    return f"v{a}" if n == 1 else f"v[{a}:{a+n-1}]"
def sr(a, n=1):
    return f"s{a}" if n == 1 else f"s[{a}:{a+n-1}]"

KA = dict(u=0, are=8, aim=16, bre=24, bim=32, cre=40, cim=48, ldt=56, dskip=64, bx=72, wg=80, wu=88, wd=96, gw=104, out=112, dbg=120, ws=128)

WS_H  = 0x000000; SZ_H = 2048*1792*2
WS_UT = 0x700000; SZ_UT = 448*2048*2
WS_AT = 0x8C0000; SZ_AT = 448*2048*2
WS_KX = 0xA80000; KX_ROW = 2112*2; SZ_KX = 448*2*KX_ROW
WS_G  = 0xE20000; SZ_G = 2048*4

def srd_from(a, dst, src, size, off=0):
    if off:
        a(f"s_add_u32 s{dst}, s{src}, {off}")
        a(f"s_addc_u32 s{dst+1}, s{src+1}, 0")
    else:
        a(f"s_mov_b32 s{dst}, s{src}")
        a(f"s_mov_b32 s{dst+1}, s{src+1}")
    a(f"s_mov_b32 s{dst+2}, {size}")
    a(f"s_mov_b32 s{dst+3}, 0x20000")

def kdesc(name, vgpr, sgpr=102, accum=None):
    accum = accum or ((vgpr + 3) // 4 * 4)
    return f""".section .rodata,"a"
.p2align 6
.amdhsa_kernel {name}
  .amdhsa_next_free_vgpr {vgpr}
  .amdhsa_next_free_sgpr {sgpr}
  .amdhsa_accum_offset {accum}
  .amdhsa_group_segment_fixed_size 0
  .amdhsa_kernarg_size 136
  .amdhsa_user_sgpr_count 2
  .amdhsa_user_sgpr_kernarg_segment_ptr 1
  .amdhsa_system_sgpr_workgroup_id_x 1
  .amdhsa_float_denorm_mode_32 3
.end_amdhsa_kernel
.text
"""

WS_STAMP = 0x2000000
class Stamps:
    ALLREAL = False
    def __init__(self, a, base, on):
        self.a, self.base, self.on, self.n = a, base, on, 0
    def stamp(self, real=False):
        if not self.on: return
        real = real or Stamps.ALLREAL
        self.a(f"s_mem{'real' if real else ''}time s[{self.base+2*self.n}:{self.base+2*self.n+1}]")
        self.n += 1
    def flush(self, wave_sgpr, tmp0=92):
        if not self.on: return
        a = self.a
        a("s_waitcnt lgkmcnt(0) vmcnt(0)")
        a(f"s_load_dwordx2 s[{tmp0}:{tmp0+1}], s[0:1], {KA['ws']}")
        a("s_waitcnt lgkmcnt(0)")
        a(f"s_add_u32 s{tmp0}, s{tmp0}, {WS_STAMP}")
        a(f"s_addc_u32 s{tmp0+1}, s{tmp0+1}, 0")
        a(f"s_mov_b32 s{tmp0+2}, 0x100000")
        a(f"s_mov_b32 s{tmp0+3}, 0x20000")
        a(f"s_lshl_b32 s{tmp0+4}, s2, 8")
        a(f"s_lshl_b32 s{tmp0+5}, s{wave_sgpr}, 6")
        a(f"s_add_u32 s{tmp0+4}, s{tmp0+4}, s{tmp0+5}")
        a(f"v_mov_b32 v250, 0")
        for k in range(16):
            a(f"v_mov_b32 v251, s{self.base+2*k}")
            a(f"buffer_store_dword v251, v250, s[{tmp0}:{tmp0+3}], s{tmp0+4} offen offset:{4*k}")
        a("s_waitcnt vmcnt(0)")

FLAG_AUX = 0
FLAG_H = 16
FLAG_A = 128

WS_F = 0xE30000; SZ_F = 896*128
L_H = 0
L_A = 224
L_U = 448
L_M = 672
SPIN_MAX = 400000

def wait_tag(a, name, s_dbg, s_tag, s_cnt, v0_, v1_):
    a(f"v_mov_b32 v{v0_}, 0")
    a(f"s_mov_b32 s{s_cnt}, 0")
    a.label(name)
    a(f"global_load_dword v{v1_}, v{v0_}, s[{s_dbg}:{s_dbg+1}] sc1")
    a("s_waitcnt vmcnt(0)")
    a(f"v_readfirstlane_b32 s{s_tag}, v{v1_}")
    a(f"s_add_u32 s{s_cnt}, s{s_cnt}, 1")
    a(f"s_cmp_ge_u32 s{s_cnt}, {SPIN_MAX}")
    a(f"s_cbranch_scc1 {name}_ok")
    a(f"s_cmp_lg_u32 s{s_tag}, 0")
    a(f"s_cbranch_scc1 {name}_ok")
    a("s_sleep 8")
    a(f"s_branch {name}")
    a.label(name + "_ok")

def wait_flags(a, name, srd_f, s_line_off, nwords, s_tag, s_tmp, s_cnt, v0_, v1_, sleep=2, s_mask=None, first_sleep=0):
    mask = f"s{s_mask}" if s_mask is not None else hex((1 << nwords) - 1)
    a(f"v_and_b32 v{v0_}, 31, v0")
    a(f"v_lshlrev_b32 v{v0_}, 2, v{v0_}")
    a(f"s_mov_b32 s{s_cnt}, 0")
    a.label(name)
    a(f"buffer_load_dword v{v1_}, v{v0_}, s[{srd_f}:{srd_f+3}], s{s_line_off} offen sc1")
    a("s_waitcnt vmcnt(0)")
    a(f"v_cmp_eq_u32 vcc, s{s_tag}, v{v1_}")
    a(f"s_add_u32 s{s_cnt}, s{s_cnt}, 1")
    a(f"s_cmp_ge_u32 s{s_cnt}, {SPIN_MAX}")
    a(f"s_cbranch_scc1 {name}_ok")
    a(f"s_and_b32 s{s_tmp}, vcc_lo, {mask}")
    a(f"s_cmp_eq_u32 s{s_tmp}, {mask}")
    a(f"s_cbranch_scc1 {name}_ok")
    if first_sleep:
        a(f"s_cmp_lg_u32 s{s_cnt}, 1")
        a(f"s_cbranch_scc1 {name}_short")
        a(f"s_sleep {first_sleep}")
        a.label(name + "_short")
    if sleep: a(f"s_sleep {sleep}")
    a(f"s_branch {name}")
    a.label(name + "_ok")

def set_flags(a, srd_f, s_off, s_tag, nlanes, lane_stride, v0_, v1_):
    if nlanes == 1: a(f"v_mov_b32 v{v0_}, 0")
    else: a(f"v_mul_u32_u24 v{v0_}, {lane_stride}, v0")
    a(f"v_mov_b32 v{v1_}, s{s_tag}")
    a(f"s_mov_b64 exec, {hex((1 << nlanes) - 1)}")
    a(f"buffer_store_dword v{v1_}, v{v0_}, s[{srd_f}:{srd_f+3}], s{s_off} offen sc1")
    a("s_mov_b64 exec, -1")

DBGEV = False
DBG_IDS = (232, 238)
def dbg_event(a, word, invert=False):
    if not DBGEV: return
    lab = f"dbgev_{len(a.L)}"
    a("s_cmp_lg_u32 s4, 0")
    a(f"s_cbranch_scc1 {lab}")
    a("s_mov_b32 s88, 0")
    a("s_cmp_eq_u32 s2, 232"); a("s_cselect_b32 s88, 1, s88")
    a("s_cmp_eq_u32 s2, 8"); a("s_cselect_b32 s88, 1, s88")
    a("s_cmp_eq_u32 s2, 238"); a("s_cselect_b32 s88, 8, s88")
    a("s_cmp_eq_u32 s2, 14"); a("s_cselect_b32 s88, 8, s88")
    a("s_cmp_eq_u32 s88, 0")
    a(f"s_cbranch_scc1 {lab}")
    a(f"s_add_u32 s88, s88, {word}")
    a("s_lshl_b32 s88, s88, 2")
    a("v_mov_b32 v13, s88")
    a("s_memrealtime s[88:89]")
    a(f"s_load_dwordx2 s[90:91], s[0:1], {KA['dbg']}")
    a("s_waitcnt lgkmcnt(0)")
    a("v_mov_b32 v12, s88")
    a("s_mov_b64 exec, 1")
    a("global_store_dword v13, v12, s[90:91] sc1")
    a("s_mov_b64 exec, -1")
    a.label(lab)

def wait_flags2(a, name, srd_f, s_line_off, s_tag, s_mask, s_tmp, s_cnt, v0_, v1_, v2_):
    def check(v):
        a(f"v_cmp_eq_u32 vcc, s{s_tag}, v{v}")
        a(f"s_add_u32 s{s_cnt}, s{s_cnt}, 1")
        a(f"s_cmp_ge_u32 s{s_cnt}, {SPIN_MAX}")
        a(f"s_cbranch_scc1 {name}_ok")
        a(f"s_and_b32 s{s_tmp}, vcc_lo, s{s_mask}")
        a(f"s_cmp_eq_u32 s{s_tmp}, s{s_mask}")
        a(f"s_cbranch_scc1 {name}_ok")
    ld = lambda v: a(f"buffer_load_dword v{v}, v{v0_}, s[{srd_f}:{srd_f+3}], s{s_line_off} offen sc1")
    a(f"v_and_b32 v{v0_}, 31, v0")
    a(f"v_lshlrev_b32 v{v0_}, 2, v{v0_}")
    a(f"s_mov_b32 s{s_cnt}, 0")
    ld(v1_)
    a("s_sleep 6")
    a.label(name)
    ld(v2_)
    a("s_waitcnt vmcnt(1)")
    check(v1_)
    ld(v1_)
    a("s_waitcnt vmcnt(1)")
    check(v2_)
    a(f"s_branch {name}")
    a.label(name + "_ok")
```

```python
from asmlib import *

NSLOT = 5
SLEEP = 2
NS = 28

SRD_WD = 92; S_WCUR = 96; S_WLIM = 97; S_L2 = 98; V_W0 = 20; V_W1 = 19
S_R = 38; S_PH = 39; S_WB = 47
TWOPASS = False
MAPB = True
EARLY_AREA = [4, 5, 8, 9, 6, 7]
def setup_w(a, s_main, rot=True):
    a(f"s_load_dwordx2 s[{SRD_WD}:{SRD_WD+1}], s[0:1], {KA['wd']}")
    a("v_lshrrev_b32 v10, 4, v0")
    a("v_lshrrev_b32 v11, 3, v0")
    a("v_and_b32 v12, 7, v0")
    a("v_and_b32 v13, 1, v10")
    a("v_lshlrev_b32 v13, 2, v13")
    a("v_xor_b32 v13, v13, v12")
    a("v_lshlrev_b32 v13, 4, v13")
    a("v_mul_u32_u24 v12, 896, v11")
    a(f"v_add_u32 v{V_W0}, v12, v13")
    a(f"v_add_u32 v{V_W1}, {8*896 - 1024}, v{V_W0}")
    a(f"s_lshr_b32 s99, s{s_main}, 3")
    a("s_and_b32 s100, s99, 3")
    a("s_mul_i32 s100, s100, 3")
    a("s_lshr_b32 s99, s99, 2")
    a("s_lshl_b32 s101, s99, 1")
    a("s_add_u32 s100, s100, s101")
    a("s_sub_u32 s101, s100, 14")
    a("s_cmp_ge_u32 s100, 14")
    a("s_cselect_b32 s100, s101, s100")
    if not rot: a("s_mov_b32 s100, 0")
    a(f"s_mov_b32 s{S_R}, s100")
    if MAPB:
        a(f"s_and_b32 s101, s{s_main}, 1")
        a(f"s_mul_i32 s{S_PH}, s101, 14")
    else:
        a(f"s_and_b32 s101, s{s_main}, 4")
        a("s_cmp_eq_u32 s101, 0")
        a(f"s_cselect_b32 s{S_PH}, 8, 0")
    a(f"s_lshl_b32 s101, s4, 4")
    a(f"s_mul_i32 s{S_WB}, s101, 896")
    a("s_lshl_b32 s99, s99, 7")
    a(f"s_add_u32 s{S_WB}, s{S_WB}, s99")
    if TWOPASS:
        a(f"s_add_u32 s{S_WLIM}, s{S_WB}, {28*64*896}")
        a(f"s_mul_i32 s99, s100, {128*896}")
        a(f"s_add_u32 s{S_WCUR}, s{S_WB}, s99")
    else:
        a(f"s_add_u32 s99, s{S_PH}, 14")
        a(f"s_mul_i32 s99, s99, {64*896}")
        a(f"s_add_u32 s{S_WLIM}, s{S_WB}, s99")
        a(f"s_add_u32 s99, s{S_PH}, s100")
        a(f"s_mul_i32 s99, s99, {64*896}")
        a(f"s_add_u32 s{S_WCUR}, s{S_WB}, s99")
    a(f"s_lshl_b32 s{S_L2}, s4, 11")
    a("s_waitcnt lgkmcnt(0)")
    a(f"s_mov_b32 s{SRD_WD+2}, {1792*448*2}")
    a(f"s_mov_b32 s{SRD_WD+3}, 0x20000")

def advance(cur, lim, step, i, base_reg, tmp):
    if TWOPASS:
        if i == 13:
            return [f"s_mul_i32 s{tmp}, s{S_R}, {2*step}", f"s_add_u32 s{cur}, s{base_reg}, s{tmp}", f"s_add_u32 s{cur}, s{cur}, {step}",
                    f"s_add_u32 s{lim}, s{base_reg}, {29*step}"]
        return [f"s_add_u32 s{cur}, s{cur}, {2*step}", f"s_sub_u32 s{tmp}, s{cur}, {28*step}",
                f"s_cmp_ge_u32 s{cur}, s{lim}", f"s_cselect_b32 s{cur}, s{tmp}, s{cur}"]
    if not MAPB:
        if i == 13:
            return [f"s_add_u32 s{tmp}, s{S_PH}, 14", f"s_mul_i32 s{tmp}, s{tmp}, {step}", f"s_add_u32 s{cur}, s{base_reg}, s{tmp}",
                    f"s_add_u32 s{lim}, s{base_reg}, {28*step}"]
        n = 14 if i < 13 else 28
        return [f"s_add_u32 s{cur}, s{cur}, {step}", f"s_sub_u32 s{tmp}, s{cur}, {n*step}",
                f"s_cmp_ge_u32 s{cur}, s{lim}", f"s_cselect_b32 s{cur}, s{tmp}, s{cur}"]
    if i == 13:
        return [f"s_sub_u32 s{tmp}, 28, s{S_PH}", f"s_mul_i32 s{tmp}, s{tmp}, {step}", f"s_add_u32 s{lim}, s{base_reg}, s{tmp}",
                f"s_sub_u32 s{tmp}, 14, s{S_PH}", f"s_add_u32 s{tmp}, s{tmp}, s{S_R}", f"s_mul_i32 s{tmp}, s{tmp}, {step}",
                f"s_add_u32 s{cur}, s{base_reg}, s{tmp}"]
    return [f"s_add_u32 s{cur}, s{cur}, {step}", f"s_sub_u32 s{tmp}, s{cur}, {14*step}",
            f"s_cmp_ge_u32 s{cur}, s{lim}", f"s_cselect_b32 s{cur}, s{tmp}, s{cur}"]

def dma_w_lines(ldsoff, i):
    g0 = [f"s_add_u32 m0, s{S_L2}, {ldsoff}", "s_nop 0",
          f"buffer_load_dwordx4 v{V_W0}, s[{SRD_WD}:{SRD_WD+3}], s{S_WCUR} offen lds"]
    g1 = [f"buffer_load_dwordx4 v{V_W1}, s[{SRD_WD}:{SRD_WD+3}], s{S_WCUR} offen offset:1024 lds"] + advance(S_WCUR, S_WLIM, 64*896, i, S_WB, 99)
    return [g0, g1]

RESIDENT = False
PIPE = False
NHST = 8
def pre_dma(a):
    if RESIDENT: return
    for p in range(6, 10):
        for g in dma_w_lines((p-6)*8192, p):
            for l in g: a(l)

S_HB = 40; S_LINE = 41; S_HCUR = 42; S_HLIM = 43; S_T0 = 44; S_D0 = 45; S_MASK = 46; SRD_F = 48; SRD_H = 16
def setup_g2(a, s_main):
    a(f"s_load_dwordx2 s[100:101], s[0:1], {KA['ws']}")
    a(f"s_and_b32 s99, s{s_main}, 7")
    a("s_lshl_b32 s99, s99, 2")
    a(f"s_lshr_b32 s{S_D0}, s{s_main}, 3")
    a(f"s_and_b32 s{S_T0}, s{S_D0}, 3")
    a(f"s_add_u32 s99, s99, s{S_T0}")
    a(f"s_lshr_b32 s{S_D0}, s{S_D0}, 2")
    a(f"s_mul_i32 s{S_LINE}, s99, 7")
    a(f"s_add_u32 s{S_LINE}, s{S_LINE}, s{S_D0}")
    a(f"s_lshl_b32 s{S_LINE}, s{S_LINE}, 7")
    a(f"s_lshl_b32 s{S_T0}, s99, 6")
    a(f"s_lshl_b32 s{S_D0}, s{S_D0}, 6")
    a("s_lshl_b32 s99, s4, 4")
    a(f"s_add_u32 s{S_HB}, s{S_T0}, s99")
    a(f"s_mul_i32 s{S_HB}, s{S_HB}, 3584")
    if TWOPASS:
        a(f"s_add_u32 s{S_HLIM}, s{S_HB}, 3584")
        a(f"s_lshl_b32 s99, s{S_R}, 8")
        a(f"s_add_u32 s{S_HCUR}, s{S_HB}, s99")
        a(f"s_mov_b32 s{S_MASK}, 0x3fff")
    else:
        a(f"s_add_u32 s99, s{S_PH}, 14")
        a("s_lshl_b32 s99, s99, 7")
        a(f"s_add_u32 s{S_HLIM}, s{S_HB}, s99")
        a(f"s_add_u32 s99, s{S_PH}, s{S_R}")
        a("s_lshl_b32 s99, s99, 7")
        a(f"s_add_u32 s{S_HCUR}, s{S_HB}, s99")
        a(f"s_lshr_b32 s{S_MASK}, s{S_PH}, 1")
        a(f"s_lshl_b32 s{S_MASK}, 0x7f, s{S_MASK}")
    a("v_lshrrev_b32 v10, 4, v0")
    a("v_lshrrev_b32 v11, 3, v0")
    a("v_and_b32 v12, 7, v0")
    a("v_xor_b32 v13, v12, v10")
    a("v_lshlrev_b32 v13, 4, v13")
    a("v_mul_u32_u24 v9, 3584, v11")
    a("v_add_u32 v86, v9, v13")
    a("v_xor_b32 v13, 64, v13")
    a("v_add_u32 v87, v9, v13")
    a(f"v_add_u32 v87, {8*3584 - 1024}, v87")
    a("v_and_b32 v10, 31, v0")
    a("v_lshrrev_b32 v11, 5, v0")
    a("v_lshrrev_b32 v12, 1, v10")
    a("v_and_b32 v12, 7, v12")
    a("s_lshl_b32 s99, s4, 1")
    a("v_add_u32 v11, s99, v11")
    a("v_xor_b32 v12, v12, v11")
    a("v_lshlrev_b32 v12, 4, v12")
    a("v_lshlrev_b32 v10, 7, v10")
    a("v_add_u32 v88, v10, v12")
    a("v_lshrrev_b32 v10, 4, v0")
    a("v_lshrrev_b32 v11, 2, v0")
    a("v_and_b32 v11, 3, v11")
    a("v_and_b32 v12, 3, v0")
    a("v_lshrrev_b32 v13, 1, v10")
    a("v_lshlrev_b32 v13, 3, v13")
    a("v_add_u32 v13, v13, v11")
    a("s_lshl_b32 s99, s4, 4")
    a("v_add_u32 v13, s99, v13")
    a("v_lshlrev_b32 v13, 7, v13")
    a("v_lshrrev_b32 v9, 1, v12")
    a("v_lshlrev_b32 v9, 3, v9")
    a("v_add_u32 v13, v13, v9")
    a("v_and_b32 v9, 1, v10")
    a("v_lshlrev_b32 v9, 1, v9")
    a("v_and_b32 v18, 1, v12")
    a("v_add_u32 v9, v9, v18")
    a("v_lshrrev_b32 v18, 1, v11")
    a("v_lshlrev_b32 v18, 2, v18")
    a("v_xor_b32 v9, v9, v18")
    a("v_lshlrev_b32 v18, 4, v9")
    a("v_add_u32 v89, v13, v18")
    a("v_xor_b32 v18, 64, v18")
    a("v_add_u32 v90, v13, v18")
    a("s_waitcnt lgkmcnt(0)")
    srd_from(a, SRD_F, 100, SZ_F, WS_F)

def h_flag(a, srd_f, tag):
    a("s_cmp_lg_u32 s4, 0")
    a(f"s_cbranch_scc1 {tag}_flagged")
    a("s_cmp_eq_u32 s58, 0")
    a(f"s_cbranch_scc1 {tag}_flagged")
    set_flags(a, srd_f, 57, 37, 14, 128, 10, 11)
    a.label(f"{tag}_flagged")
    dbg_event(a, 3)

def gemm2(a, st, rot=True, NP=16, prio=0, early=True, sst=False, hsc1=True, print_sched=False, diagdelay=0, NREG=16, noat=False, NINIT0=5, outflag=''):
    S_W = 4
    SRD_AT = 8; SRD_O = 12; SRD_G = 20
    S_TMP = 24; S_TMP2 = 25
    P0 = 28
    S_L = S_L2; S_AL = 33; S_CNT = 34; S_MK = 35
    a.c("---- GEMM2 role ----")
    if sst: st.n = 1
    else: st.n = 6
    a(f"s_load_dwordx2 s[{P0}:{P0+1}], s[0:1], {KA['ws']}")
    a(f"s_load_dwordx2 s[{P0+2}:{P0+3}], s[0:1], {KA['out']}")
    if prio: a(f"s_setprio {prio}")
    V_H0, V_H1 = 2, 3
    V_B = 5; V_A0 = 6; V_A1 = 7
    a("v_mov_b32 v2, v86"); a("v_mov_b32 v3, v87"); a("v_mov_b32 v5, v88"); a("v_mov_b32 v6, v89"); a("v_mov_b32 v7, v90")
    a(f"v_add_u32 v16, 0x10000, v{V_B}")
    a(f"v_add_u32 v17, 0x10000, v{V_A0}")
    a(f"v_add_u32 v18, 0x10000, v{V_A1}")
    vm = []
    def dma_w(ldsoff, key):
        vm.append(key)
        return dma_w_lines(ldsoff, key[1])
    def dma_h(u, ar):
        g0 = [f"s_add_u32 m0, s{S_L}, {ar*8192}", "s_nop 0",
              f"buffer_load_dwordx4 v{V_H0}, s[{SRD_H}:{SRD_H+3}], s{S_HCUR} offen {'sc1' if hsc1 else ''} lds"]
        g1 = [f"buffer_load_dwordx4 v{V_H1}, s[{SRD_H}:{SRD_H+3}], s{S_HCUR} offen offset:1024 {'sc1' if hsc1 else ''} lds"] + advance(S_HCUR, S_HLIM, 128, u, S_HB, S_TMP2)
        vm.append(("H", u))
        return [g0, g1]
    def emit(groups):
        for g in groups:
            for l in g: a(l)
    def wait_for(needs):
        last = max(vm.index(n) for n in needs)
        a(f"s_waitcnt vmcnt({sum((1 if g[0] == 'S' else 2) for g in vm[last+1:])})")
    NB = 10
    area = EARLY_AREA + [0, 1, 2, 3]
    if not RESIDENT:
        for p in range(6, 10): vm.append(("P", p))
    PRE = 128
    def a_reads(dst, off):
        va0, va1 = V_A0, V_A1
        if off >= 65536: off -= 65536; va0, va1 = 17, 18
        return [f"ds_read_b64_tr_b16 v[{dst}:{dst+1}], v{va0} offset:{off}",
                f"ds_read_b64_tr_b16 v[{dst+2}:{dst+3}], v{va0} offset:{off+512}",
                f"ds_read_b64_tr_b16 v[{dst+4}:{dst+5}], v{va1} offset:{off}",
                f"ds_read_b64_tr_b16 v[{dst+6}:{dst+7}], v{va1} offset:{off+512}"]
    def b_reads(dst, off):
        vb = V_B
        if off >= 65536: off -= 65536; vb = 16
        return [f"ds_read_b128 v[{dst}:{dst+3}], v{vb} offset:{off}",
                f"ds_read_b128 v[{dst+4}:{dst+7}], v{vb} offset:{off+4096}"]
    assert NP in (0, 10, 16) and (NP == 0) == RESIDENT
    R0, R1 = (6, 6 + NREG) if RESIDENT else (0, NP)
    a(f"s_waitcnt vmcnt({NHST + (8 if NP else 0)})")
    if NP:
        for p in range(6):
            for r in a_reads(PRE + 8*p, area[p]*8192): a(r)
        a("s_waitcnt lgkmcnt(0)")
        if NP == 16:
            for p in range(10, 16):
                emit(dma_w(EARLY_AREA[p-10]*8192, ("P", p)))
    a(f"s_waitcnt vmcnt({(8 + (12 if NP == 16 else 0)) if NP else 0})")
    st.stamp()
    a("s_barrier")
    h_flag(a, SRD_F, "g2")
    if NP:
        for p in range(6, NP):
            wait_for([("P", p)])
            for r in a_reads(PRE + 8*p, (area[p] if p < 10 else EARLY_AREA[p-10])*8192): a(r)
    if RESIDENT and NREG:
        for p in range(R0, min(R0 + 4, R1)):
            emit(dma_w(((p - R0) % 4)*8192, ("P", p)))
        for p in range(R0, R1):
            wait_for([("P", p)])
            for r in a_reads(PRE + 8*(p - R0), ((p - R0) % 4)*8192): a(r)
            if p + 4 < R1:
                a("s_waitcnt lgkmcnt(0)")
                emit(dma_w(((p - R0) % 4)*8192, ("P", p + 4)))
    a("s_waitcnt lgkmcnt(0)")
    NINIT = NINIT0
    FLAGST = 8
    MAXLD = 2
    sched = {}
    if RESIDENT:
        NINIT = 4
        where = {("H", u): u for u in range(NINIT)}
        for u in range(6): where[("W", u)] = EARLY_AREA[u]
        free = []
        nh, nw = NINIT, R1
    else:
        where = {("H", u): u for u in range(NINIT)}
        free = list(range(NINIT, 10))
        nh, nw = NINIT, NP
    for u in range(NS):
        free.append(where[("H", u)])
        if not (R0 <= u < R1): free.append(where[("W", u)])
        sched[u] = []
        lim = 3 if u < 3 else MAXLD
        while free and len(sched[u]) < lim:
            canh = nh < NS and (nh < 14 or u >= FLAGST)
            canw = nw < NS
            if not (canh or canw): break
            key = ("H", nh) if (canh and (not canw or nh <= nw)) else ("W", nw)
            cand = sorted(free, key=lambda x: (x >= 8 and key[1] >= 22, free.index(x)))
            ar = cand[0]; free.remove(ar); where[key] = ar
            sched[u].append(key)
            if key[0] == "H": nh += 1
            else: nw += 1
    assert nh == NS and nw == NS
    for u in range(NS):
        for key in sched[u]: assert key[1] - u >= 2, (u, key)
    if print_sched: print(sched)
    last_use = {ar: max(k[1] for k, v in where.items() if v == ar) for ar in (8, 9)}
    AT_AREA = min(last_use, key=last_use.get)
    AT_STAGE = max(last_use[AT_AREA], 23)
    assert AT_STAGE <= 27, (last_use, where)
    ATL = AT_AREA*8192
    OT = 0
    a("v_lshlrev_b32 v11, 4, v0")
    a(f"s_lshl_b32 s{S_TMP}, s{S_W}, 12")
    a(f"v_add_u32 v56, s{S_TMP}, v11")
    a(f"s_lshl_b32 s{S_TMP}, s{S_W}, 14")
    a(f"v_add_u32 v12, s{S_TMP}, v11")
    for k in range(1, 4):
        a(f"s_add_u32 s{S_TMP}, s{S_W}, {k}")
        a(f"s_and_b32 s{S_TMP}, s{S_TMP}, 3")
        a(f"s_lshl_b32 s{S_TMP}, s{S_TMP}, 12")
        a(f"v_add_u32 v{56+k}, s{S_TMP}, v12")
    a("v_lshrrev_b32 v10, 4, v0")
    a("v_lshrrev_b32 v13, 2, v0")
    a("v_and_b32 v13, 3, v13")
    a("v_and_b32 v14, 3, v0")
    a("v_lshrrev_b32 v15, 1, v10")
    a("v_lshlrev_b32 v15, 3, v15")
    a("v_add_u32 v15, v15, v13")
    a("v_lshlrev_b32 v15, 7, v15")
    a("v_and_b32 v9, 1, v10")
    a("v_lshlrev_b32 v9, 5, v9")
    a("v_add_u32 v15, v15, v9")
    a("v_lshlrev_b32 v14, 3, v14")
    a("v_add_u32 v15, v15, v14")
    a(f"s_lshr_b32 s{S_TMP}, s{S_W}, 1")
    a(f"s_lshl_b32 s{S_TMP}, s{S_TMP}, 12")
    a(f"s_and_b32 s{S_TMP2}, s{S_W}, 1")
    a(f"s_lshl_b32 s{S_TMP2}, s{S_TMP2}, 6")
    a(f"s_add_u32 s{S_TMP}, s{S_TMP}, s{S_TMP2}")
    a(f"s_add_u32 s{S_TMP}, s{S_TMP}, {ATL}")
    a(f"v_add_u32 v60, s{S_TMP}, v15")
    a("v_and_b32 v10, 31, v0")
    a("v_lshrrev_b32 v11, 5, v0")
    a(f"s_and_b32 s{S_TMP}, s{S_W}, 1")
    a(f"s_lshl_b32 s{S_TMP}, s{S_TMP}, 5")
    a(f"v_add_u32 v10, s{S_TMP}, v10")
    a(f"s_lshr_b32 s{S_TMP2}, s{S_W}, 1")
    a(f"s_lshl_b32 s{S_TMP2}, s{S_TMP2}, 2")
    a(f"v_add_u32 v11, s{S_TMP2}, v11")
    a("v_and_b32 v12, 7, v10")
    a("v_xor_b32 v11, v11, v12")
    a("v_lshlrev_b32 v10, 7, v10")
    a("v_lshlrev_b32 v12, 4, v11")
    a("v_add_u32 v61, v10, v12")
    a("v_xor_b32 v12, 32, v12")
    a("v_add_u32 v62, v10, v12")
    a("v_lshrrev_b32 v10, 3, v0")
    a("v_and_b32 v11, 7, v0")
    a("v_xor_b32 v11, v11, v10")
    a("v_lshlrev_b32 v11, 4, v11")
    a("v_mul_u32_u24 v10, 896, v10")
    a("v_add_u32 v23, v10, v11")
    a("v_lshlrev_b32 v12, 4, v0")
    a(f"v_add_u32 v63, s{S_L}, v12")
    a(f"s_lshl_b32 s{S_TMP}, s{S_W}, 4")
    a(f"s_add_u32 s{S_TMP}, s{S_TMP}, s{S_T0}")
    a(f"s_mul_i32 s{S_TMP}, s{S_TMP}, 896")
    a(f"s_lshl_b32 s32, s{S_D0}, 1")
    a(f"s_add_u32 s32, s32, s{S_TMP}")
    st.stamp()
    P2MASK = "0x3fff4000" if TWOPASS else "0x7fff"
    S_P2 = 31 if False else 101
    a(f"s_mov_b32 s{S_P2}, {SZ_F}")
    a(f"s_mov_b32 s100, {SZ_F}")
    a(f"s_cmp_lg_u32 s{S_W}, 0")
    a("s_cbranch_scc1 g2_hready")
    wait_flags2(a, "g2_wh", SRD_F, S_LINE, 37, S_MASK, S_TMP, S_CNT, 10, 13, 14) if PIPE else wait_flags(a, "g2_wh", SRD_F, S_LINE, 14, 37, S_TMP, S_CNT, 10, 11, sleep=SLEEP, s_mask=S_MASK)
    a(f"s_and_b32 s{S_TMP}, vcc_lo, {P2MASK}")
    a(f"s_cmp_eq_u32 s{S_TMP}, {P2MASK}")
    a(f"s_cselect_b32 s{S_P2}, s{S_P2}, s{S_LINE}")
    a(f"s_add_u32 s100, s{S_LINE}, {L_A*128}")
    a.label("g2_hready")
    a("s_barrier")
    st.stamp()
    for u in range(NINIT):
        emit(dma_h(u, u))
    FR = [24, 40]
    ACC = 64
    def acc(rb, cb): return ACC + 16*(2*rb + cb)
    def reads(u):
        fb = FR[u % 2]
        R = b_reads(fb+8, where[("H", u)]*8192)
        if not (R0 <= u < R1):
            Ar = a_reads(fb, where[("W", u)]*8192)
            R = [R[0]] + Ar[:2] + [R[1]] + Ar[2:]
        return R
    def needs(u):
        return [("H", u)] + ([("W", u)] if ("W", u) in vm else [])
    V_FL = 21
    last_flag = [None]
    def flag_load(s_off):
        a(f"buffer_load_dword v{V_FL}, v22, s[{SRD_F}:{SRD_F+3}], s{s_off} offen sc1")
        vm.append(("S", 100 + len(vm)))
        last_flag[0] = vm[-1]
    def flag_check(name, s_off, nwords, mask=None, s_async=None):
        mask = mask or hex((1 << nwords) - 1)
        a(f"s_mov_b32 s{S_MK}, {mask}")
        a(f"s_cmp_eq_u32 s{s_async}, {SZ_F}")
        a(f"s_cbranch_scc1 {name}_done")
        wait_for([last_flag[0]])
        a(f"v_cmp_eq_u32 vcc, s37, v{V_FL}")
        a("s_nop 2")
        a(f"s_and_b32 s{S_TMP}, vcc_lo, {mask}")
        a(f"s_cmp_eq_u32 s{S_TMP}, {mask}")
        a(f"s_cbranch_scc1 {name}_done")
        wait_flags(a, name, SRD_F, s_off, nwords, 37, S_TMP, S_CNT, 10, 11, sleep=SLEEP, s_mask=S_MK)
        a.label(name + "_done")
    a("v_and_b32 v22, 31, v0")
    a("v_lshlrev_b32 v22, 2, v22")
    a(f"s_add_u32 s{S_AL}, s{S_LINE}, {L_A*128}")
    V_G = 8
    def at_loads():
        a("v_and_b32 v9, 31, v0")
        a(f"s_and_b32 s{S_TMP}, s{S_W}, 1")
        a(f"s_lshl_b32 s{S_TMP}, s{S_TMP}, 5")
        a(f"s_add_u32 s{S_TMP}, s{S_TMP}, s{S_T0}")
        a(f"v_add_u32 v9, s{S_TMP}, v9")
        a("v_lshlrev_b32 v9, 2, v9")
        a(f"buffer_load_dword v{V_G}, v9, s[{SRD_G}:{SRD_G+3}], 0 offen sc1")
        a("v_lshrrev_b32 v9, 3, v0")
        a("v_lshlrev_b32 v9, 12, v9")
        a("v_and_b32 v12, 7, v0")
        a("v_lshlrev_b32 v12, 4, v12")
        a("v_add_u32 v9, v9, v12")
        a(f"s_lshl_b32 s{S_TMP}, s{S_W}, 4")
        a(f"s_add_u32 s{S_TMP}, s{S_TMP}, s{S_D0}")
        a(f"s_lshl_b32 s{S_TMP}, s{S_TMP}, 12")
        a(f"s_lshl_b32 s{S_TMP2}, s{S_T0}, 1")
        a(f"s_add_u32 s{S_TMP2}, s{S_TMP2}, s{S_TMP}")
        for i in range(2):
            a(f"s_add_u32 m0, s{S_L}, {ATL + i*1024}")
            a(f"s_add_u32 s{S_TMP}, s{S_TMP2}, {8*i*4096}")
            a(f"buffer_load_dwordx4 v9, s[{SRD_AT}:{SRD_AT+3}], s{S_TMP} offen sc1 lds")
        for i in range(3): vm.append(("S", i))
    GA_STAGE = min(AT_STAGE + 2, NS - 1)
    assert GA_STAGE > AT_STAGE
    GA = 128
    def ga_prepare():
        for Q in range(2):
            for h2 in range(2):
                a(f"ds_read_b64_tr_b16 v[{144+4*Q+2*h2}:{144+4*Q+2*h2+1}], v60 offset:{(16*Q+4*h2)*128}")
    wait_for(needs(0))
    a("s_barrier")
    st.stamp()
    dbg_event(a, 4)
    for r in reads(0): a(r)
    for u in range(NS):
        fb = FR[u % 2]
        if sst == 2 and u in (6, 20): st.stamp()
        a("s_waitcnt lgkmcnt(0)")
        if sst == 2 and u in (6, 20): st.stamp()
        if u + 1 < NS: wait_for(needs(u+1))
        if sst == 2 and u in (6, 20): st.stamp()
        if u == FLAGST: flag_check("g2_wh2", S_LINE, 32, P2MASK, S_P2)
        if u == AT_STAGE and not noat: flag_check("g2_wa", S_AL, 32, None, 100)
        if u == GA_STAGE: wait_for([("S", 2)])
        a("s_barrier")
        if u == 12:
            srd_from(a, SRD_AT, P0, SZ_AT, WS_AT)
            srd_from(a, SRD_O, P0+2, 2048*448*2)
            srd_from(a, SRD_G, P0, SZ_G, WS_G)
        if u == FLAGST - 4: flag_load(S_P2)
        if u == AT_STAGE - 5: flag_load(100)
        if sst == 1 and u in (2, 5, 8, 11, 14, 17, 20, 23): st.stamp()
        if sst == 2 and u in (6, 7, 20, 21): st.stamp()
        if u == AT_STAGE:
            at_loads()
        if u == GA_STAGE:
            ga_prepare()
        D = []
        for key in sched.get(u, []):
            D += dma_h(key[1], where[key]) if key[0] == "H" else dma_w(where[key]*8192, key)
        R = reads(u + 1) if u + 1 < NS else []
        M = []
        for (rb, cb) in ((0,0),(0,1),(1,0),(1,1)):
            c = "0" if u == 0 else f"v[{acc(rb,cb)}:{acc(rb,cb)+15}]"
            A = (PRE + 8*(u - R0) + 4*rb) if R0 <= u < R1 else (fb + 4*rb)
            M.append(f"v_mfma_f32_32x32x16_bf16 v[{acc(rb,cb)}:{acc(rb,cb)+15}], v[{A}:{A+3}], v[{fb+8+4*cb}:{fb+8+4*cb+3}], {c}")
        seq = []
        nD = len(D); per = [D[0:2], D[2:4], D[4:5], D[5:6]] if nD > 4 else [D[0:1], D[1:2], D[2:3], D[3:4]]
        for g in per[0]: seq += g
        seq += R[:2]
        seq.append(M[0])
        for g in per[1]: seq += g
        seq += R[2:4]
        seq.append(M[1])
        for g in per[2]: seq += g
        seq += R[4:]
        seq.append(M[2])
        for g in per[3]: seq += g
        seq.append(M[3])
        for l in seq: a(l)
    st.stamp()
    if sst:
        st.flush(S_W); a("s_endpgm"); return
    a("s_mov_b32 s39, 0xffff0000")
    a("s_waitcnt lgkmcnt(0)")
    a(f"v_sub_f32 v152, 1.0, v{V_G}")
    for p in range(8):
        a(f"v_lshlrev_b32 v{GA+2*p}, 16, v{144+p}")
        a(f"v_and_b32 v{GA+2*p+1}, s39, v{144+p}")
    for r in range(16):
        a(f"v_mul_f32 v{GA+r}, v{V_G}, v{GA+r}")
    for beta in range(4):
        rb, cb = beta >> 1, beta & 1
        a(f"s_cmp_eq_u32 s{S_W}, {beta}")
        a(f"s_cbranch_scc1 g2_skipw{beta}")
        for q in range(4):
            a(f"ds_write_b128 v56, v[{acc(rb,cb)+4*q}:{acc(rb,cb)+4*q+3}] offset:{beta*16384 + q*1024}")
        a.label(f"g2_skipw{beta}")
    for beta in range(4):
        rb, cb = beta >> 1, beta & 1
        a(f"s_cmp_lg_u32 s{S_W}, {beta}")
        a(f"s_cbranch_scc1 g2_skipm{beta}")
        for r in range(16):
            a(f"v_fma_f32 v{GA+r}, v152, v{acc(rb,cb)+r}, v{GA+r}")
        a.label(f"g2_skipm{beta}")
    a("s_waitcnt lgkmcnt(0)")
    a("s_barrier")
    st.stamp()
    for k in range(1, 4):
        for q in range(4):
            a(f"ds_read_b128 v[{160+16*(k-1)+4*q}:{160+16*(k-1)+4*q+3}], v{56+k} offset:{q*1024}")
    for k in range(1, 4):
        a(f"s_waitcnt lgkmcnt({4*(3-k)})")
        for r in range(16):
            a(f"v_fmac_f32 v{GA+r}, v152, v{160+16*(k-1)+r}")
    for p in range(8):
        a(f"v_cvt_pk_bf16_f32 v{24+p}, v{GA+2*p}, v{GA+2*p+1}")
    a("s_barrier")
    for Q in range(2):
        a(f"ds_write_b128 v{61+Q}, v[{24+4*Q}:{27+4*Q}] offset:{OT}")
    a("s_waitcnt lgkmcnt(0)")
    a("s_barrier")
    a(f"ds_read_b128 v[32:35], v63 offset:{OT}")
    a(f"ds_read_b128 v[36:39], v63 offset:{OT+1024}")
    for i in range(2):
        a(f"s_waitcnt lgkmcnt({1-i})")
        a(f"s_add_u32 s{S_TMP}, s32, {8*i*896}")
        a(f"buffer_store_dwordx4 v[{32+4*i}:{35+4*i}], v23, s[{SRD_O}:{SRD_O+3}], s{S_TMP} offen {outflag}")
    st.stamp()
    for _ in range(diagdelay): a("s_sleep 32")
    dbg_event(a, 5)
    if st.on: a("s_waitcnt vmcnt(0)")
    st.stamp(real=True)
    st.flush(S_W)
```

```python
from asmlib import *

STG = 14848
ESTR = 272
FOFF = 21*ESTR
UBASE = 59392
XT = 66560
KCSZ = 16640; CPSZ = 4160
XCH = 18432

def cmul(a, dr, di, xr, xi, cr, ci, nci):
    a(f"v_mul_f32 v{dr}, v{xr}, v{cr}")
    a(f"v_mul_f32 v{di}, v{xr}, v{ci}")
    a(f"v_fmac_f32 v{dr}, v{xi}, v{nci}")
    a(f"v_fmac_f32 v{di}, v{xi}, v{cr}")

def side(a, st, s_cp, gate=True, sleep=4, pf=True, p0early=True, latetile=True, lategate=True, lateparam=True, tlb=0, sprio=0, fsleep=0, combo=False):
    S_W = 4; S_D = 5; S_HALF = 6; S_CHL = 7
    SRD_P = 8; SRD_UT = 12; SRD_AT = 16; SRD_F = 20
    S_TMP = 24; S_TMP2 = 25; S_SC = 26; S_ISC = 27
    P0 = 28
    P_WS = 44; P_DBG = 46
    S_STG = 48; S_U = 49; S_KC = 50; S_DSK = 51; S_LDT = 52
    P_X = 54
    WA, RA, VT, UD, TA, TB, KCW, VA, VB, XW, XR, UR, ATO, VM = 216, 220, 222, 223, 227, 236, 237, 238, 239, 240, 241, 242, 243, 244
    PK = [104, 160]; D = 88
    a.c("---- side role ----")
    a(f"s_load_dwordx8 s[{P0}:{P0+7}], s[0:1], {KA['are']}")
    a(f"s_load_dwordx8 s[{P0+8}:{P0+15}], s[0:1], {KA['cre']}")
    a(f"s_load_dwordx2 s[{P_WS}:{P_WS+1}], s[0:1], {KA['ws']}")
    a(f"s_load_dwordx2 s[{P_DBG}:{P_DBG+1}], s[0:1], {KA['dbg']}")
    a(f"s_load_dwordx2 s[{P_X}:{P_X+1}], s[0:1], {KA['u']}")
    a(f"s_and_b32 s{S_HALF}, s{S_W}, 1")
    a(f"s_lshr_b32 s{S_CHL}, s{S_W}, 1")
    a(f"s_lshl_b32 s{S_D}, s{s_cp}, 1")
    a(f"s_add_u32 s{S_D}, s{S_D}, s{S_CHL}")
    a(f"s_lshl_b32 s{S_TMP}, s{S_D}, 9")
    a(f"s_lshl_b32 s{S_TMP2}, s{S_HALF}, 8")
    a(f"s_add_u32 s{S_TMP}, s{S_TMP}, s{S_TMP2}")
    a("v_lshlrev_b32 v2, 2, v0")
    a("v_lshrrev_b32 v5, 4, v0")
    a("v_lshrrev_b32 v6, 3, v0")
    a("v_mul_u32_u24 v6, 896, v6")
    a("v_and_b32 v7, 7, v0")
    a("v_xor_b32 v7, v7, v5")
    a("v_lshlrev_b32 v7, 4, v7")
    a("v_add_u32 v3, v6, v7")
    a("v_xor_b32 v7, 64, v7")
    a("v_add_u32 v4, v6, v7")
    a("s_and_b32 s56, s2, 31")
    a("s_lshr_b32 s57, s2, 5")
    a("s_lshl_b32 s58, s56, 6")
    a(f"s_lshl_b32 s59, s{S_W}, 4")
    a("s_add_u32 s58, s58, s59")
    a("s_mul_i32 s58, s58, 896")
    a("s_lshl_b32 s59, s57, 7")
    a("s_add_u32 s58, s58, s59")
    a("s_waitcnt lgkmcnt(0)")
    srd_from(a, SRD_F, P_WS, SZ_F, WS_F)
    if tlb:
        a("s_lshr_b32 s93, s2, 3")
        a("s_lshl_b32 s93, s93, 2")
        a(f"s_add_u32 s93, s93, s{S_W}")
        a("s_cmp_ge_u32 s93, 72")
        a("s_cbranch_scc1 side_tlb_done")
        a(f"s_load_dwordx2 s[94:95], s[0:1], {KA['out']}")
        a(f"s_load_dwordx2 s[96:97], s[0:1], {KA['wd']}")
        a(f"s_mov_b32 s100, s{P_WS}"); a(f"s_mov_b32 s101, s{P_WS+1}")
        a(f"s_mov_b32 s99, {WS_F + SZ_F}")
        a("s_waitcnt lgkmcnt(0)")
        a("s_cmp_ge_u32 s93, 58")
        a("s_cselect_b32 s100, s94, s100"); a("s_cselect_b32 s101, s95, s101")
        a(f"s_cselect_b32 s99, {2048*448*2}, s99")
        a("s_cselect_b32 s98, 58, 0")
        a("s_cmp_ge_u32 s93, 65")
        a("s_cselect_b32 s100, s96, s100"); a("s_cselect_b32 s101, s97, s101")
        a(f"s_cselect_b32 s99, {1792*448*2}, s99")
        a("s_cselect_b32 s98, 65, s98")
        a("s_sub_u32 s93, s93, s98")
        a("s_lshl_b32 s93, s93, 18")
        a("v_lshlrev_b32 v254, 12, v0")
        a("s_mov_b32 s96, s100"); a("s_mov_b32 s97, s101"); a("s_mov_b32 s98, s99"); a("s_mov_b32 s99, 0x20000")
        a("buffer_load_dword v253, v254, s[96:99], s93 offen")
        a.label("side_tlb_done")
    a("v_mov_b32 v255, v2")
    a(f"s_mov_b32 s92, s{S_TMP}")
    def param_loads():
        a(f"s_mov_b32 s{SRD_P+2}, {448*256*2}")
        a(f"s_mov_b32 s{SRD_P+3}, 0x20000")
        for i in range(6):
            a(f"s_mov_b32 s{SRD_P}, s{P0+2*i}")
            a(f"s_mov_b32 s{SRD_P+1}, s{P0+2*i+1}")
            a(f"buffer_load_dword v{10+i}, v255, s[{SRD_P}:{SRD_P+3}], s92 offen")
            a("s_nop 0")
    if not lateparam: param_loads()
    a(f"s_lshl_b32 s{S_TMP2}, s{s_cp}, 2")
    a(f"s_load_dword s{S_LDT}, s[{P0+12}:{P0+13}], s{S_TMP2}")
    a(f"s_load_dword s{S_DSK}, s[{P0+14}:{P0+15}], s{S_TMP2}")
    srd_from(a, SRD_UT, P_X, 2048*448*2)
    a(f"s_lshl_b32 s59, s{S_W}, 11")
    a(f"s_add_u32 s59, s59, {XT}")
    def tile_dma(v0_):
        for i in range(2):
            a(f"s_add_u32 m0, s59, {i*1024}")
            a(f"s_add_u32 s{S_TMP}, s58, {8*i*896}")
            a(f"buffer_load_dwordx4 v{v0_+i}, s[{SRD_UT}:{SRD_UT+3}], s{S_TMP} offen lds")
    if latetile:
        a("v_mov_b32 v251, v3"); a("v_mov_b32 v252, v4")
    else:
        tile_dma(3)
    NPF = 0
    if pf == 1:
        NPF = 4
        a("s_lshr_b32 s40, s2, 3")
        a("s_lshl_b32 s40, s40, 2")
        a(f"s_add_u32 s40, s40, s{S_W}")
        a("s_cmp_ge_u32 s40, 96")
        a("s_cbranch_scc1 side_pf_none")
        a(f"s_load_dwordx4 s[28:31], s[0:1], {KA['wg']}")
        a("s_and_b32 s41, s2, 7")
        a("s_cmp_ge_u32 s40, 48")
        a("s_cbranch_scc1 side_pf_w")
        a("s_lshl_b32 s42, s40, 6")
        a("v_add_u32 v3, s42, v0")
        a("s_mov_b32 s43, 21846")
        a("v_mul_u32_u24 v4, s43, v3")
        a("v_lshrrev_b32 v4, 16, v4")
        a("v_mul_u32_u24 v5, 3, v4")
        a("v_sub_u32 v5, v3, v5")
        a("v_mul_u32_u24 v4, 896, v4")
        a("v_lshlrev_b32 v5, 6, v5")
        a("v_add_u32 v4, v4, v5")
        a("s_and_b32 s42, s41, 1")
        a(f"s_mul_i32 s42, s42, {1024*896}")
        a("s_add_u32 s42, s42, 128")
        for q in range(4):
            a(f"buffer_load_dword v{251+q}, v4, s[{SRD_UT}:{SRD_UT+3}], s42 offen")
            a("s_add_u32 s42, s42, 192")
        a("s_waitcnt lgkmcnt(0)")
        a("s_branch side_pf_done")
        a.label("side_pf_w")
        a("s_sub_u32 s40, s40, 48")
        a("s_lshr_b32 s42, s40, 1")
        a("s_lshl_b32 s42, s42, 6")
        a("v_add_u32 v3, s42, v0")
        a("v_lshrrev_b32 v4, 4, v3")
        a("v_and_b32 v3, 15, v3")
        a("v_mul_u32_u24 v4, 3584, v4")
        a("v_lshlrev_b32 v3, 6, v3")
        a("v_add_u32 v4, v4, v3")
        a("s_lshr_b32 s42, s41, 1")
        a("s_lshr_b32 s43, s42, 1")
        a("s_mul_i32 s43, s43, 7")
        a("s_and_b32 s42, s42, 1")
        a("s_lshl_b32 s42, s42, 2")
        a("s_add_u32 s42, s42, s43")
        a("s_lshl_b32 s42, s42, 8")
        a(f"s_add_u32 s42, s42, {64*3584}")
        a("s_and_b32 s40, s40, 1")
        a("s_waitcnt lgkmcnt(0)")
        a("s_cmp_eq_u32 s40, 0")
        a("s_cselect_b32 s32, s28, s30")
        a("s_cselect_b32 s33, s29, s31")
        a(f"s_mov_b32 s34, {448*1792*2}")
        a("s_mov_b32 s35, 0x20000")
        for q in range(4):
            a(f"buffer_load_dword v{251+q}, v4, s[32:35], s42 offen")
            a(f"s_add_u32 s42, s42, {96*3584}")
        a("s_branch side_pf_done")
        a.label("side_pf_none")
        for q in range(4):
            a(f"buffer_load_dword v{251+q}, v2, s[{SRD_UT}:{SRD_UT+3}], 0 offen")
        a.label("side_pf_done")
    srd_from(a, SRD_AT, P_WS, SZ_AT, WS_AT)
    a(f"s_mul_i32 s{S_STG}, s{S_W}, {STG}")
    a(f"s_lshl_b32 s{S_U}, s{S_CHL}, 13")
    a(f"s_add_u32 s{S_U}, s{S_U}, {UBASE}")
    a(f"s_mul_i32 s{S_KC}, s{S_CHL}, {KCSZ}")
    a("v_and_b32 v3, 31, v0")
    a(f"v_mul_u32_u24 v3, {ESTR}, v3")
    a("v_lshrrev_b32 v4, 5, v0")
    a("v_lshlrev_b32 v4, 4, v4")
    a("v_add_u32 v3, v3, v4")
    a(f"v_add_u32 v{RA}, s{S_STG}, v3")
    a("v_lshrrev_b32 v3, 4, v0")
    a("v_lshrrev_b32 v4, 2, v0")
    a("v_and_b32 v4, 3, v4")
    a("v_and_b32 v5, 3, v0")
    a("v_lshrrev_b32 v7, 1, v3")
    a(f"v_mul_u32_u24 v8, {CPSZ}, v4")
    a("v_and_b32 v9, 1, v3")
    a("v_lshlrev_b32 v9, 5, v9")
    a("v_add_u32 v8, v8, v9")
    a("v_and_b32 v9, 1, v5")
    a("v_lshlrev_b32 v9, 4, v9")
    a("v_add_u32 v8, v8, v9")
    a("v_lshrrev_b32 v9, 1, v5")
    a("v_lshlrev_b32 v9, 3, v9")
    a("v_add_u32 v8, v8, v9")
    a("v_lshlrev_b32 v9, 4, v7")
    a("v_sub_u32 v8, v8, v9")
    a(f"s_lshl_b32 s{S_TMP}, s{S_HALF}, 10")
    a(f"s_add_u32 s{S_TMP}, s{S_TMP}, s{S_KC}")
    a(f"s_add_u32 s{S_TMP}, s{S_TMP}, 24")
    a(f"v_add_u32 v{VA}, s{S_TMP}, v8")
    a("v_lshlrev_b32 v8, 3, v3")
    a("v_add_u32 v8, v8, v4")
    a("v_lshlrev_b32 v8, 7, v8")
    a("v_and_b32 v9, 1, v5")
    a("v_lshlrev_b32 v9, 3, v9")
    a("v_add_u32 v8, v8, v9")
    a(f"v_add_u32 v8, {XT}, v8")
    a("v_lshrrev_b32 v9, 1, v5")
    a(f"s_lshl_b32 s{S_TMP}, s{S_W}, 1")
    a(f"v_add_u32 v9, s{S_TMP}, v9")
    a("v_and_b32 v1, 1, v3")
    a("v_lshlrev_b32 v1, 2, v1")
    a("v_lshrrev_b32 v4, 1, v4")
    a("v_add_u32 v1, v1, v4")
    a("v_xor_b32 v9, v9, v1")
    a("v_lshlrev_b32 v1, 4, v9")
    a("v_add_u32 v245, v8, v1")
    a("v_xor_b32 v9, 2, v9")
    a("v_lshlrev_b32 v1, 4, v9")
    a("v_add_u32 v246, v8, v1")
    a("v_add_u32 v246, 512, v246")
    a("v_and_b32 v3, 15, v0")
    a("v_lshrrev_b32 v4, 4, v0")
    a("v_and_b32 v5, 7, v3")
    a("v_xor_b32 v5, v5, v4")
    a("v_lshlrev_b32 v7, 7, v3")
    a(f"v_add_u32 v7, s59, v7")
    a("v_lshlrev_b32 v8, 4, v5")
    a("v_add_u32 v247, v7, v8")
    a("v_xor_b32 v8, 64, v8")
    a("v_add_u32 v248, v7, v8")
    a("v_lshlrev_b32 v249, 4, v0")
    a("v_add_u32 v249, s59, v249")
    a("v_lshrrev_b32 v3, 3, v0")
    a("v_and_b32 v4, 7, v0")
    a("v_xor_b32 v4, v4, v3")
    a("v_lshlrev_b32 v4, 4, v4")
    a("v_lshlrev_b32 v3, 12, v3")
    a("v_add_u32 v250, v3, v4")
    a("v_and_b32 v7, 31, v0")
    a("v_lshlrev_b32 v7, 2, v7")
    a("v_lshrrev_b32 v8, 5, v0")
    a("v_lshlrev_b32 v9, 9, v8")
    a("v_add_u32 v9, v7, v9")
    a(f"v_add_u32 v{VT}, s{S_STG}, v9")
    a("v_and_b32 v3, 31, v0")
    a("v_mul_u32_u24 v4, 80, v3")
    a("v_lshlrev_b32 v5, 4, v8")
    a("v_add_u32 v4, v4, v5")
    a(f"s_mul_i32 s{S_TMP}, s{S_HALF}, {80*16}")
    a(f"s_sub_u32 s{S_TMP}, s{S_U}, s{S_TMP}")
    a(f"s_add_u32 s{S_TMP}, s{S_TMP}, {80*16}")
    a(f"v_add_u32 v{VB}, s{S_TMP}, v4")
    a(f"s_mul_i32 s{S_TMP}, s{S_CHL}, {XCH}")
    a(f"s_lshl_b32 s{S_TMP2}, s{S_HALF}, 12")
    a("v_lshlrev_b32 v4, 4, v0")
    a(f"v_add_u32 v4, s{S_TMP}, v4")
    a(f"v_add_u32 v{XW}, s{S_TMP2}, v4")
    a(f"s_xor_b32 s{S_TMP2}, s{S_TMP2}, 4096")
    a(f"v_add_u32 v{XR}, s{S_TMP2}, v4")
    a("v_and_b32 v3, 31, v0")
    a("v_lshrrev_b32 v8, 5, v0")
    a("v_mul_u32_u24 v7, 80, v3")
    a("v_lshlrev_b32 v5, 4, v8")
    a("v_add_u32 v7, v7, v5")
    a(f"s_mul_i32 s{S_TMP}, s{S_HALF}, {80*32}")
    a(f"s_add_u32 s{S_TMP}, s{S_TMP}, s{S_U}")
    a(f"s_add_u32 s{S_TMP}, s{S_TMP}, {80*31}")
    a(f"v_add_u32 v{UR}, s{S_TMP}, v7")
    a("v_lshlrev_b32 v7, 6, v3")
    a("v_add_u32 v7, v7, v5")
    a(f"s_mul_i32 s56, s{S_CHL}, {XCH}")
    a(f"s_lshl_b32 s{S_TMP}, s{S_HALF}, 11")
    a(f"s_add_u32 s56, s56, s{S_TMP}")
    a("s_add_u32 s56, s56, 8192")
    a(f"v_add_u32 v{ATO}, s56, v7")
    a(f"s_lshl_b32 s{S_TMP}, s{S_HALF}, 8")
    a(f"v_add_u32 v3, s{S_TMP}, v0")
    a("s_mov_b32 s53, 52429")
    for ii in range(4):
        a("v_mul_u32_u24 v4, s53, v3")
        a("v_lshrrev_b32 v4, 18, v4")
        a("v_mul_u32_u24 v5, 5, v4")
        a("v_sub_u32 v5, v3, v5")
        a("v_subrev_u32 v4, 31, v4")
        a("v_lshlrev_b32 v7, 6, v4")
        a("v_lshlrev_b32 v8, 4, v5")
        a("v_add_u32 v7, v7, v8")
        a("v_cmp_gt_u32 vcc, 64, v4")
        a("v_cmp_gt_u32 s[56:57], 4, v5") if False else a("v_cmp_gt_u32 s[40:41], 4, v5")
        a("s_and_b64 vcc, vcc, s[40:41]")
        a("v_mov_b32 v8, 0x80000000")
        a("s_nop 0")
        a(f"v_cndmask_b32 v{UD+ii}, v8, v7, vcc")
        if ii < 3: a("v_add_u32 v3, 64, v3")
    a(f"s_mul_i32 s{S_TMP}, s{S_CHL}, {2*STG}")
    a("v_and_b32 v3, 31, v0")
    a("v_lshlrev_b32 v3, 2, v3")
    a(f"v_add_u32 v3, s{S_TMP}, v3")
    a("v_cmp_gt_u32 vcc, 32, v0")
    r1 = [8*128, 8*128, 16*128, 17*128, 17*128, 17*128, 18*128, 8*128+4]
    for i in range(8):
        a(f"v_mov_b32 v4, {r1[i]}")
        a(f"v_mov_b32 v5, {i*128}")
        a("v_cndmask_b32 v4, v4, v5, vcc")
        a(f"v_add_u32 v{TA+i}, v3, v4")
    a("v_cmp_eq_u32 s[40:41], 32, v0")
    a("v_mov_b32 v4, 1024")
    a("v_mov_b32 v5, 892")
    a("v_cndmask_b32 v4, v4, v5, vcc")
    a("v_mov_b32 v5, 1020")
    a("v_cndmask_b32 v4, v4, v5, s[40:41]")
    a(f"v_add_u32 v{TA+8}, v3, v4")
    a(f"v_lshlrev_b32 v{TB}, 2, v0")
    a(f"v_add_u32 v{TB}, s{S_TMP}, v{TB}")
    a(f"s_lshl_b32 s{S_TMP}, s{S_HALF}, 7")
    a(f"v_add_u32 v{VM}, s{S_TMP}, v0")
    a(f"v_lshlrev_b32 v{KCW}, 4, v{VM}")
    a(f"s_add_u32 s{S_TMP}, s{S_KC}, 64")
    a(f"v_add_u32 v{KCW}, s{S_TMP}, v{KCW}")
    if lateparam: param_loads()
    if pf == 2:
        NPF = 12
        a(f"s_load_dwordx4 s[28:31], s[0:1], {KA['wg']}")
        a(f"s_load_dwordx2 s[36:37], s[0:1], {KA['u']}")
        a("s_lshr_b32 s93, s2, 3")
        a("s_lshl_b32 s93, s93, 2")
        a(f"s_add_u32 s93, s93, s{S_W}")
        a("s_and_b32 s94, s2, 7")
        a("s_lshr_b32 s95, s94, 1")
        a("s_lshr_b32 s96, s95, 1")
        a("s_mul_i32 s96, s96, 7")
        a("s_and_b32 s95, s95, 1")
        a("s_lshl_b32 s95, s95, 2")
        a("s_add_u32 s95, s95, s96")
        a("s_lshl_b32 s95, s95, 8")
        a("s_lshr_b32 s96, s93, 1")
        a("s_add_u32 s96, s96, 96")
        a("s_mul_i32 s96, s96, 3584")
        a("s_add_u32 s95, s95, s96")
        a("v_lshlrev_b32 v3, 4, v0")
        a("v_lshrrev_b32 v4, 3, v0")
        a("v_mul_u32_u24 v4, 896, v4")
        a("v_and_b32 v5, 7, v0")
        a("v_lshlrev_b32 v5, 4, v5")
        a("v_add_u32 v4, v4, v5")
        a("s_and_b32 s94, s94, 1")
        a(f"s_mul_i32 s94, s94, {1024*896}")
        a("s_waitcnt lgkmcnt(0)")
        a("s_and_b32 s96, s93, 1")
        a("s_cmp_eq_u32 s96, 0")
        a("s_cselect_b32 s32, s28, s30")
        a("s_cselect_b32 s33, s29, s31")
        a(f"s_mov_b32 s34, {448*1792*2}"); a("s_mov_b32 s35, 0x20000")
        a(f"s_mov_b32 s38, {2048*448*2}"); a("s_mov_b32 s39, 0x20000")
        for i in range(6):
            a(f"buffer_load_dwordx4 v[80:83], v3, s[32:35], s95 offen")
            a(f"s_add_u32 s95, s95, {56*3584}")
            a(f"s_add_u32 s96, s93, {112*i}")
            a("s_lshr_b32 s97, s96, 7")
            a("s_and_b32 s96, s96, 127")
            a(f"s_mul_i32 s96, s96, {8*896}")
            a("s_lshl_b32 s97, s97, 7")
            a("s_add_u32 s96, s96, s97")
            a("s_add_u32 s96, s96, s94")
            a("s_add_u32 s96, s96, 256")
            if i == 5:
                a("s_cmp_ge_u32 s97, 640")
                a(f"s_cselect_b32 s96, {2048*448*2}, s96")
            a(f"buffer_load_dwordx4 v[84:87], v4, s[36:39], s96 offen")
    a("s_waitcnt lgkmcnt(0)")
    for r in (S_LDT, S_DSK):
        a(f"s_lshl_b32 s{S_TMP}, s{r}, 16")
        a(f"s_and_b32 s{S_TMP2}, s{r}, 0xffff0000")
        a(f"s_cmp_eq_u32 s{S_CHL}, 0")
        a(f"s_cselect_b32 s{r}, s{S_TMP}, s{S_TMP2}")
    a(f"v_mov_b32 v6, s{S_LDT}")
    a("v_mul_f32 v7, 0x3fb8aa3b, v6")
    a("s_mov_b32 s53, 0x3fb8aa3b")
    a("v_fma_f32 v8, v6, s53, -v7")
    a("v_fmac_f32 v8, 0x32a57060, v6")
    a("v_exp_f32 v7, v7")
    a("v_mul_f32 v8, 0x3f317218, v8")
    a("s_nop 0")
    a("v_fmac_f32 v7, v7, v8")
    a("v_cvt_pk_bf16_f32 v7, v7, v7")
    a("v_lshlrev_b32 v6, 16, v7")
    st.stamp()
    a(f"s_waitcnt vmcnt({NPF + (0 if latetile else 0)})")
    st.stamp()
    if latetile: tile_dma(251)
    a("s_mov_b32 s54, 0xffff0000")
    for p in range(2):
        def ex(dst, src):
            if p == 0: a(f"v_lshlrev_b32 v{dst}, 16, v{src}")
            else: a(f"v_and_b32 v{dst}, s54, v{src}")
        ex(24, 10); ex(25, 11); ex(26, 12); ex(27, 13); ex(28, 14); ex(29, 15)
        a("v_mul_f32 v24, v6, v24")
        a("v_mul_f32 v25, v6, v25")
        a("v_mul_f32 v26, v6, v26")
        a("v_mul_f32 v27, v6, v27")
        wr, wi = 16+2*p, 17+2*p
        a(f"v_mul_f32 v{wr}, v28, v26")
        a(f"v_fma_f32 v{wr}, -v29, v27, v{wr}")
        a(f"v_mul_f32 v{wi}, v28, v27")
        a(f"v_fmac_f32 v{wi}, v29, v26")
        a(f"v_mul_f32 v{20+2*p}, 0x3fb8aa3b, v24")
        a(f"v_mul_f32 v{21+2*p}, 0.15915494, v25")
        a(f"v_mul_f32 v30, 0x45000000, v{20+2*p}")
        a("v_max_f32 v30, 0, v30")
        a("v_exp_f32 v30, v30")
        a(f"v_max_f32 v31, |v{wr}|, |v{wi}|")
        if p == 0: a("v_mul_f32 v9, v30, v31")
        else:
            a("v_mul_f32 v30, v30, v31")
            a("v_max_f32 v9, v9, v30")
    for ctrl in ("row_shr:1", "row_shr:2", "row_shr:4", "row_shr:8", "row_bcast:15 row_mask:0xa", "row_bcast:31 row_mask:0xc"):
        a("s_nop 1")
        if "row_mask" in ctrl: a(f"v_max_f32_dpp v9, v9, v9 {ctrl} bank_mask:0xf")
        else: a(f"v_max_f32_dpp v9, v9, v9 {ctrl} row_mask:0xf bank_mask:0xf")
    a("s_nop 1")
    a(f"v_readlane_b32 s{S_TMP}, v9, 63")
    a("s_nop 3")
    a(f"s_lshr_b32 s{S_TMP}, s{S_TMP}, 23")
    a(f"s_max_u32 s{S_TMP}, s{S_TMP}, 8")
    a(f"s_min_u32 s{S_TMP}, s{S_TMP}, 254")
    a(f"s_sub_u32 s{S_SC}, 261, s{S_TMP}")
    a(f"s_lshl_b32 s{S_SC}, s{S_SC}, 23")
    a(f"s_sub_u32 s{S_ISC}, s{S_TMP}, 7")
    a(f"s_lshl_b32 s{S_ISC}, s{S_ISC}, 23")
    def vpass(p, mid=None):
        e2, ph = 20+2*p, 21+2*p
        def polar(r, i, ni, mult):
            if mult == 1:
                a(f"v_exp_f32 v40, v{e2}")
                a(f"v_fract_f32 v41, v{ph}")
            else:
                a(f"v_mul_f32 v40, {mult}, v{e2}")
                a(f"v_mul_f32 v41, {mult}, v{ph}")
                a(f"v_exp_f32 v40, v40")
                a(f"v_fract_f32 v41, v41")
            a(f"v_cos_f32 v42, v41")
            a(f"v_sin_f32 v43, v41")
            a("s_nop 0")
            a(f"v_mul_f32 v{r}, v40, v42")
            a(f"v_mul_f32 v{i}, v40, v43")
            a(f"v_sub_f32 v{ni}, 0, v{i}")
        polar(24, 25, 26, 1)
        polar(33, 34, 35, "0x43800000")
        polar(36, 37, 38, "0x41000000")
        cmul(a, 27, 28, 24, 25, 24, 25, 26); a("v_sub_f32 v29, 0, v28")
        cmul(a, 30, 31, 27, 28, 27, 28, 29); a("v_sub_f32 v32, 0, v31")
        wr, wi = 16+2*p, 17+2*p
        def put(idx, r, i):
            a(f"v_cvt_pk_f16_f32 v{PK[p]+idx}, v{r}, v{i}")
        Gc = (33, 35, 34); z2c = (27, 29, 28); z4c = (30, 32, 31); zc = (24, 26, 25)
        a(f"v_mul_f32 v48, s{S_SC}, v{wr}")
        a(f"v_mul_f32 v49, s{S_SC}, v{wi}")
        a("v_sub_f32 v49, 0, v49")
        put(0, 48, 49)
        cur = (48, 49); bufs = [(44, 45), (46, 47)]
        for row in range(1, 8):
            nx = bufs[row % 2]
            cmul(a, nx[0], nx[1], cur[0], cur[1], *zc); cur = nx
            put(row, *cur)
        cmul(a, 50, 51, 48, 49, *Gc); put(8, 50, 51)
        cmul(a, 44, 45, 50, 51, *z2c); put(16, 44, 45)
        cmul(a, 46, 47, 44, 45, *z2c); put(17, 46, 47)
        cmul(a, 44, 45, 46, 47, *z2c); put(18, 44, 45)
        cmul(a, 48, 49, 50, 51, *Gc); put(9, 48, 49)
        cmul(a, 44, 45, 48, 49, *z4c); put(19, 44, 45)
        cmul(a, 50, 51, 48, 49, *Gc); put(10, 50, 51)
        cmul(a, 44, 45, 50, 51, *z4c); put(20, 44, 45)
        cur = (50, 51); other = (48, 49)
        for row in range(11, 16):
            cmul(a, other[0], other[1], cur[0], cur[1], *Gc)
            cur, other = other, cur
            put(row, *cur)
        if mid: mid()
        a(f"v_mov_b32 v{PK[p]+21}, 0x3c00")
        put(22, 36, 37)
        cur = (36, 37)
        for j in range(2, 32):
            nx = bufs[j % 2]
            cmul(a, nx[0], nx[1], cur[0], cur[1], 36, 37, 38); cur = nx
            put(21 + j, *cur)
    FA = [24, PK[0]]; FBk = [56, PK[0] + 32]
    def writes(p):
        return [f"ds_write_addtid_b32 v{PK[p]+row} offset:{row*ESTR}" for row in range(21)] + \
               [f"ds_write_addtid_b32 v{PK[p]+21+row} offset:{FOFF + row*ESTR}" for row in range(32)]
    def freads(p):
        R = []
        for kk in range(8):
            R.append(f"ds_read_b128 v[{FA[p]+4*kk}:{FA[p]+4*kk+3}], v{RA} offset:{32*kk}")
            R.append(f"ds_read_b128 v[{FBk[p]+4*kk}:{FBk[p]+4*kk+3}], v{RA} offset:{FOFF + 32*kk}")
        return R
    def mf(p, kk):
        c = "0" if (p == 0 and kk == 0) else f"v[{D}:{D+15}]"
        return f"v_mfma_f32_32x32x16_f16 v[{D}:{D+15}], v[{FA[p]+4*kk}:{FA[p]+4*kk+3}], v[{FBk[p]+4*kk}:{FBk[p]+4*kk+3}], {c}"
    def ldspass(p):
        a(f"s_mov_b32 m0, s{S_STG}")
        a("s_nop 0")
        for l in writes(p): a(l)
        for l in freads(p): a(l)
        for kk in range(8):
            a(f"s_waitcnt lgkmcnt({14 - 2*kk})")
            a(mf(p, kk))
    def uflag():
        a("s_waitcnt vmcnt(0)")
        a("s_barrier")
        a(f"s_cmp_lg_u32 s{S_W}, 0")
        a("s_cbranch_scc1 side_uflagged")
        wait_tag(a, "side_wr", P_DBG, 53, 57, 1, 2)
        a("s_lshr_b32 s57, s2, 5")
        a("s_lshl_b32 s57, s57, 5")
        a(f"s_add_u32 s57, s57, {L_U}")
        a("s_lshl_b32 s57, s57, 7")
        a("s_and_b32 s58, s2, 31")
        a("s_lshl_b32 s58, s58, 2")
        a("s_add_u32 s57, s57, s58")
        set_flags(a, SRD_F, 57, 53, 32, 128, 1, 2)
        a.label("side_uflagged")
    vpass(0)
    a("s_waitcnt vmcnt(0)" if not NPF else f"s_waitcnt vmcnt(0)")
    a("s_barrier")
    for o in range(2):
        a(f"ds_read_b64_tr_b16 v[{56+4*o}:{57+4*o}], v245 offset:{o*4096}")
        a(f"ds_read_b64_tr_b16 v[{58+4*o}:{59+4*o}], v246 offset:{o*4096}")
    srd_from(a, SRD_UT, P_WS, SZ_UT, WS_UT)
    a("s_waitcnt lgkmcnt(0)")
    a("s_barrier")
    a("ds_write_b128 v247, v[56:59]")
    a("ds_write_b128 v248, v[60:63]")
    a("s_lshr_b32 s57, s2, 5")
    a("s_lshl_b32 s57, s57, 6")
    a(f"s_lshl_b32 s58, s{S_W}, 4")
    a("s_add_u32 s57, s57, s58")
    a("s_lshl_b32 s57, s57, 12")
    a("s_and_b32 s58, s2, 31")
    a("s_lshl_b32 s58, s58, 7")
    a("s_add_u32 s57, s57, s58")
    a("s_waitcnt lgkmcnt(0)")
    a("ds_read_b128 v[56:59], v249")
    a("ds_read_b128 v[60:63], v249 offset:1024")
    a("s_waitcnt lgkmcnt(1)")
    a(f"buffer_store_dwordx4 v[56:59], v250, s[{SRD_UT}:{SRD_UT+3}], s57 offen sc1")
    a("s_add_u32 s57, s57, 32768")
    a("s_waitcnt lgkmcnt(0)")
    a(f"buffer_store_dwordx4 v[60:63], v250, s[{SRD_UT}:{SRD_UT+3}], s57 offen sc1")
    if p0early: ldspass(0)
    vpass(1, uflag)
    st.stamp()
    def u_dma():
        a(f"s_lshl_b32 s{S_TMP2}, s{S_D}, 12")
        a(f"s_lshl_b32 s55, s{S_HALF}, 12")
        a(f"s_add_u32 s55, s55, s{S_U}")
        for ii in range(4):
            a(f"s_add_u32 m0, s55, {ii*1024}")
            a("s_nop 0")
            a(f"buffer_load_dwordx4 v{UD+ii}, s[{SRD_UT}:{SRD_UT+3}], s{S_TMP2} offen sc1 lds")
    def do_gate():
        a(f"s_cmp_lg_u32 s{S_W}, 0")
        a("s_cbranch_scc1 side_gated")
        a(f"s_add_u32 s57, s2, {L_M}")
        a("s_lshl_b32 s57, s57, 7")
        wait_flags(a, "side_wm", SRD_F, 57, 1, 53, S_TMP, 58, 1, 2, sleep=sleep, first_sleep=fsleep)
        a.label("side_gated")
        a("s_barrier")
    if combo:
        a(f"s_cmp_lg_u32 s{S_W}, 0")
        a("s_cbranch_scc1 side_gated")
        a(f"s_add_u32 s57, s{s_cp}, {L_U}")
        a("s_lshl_b32 s57, s57, 7")
        a(f"s_add_u32 s58, s2, {L_M}")
        a("s_lshl_b32 s58, s58, 7")
        a("v_lshlrev_b32 v1, 2, v0")
        a("v_add_u32 v1, s57, v1")
        a("v_mov_b32 v2, s58")
        a("v_cmp_eq_u32 vcc, 32, v0")
        a("s_mov_b32 s58, 0")
        a("s_nop 0")
        a("v_cndmask_b32 v1, v1, v2, vcc")
        a.label("side_wc")
        a(f"buffer_load_dword v2, v1, s[{SRD_F}:{SRD_F+3}], 0 offen sc1")
        a("s_waitcnt vmcnt(0)")
        a("v_cmp_eq_u32 vcc, s53, v2")
        a("s_add_u32 s58, s58, 1")
        a(f"s_cmp_ge_u32 s58, {SPIN_MAX}")
        a("s_cbranch_scc1 side_gated")
        a(f"s_and_b32 s{S_TMP}, vcc_hi, 1")
        a(f"s_and_b32 s{S_TMP}, s{S_TMP}, vcc_lo") if False else None
        a("s_cmp_eq_u32 vcc_lo, -1")
        a(f"s_cselect_b32 s{S_TMP}, s{S_TMP}, 0")
        a(f"s_cmp_lg_u32 s{S_TMP}, 0")
        a("s_cbranch_scc1 side_gated")
        a(f"s_sleep {sleep}")
        a("s_branch side_wc")
        a.label("side_gated")
        a("s_barrier")
        u_dma()
    else:
        a(f"s_cmp_lg_u32 s{S_W}, 0")
        a("s_cbranch_scc1 side_uready")
        a(f"s_add_u32 s57, s{s_cp}, {L_U}")
        a("s_lshl_b32 s57, s57, 7")
        wait_flags(a, "side_wu", SRD_F, 57, 32, 53, S_TMP, 58, 1, 2, sleep=sleep)
        a.label("side_uready")
        a("s_barrier")
        u_dma()
        if gate and not lategate: do_gate()
    st.stamp()
    if p0early:
        ldspass(1)
    else:
        a(f"s_mov_b32 m0, s{S_STG}")
        a("s_nop 0")
        for l in writes(0): a(l)
        for l in freads(0): a(l)
        W1 = writes(1)
        for l in W1[:15]: a(l)
        a("s_waitcnt lgkmcnt(15)")
        W1 = W1[15:]
        for kk in range(8):
            a(mf(0, kk))
            for l in W1[:5]: a(l)
            W1 = W1[5:]
        for l in W1: a(l)
        for l in freads(1): a(l)
        for kk in range(8):
            a(f"s_waitcnt lgkmcnt({14 - 2*kk})")
            a(mf(1, kk))
    a("s_nop 15")
    a("s_nop 3")
    for r in range(12):
        q, rr = r // 4, r % 4
        a(f"v_mul_f32 v{D+r}, s{S_ISC}, v{D+r}")
        a(f"ds_write_b32 v{VT}, v{D+r} offset:{(8*q + rr)*128}")
    a("s_waitcnt lgkmcnt(0)")
    a("s_barrier")
    st.stamp()
    a(f"s_cmp_eq_u32 s{S_HALF}, 0")
    a("s_cbranch_scc0 side_exp_h1")
    for i in range(9):
        a(f"ds_read_b32 v{24+i}, v{TA+i}")
        a(f"ds_read_b32 v{40+i}, v{TA+i} offset:{STG}")
    for i, o in enumerate((1024+128, 2432, 1024+132)):
        a(f"ds_read_b32 v{33+i}, v{TB} offset:{o}")
        a(f"ds_read_b32 v{49+i}, v{TB} offset:{o+STG}")
    a("v_cmp_eq_u32 vcc, 0, v0")
    a("v_mov_b32 v11, 0")
    a("s_waitcnt lgkmcnt(0)")
    for i in range(12):
        a(f"v_add_f32 v{24+i}, v{24+i}, v{40+i}")
    a(f"v_cndmask_b32 v32, v32, v11, vcc")
    for i in range(4):
        a(f"v_cvt_pk_bf16_f32 v{40+i}, v{24+2*i}, v{24+2*i+1}")
    a(f"v_cvt_pk_bf16_f32 v44, v32, v24")
    for i in range(1, 4):
        a(f"v_cvt_pk_bf16_f32 v{44+i}, v{24+2*i-1}, v{24+2*i}")
    a("v_cvt_pk_bf16_f32 v48, v33, v33")
    a("v_cvt_pk_bf16_f32 v49, v33, v34")
    a("v_cvt_pk_bf16_f32 v50, v34, v34")
    a("v_cvt_pk_bf16_f32 v51, v35, v35")
    a("v_mov_b32 v52, v48")
    a("v_mov_b32 v53, v48")
    a("v_mov_b32 v54, v50")
    a("v_cvt_pk_bf16_f32 v55, v34, v35")
    a("s_branch side_exp_join")
    a.label("side_exp_h1")
    o = 1024 + 4*96
    for sl in range(2):
        a(f"ds_read_b32 v{24+2*sl}, v{TB} offset:{o + 256*sl}")
        a(f"ds_read_b32 v{40+2*sl}, v{TB} offset:{o + 256*sl + STG}")
        a(f"ds_read_b32 v{25+2*sl}, v{TB} offset:{o + 256*sl + 4}")
        a(f"ds_read_b32 v{41+2*sl}, v{TB} offset:{o + 256*sl + 4 + STG}")
    a("v_and_b32 v11, 1, v0")
    a("v_cmp_eq_u32 vcc, 0, v11")
    a("s_waitcnt lgkmcnt(0)")
    for i in range(4):
        a(f"v_add_f32 v{24+i}, v{24+i}, v{40+i}")
    for sl in range(2):
        f0, f8 = 24+2*sl, 25+2*sl
        o0 = 40 + 8*sl
        a(f"v_cndmask_b32 v12, v{f8}, v{f0}, vcc")
        a(f"v_cvt_pk_bf16_f32 v{o0}, v{f0}, v{f0}")
        a(f"v_cvt_pk_bf16_f32 v{o0+3}, v{f8}, v{f8}")
        a(f"v_cvt_pk_bf16_f32 v{o0+2}, v12, v{f8}")
        a(f"v_cvt_pk_bf16_f32 v{o0+6}, v{f0}, v12")
        a(f"v_mov_b32 v{o0+1}, v{o0}")
        a(f"v_mov_b32 v{o0+4}, v{o0}")
        a(f"v_mov_b32 v{o0+5}, v{o0}")
        a(f"v_mov_b32 v{o0+7}, v{o0+3}")
    a.label("side_exp_join")
    a("s_barrier")
    a(f"s_cmp_eq_u32 s{S_HALF}, 0")
    a("s_cbranch_scc0 side_nozero")
    a("v_lshrrev_b32 v10, 3, v0")
    a("v_and_b32 v11, 7, v0")
    a(f"v_mul_u32_u24 v10, {CPSZ}, v10")
    a("v_lshlrev_b32 v12, 4, v11")
    a("v_add_u32 v10, v10, v12")
    a(f"v_add_u32 v10, s{S_KC}, v10")
    a("v_mov_b32 v56, 0"); a("v_mov_b32 v57, 0"); a("v_mov_b32 v58, 0"); a("v_mov_b32 v59, 0")
    a("v_cmp_gt_u32 vcc, 5, v11")
    a("v_cmp_gt_u32 s[40:41], 32, v0")
    a("s_and_b64 vcc, vcc, s[40:41]")
    a("s_and_saveexec_b64 s[40:41], vcc")
    a("ds_write_b128 v10, v[56:59]")
    a("s_mov_b64 exec, s[40:41]")
    a.label("side_nozero")
    for sl in range(2):
        o0 = 40 + 8*sl; ob = 1024*sl
        a(f"ds_write_b128 v{KCW}, v[{o0}:{o0+3}] offset:{ob}")
        a(f"ds_write_b128 v{KCW}, v[{o0+4}:{o0+7}] offset:{ob + CPSZ}")
    a(f"v_add_u32 v11, {2*CPSZ+4}, v{KCW}")
    a(f"v_add_u32 v12, {3*CPSZ+4}, v{KCW}")
    for sl in range(2):
        o0 = 40 + 8*sl
        if sl == 1:
            a("v_add_u32 v11, 1024, v11"); a("v_add_u32 v12, 1024, v12")
        a(f"ds_write2_b32 v11, v{o0}, v{o0+1} offset0:0 offset1:1")
        a(f"ds_write2_b32 v11, v{o0+2}, v{o0+3} offset0:2 offset1:3")
        a(f"ds_write2_b32 v12, v{o0+4}, v{o0+5} offset0:0 offset1:1")
        a(f"ds_write2_b32 v12, v{o0+6}, v{o0+7} offset0:2 offset1:3")
    a("s_waitcnt vmcnt(0) lgkmcnt(0)")
    if gate and lategate: do_gate()
    else: a("s_barrier")
    if sprio: a(f"s_setprio {sprio}")
    st.stamp()
    ACC0, ACC1 = 96, 112
    FB = [24, 40, 56]
    steps = [(dl, s) for dl in range(16) for s in range(2)]
    def reads(i):
        dl, s = steps[i]; fb = FB[i % 3]
        base = 64*dl + 40 - 32*s
        return [f"ds_read_b128 v[{fb+8}:{fb+11}], v{VB} offset:{80*(15-dl) + 32*s}",
                f"ds_read_b64_tr_b16 v[{fb}:{fb+1}], v{VA} offset:{base}",
                f"ds_read_b64_tr_b16 v[{fb+2}:{fb+3}], v{VA} offset:{base - 8}",
                f"ds_read_b128 v[{fb+12}:{fb+15}], v{VB} offset:{80*(15-dl) + 32*s + 2560}",
                f"ds_read_b64_tr_b16 v[{fb+4}:{fb+5}], v{VA} offset:{base + 2048}",
                f"ds_read_b64_tr_b16 v[{fb+6}:{fb+7}], v{VA} offset:{base + 2048 - 8}"]
    for r in reads(0): a(r)
    for r in reads(1): a(r)
    n = len(steps)
    for i in range(n):
        fb = FB[i % 3]
        a(f"s_waitcnt lgkmcnt({6 if i + 1 < n else 0})")
        R = reads(i + 2) if i + 2 < n else []
        c0 = "0" if i == 0 else f"v[{ACC0}:{ACC0+15}]"
        c1 = "0" if i == 0 else f"v[{ACC1}:{ACC1+15}]"
        a(f"v_mfma_f32_32x32x16_bf16 v[{ACC0}:{ACC0+15}], v[{fb}:{fb+3}], v[{fb+8}:{fb+11}], {c0}")
        for r in R[:2]: a(r)
        a(f"v_mfma_f32_32x32x16_bf16 v[{ACC1}:{ACC1+15}], v[{fb}:{fb+3}], v[{fb+12}:{fb+15}], {c1}")
        for r in R[2:4]: a(r)
        a(f"v_mfma_f32_32x32x16_bf16 v[{ACC1}:{ACC1+15}], v[{fb+4}:{fb+7}], v[{fb+8}:{fb+11}], v[{ACC1}:{ACC1+15}]")
        for r in R[4:]: a(r)
    st.stamp()
    if sprio: a("s_setprio 0")
    a("s_nop 15")
    a("s_barrier")
    a(f"s_cmp_eq_u32 s{S_HALF}, 0")
    a("s_cbranch_scc0 side_x_h1")
    for q in range(4):
        a(f"ds_write_b128 v{XW}, v[{ACC1+4*q}:{ACC1+4*q+3}] offset:{q*1024}")
    a("s_branch side_x_j")
    a.label("side_x_h1")
    for q in range(4):
        a(f"ds_write_b128 v{XW}, v[{ACC0+4*q}:{ACC0+4*q+3}] offset:{q*1024}")
    for r in range(16):
        a(f"v_mov_b32 v{ACC0+r}, v{ACC1+r}")
    a.label("side_x_j")
    a("s_mov_b32 s54, 0xffff0000")
    a(f"s_lshl_b32 s{S_TMP}, s{S_D}, 12")
    a(f"s_lshl_b32 s{S_TMP2}, s{S_HALF}, 11")
    a(f"s_add_u32 s{S_TMP}, s{S_TMP}, s{S_TMP2}")
    a("s_waitcnt lgkmcnt(0)")
    a("s_barrier")
    for q in range(4):
        a(f"ds_read_b128 v[{24+4*q}:{27+4*q}], v{XR} offset:{q*1024}")
    for Q in range(2):
        a(f"ds_read_b128 v[{40+4*Q}:{43+4*Q}], v{UR} offset:{32*Q}")
    a("s_waitcnt lgkmcnt(2)")
    for r in range(16):
        a(f"v_add_f32 v{24+r}, v{24+r}, v{ACC0+r}")
    a("s_waitcnt lgkmcnt(0)")
    for Q in range(2):
        ob = 72 + 4*Q
        for i in range(4):
            y0 = 24 + 8*Q + 2*i
            a(f"v_lshlrev_b32 v65, 16, v{40+4*Q+i}")
            a(f"v_and_b32 v66, s54, v{40+4*Q+i}")
            a(f"v_fmac_f32 v{y0}, s{S_DSK}, v65")
            a(f"v_fmac_f32 v{y0+1}, s{S_DSK}, v66")
            a(f"v_cvt_pk_bf16_f32 v{ob+i}, v{y0}, v{y0+1}")
        a(f"ds_write_b128 v{ATO}, v[{ob}:{ob+3}] offset:{32*Q}")
    a("v_lshlrev_b32 v10, 4, v0")
    a(f"v_add_u32 v11, s56, v10")
    for i in range(2):
        a(f"ds_read_b128 v[{24+4*i}:{27+4*i}], v11 offset:{1024*i}")
    for i in range(2):
        a(f"s_waitcnt lgkmcnt({1-i})")
        a(f"buffer_store_dwordx4 v[{24+4*i}:{27+4*i}], v10, s[{SRD_AT}:{SRD_AT+3}], s{S_TMP} offen offset:{1024*i} sc1")
    a("s_waitcnt vmcnt(0)")
    st.stamp()
    a("s_barrier")
    a(f"s_cmp_lg_u32 s{S_W}, 0")
    a("s_cbranch_scc1 side_done")
    a(f"s_lshr_b32 s{S_TMP}, s{s_cp}, 5")
    a(f"s_add_u32 s{S_TMP}, s{S_TMP}, {L_A}")
    a(f"s_lshl_b32 s{S_TMP}, s{S_TMP}, 7")
    a(f"s_and_b32 s{S_TMP2}, s{s_cp}, 31")
    a(f"s_lshl_b32 s{S_TMP2}, s{S_TMP2}, 2")
    a(f"s_add_u32 s{S_TMP}, s{S_TMP}, s{S_TMP2}")
    set_flags(a, SRD_F, S_TMP, 53, 32, 896, 10, 11)
    a.label("side_done")
    dbg_event(a, 6)
    st.stamp(real=True)
    st.flush(S_W)
```

```python
from asmlib import *

def gemm1(a, st, s_ti, s_tj, s_rot, exact_round=True, NW=3, NX=2, sc1=True, NPRO=5, unitstamps=False, s_k=None, s_j=None, MFU=11, hybrid=True, publish=None, tail=None, s_main=None, mshift=0, notag=False, dual=False, prioU=None, tagU=6, tagsc=True, early_m=1):
    S_W = 4
    S_T0 = 5; S_F0 = 6
    SRD_X = 8; SRD_W = 12; SRD_H = 16
    S_XCUR = 20; S_WCUR = 21; S_XL = 22; S_WL = 23
    S_TMP = 24; S_TMP2 = 25; S_XLIM = 26; S_WLIM = 27
    P0 = 28
    a.c("---- GEMM1 role ----")
    a(f"s_load_dwordx2 s[{P0}:{P0+1}], s[0:1], {KA['u']}")
    a(f"s_load_dwordx4 s[{P0+4}:{P0+7}], s[0:1], {KA['wg']}")
    a(f"s_load_dwordx2 s[{P0+2}:{P0+3}], s[0:1], {KA['ws']}")
    a(f"s_lshl_b32 s{S_T0}, s{s_ti}, 7")
    a(f"s_lshl_b32 s{S_F0}, s{s_tj}, 7")
    V_DW = 2; V_DX0 = 3; V_DX1 = 4
    V_DWI = 72; V_DXI = 76
    a("v_lshrrev_b32 v10, 4, v0")
    a("v_and_b32 v11, 15, v0")
    a("v_lshlrev_b32 v12, 1, v10")
    a("v_xor_b32 v11, v11, v12")
    a(f"s_lshr_b32 s{S_TMP}, s{S_W}, 1")
    a(f"s_lshl_b32 s{S_TMP2}, s{S_TMP}, 3")
    a(f"v_xor_b32 v11, s{S_TMP2}, v11")
    a("v_lshlrev_b32 v11, 4, v11")
    a("v_mul_u32_u24 v12, 3584, v10")
    a(f"v_add_u32 v{V_DW}, v11, v12")
    a("v_lshrrev_b32 v11, 3, v0")
    a("v_mul_u32_u24 v11, 896, v11")
    a("v_and_b32 v12, 7, v0")
    a("v_xor_b32 v13, v12, v10")
    a("v_lshlrev_b32 v13, 4, v13")
    a(f"v_add_u32 v{V_DX0}, v11, v13")
    a("v_xor_b32 v13, 64, v13")
    a(f"v_add_u32 v{V_DX1}, v11, v13")
    for i in range(4):
        a(f"v_add_u32 v{V_DWI+i}, {i*(4*3584 - 1024)}, v{V_DW}")
        a(f"v_add_u32 v{V_DXI+i}, {i*(8*896 - 1024)}, v{V_DX0 + (i & 1)}")
    a(f"s_lshl_b32 s{S_TMP2}, s{S_W}, 5")
    a(f"s_add_u32 s{S_XCUR}, s{S_T0}, s{S_TMP2}")
    a(f"s_mul_i32 s{S_XCUR}, s{S_XCUR}, 896")
    a(f"s_add_u32 s{S_XLIM}, s{S_XCUR}, 896")
    a(f"s_lshl_b32 s{S_TMP2}, s{s_rot}, 7")
    if hybrid:
        a(f"s_add_u32 s58, s{S_XCUR}, s{S_TMP2}")
        a(f"s_add_u32 s58, s58, 128")
    else:
        a(f"s_add_u32 s{S_XCUR}, s{S_XCUR}, s{S_TMP2}")
    a(f"s_lshl_b32 s{S_XL}, s{S_W}, 12")
    a(f"s_add_u32 s{S_XL}, s{S_XL}, {NW*16384}")
    a(f"s_and_b32 s{S_TMP2}, s{S_W}, 1")
    a(f"s_mul_i32 s{S_WCUR}, s{S_TMP2}, {16*3584}")
    a(f"s_lshl_b32 s{S_WL}, s{S_F0}, 1")
    a(f"s_add_u32 s{S_WCUR}, s{S_WCUR}, s{S_WL}")
    a(f"s_add_u32 s{S_WLIM}, s{S_WCUR}, {448*3584}")
    a(f"s_mul_i32 s{S_WL}, s{s_rot}, {64*3584}")
    if hybrid:
        a(f"s_add_u32 s59, s{S_WCUR}, s{S_WL}")
        a(f"s_add_u32 s59, s59, {64*3584}")
    else:
        a(f"s_add_u32 s{S_WCUR}, s{S_WCUR}, s{S_WL}")
    a(f"s_lshl_b32 s{S_WL}, s{S_TMP}, 13")
    a(f"s_lshl_b32 s{S_TMP2}, s{S_TMP2}, 12")
    a(f"s_add_u32 s{S_WL}, s{S_WL}, s{S_TMP2}")
    a("s_waitcnt lgkmcnt(0)")
    srd_from(a, SRD_X, P0, 2048*448*2)
    a(f"s_cmp_eq_u32 s{S_TMP}, 0")
    a(f"s_cselect_b32 s{SRD_W}, s{P0+4}, s{P0+6}")
    a(f"s_cselect_b32 s{SRD_W+1}, s{P0+5}, s{P0+7}")
    a(f"s_mov_b32 s{SRD_W+2}, {448*1792*2}")
    a(f"s_mov_b32 s{SRD_W+3}, 0x20000")

    vm = []
    def dma_instrs(d):
        kind, idx = d
        out = []
        for i in range(4):
            if kind == "W":
                g = [f"s_add_u32 m0, s{S_WL}, {(idx % NW)*16384}"] if i == 0 else []
                g.append(f"buffer_load_dwordx4 v{V_DWI+i}, s[{SRD_W}:{SRD_W+3}], s{S_WCUR} offen offset:{i*1024} lds")
                if i == 3 and hybrid and idx == 1:
                    g += [f"s_mov_b32 s{S_WCUR}, s59"]
                elif i == 3:
                    g += [f"s_add_u32 s{S_WCUR}, s{S_WCUR}, {32*3584}",
                          f"s_sub_u32 s{S_TMP2}, s{S_WCUR}, {(384 if hybrid else 448)*3584}",
                          f"s_cmp_ge_u32 s{S_WCUR}, s{S_WLIM}",
                          f"s_cselect_b32 s{S_WCUR}, s{S_TMP2}, s{S_WCUR}"]
            else:
                g = [f"s_add_u32 m0, s{S_XL}, {(idx % NX)*16384}"] if i == 0 else []
                g.append(f"buffer_load_dwordx4 v{V_DXI+i}, s[{SRD_X}:{SRD_X+3}], s{S_XCUR} offen offset:{i*1024} lds")
                if i == 3 and hybrid and idx == 0:
                    g += [f"s_mov_b32 s{S_XCUR}, s58"]
                elif i == 3:
                    g += [f"s_add_u32 s{S_XCUR}, s{S_XCUR}, 128",
                          f"s_sub_u32 s{S_TMP2}, s{S_XCUR}, {768 if hybrid else 896}",
                          f"s_cmp_ge_u32 s{S_XCUR}, s{S_XLIM}",
                          f"s_cselect_b32 s{S_XCUR}, s{S_TMP2}, s{S_XCUR}"]
            if i == 0: g.insert(1, "s_nop 0")
            out.append(g)
        vm.append(d)
        return out
    def wait_for(needs):
        last = max(vm.index(n) for n in needs)
        a(f"s_waitcnt vmcnt({sum((1 if g[0] == 'F' else 2 if g[0] == 'T' else 4) for g in vm[last+1:])})")
    order = [("X",0),("W",0),("W",1),("X",1),("W",2),("W",3),("X",2),("W",4),("W",5)]
    order = [d for d in order if (d[0] == "W" and d[1] < NW) or (d[0] == "X" and d[1] < NX)]
    for d in order[:NPRO]:
        for g in dma_instrs(d):
            for l in g: a(l)
    late = order[NPRO:]
    srd_from(a, SRD_H, P0+2, SZ_H, WS_H)
    SRD_F = 52
    srd_from(a, SRD_F, P0+2, SZ_F, WS_F)
    a(f"s_load_dwordx2 s[{P0}:{P0+1}], s[0:1], {KA['dbg']}")
    a(f"s_sub_u32 s57, s{s_j}, {mshift}")
    a(f"s_lshl_b32 s56, s57, 3")
    a(f"s_add_u32 s56, s56, s{s_k}")
    a(f"s_add_u32 s56, s56, {L_M}")
    a("s_lshl_b32 s56, s56, 7")
    a(f"s_cmp_lt_u32 s57, 28")
    a(f"s_cselect_b32 s56, s56, {SZ_F}")
    a("v_mov_b32 v21, 0")
    a("s_waitcnt lgkmcnt(0)")
    if publish: publish(a, P0)

    V_AW = 5
    V_AX = 14
    a("v_lshrrev_b32 v10, 4, v0")
    a("v_lshrrev_b32 v11, 2, v0")
    a("v_and_b32 v11, 3, v11")
    a("v_and_b32 v12, 3, v0")
    a("v_lshrrev_b32 v13, 1, v10")
    a("v_and_b32 v10, 1, v10")
    a("v_lshlrev_b32 v18, 13, v10")
    a("v_lshlrev_b32 v19, 3, v13")
    a("v_add_u32 v19, v19, v11")
    a("v_lshlrev_b32 v19, 8, v19")
    a("v_add_u32 v18, v18, v19")
    a("v_lshrrev_b32 v19, 1, v12")
    a("v_lshlrev_b32 v19, 3, v19")
    a("v_add_u32 v18, v18, v19")
    a("v_and_b32 v19, 1, v12")
    a("v_lshlrev_b32 v20, 1, v11")
    a("v_xor_b32 v19, v19, v20")
    a("v_lshlrev_b32 v20, 3, v10")
    a("v_xor_b32 v19, v19, v20")
    a(f"s_lshr_b32 s{S_TMP}, s{S_W}, 1")
    a(f"s_lshl_b32 s{S_TMP}, s{S_TMP}, 3")
    for rb in range(4):
        a(f"s_add_u32 s{S_TMP2}, s{S_TMP}, {rb*2}")
        a(f"v_xor_b32 v20, s{S_TMP2}, v19")
        a("v_lshlrev_b32 v20, 4, v20")
        a(f"v_add_u32 v{V_AW+rb}, v18, v20")
    a("v_and_b32 v10, 31, v0")
    a("v_lshrrev_b32 v11, 5, v0")
    a("v_lshrrev_b32 v12, 1, v10")
    a("v_and_b32 v12, 7, v12")
    a("v_xor_b32 v12, v12, v11")
    a(f"s_and_b32 s{S_TMP}, s{S_W}, 1")
    a(f"s_lshl_b32 s{S_TMP}, s{S_TMP}, 13")
    a(f"s_add_u32 s{S_TMP}, s{S_TMP}, {NW*16384}")
    a("v_lshlrev_b32 v10, 7, v10")
    a(f"v_add_u32 v10, s{S_TMP}, v10")
    for ks in range(4):
        a(f"v_xor_b32 v13, {2*ks}, v12")
        a("v_lshlrev_b32 v13, 4, v13")
        a(f"v_add_u32 v{V_AX+ks}, v10, v13")

    FR = [24, 48]
    ACC = 128
    def acc(rb, cb): return ACC + 16*(rb*2 + cb)
    def reads(step):
        u = step // 2; s = step % 2; v = step // 4; ks = step % 4
        fb = FR[step % 2]
        R = []
        def ra(rb):
            for h2 in range(2):
                R.append(f"ds_read_b64_tr_b16 v[{fb+4*rb+2*h2}:{fb+4*rb+2*h2+1}], v{V_AW+rb} offset:{(u%NW)*16384 + (16*s+4*h2)*256}")
        def rbb(cb):
            R.append(f"ds_read_b128 v[{fb+16+4*cb}:{fb+16+4*cb+3}], v{V_AX+ks} offset:{(v%NX)*16384 + cb*4096}")
        rbb(0); ra(0); ra(1); rbb(1); ra(2); ra(3)
        return R
    def mfmas(step):
        fb = FR[step % 2]
        M = []
        for (rb, cb) in [(0,0),(1,0),(0,1),(1,1),(2,0),(2,1),(3,0),(3,1)]:
            c = "0" if step == 0 else f"v[{acc(rb,cb)}:{acc(rb,cb)+15}]"
            M.append(f"v_mfma_f32_32x32x16_bf16 v[{acc(rb,cb)}:{acc(rb,cb)+15}], v[{fb+4*rb}:{fb+4*rb+3}], v[{fb+16+4*cb}:{fb+16+4*cb+3}], {c}")
        return M
    a("v_and_b32 v10, 31, v0")
    a("v_lshrrev_b32 v11, 5, v0")
    a("v_and_b32 v12, 7, v10")
    a("v_xor_b32 v12, v12, v11")
    a(f"s_lshl_b32 s{S_TMP}, s{S_W}, 13")
    a("v_lshlrev_b32 v10, 7, v10")
    a(f"v_add_u32 v10, s{S_TMP}, v10")
    for rb in range(4):
        a(f"v_xor_b32 v13, {2*rb}, v12")
        a("v_lshlrev_b32 v13, 4, v13")
        a(f"v_add_u32 v{91+rb}, v10, v13")
    a("v_lshrrev_b32 v10, 3, v0")
    a("v_and_b32 v11, 7, v0")
    a("v_xor_b32 v11, v11, v10")
    a("v_lshlrev_b32 v11, 4, v11")
    a("v_mul_u32_u24 v13, 3584, v10")
    a("v_add_u32 v95, v11, v13")
    a("v_lshlrev_b32 v96, 4, v0")
    a(f"v_add_u32 v96, s{S_TMP}, v96")
    a(f"s_and_b32 s{S_TMP2}, s{S_W}, 1")
    a(f"s_lshl_b32 s{S_TMP2}, s{S_TMP2}, 6")
    a(f"s_add_u32 s{S_TMP2}, s{S_TMP2}, s{S_T0}")
    a(f"s_mul_i32 s{S_TMP2}, s{S_TMP2}, 3584")
    a(f"s_lshr_b32 s{S_TMP}, s{S_W}, 1")
    a(f"s_lshl_b32 s{S_TMP}, s{S_TMP}, 6")
    a(f"s_add_u32 s{S_TMP}, s{S_TMP}, s{S_F0}")
    a(f"s_lshl_b32 s{S_TMP}, s{S_TMP}, 1")
    a(f"s_add_u32 s{S_TMP2}, s{S_TMP2}, s{S_TMP}")
    a(f"s_mov_b32 s30, s{S_TMP2}")
    if tail:
        tail.setup_w(a, s_main)
        tail.setup_g2(a, s_main)
    if not unitstamps: st.stamp()
    wait_for([("X",0),("W",0)])
    a("s_barrier")
    st.stamp()
    dbg_event(a, 1)
    if st.on: a("s_memtime s[88:89]")
    for r in reads(0): a(r)
    pend = []
    for d in late:
        for g in dma_instrs(d):
            for l in g: a(l)
    for u in range(14):
        for s in range(2):
            step = 2*u + s
            a("s_waitcnt lgkmcnt(0)")
            M = mfmas(step)
            nearly = early_m if s == 1 else 0
            for m in M[:nearly]: a(m)
            if s == 1:
                need = []
                if u + 1 < 14: need = [("W", u+1), ("X", (u+1)//2)]
                if need: wait_for(need)
                a("s_barrier")
                if unitstamps and (u < 11 if unitstamps == 1 else u >= 3): st.stamp()
                assert not pend
                if prioU is not None and u == prioU: a("s_setprio 3")
                dmas = []
                if u + NW < 14: dmas.append(("W", u+NW))
                if u % 2 == 1 and (u//2) + NX < 7: dmas.append(("X", u//2 + NX))
                if u == tagU:
                    a(f"global_load_dword v23, v21, s[{P0}:{P0+1}] {'sc1' if tagsc else ''}")
                    vm.append(("F", 1))
                if u == MFU and not notag:
                    a("v_readfirstlane_b32 s37, v23")
                    a("s_nop 3")
                    a("s_cmp_lg_u32 s37, 0")
                    a("s_cbranch_scc1 g1_mf_fast")
                    wait_tag(a, "g1_wr", P0, 37, S_TMP2, 21, 23)
                    a("v_mov_b32 v21, 0")
                    a.label("g1_mf_fast")
                    a("v_mov_b32 v22, s37")
                    a("s_mov_b64 exec, 1")
                    a(f"buffer_store_dword v22, v21, s[{SRD_F}:{SRD_F+3}], s56 offen sc1")
                    a("s_mov_b64 exec, -1")
                    vm.append(("F", 0))
                for d in dmas: pend += dma_instrs(d)
                if tail and NW == 3 and u in (11, 13):
                    for p in ((0, 1, 2, 3) if u == 11 else (4, 5)):
                        pend += tail.dma_w_lines(tail.EARLY_AREA[p]*8192, p)
                        vm.append(("T", p))
            R = reads(step + 1) if step + 1 < 28 else []
            ri = 0
            if nearly:
                for _ in range(2*nearly):
                    if ri < len(R):
                        a(R[ri]); ri += 1
            for mi, m in enumerate(M):
                if mi < nearly: continue
                a(m)
                if pend and (mi % 2 == 1 or (nearly and len(pend) > (8 - mi)//2 + (4 if s == 1 else 0))):
                    for line in pend.pop(0): a(line)
                for _ in range(2):
                    if ri < len(R):
                        a(R[ri]); ri += 1
    assert not pend
    dbg_event(a, 2)
    if unitstamps:
        st.stamp(); st.flush(S_W); a("s_endpgm"); st.n = 4
    st.stamp()
    if st.on: a("s_memtime s[90:91]")
    a("s_mov_b32 s36, 0xffff0000")
    a("s_nop 7")
    def half(cb):
        for rb in range(4):
            A0 = acc(rb, cb)
            o = 24 + 4*(rb % 2)
            for p in range(4):
                g0, g1, u0, u1 = A0+2*p, A0+2*p+1, A0+8+2*p, A0+8+2*p+1
                if exact_round:
                    a(f"v_cvt_pk_bf16_f32 v32, v{g0}, v{g1}")
                    a(f"v_cvt_pk_bf16_f32 v33, v{u0}, v{u1}")
                    a(f"v_lshlrev_b32 v34, 16, v32")
                    a(f"v_and_b32 v35, s36, v32")
                    a(f"v_lshlrev_b32 v36, 16, v33")
                    a(f"v_and_b32 v37, s36, v33")
                    a(f"v_mul_f32 v34, v34, v36")
                    a(f"v_mul_f32 v35, v35, v37")
                    a(f"v_cvt_pk_bf16_f32 v{o+p}, v34, v35")
                else:
                    a(f"v_mul_f32 v34, v{g0}, v{u0}")
                    a(f"v_mul_f32 v35, v{g1}, v{u1}")
                    a(f"v_cvt_pk_bf16_f32 v{o+p}, v34, v35")
            a(f"ds_write_b128 v{91+rb}, v[{o}:{o+3}] offset:{cb*4096}")
    def readback(cb):
        for i in range(4):
            a(f"ds_read_b128 v[{40+16*cb+4*i}:{43+16*cb+4*i}], v96 offset:{cb*4096 + i*1024}")
    def stores(cb, younger):
        for i in range(4):
            a(f"s_waitcnt lgkmcnt({younger + 3 - i})")
            a(f"s_add_u32 s{S_TMP}, s30, {(32*cb + 8*i)*3584}")
            a(f"buffer_store_dwordx4 v[{40+16*cb+4*i}:{43+16*cb+4*i}], v95, s[{SRD_H}:{SRD_H+3}], s{S_TMP} offen {'sc1' if sc1 else ''}")
            if dual: a(f"buffer_store_dwordx4 v[{40+16*cb+4*i}:{43+16*cb+4*i}], v95, s[{SRD_H}:{SRD_H+3}], s{S_TMP} offen {['', '', 'nt'][dual]}")
    half(0)
    readback(0)
    half(1)
    readback(1)
    stores(0, 8)
    stores(1, 0)
    if MFU >= 14:
        a("v_readfirstlane_b32 s37, v23")
        a("s_nop 3")
        a("s_cmp_lg_u32 s37, 0")
        a("s_cbranch_scc1 g1_mf_fast")
        wait_tag(a, "g1_wr", P0, 37, S_TMP2, 21, 23)
        a("v_mov_b32 v21, 0")
        a.label("g1_mf_fast")
        a("v_mov_b32 v22, s37")
        a("s_mov_b64 exec, 1")
        a(f"buffer_store_dword v22, v21, s[{SRD_F}:{SRD_F+3}], s56 offen sc1")
        a("s_mov_b64 exec, -1")
    st.stamp()
    a("s_barrier")
    tail.pre_dma(a)
    a(f"s_lshr_b32 s{S_TMP}, s{S_T0}, 7")
    a(f"s_mul_i32 s57, s{S_TMP}, {14*128}")
    a(f"s_lshr_b32 s{S_TMP2}, s{S_F0}, 5")
    a(f"s_add_u32 s57, s57, s{S_TMP2}")
    a("s_mov_b32 s58, 1")
```

```python
from asmlib import *

NSLOT = 5
SLEEP = 2
NS = 28

SRD_WD = 92; S_WCUR = 96; S_WLIM = 97; S_L2 = 98; V_W0 = 20; V_W1 = 19
S_R = 38; S_PH = 39; S_WB = 47
TWOPASS = False
MAPB = True
EARLY_AREA = [4, 5, 8, 9, 6, 7]
def setup_w(a, s_main, rot=True):
    a(f"s_load_dwordx2 s[{SRD_WD}:{SRD_WD+1}], s[0:1], {KA['wd']}")
    a("v_lshrrev_b32 v10, 4, v0")
    a("v_lshrrev_b32 v11, 3, v0")
    a("v_and_b32 v12, 7, v0")
    a("v_and_b32 v13, 1, v10")
    a("v_lshlrev_b32 v13, 2, v13")
    a("v_xor_b32 v13, v13, v12")
    a("v_lshlrev_b32 v13, 4, v13")
    a("v_mul_u32_u24 v12, 896, v11")
    a(f"v_add_u32 v{V_W0}, v12, v13")
    a(f"v_add_u32 v{V_W1}, {8*896 - 1024}, v{V_W0}")
    a(f"s_lshr_b32 s99, s{s_main}, 3")
    a("s_and_b32 s100, s99, 3")
    a("s_mul_i32 s100, s100, 3")
    a("s_lshr_b32 s99, s99, 2")
    a("s_lshl_b32 s101, s99, 1")
    a("s_add_u32 s100, s100, s101")
    a("s_sub_u32 s101, s100, 14")
    a("s_cmp_ge_u32 s100, 14")
    a("s_cselect_b32 s100, s101, s100")
    if not rot: a("s_mov_b32 s100, 0")
    a(f"s_mov_b32 s{S_R}, s100")
    if MAPB:
        a(f"s_and_b32 s101, s{s_main}, 1")
        a(f"s_mul_i32 s{S_PH}, s101, 14")
    else:
        a(f"s_and_b32 s101, s{s_main}, 4")
        a("s_cmp_eq_u32 s101, 0")
        a(f"s_cselect_b32 s{S_PH}, 8, 0")
    a(f"s_lshl_b32 s101, s4, 4")
    a(f"s_mul_i32 s{S_WB}, s101, 896")
    a("s_lshl_b32 s99, s99, 7")
    a(f"s_add_u32 s{S_WB}, s{S_WB}, s99")
    if TWOPASS:
        a(f"s_add_u32 s{S_WLIM}, s{S_WB}, {28*64*896}")
        a(f"s_mul_i32 s99, s100, {128*896}")
        a(f"s_add_u32 s{S_WCUR}, s{S_WB}, s99")
    else:
        a(f"s_add_u32 s99, s{S_PH}, 14")
        a(f"s_mul_i32 s99, s99, {64*896}")
        a(f"s_add_u32 s{S_WLIM}, s{S_WB}, s99")
        a(f"s_add_u32 s99, s{S_PH}, s100")
        a(f"s_mul_i32 s99, s99, {64*896}")
        a(f"s_add_u32 s{S_WCUR}, s{S_WB}, s99")
    a(f"s_lshl_b32 s{S_L2}, s4, 11")
    a("s_waitcnt lgkmcnt(0)")
    a(f"s_mov_b32 s{SRD_WD+2}, {1792*448*2}")
    a(f"s_mov_b32 s{SRD_WD+3}, 0x20000")

def advance(cur, lim, step, i, base_reg, tmp):
    if TWOPASS:
        if i == 13:
            return [f"s_mul_i32 s{tmp}, s{S_R}, {2*step}", f"s_add_u32 s{cur}, s{base_reg}, s{tmp}", f"s_add_u32 s{cur}, s{cur}, {step}",
                    f"s_add_u32 s{lim}, s{base_reg}, {29*step}"]
        return [f"s_add_u32 s{cur}, s{cur}, {2*step}", f"s_sub_u32 s{tmp}, s{cur}, {28*step}",
                f"s_cmp_ge_u32 s{cur}, s{lim}", f"s_cselect_b32 s{cur}, s{tmp}, s{cur}"]
    if not MAPB:
        if i == 13:
            return [f"s_add_u32 s{tmp}, s{S_PH}, 14", f"s_mul_i32 s{tmp}, s{tmp}, {step}", f"s_add_u32 s{cur}, s{base_reg}, s{tmp}",
                    f"s_add_u32 s{lim}, s{base_reg}, {28*step}"]
        n = 14 if i < 13 else 28
        return [f"s_add_u32 s{cur}, s{cur}, {step}", f"s_sub_u32 s{tmp}, s{cur}, {n*step}",
                f"s_cmp_ge_u32 s{cur}, s{lim}", f"s_cselect_b32 s{cur}, s{tmp}, s{cur}"]
    if i == 13:
        return [f"s_sub_u32 s{tmp}, 28, s{S_PH}", f"s_mul_i32 s{tmp}, s{tmp}, {step}", f"s_add_u32 s{lim}, s{base_reg}, s{tmp}",
                f"s_sub_u32 s{tmp}, 14, s{S_PH}", f"s_add_u32 s{tmp}, s{tmp}, s{S_R}", f"s_mul_i32 s{tmp}, s{tmp}, {step}",
                f"s_add_u32 s{cur}, s{base_reg}, s{tmp}"]
    return [f"s_add_u32 s{cur}, s{cur}, {step}", f"s_sub_u32 s{tmp}, s{cur}, {14*step}",
            f"s_cmp_ge_u32 s{cur}, s{lim}", f"s_cselect_b32 s{cur}, s{tmp}, s{cur}"]

def dma_w_lines(ldsoff, i):
    g0 = [f"s_add_u32 m0, s{S_L2}, {ldsoff}", "s_nop 0",
          f"buffer_load_dwordx4 v{V_W0}, s[{SRD_WD}:{SRD_WD+3}], s{S_WCUR} offen lds"]
    g1 = [f"buffer_load_dwordx4 v{V_W1}, s[{SRD_WD}:{SRD_WD+3}], s{S_WCUR} offen offset:1024 lds"] + advance(S_WCUR, S_WLIM, 64*896, i, S_WB, 99)
    return [g0, g1]

RESIDENT = False
PIPE = False
NHST = 8
def pre_dma(a):
    if RESIDENT: return
    for p in range(6, 10):
        for g in dma_w_lines((p-6)*8192, p):
            for l in g: a(l)

S_HB = 40; S_LINE = 41; S_HCUR = 42; S_HLIM = 43; S_T0 = 44; S_D0 = 45; S_MASK = 46; SRD_F = 48; SRD_H = 16
def setup_g2(a, s_main):
    a(f"s_load_dwordx2 s[100:101], s[0:1], {KA['ws']}")
    a(f"s_and_b32 s99, s{s_main}, 7")
    a("s_lshl_b32 s99, s99, 2")
    a(f"s_lshr_b32 s{S_D0}, s{s_main}, 3")
    a(f"s_and_b32 s{S_T0}, s{S_D0}, 3")
    a(f"s_add_u32 s99, s99, s{S_T0}")
    a(f"s_lshr_b32 s{S_D0}, s{S_D0}, 2")
    a(f"s_mul_i32 s{S_LINE}, s99, 7")
    a(f"s_add_u32 s{S_LINE}, s{S_LINE}, s{S_D0}")
    a(f"s_lshl_b32 s{S_LINE}, s{S_LINE}, 7")
    a(f"s_lshl_b32 s{S_T0}, s99, 6")
    a(f"s_lshl_b32 s{S_D0}, s{S_D0}, 6")
    a("s_lshl_b32 s99, s4, 4")
    a(f"s_add_u32 s{S_HB}, s{S_T0}, s99")
    a(f"s_mul_i32 s{S_HB}, s{S_HB}, 3584")
    if TWOPASS:
        a(f"s_add_u32 s{S_HLIM}, s{S_HB}, 3584")
        a(f"s_lshl_b32 s99, s{S_R}, 8")
        a(f"s_add_u32 s{S_HCUR}, s{S_HB}, s99")
        a(f"s_mov_b32 s{S_MASK}, 0x3fff")
    else:
        a(f"s_add_u32 s99, s{S_PH}, 14")
        a("s_lshl_b32 s99, s99, 7")
        a(f"s_add_u32 s{S_HLIM}, s{S_HB}, s99")
        a(f"s_add_u32 s99, s{S_PH}, s{S_R}")
        a("s_lshl_b32 s99, s99, 7")
        a(f"s_add_u32 s{S_HCUR}, s{S_HB}, s99")
        a(f"s_lshr_b32 s{S_MASK}, s{S_PH}, 1")
        a(f"s_lshl_b32 s{S_MASK}, 0x7f, s{S_MASK}")
    a("v_lshrrev_b32 v10, 4, v0")
    a("v_lshrrev_b32 v11, 3, v0")
    a("v_and_b32 v12, 7, v0")
    a("v_xor_b32 v13, v12, v10")
    a("v_lshlrev_b32 v13, 4, v13")
    a("v_mul_u32_u24 v9, 3584, v11")
    a("v_add_u32 v86, v9, v13")
    a("v_xor_b32 v13, 64, v13")
    a("v_add_u32 v87, v9, v13")
    a(f"v_add_u32 v87, {8*3584 - 1024}, v87")
    a("v_and_b32 v10, 31, v0")
    a("v_lshrrev_b32 v11, 5, v0")
    a("v_lshrrev_b32 v12, 1, v10")
    a("v_and_b32 v12, 7, v12")
    a("s_lshl_b32 s99, s4, 1")
    a("v_add_u32 v11, s99, v11")
    a("v_xor_b32 v12, v12, v11")
    a("v_lshlrev_b32 v12, 4, v12")
    a("v_lshlrev_b32 v10, 7, v10")
    a("v_add_u32 v88, v10, v12")
    a("v_lshrrev_b32 v10, 4, v0")
    a("v_lshrrev_b32 v11, 2, v0")
    a("v_and_b32 v11, 3, v11")
    a("v_and_b32 v12, 3, v0")
    a("v_lshrrev_b32 v13, 1, v10")
    a("v_lshlrev_b32 v13, 3, v13")
    a("v_add_u32 v13, v13, v11")
    a("s_lshl_b32 s99, s4, 4")
    a("v_add_u32 v13, s99, v13")
    a("v_lshlrev_b32 v13, 7, v13")
    a("v_lshrrev_b32 v9, 1, v12")
    a("v_lshlrev_b32 v9, 3, v9")
    a("v_add_u32 v13, v13, v9")
    a("v_and_b32 v9, 1, v10")
    a("v_lshlrev_b32 v9, 1, v9")
    a("v_and_b32 v18, 1, v12")
    a("v_add_u32 v9, v9, v18")
    a("v_lshrrev_b32 v18, 1, v11")
    a("v_lshlrev_b32 v18, 2, v18")
    a("v_xor_b32 v9, v9, v18")
    a("v_lshlrev_b32 v18, 4, v9")
    a("v_add_u32 v89, v13, v18")
    a("v_xor_b32 v18, 64, v18")
    a("v_add_u32 v90, v13, v18")
    a("s_waitcnt lgkmcnt(0)")
    srd_from(a, SRD_F, 100, SZ_F, WS_F)

def h_flag(a, srd_f, tag):
    a("s_cmp_lg_u32 s4, 0")
    a(f"s_cbranch_scc1 {tag}_flagged")
    a("s_cmp_eq_u32 s58, 0")
    a(f"s_cbranch_scc1 {tag}_flagged")
    set_flags(a, srd_f, 57, 37, 14, 128, 10, 11)
    a.label(f"{tag}_flagged")
    dbg_event(a, 3)

def gemm2(a, st, rot=True, NP=16, prio=0, early=True, sst=False, hsc1=True, print_sched=False, diagdelay=0, NREG=16, noat=False, NINIT0=5, outflag='', early_m=2):
    S_W = 4
    SRD_AT = 8; SRD_O = 12; SRD_G = 20
    S_TMP = 24; S_TMP2 = 25
    P0 = 28
    S_L = S_L2; S_AL = 33; S_CNT = 34; S_MK = 35
    a.c("---- GEMM2 role ----")
    if sst: st.n = 1
    else: st.n = 6
    a(f"s_load_dwordx2 s[{P0}:{P0+1}], s[0:1], {KA['ws']}")
    a(f"s_load_dwordx2 s[{P0+2}:{P0+3}], s[0:1], {KA['out']}")
    if prio: a(f"s_setprio {prio}")
    V_H0, V_H1 = 2, 3
    V_B = 5; V_A0 = 6; V_A1 = 7
    a("v_mov_b32 v2, v86"); a("v_mov_b32 v3, v87"); a("v_mov_b32 v5, v88"); a("v_mov_b32 v6, v89"); a("v_mov_b32 v7, v90")
    a(f"v_add_u32 v16, 0x10000, v{V_B}")
    a(f"v_add_u32 v17, 0x10000, v{V_A0}")
    a(f"v_add_u32 v18, 0x10000, v{V_A1}")
    vm = []
    def dma_w(ldsoff, key):
        vm.append(key)
        return dma_w_lines(ldsoff, key[1])
    def dma_h(u, ar):
        g0 = [f"s_add_u32 m0, s{S_L}, {ar*8192}", "s_nop 0",
              f"buffer_load_dwordx4 v{V_H0}, s[{SRD_H}:{SRD_H+3}], s{S_HCUR} offen {'sc1' if hsc1 else ''} lds"]
        g1 = [f"buffer_load_dwordx4 v{V_H1}, s[{SRD_H}:{SRD_H+3}], s{S_HCUR} offen offset:1024 {'sc1' if hsc1 else ''} lds"] + advance(S_HCUR, S_HLIM, 128, u, S_HB, S_TMP2)
        vm.append(("H", u))
        return [g0, g1]
    def emit(groups):
        for g in groups:
            for l in g: a(l)
    def wait_for(needs):
        last = max(vm.index(n) for n in needs)
        a(f"s_waitcnt vmcnt({sum((1 if g[0] == 'S' else 2) for g in vm[last+1:])})")
    NB = 10
    area = EARLY_AREA + [0, 1, 2, 3]
    if not RESIDENT:
        for p in range(6, 10): vm.append(("P", p))
    PRE = 128
    def a_reads(dst, off):
        va0, va1 = V_A0, V_A1
        if off >= 65536: off -= 65536; va0, va1 = 17, 18
        return [f"ds_read_b64_tr_b16 v[{dst}:{dst+1}], v{va0} offset:{off}",
                f"ds_read_b64_tr_b16 v[{dst+2}:{dst+3}], v{va0} offset:{off+512}",
                f"ds_read_b64_tr_b16 v[{dst+4}:{dst+5}], v{va1} offset:{off}",
                f"ds_read_b64_tr_b16 v[{dst+6}:{dst+7}], v{va1} offset:{off+512}"]
    def b_reads(dst, off):
        vb = V_B
        if off >= 65536: off -= 65536; vb = 16
        return [f"ds_read_b128 v[{dst}:{dst+3}], v{vb} offset:{off}",
                f"ds_read_b128 v[{dst+4}:{dst+7}], v{vb} offset:{off+4096}"]
    assert NP in (0, 10, 16) and (NP == 0) == RESIDENT
    R0, R1 = (6, 6 + NREG) if RESIDENT else (0, NP)
    a(f"s_waitcnt vmcnt({NHST + (8 if NP else 0)})")
    if NP:
        for p in range(6):
            for r in a_reads(PRE + 8*p, area[p]*8192): a(r)
        a("s_waitcnt lgkmcnt(0)")
        if NP == 16:
            for p in range(10, 16):
                emit(dma_w(EARLY_AREA[p-10]*8192, ("P", p)))
    a(f"s_waitcnt vmcnt({(8 + (12 if NP == 16 else 0)) if NP else 0})")
    st.stamp()
    a("s_barrier")
    h_flag(a, SRD_F, "g2")
    if NP:
        for p in range(6, NP):
            wait_for([("P", p)])
            for r in a_reads(PRE + 8*p, (area[p] if p < 10 else EARLY_AREA[p-10])*8192): a(r)
    if RESIDENT and NREG:
        for p in range(R0, min(R0 + 4, R1)):
            emit(dma_w(((p - R0) % 4)*8192, ("P", p)))
        for p in range(R0, R1):
            wait_for([("P", p)])
            for r in a_reads(PRE + 8*(p - R0), ((p - R0) % 4)*8192): a(r)
            if p + 4 < R1:
                a("s_waitcnt lgkmcnt(0)")
                emit(dma_w(((p - R0) % 4)*8192, ("P", p + 4)))
    a("s_waitcnt lgkmcnt(0)")
    NINIT = NINIT0
    FLAGST = 8
    MAXLD = 2
    sched = {}
    if RESIDENT:
        NINIT = 4
        where = {("H", u): u for u in range(NINIT)}
        for u in range(6): where[("W", u)] = EARLY_AREA[u]
        free = []
        nh, nw = NINIT, R1
    else:
        where = {("H", u): u for u in range(NINIT)}
        free = list(range(NINIT, 10))
        nh, nw = NINIT, NP
    for u in range(NS):
        free.append(where[("H", u)])
        if not (R0 <= u < R1): free.append(where[("W", u)])
        sched[u] = []
        lim = 3 if u < 3 else MAXLD
        while free and len(sched[u]) < lim:
            canh = nh < NS and (nh < 14 or u >= FLAGST)
            canw = nw < NS
            if not (canh or canw): break
            key = ("H", nh) if (canh and (not canw or nh <= nw)) else ("W", nw)
            cand = sorted(free, key=lambda x: (x >= 8 and key[1] >= 22, free.index(x)))
            ar = cand[0]; free.remove(ar); where[key] = ar
            sched[u].append(key)
            if key[0] == "H": nh += 1
            else: nw += 1
    assert nh == NS and nw == NS
    for u in range(NS):
        for key in sched[u]: assert key[1] - u >= 2, (u, key)
    if print_sched: print(sched)
    last_use = {ar: max(k[1] for k, v in where.items() if v == ar) for ar in (8, 9)}
    AT_AREA = min(last_use, key=last_use.get)
    AT_STAGE = max(last_use[AT_AREA], 23)
    assert AT_STAGE <= 27, (last_use, where)
    ATL = AT_AREA*8192
    OT = 0
    a("v_lshlrev_b32 v11, 4, v0")
    a(f"s_lshl_b32 s{S_TMP}, s{S_W}, 12")
    a(f"v_add_u32 v56, s{S_TMP}, v11")
    a(f"s_lshl_b32 s{S_TMP}, s{S_W}, 14")
    a(f"v_add_u32 v12, s{S_TMP}, v11")
    for k in range(1, 4):
        a(f"s_add_u32 s{S_TMP}, s{S_W}, {k}")
        a(f"s_and_b32 s{S_TMP}, s{S_TMP}, 3")
        a(f"s_lshl_b32 s{S_TMP}, s{S_TMP}, 12")
        a(f"v_add_u32 v{56+k}, s{S_TMP}, v12")
    a("v_lshrrev_b32 v10, 4, v0")
    a("v_lshrrev_b32 v13, 2, v0")
    a("v_and_b32 v13, 3, v13")
    a("v_and_b32 v14, 3, v0")
    a("v_lshrrev_b32 v15, 1, v10")
    a("v_lshlrev_b32 v15, 3, v15")
    a("v_add_u32 v15, v15, v13")
    a("v_lshlrev_b32 v15, 7, v15")
    a("v_and_b32 v9, 1, v10")
    a("v_lshlrev_b32 v9, 5, v9")
    a("v_add_u32 v15, v15, v9")
    a("v_lshlrev_b32 v14, 3, v14")
    a("v_add_u32 v15, v15, v14")
    a(f"s_lshr_b32 s{S_TMP}, s{S_W}, 1")
    a(f"s_lshl_b32 s{S_TMP}, s{S_TMP}, 12")
    a(f"s_and_b32 s{S_TMP2}, s{S_W}, 1")
    a(f"s_lshl_b32 s{S_TMP2}, s{S_TMP2}, 6")
    a(f"s_add_u32 s{S_TMP}, s{S_TMP}, s{S_TMP2}")
    a(f"s_add_u32 s{S_TMP}, s{S_TMP}, {ATL}")
    a(f"v_add_u32 v60, s{S_TMP}, v15")
    a("v_and_b32 v10, 31, v0")
    a("v_lshrrev_b32 v11, 5, v0")
    a(f"s_and_b32 s{S_TMP}, s{S_W}, 1")
    a(f"s_lshl_b32 s{S_TMP}, s{S_TMP}, 5")
    a(f"v_add_u32 v10, s{S_TMP}, v10")
    a(f"s_lshr_b32 s{S_TMP2}, s{S_W}, 1")
    a(f"s_lshl_b32 s{S_TMP2}, s{S_TMP2}, 2")
    a(f"v_add_u32 v11, s{S_TMP2}, v11")
    a("v_and_b32 v12, 7, v10")
    a("v_xor_b32 v11, v11, v12")
    a("v_lshlrev_b32 v10, 7, v10")
    a("v_lshlrev_b32 v12, 4, v11")
    a("v_add_u32 v61, v10, v12")
    a("v_xor_b32 v12, 32, v12")
    a("v_add_u32 v62, v10, v12")
    a("v_lshrrev_b32 v10, 3, v0")
    a("v_and_b32 v11, 7, v0")
    a("v_xor_b32 v11, v11, v10")
    a("v_lshlrev_b32 v11, 4, v11")
    a("v_mul_u32_u24 v10, 896, v10")
    a("v_add_u32 v23, v10, v11")
    a("v_lshlrev_b32 v12, 4, v0")
    a(f"v_add_u32 v63, s{S_L}, v12")
    a(f"s_lshl_b32 s{S_TMP}, s{S_W}, 4")
    a(f"s_add_u32 s{S_TMP}, s{S_TMP}, s{S_T0}")
    a(f"s_mul_i32 s{S_TMP}, s{S_TMP}, 896")
    a(f"s_lshl_b32 s32, s{S_D0}, 1")
    a(f"s_add_u32 s32, s32, s{S_TMP}")
    st.stamp()
    P2MASK = "0x3fff4000" if TWOPASS else "0x7fff"
    S_P2 = 31 if False else 101
    a(f"s_mov_b32 s{S_P2}, {SZ_F}")
    a(f"s_mov_b32 s100, {SZ_F}")
    a(f"s_cmp_lg_u32 s{S_W}, 0")
    a("s_cbranch_scc1 g2_hready")
    wait_flags2(a, "g2_wh", SRD_F, S_LINE, 37, S_MASK, S_TMP, S_CNT, 10, 13, 14) if PIPE else wait_flags(a, "g2_wh", SRD_F, S_LINE, 14, 37, S_TMP, S_CNT, 10, 11, sleep=SLEEP, s_mask=S_MASK)
    a(f"s_and_b32 s{S_TMP}, vcc_lo, {P2MASK}")
    a(f"s_cmp_eq_u32 s{S_TMP}, {P2MASK}")
    a(f"s_cselect_b32 s{S_P2}, s{S_P2}, s{S_LINE}")
    a(f"s_add_u32 s100, s{S_LINE}, {L_A*128}")
    a.label("g2_hready")
    a("s_barrier")
    st.stamp()
    for u in range(NINIT):
        emit(dma_h(u, u))
    FR = [24, 40]
    ACC = 64
    def acc(rb, cb): return ACC + 16*(2*rb + cb)
    def reads(u):
        fb = FR[u % 2]
        R = b_reads(fb+8, where[("H", u)]*8192)
        if not (R0 <= u < R1):
            Ar = a_reads(fb, where[("W", u)]*8192)
            R = [R[0]] + Ar[:2] + [R[1]] + Ar[2:]
        return R
    def needs(u):
        return [("H", u)] + ([("W", u)] if ("W", u) in vm else [])
    V_FL = 21
    last_flag = [None]
    def flag_load(s_off):
        a(f"buffer_load_dword v{V_FL}, v22, s[{SRD_F}:{SRD_F+3}], s{s_off} offen sc1")
        vm.append(("S", 100 + len(vm)))
        last_flag[0] = vm[-1]
    def flag_check(name, s_off, nwords, mask=None, s_async=None):
        mask = mask or hex((1 << nwords) - 1)
        a(f"s_mov_b32 s{S_MK}, {mask}")
        a(f"s_cmp_eq_u32 s{s_async}, {SZ_F}")
        a(f"s_cbranch_scc1 {name}_done")
        wait_for([last_flag[0]])
        a(f"v_cmp_eq_u32 vcc, s37, v{V_FL}")
        a("s_nop 2")
        a(f"s_and_b32 s{S_TMP}, vcc_lo, {mask}")
        a(f"s_cmp_eq_u32 s{S_TMP}, {mask}")
        a(f"s_cbranch_scc1 {name}_done")
        wait_flags(a, name, SRD_F, s_off, nwords, 37, S_TMP, S_CNT, 10, 11, sleep=SLEEP, s_mask=S_MK)
        a.label(name + "_done")
    a("v_and_b32 v22, 31, v0")
    a("v_lshlrev_b32 v22, 2, v22")
    a(f"s_add_u32 s{S_AL}, s{S_LINE}, {L_A*128}")
    V_G = 8
    def at_loads():
        a("v_and_b32 v9, 31, v0")
        a(f"s_and_b32 s{S_TMP}, s{S_W}, 1")
        a(f"s_lshl_b32 s{S_TMP}, s{S_TMP}, 5")
        a(f"s_add_u32 s{S_TMP}, s{S_TMP}, s{S_T0}")
        a(f"v_add_u32 v9, s{S_TMP}, v9")
        a("v_lshlrev_b32 v9, 2, v9")
        a(f"buffer_load_dword v{V_G}, v9, s[{SRD_G}:{SRD_G+3}], 0 offen sc1")
        a("v_lshrrev_b32 v9, 3, v0")
        a("v_lshlrev_b32 v9, 12, v9")
        a("v_and_b32 v12, 7, v0")
        a("v_lshlrev_b32 v12, 4, v12")
        a("v_add_u32 v9, v9, v12")
        a(f"s_lshl_b32 s{S_TMP}, s{S_W}, 4")
        a(f"s_add_u32 s{S_TMP}, s{S_TMP}, s{S_D0}")
        a(f"s_lshl_b32 s{S_TMP}, s{S_TMP}, 12")
        a(f"s_lshl_b32 s{S_TMP2}, s{S_T0}, 1")
        a(f"s_add_u32 s{S_TMP2}, s{S_TMP2}, s{S_TMP}")
        for i in range(2):
            a(f"s_add_u32 m0, s{S_L}, {ATL + i*1024}")
            a(f"s_add_u32 s{S_TMP}, s{S_TMP2}, {8*i*4096}")
            a(f"buffer_load_dwordx4 v9, s[{SRD_AT}:{SRD_AT+3}], s{S_TMP} offen sc1 lds")
        for i in range(3): vm.append(("S", i))
    GA_STAGE = min(AT_STAGE + 2, NS - 1)
    assert GA_STAGE > AT_STAGE
    GA = 128
    def ga_prepare():
        for Q in range(2):
            for h2 in range(2):
                a(f"ds_read_b64_tr_b16 v[{144+4*Q+2*h2}:{144+4*Q+2*h2+1}], v60 offset:{(16*Q+4*h2)*128}")
    wait_for(needs(0))
    a("s_barrier")
    st.stamp()
    dbg_event(a, 4)
    for r in reads(0): a(r)
    for u in range(NS):
        fb = FR[u % 2]
        if sst == 2 and u in (6, 20): st.stamp()
        a("s_waitcnt lgkmcnt(0)")
        M = []
        for (rb, cb) in ((0,0),(0,1),(1,0),(1,1)):
            c = "0" if u == 0 else f"v[{acc(rb,cb)}:{acc(rb,cb)+15}]"
            A = (PRE + 8*(u - R0) + 4*rb) if R0 <= u < R1 else (fb + 4*rb)
            M.append(f"v_mfma_f32_32x32x16_bf16 v[{acc(rb,cb)}:{acc(rb,cb)+15}], v[{A}:{A+3}], v[{fb+8+4*cb}:{fb+8+4*cb+3}], {c}")
        for m in M[:early_m]: a(m)
        if sst == 2 and u in (6, 20): st.stamp()
        if u + 1 < NS: wait_for(needs(u+1))
        if sst == 2 and u in (6, 20): st.stamp()
        if u == FLAGST: flag_check("g2_wh2", S_LINE, 32, P2MASK, S_P2)
        if u == AT_STAGE and not noat: flag_check("g2_wa", S_AL, 32, None, 100)
        if u == GA_STAGE: wait_for([("S", 2)])
        a("s_barrier")
        if u == 12:
            srd_from(a, SRD_AT, P0, SZ_AT, WS_AT)
            srd_from(a, SRD_O, P0+2, 2048*448*2)
            srd_from(a, SRD_G, P0, SZ_G, WS_G)
        if u == FLAGST - 4: flag_load(S_P2)
        if u == AT_STAGE - 5: flag_load(100)
        if sst == 1 and u in (2, 5, 8, 11, 14, 17, 20, 23): st.stamp()
        if sst == 2 and u in (6, 7, 20, 21): st.stamp()
        if u == AT_STAGE:
            at_loads()
        if u == GA_STAGE:
            ga_prepare()
        D = []
        for key in sched.get(u, []):
            D += dma_h(key[1], where[key]) if key[0] == "H" else dma_w(where[key]*8192, key)
        R = reads(u + 1) if u + 1 < NS else []
        seq = []
        nD = len(D); per = [D[0:2], D[2:4], D[4:5], D[5:6]] if nD > 4 else [D[0:1], D[1:2], D[2:3], D[3:4]]
        for g in per[0]: seq += g
        seq += R[:2]
        if early_m < 1: seq.append(M[0])
        for g in per[1]: seq += g
        seq += R[2:4]
        if early_m < 2: seq.append(M[1])
        for g in per[2]: seq += g
        seq += R[4:]
        if early_m < 3: seq.append(M[2])
        for g in per[3]: seq += g
        seq.append(M[3])
        for l in seq: a(l)
    st.stamp()
    if sst:
        st.flush(S_W); a("s_endpgm"); return
    a("s_mov_b32 s39, 0xffff0000")
    a("s_waitcnt lgkmcnt(0)")
    a(f"v_sub_f32 v152, 1.0, v{V_G}")
    for p in range(8):
        a(f"v_lshlrev_b32 v{GA+2*p}, 16, v{144+p}")
        a(f"v_and_b32 v{GA+2*p+1}, s39, v{144+p}")
    for r in range(16):
        a(f"v_mul_f32 v{GA+r}, v{V_G}, v{GA+r}")
    for beta in range(4):
        rb, cb = beta >> 1, beta & 1
        a(f"s_cmp_eq_u32 s{S_W}, {beta}")
        a(f"s_cbranch_scc1 g2_skipw{beta}")
        for q in range(4):
            a(f"ds_write_b128 v56, v[{acc(rb,cb)+4*q}:{acc(rb,cb)+4*q+3}] offset:{beta*16384 + q*1024}")
        a.label(f"g2_skipw{beta}")
    for beta in range(4):
        rb, cb = beta >> 1, beta & 1
        a(f"s_cmp_lg_u32 s{S_W}, {beta}")
        a(f"s_cbranch_scc1 g2_skipm{beta}")
        for r in range(16):
            a(f"v_fma_f32 v{GA+r}, v152, v{acc(rb,cb)+r}, v{GA+r}")
        a.label(f"g2_skipm{beta}")
    a("s_waitcnt lgkmcnt(0)")
    a("s_barrier")
    st.stamp()
    for k in range(1, 4):
        for q in range(4):
            a(f"ds_read_b128 v[{160+16*(k-1)+4*q}:{160+16*(k-1)+4*q+3}], v{56+k} offset:{q*1024}")
    for k in range(1, 4):
        a(f"s_waitcnt lgkmcnt({4*(3-k)})")
        for r in range(16):
            a(f"v_fmac_f32 v{GA+r}, v152, v{160+16*(k-1)+r}")
    for p in range(8):
        a(f"v_cvt_pk_bf16_f32 v{24+p}, v{GA+2*p}, v{GA+2*p+1}")
    a("s_barrier")
    for Q in range(2):
        a(f"ds_write_b128 v{61+Q}, v[{24+4*Q}:{27+4*Q}] offset:{OT}")
    a("s_waitcnt lgkmcnt(0)")
    a("s_barrier")
    a(f"ds_read_b128 v[32:35], v63 offset:{OT}")
    a(f"ds_read_b128 v[36:39], v63 offset:{OT+1024}")
    for i in range(2):
        a(f"s_waitcnt lgkmcnt({1-i})")
        a(f"s_add_u32 s{S_TMP}, s32, {8*i*896}")
        a(f"buffer_store_dwordx4 v[{32+4*i}:{35+4*i}], v23, s[{SRD_O}:{SRD_O+3}], s{S_TMP} offen {outflag}")
    st.stamp()
    for _ in range(diagdelay): a("s_sleep 32")
    dbg_event(a, 5)
    if st.on: a("s_waitcnt vmcnt(0)")
    st.stamp(real=True)
    st.flush(S_W)
```
